```python
import torch

def _softmax(x, axis=-1):
    return torch.softmax(x, dim=axis)

def _gelu(x):
    return torch.nn.functional.gelu(x, approximate='tanh')

def _silu(x):
    return torch.nn.functional.silu(x)

def _sigmoid(x):
    return torch.sigmoid(x)

def _layernorm(x, axis=-1, eps=1e-05):
    m = x.mean(dim=axis, keepdim=True)
    v = x.var(dim=axis, keepdim=True, unbiased=False)
    return (x - m) / torch.sqrt(v + eps)

def _scatter_add(tgt, idx, src, axis=0):
    return tgt.clone().index_add_(axis, idx, src)

def _segment_sum(src, seg, n):
    out = torch.zeros((n,) + src.shape[1:], dtype=src.dtype)
    return out.index_add_(0, seg, src)

def _pad(x, pw):
    flat = tuple((v for pair in reversed(pw) for v in pair))
    return torch.nn.functional.pad(x, flat)
kernel_name = 'gather_scatter__tensor_product_equiv_equiformer__graph'

def setup_inputs():

    _w = lambda a: (lambda t: t.to(torch.bfloat16) if t.is_floating_point() else t)(torch.as_tensor(a))
    N, deg, C, De = (10000, 64, 64, max(0, 1))
    E = N * deg
    src = (lambda lo, hi, *s: torch.randint(lo, hi, s))(0, N, E).to(torch.int64)
    dst = (lambda lo, hi, *s: torch.randint(lo, hi, s))(0, N, E).to(torch.int64)
    rvec = (lambda *s: torch.randn(*s, dtype=torch.bfloat16) * 0.05)(E, 3).to(float)
    rn = (torch.linalg.norm(rvec, dim=-1, keepdim=True) + 1e-06).to(float)
    rhat = (rvec / rn).to(float)
    eps = torch.zeros((3, 3, 3), dtype=float)
    eps[0, 1, 2] = eps[1, 2, 0] = eps[2, 0, 1] = 1.0
    eps[0, 2, 1] = eps[2, 1, 0] = eps[1, 0, 2] = -1.0
    return {'x': _w((lambda *s: torch.randn(*s, dtype=torch.bfloat16) * 0.4)(N, 4 * C).to(float)), 'rhat': _w(rhat), 'e_attr': _w((lambda *s: torch.randn(*s, dtype=torch.bfloat16) * 0.4)(E, De).to(float)), 'src': _w(src), 'dst': _w(dst), 'w_rad': _w((lambda *s: torch.randn(*s, dtype=torch.bfloat16) * 0.4)(De, 5 * C).to(float)), 'w_si0': _w((lambda *s: torch.randn(*s, dtype=torch.bfloat16) * 0.4)(2 * C, C).to(float)), 'w_si1': _w((lambda *s: torch.randn(*s, dtype=torch.bfloat16) * 0.05)(3 * C, C).to(float)), 'cg_eps': _w(eps)}

def reference(x, rhat, e_attr, src, dst, w_rad, w_si0, w_si1, cg_eps):
    N = x.shape[0]
    C = w_si0.shape[1]
    E = rhat.shape[0]
    x0 = x[:, :C].clone()
    x1 = x[:, C:].reshape(N, 3, C)
    R = (e_attr @ w_rad).reshape(E, 5, C)
    f0 = x0[src]
    f1 = x1[src]
    Y1 = rhat
    p00_0 = f0 * R[:, 0, :]
    p11_0 = torch.einsum('ejc,ej->ec', f1, Y1) * R[:, 1, :]
    p01_1 = torch.einsum('ec,ej->ejc', f0, Y1) * R[:, 2, :][:, None, :]
    p10_1 = f1 * R[:, 3, :][:, None, :]
    p11_1 = torch.einsum('ijk,ekc,ej->eic', cg_eps, f1, Y1) * R[:, 4, :][:, None, :]
    m0 = torch.concatenate([p00_0, p11_0], axis=-1) @ w_si0
    m1 = torch.einsum('ejp,pc->ejc', torch.concatenate([p01_1, p10_1, p11_1], axis=-1), w_si1)
    agg0 = _segment_sum(m0, dst, N)
    agg1 = _segment_sum(m1.reshape(E, 3 * C), dst, N).reshape(N, 3, C)
    gate = _sigmoid(agg0)
    out1 = agg1 * gate[:, None, :]
    return torch.concatenate([agg0, out1.reshape(N, 3 * C)], axis=-1)
```

```python
import sys
sys.path.insert(0, "bench")
from common import *
HEAD = '.amdgcn_target "amdgcn-amd-amdhsa--gfx950"\n.text\n'
body = """
.globl t0
.p2align 8
.type t0,@function
t0:
  s_load_dwordx2 s[4:5], s[0:1], 0
  s_waitcnt lgkmcnt(0)
  s_mov_b32 s8, s4
  s_mov_b32 s9, s5
  s_mov_b32 s10, 0x100000
  s_mov_b32 s11, 0x00020000
  v_lshlrev_b32 v1, 2, v0
  s_mov_b32 s12, 0
L0:
  v_add_u32 v2, s12, v1
  v_lshrrev_b32 v3, 1, v2
  v_add_u32 v4, 1, v3
  v_lshl_or_b32 v3, v4, 16, v3
  ds_write_b32 v2, v3
  s_add_u32 s12, s12, 256
  s_cmp_lt_u32 s12, 4096
  s_cbranch_scc1 L0
  s_waitcnt lgkmcnt(0)
  v_lshlrev_b32 v5, 5, v0
  ds_read_b64_tr_b16 v[6:7], v5
  s_waitcnt lgkmcnt(0)
  v_lshlrev_b32 v1, 2, v0
  buffer_store_dword v6, v1, s[8:11], 0 offen
  buffer_store_dword v7, v1, s[8:11], 0 offen offset:256
  v_add_u32 v8, 1, v0
  s_nop 1
  v_add_u32_dpp v8, v8, v8 row_shr:1 row_mask:0xf bank_mask:0xf bound_ctrl:0
  s_nop 1
  v_add_u32_dpp v8, v8, v8 row_shr:2 row_mask:0xf bank_mask:0xf bound_ctrl:0
  s_nop 1
  v_add_u32_dpp v8, v8, v8 row_shr:4 row_mask:0xf bank_mask:0xf bound_ctrl:0
  s_nop 1
  v_add_u32_dpp v8, v8, v8 row_shr:8 row_mask:0xf bank_mask:0xf bound_ctrl:0
  s_nop 1
  v_add_u32_dpp v8, v8, v8 row_bcast:15 row_mask:0xa bank_mask:0xf
  s_nop 1
  v_add_u32_dpp v8, v8, v8 row_bcast:31 row_mask:0xc bank_mask:0xf
  buffer_store_dword v8, v1, s[8:11], 0 offen offset:512
  ; row_ror:8
  v_mov_b32 v9, 0
  s_nop 1
  v_mov_b32_dpp v9, v0 row_ror:8 row_mask:0xf bank_mask:0xf
  buffer_store_dword v9, v1, s[8:11], 0 offen offset:768
  v_mov_b32_dpp v10, v0 quad_perm:[0,0,0,0] row_mask:0xf bank_mask:0xf
  buffer_store_dword v10, v1, s[8:11], 0 offen offset:1024
  ; cvt_pk
  v_mov_b32 v11, 1.0
  v_mov_b32 v12, 2.0
  v_cvt_pk_bf16_f32 v13, v11, v12
  buffer_store_dword v13, v1, s[8:11], 0 offen offset:1280
  v_mov_b32 v14, 0x40000
  v_add_u32 v14, v14, v5
  v_mov_b32 v16, -1
  v_mov_b32 v17, -1
  ds_read_b64_tr_b16 v[16:17], v14
  s_waitcnt lgkmcnt(0)
  buffer_store_dword v16, v1, s[8:11], 0 offen offset:1536
  v_add_u32 v18, 1, v0
  s_nop 1
  v_mov_b32 v19, 0
  s_nop 1
  v_mov_b32_dpp v19, v18 quad_perm:[0,0,1,2] row_mask:0xf bank_mask:0xf
  buffer_store_dword v19, v1, s[8:11], 0 offen offset:1792
  ; wave_shr
  v_mov_b32 v20, 0
  s_nop 1
  v_mov_b32_dpp v20, v18 wave_shr:1 row_mask:0xf bank_mask:0xf
  buffer_store_dword v20, v1, s[8:11], 0 offen offset:2048
  v_mov_b32 v21, v0
  v_add_u32 v22, 100, v0
  s_nop 1
  v_permlane32_swap_b32 v21, v22
  buffer_store_dword v21, v1, s[8:11], 0 offen offset:2304
  buffer_store_dword v22, v1, s[8:11], 0 offen offset:2560
  v_mov_b32 v21, v0
  v_add_u32 v22, 100, v0
  s_nop 1
  v_permlane16_swap_b32 v21, v22
  s_nop 1
  buffer_store_dword v21, v1, s[8:11], 0 offen offset:2816
  buffer_store_dword v22, v1, s[8:11], 0 offen offset:3072
  s_getreg_b32 s20, hwreg(HW_REG_XCC_ID)
  v_mov_b32 v23, s20
  buffer_store_dword v23, v1, s[8:11], 0 offen offset:3328
  s_waitcnt vmcnt(0)
  s_endpgm
.section .rodata,"a"
.p2align 6
.amdhsa_kernel t0
  .amdhsa_next_free_vgpr 32
  .amdhsa_next_free_sgpr 64
  .amdhsa_accum_offset 32
  .amdhsa_group_segment_fixed_size 0
  .amdhsa_kernarg_size 96
  .amdhsa_user_sgpr_count 2
  .amdhsa_user_sgpr_kernarg_segment_ptr 1
  .amdhsa_system_sgpr_workgroup_id_x 1
.end_amdhsa_kernel
.text
"""
co = assemble(HEAD + body, [("t0", 32)], "sem")
if not os.path.exists("/dev/kfd"): raise SystemExit(0)
mod = Module(co)
o = DeviceBuffer.from_numpy(np.zeros(1 << 18, dtype=np.uint32))
mod.launch("t0", 1, 64, [o.ptr] + [0]*11, lds=4096); sync()
r = o.to_numpy(np.uint32, (16, 64))
print("tr lo/hi halfwords per lane (src lane*16+elem):")
for l in range(64):
    h = [r[0,l] & 0xffff, r[0,l] >> 16, r[1,l] & 0xffff, r[1,l] >> 16]
    print(l, [(int(x)//16, int(x)%16) for x in h])
names = ["scan","ror8","quadb","cvt","oor_tr","quad001 2","wave_shr","pl32 a","pl32 b","pl16 a","pl16 b","xcc"]
for i, n in enumerate(names): print(n, [hex(int(v)) if n in ("cvt","oor_tr","xcc") else int(v) for v in r[2+i]])
```

```python
import re

TRANS = ("v_exp_f32", "v_log_f32", "v_rcp_f32", "v_rsq_f32", "v_sqrt_f32", "v_sin_f32", "v_cos_f32", "v_rcp_iflag_f32")

def regs_of(tok):
    tok = tok.strip()
    tok = tok.lstrip("-")
    m = re.fullmatch(r"abs\((.*)\)", tok)
    if m: tok = m.group(1)
    m = re.fullmatch(r"\|(.*)\|", tok)
    if m: tok = m.group(1)
    m = re.fullmatch(r"([vsa])\[(\d+):(\d+)\]", tok)
    if m: return {(m.group(1), i) for i in range(int(m.group(2)), int(m.group(3)) + 1)}
    m = re.fullmatch(r"([vsa])(\d+)", tok)
    if m: return {(m.group(1), int(m.group(2)))}
    if tok in ("vcc", "vcc_lo", "vcc_hi"): return {("vcc", 0)}
    if tok in ("exec", "exec_lo", "exec_hi"): return {("exec", 0)}
    if tok == "m0": return {("m0", 0)}
    return set()

class Ins:
    def __init__(self, text):
        self.text = text
        t = text.split(";")[0].strip()
        self.label = None
        self.op = None
        if t.endswith(":"):
            self.label = t[:-1]; return
        if not t or t.startswith("."):
            return
        parts = t.split(None, 1)
        self.op = op = parts[0]
        rest = parts[1] if len(parts) > 1 else ""
        ops, depth, cur = [], 0, ""
        for ch in rest:
            if ch in "[(": depth += 1
            if ch in "])": depth -= 1
            if ch == "," and depth == 0:
                ops.append(cur.strip()); cur = ""
            else: cur += ch
        if cur.strip(): ops.append(cur.strip())
        mods = ""
        if ops:
            sp = ops[-1].split(None, 1)
            ops[-1] = sp[0]
            if len(sp) > 1: mods = sp[1]
        self.ops, self.mods = ops, mods
        R = [regs_of(o) for o in ops]
        self.dst, self.src = set(), set()
        self.is_valu = op.startswith("v_") and not op.startswith("v_mfma")
        self.is_mfma = op.startswith("v_mfma")
        self.is_vmem = op.startswith(("buffer_", "global_", "flat_"))
        self.is_ds = op.startswith("ds_")
        self.is_salu = op.startswith("s_")
        self.is_dpp = "_dpp" in op or any(k in mods for k in ("row_shr", "row_shl", "row_ror", "quad_perm", "row_bcast", "wave_shr", "row_mirror", "row_half_mirror"))
        self.is_trans = op.replace("_e32", "").replace("_e64", "") in TRANS
        self.branch = None
        self.uncond = False
        if op.startswith("s_cbranch") or op == "s_branch":
            self.branch = ops[0]; self.uncond = op == "s_branch"
        if op == "s_endpgm": self.uncond = True
        self.store_data = set()
        if self.is_mfma:
            self.dst = R[0]; self.A, self.B, self.C = R[1], R[2], R[3]; self.src = R[1] | R[2] | R[3]
        elif self.is_valu:
            self.dst = set(R[0]); srcs = R[1:]
            if op.startswith(("v_add_co", "v_sub_co", "v_addc_co", "v_subb_co", "v_subrev_co")):
                self.dst |= R[1]; srcs = R[2:]
            if op.startswith(("v_fmac", "v_mac", "v_pk_fmac", "v_dot2c")) or self.is_dpp:
                srcs = srcs + [R[0]]
            if op.startswith(("v_permlane32_swap", "v_permlane16_swap", "v_swap")):
                self.dst |= R[1]; srcs = R
            if op.startswith("v_writelane"): srcs = srcs + [R[0]]
            for s in srcs: self.src |= s
        elif self.is_ds:
            if op.startswith(("ds_read", "ds_bpermute", "ds_permute", "ds_swizzle")) or "_rtn" in op:
                self.dst = R[0]
                for s in R[1:]: self.src |= s
            else:
                for s in R: self.src |= s
        elif self.is_vmem:
            if "load" in op and " lds" not in (" " + mods) :
                self.dst = R[0]
                for s in R[1:]: self.src |= s
            elif "atomic" in op and "sc0" in mods:
                self.dst = R[0]
                for s in R: self.src |= s
            else:
                for s in R: self.src |= s
                if "store" in op and ("x3" in op or "x4" in op):
                    self.store_data = R[0] if op.startswith("buffer") else R[1]
        elif self.is_salu:
            if op.startswith(("s_cmp", "s_cbranch", "s_branch", "s_waitcnt", "s_barrier", "s_nop", "s_setprio", "s_sleep", "s_endpgm", "s_bitcmp")):
                for s in R: self.src |= s
            else:
                self.dst = set(R[0])
                for s in R[1:]: self.src |= s
                if "saveexec" in op: self.dst |= {("exec", 0)}; self.src |= {("exec", 0)}
    def states(self):
        if self.op is None: return 0
        if self.op == "s_nop": return int(self.ops[0], 0) + 1
        return 1

def need(p, c):
    n = 0
    pv = {r for r in p.dst if r[0] in "va"} if p.op else set()
    ps = {r for r in p.dst if r[0] in ("s", "vcc")} if p.op else set()
    if p.is_valu:
        if c.is_mfma and pv & c.src: n = max(n, 2)
        if c.is_valu and c.is_dpp and pv & c.src: n = max(n, 2)
        if c.is_valu and c.op.startswith(("v_readlane", "v_readfirstlane")) and pv & c.src: n = max(n, 1)
        if c.is_valu and c.op.startswith("v_permlane") and pv & c.src: n = max(n, 2)
        if ps:
            if c.is_valu and ps & c.src:
                n = max(n, 4 if c.op.startswith(("v_readlane", "v_writelane")) else 2)
            if c.is_vmem and ps & c.src: n = max(n, 5)
            if c.is_salu and ps & c.src: n = max(n, 1)
        if p.is_trans and (c.is_valu or c.is_mfma) and pv & c.src: n = max(n, 1)
        if ("op_sel" in p.mods or "sdwa" in p.op or "dst_sel" in p.mods) and c.is_valu and pv & (c.src | c.dst): n = max(n, 1)
        if ("exec", 0) in p.dst: n = max(n, 5)
    if p.is_mfma:
        passes = 8 if "32x32" in p.op else 4
        big = {4: 8, 8: 12}[passes]; ovl = {4: 6, 8: 10}[passes]; war = {4: 3, 8: 7}[passes]
        if c.is_mfma:
            if p.dst & (c.A | c.B): n = max(n, big)
            if p.dst & c.C and not (p.dst == c.C and p.op == c.op): n = max(n, ovl)
            if p.dst & c.dst and not (p.dst == c.C): n = max(n, ovl)
        elif c.is_valu or c.is_vmem or c.is_ds:
            if p.dst & (c.src | c.dst): n = max(n, big)
            if c.is_valu and p.C & c.dst: n = max(n, war)
    if p.store_data:
        if c.is_valu and p.store_data & c.dst: n = max(n, 2)
        elif c.op and p.store_data & c.dst and not c.is_salu: n = max(n, 1)
    if p.is_salu and ("m0", 0) in p.dst:
        if (c.is_vmem and "lds" in c.mods) or (c.is_ds and "addtid" in c.op) or c.op.startswith("global_load_lds"): n = max(n, 1)
    return n

def fix_hazards(lines, verbose=False):
    inserted = 0
    while True:
        ins = [Ins(l) for l in lines]
        lab = {i.label: k for k, i in enumerate(ins) if i.label}
        preds = [[] for _ in ins]
        for k, i in enumerate(ins):
            if i.op and i.branch in lab: preds[lab[i.branch]].append(k)
            if k + 1 < len(ins) and not (i.op and i.uncond): preds[k + 1].append(k)
        worst = None
        for k, c in enumerate(ins):
            if c.op is None or c.op in ("s_nop",): continue
            short = 0
            stack = [(p, 0) for p in preds[k]]
            seen = {}
            while stack:
                p, d = stack.pop()
                if d >= 12 or seen.get(p, 99) <= d: continue
                seen[p] = d
                pi = ins[p]
                if pi.op:
                    n = need(pi, c)
                    if n > d: short = max(short, n - d)
                nd = d + pi.states()
                for q in preds[p]: stack.append((q, nd))
            if short:
                worst = (k, short); break
        if not worst: return lines, inserted
        k, short = worst
        if verbose: print(f"  hazard: +{short} before: {lines[k].strip()}")
        lines = lines[:k] + [f"    s_nop {short-1}"] + lines[k:]
        inserted += 1

class Asm:
    def __init__(self):
        self.L = []
    def __call__(self, s):
        for l in s.split("\n"):
            l = l.strip()
            if not l: continue
            if l.endswith(":") or l.startswith("."): self.L.append(l)
            else: self.L.append("    " + l)
    def c(self, s): self.L.append("    ; " + s)
    def finish(self, verbose=False):
        L, n = fix_hazards(self.L, verbose)
        return "\n".join(L) + "\n"

def kd(name, vgpr, sgpr):
    acc = (vgpr + 3) // 4 * 4
    return f""".p2align 6
.amdhsa_kernel {name}
  .amdhsa_next_free_vgpr {vgpr}
  .amdhsa_next_free_sgpr {sgpr}
  .amdhsa_accum_offset {acc}
  .amdhsa_group_segment_fixed_size 0
  .amdhsa_kernarg_size 96
  .amdhsa_user_sgpr_count 2
  .amdhsa_user_sgpr_kernarg_segment_ptr 1
  .amdhsa_system_sgpr_workgroup_id_x 1
  .amdhsa_float_denorm_mode_32 3
.end_amdhsa_kernel
"""
```

```python
import sys
from asmlib import Asm, kd

N, E = 10000, 640000
NWG = 256
CH = E // NWG
RSTR = 30080
WS_OFF = 0
WS_REC = 262144
WS_USED = WS_REC + NWG * RSTR
WS_STAMP = 16 << 20
PADKEY = 0x0FFFFFFF

def srd(A, s, lo, hi, size):
    A(f"s_mov_b32 s{s}, s{lo}\ns_mov_b32 s{s+1}, s{hi}")
    A(f"s_mov_b32 s{s+2}, {size}\ns_mov_b32 s{s+3}, 0x00020000")

def scan_steps(op, v, upto=64, first=1):
    out = []
    for sh in (1, 2, 4, 8):
        if sh >= first:
            out.append(f"{op}_dpp v{v}, v{v}, v{v} row_shr:{sh} row_mask:0xf bank_mask:0xf bound_ctrl:0")
    if upto >= 32: out.append(f"{op}_dpp v{v}, v{v}, v{v} row_bcast:15 row_mask:0xa bank_mask:0xf")
    if upto >= 64: out.append(f"{op}_dpp v{v}, v{v}, v{v} row_bcast:31 row_mask:0xc bank_mask:0xf")
    return out

class Stamps:
    def __init__(self, A, on, base, kid):
        self.A, self.on, self.base, self.n, self.kid = A, on, base, 0, kid
        self.names = []
    def mark(self, name):
        if self.on:
            r = self.base + 2 * self.n
            self.A(f"s_memrealtime s[{r}:{r+1}]"); self.n += 1; self.names.append(name)
    def flush(self, ws_lo, wave_s, v0, tmp_s):
        if not self.on: return
        A = self.A
        self.mark("end")
        A("s_waitcnt lgkmcnt(0)")
        A("s_mov_b64 exec, 1")
        srd(A, tmp_s, ws_lo, ws_lo + 1, 0x10000000)
        A(f"s_lshl_b32 s{tmp_s+4}, s2, 4\ns_add_u32 s{tmp_s+4}, s{tmp_s+4}, s{wave_s}\ns_lshl_b32 s{tmp_s+4}, s{tmp_s+4}, 6")
        A(f"s_add_u32 s{tmp_s+4}, s{tmp_s+4}, {WS_STAMP + self.kid * (1 << 20)}")
        A(f"v_mov_b32 v{v0}, 0")
        for i in range(self.n):
            A(f"v_mov_b32 v{v0+1}, s{self.base + 2*i}")
            A(f"buffer_store_dword v{v0+1}, v{v0}, s[{tmp_s}:{tmp_s+3}], s{tmp_s+4} offen offset:{4*i}")

def touch_x(A, spec, s_rank, s_tmp, v_addr, v_dst, srd_x):
    kind, lanes_list = spec[0], spec[1:]
    pos = 0
    for n, lanes in enumerate(lanes_list):
        A(f"s_mul_i32 s{s_tmp}, s{s_rank}, {lanes*128}")
        if pos: A(f"s_add_u32 s{s_tmp}, s{s_tmp}, {pos}")
        m = (1 << lanes) - 1
        if lanes < 64: A(f"s_mov_b32 exec_lo, {m & 0xffffffff}\ns_mov_b32 exec_hi, {m >> 32}")
        A(f"buffer_load_dword v{v_dst+n}, v{v_addr}, s[{srd_x}:{srd_x+3}], s{s_tmp} offen")
        if lanes < 64: A("s_mov_b64 exec, -1")
        pos += lanes * 128 * 10 * (256 if kind == "mall" else 32)
    return len(lanes_list)

def gen_k1(name, o):
    A = Asm()
    CNT, PFX, STG = 0, 1024, 2048
    lds = STG + 30720
    st = Stamps(A, o.get("stamps"), 64, 0)
    A(f".globl {name}\n.p2align 8\n.type {name},@function\n{name}:")
    A(f"s_cmp_ge_u32 s2, {NWG}\ns_cbranch_scc1 L_k1_end")
    st.mark("start")
    A("s_load_dwordx4 s[4:7], s[0:1], 0")
    A("s_load_dwordx4 s[8:11], s[0:1], 16")
    A("s_load_dwordx2 s[12:13], s[0:1], 32")
    A("s_load_dwordx2 s[14:15], s[0:1], 88")
    A.c("chunk id: workgroups that share an XCD under round-robin dispatch get neighbouring chunks")
    A("s_and_b32 s16, s2, 7\ns_lshl_b32 s16, s16, 5\ns_lshr_b32 s17, s2, 3\ns_add_u32 s16, s16, s17")
    A("v_lshrrev_b32 v1, 6, v0")
    A("v_lshlrev_b32 v2, 2, v0")
    A("v_readfirstlane_b32 s3, v1")
    A("v_mov_b32 v3, 0")
    A(f"ds_write_b32 v2, v3 offset:{CNT}")
    A("v_lshlrev_b32 v4, 4, v0")
    A("v_lshlrev_b32 v5, 3, v0")
    A("v_mul_u32_u24 v6, 24, v0")
    A("v_and_b32 v7, 63, v0")
    A(f"s_movk_i32 s17, {CH//4}\nv_cmp_gt_u32 s[18:19], s17, v0")
    A(f"s_mul_i32 s40, s16, {CH*4}\ns_mul_i32 s41, s16, {CH*2}\ns_mul_i32 s42, s16, {CH*6}")
    A("s_waitcnt lgkmcnt(0)")
    srd(A, 20, 12, 13, E*4)
    srd(A, 24, 10, 11, E*4)
    srd(A, 28, 8, 9, E*2)
    srd(A, 32, 6, 7, E*6)
    A("s_mov_b64 exec, s[18:19]")
    lf = o.get("k1_load_flags", "")
    A(f"buffer_load_dwordx4 v[8:11], v4, s[20:23], s40 offen {lf}")
    A(f"buffer_load_dwordx4 v[12:15], v4, s[24:27], s40 offen {lf}")
    A(f"buffer_load_dwordx2 v[16:17], v5, s[28:31], s41 offen {lf}")
    A(f"buffer_load_dwordx4 v[20:23], v6, s[32:35], s42 offen {lf}")
    A(f"buffer_load_dwordx2 v[24:25], v6, s[32:35], s42 offen offset:16 {lf}")
    A("s_mov_b64 exec, -1")
    srd(A, 36, 4, 5, N*512)
    nt = 0
    touch = o.get("k1_touch", ("mall", 16))
    if touch:
        A.c("touch x once so that the gather of the second launch finds it on chip")
        A("v_lshlrev_b32 v26, 7, v7")
        if touch[0] == "mall": A("s_mul_i32 s43, s16, 10")
        else: A("s_lshr_b32 s43, s2, 3\ns_mul_i32 s43, s43, 10")
        A("s_add_u32 s43, s43, s3")
        nt = touch_x(A, touch, 43, 48, 26, 28, 36)
    srd(A, 44, 14, 15, WS_USED)
    A("s_barrier")
    A("v_mov_b32 v3, 1")
    A("s_mov_b64 exec, s[18:19]")
    A(f"s_waitcnt vmcnt({4+nt})")
    st.mark("dst")
    for i in range(4):
        A(f"v_lshlrev_b32 v{32+i}, 2, v{8+i}")
        A(f"v_and_b32 v{32+i}, 0x3fc, v{32+i}")
        A(f"ds_add_rtn_u32 v{36+i}, v{32+i}, v3 offset:{CNT}")
    A("s_mov_b64 exec, -1")
    A("v_lshlrev_b32 v59, 4, v7")
    A("s_waitcnt lgkmcnt(0)")
    A("s_barrier")
    st.mark("ranked")
    A(f"ds_read_b128 v[60:63], v59 offset:{CNT}")
    A(f"s_waitcnt vmcnt({3+nt})")
    A.c("key = src<<9 | onehot(node)<<28 | (group*4 + source quarter)<<2 ; record i = v[40+4i : 42+4i] = c01, c23, key")
    A("s_mov_b32 s48, 0x10000000")
    for i in range(4):
        d, s, k = 8+i, 12+i, 42+4*i
        A(f"v_bfe_u32 v56, v{d}, 8, 2")
        A(f"v_lshlrev_b32_e64 v56, v56, s48")
        A(f"v_lshl_or_b32 v56, v{s}, 9, v56")
        A(f"v_mul_u32_u24 v57, 13, v{s}")
        A(f"v_lshrrev_b32 v57, 15, v57")
        A(f"v_lshrrev_b32 v58, 10, v{d}")
        A(f"v_lshl_or_b32 v57, v58, 2, v57")
        A(f"v_lshl_or_b32 v{k}, v57, 2, v56")
    A("s_waitcnt lgkmcnt(0)")
    A("v_add_u32 v65, v60, v61\nv_add_u32 v66, v65, v62\nv_add_u32 v67, v66, v63")
    A("v_mov_b32 v68, v67")
    for s in scan_steps("v_add_u32", 68): A(s)
    A("v_sub_u32 v68, v68, v67")
    A("v_add_u32 v69, v68, v60\nv_add_u32 v70, v68, v65\nv_add_u32 v71, v68, v66")
    A.c("every wave writes the same prefix table and then reads only after its own write")
    A(f"ds_write_b128 v59, v[68:71] offset:{PFX}")
    A("s_mov_b64 exec, s[18:19]")
    for i in range(4): A(f"ds_read_b32 v{32+i}, v{32+i} offset:{PFX}")
    A.c("coefficients a, a*Y0, a*Y1, a*Y2 in bf16")
    A(f"s_waitcnt vmcnt({nt})")
    st.mark("alldata")
    A("s_mov_b32 s49, 0xffff0000")
    def unpack(dst, reg, hi):
        if hi: A(f"v_and_b32 v{dst}, s49, v{reg}")
        else: A(f"v_lshlrev_b32 v{dst}, 16, v{reg}")
    for i in range(4):
        unpack(56, 16 + i//2, i & 1)
        for j in range(3):
            h = 3*i + j
            unpack(72+j, 20 + h//2, h & 1)
        for j in range(3): A(f"v_mul_f32 v{72+j}, v56, v{72+j}")
        A(f"v_cvt_pk_bf16_f32 v{40+4*i}, v56, v72")
        A(f"v_cvt_pk_bf16_f32 v{41+4*i}, v73, v74")
    A("s_waitcnt lgkmcnt(0)")
    for i in range(4):
        A(f"v_add_u32 v{32+i}, v{32+i}, v{36+i}")
        A(f"v_mul_u32_u24 v{32+i}, 12, v{32+i}")
        A(f"ds_write_b32 v{32+i}, v{42+4*i} offset:{STG+8}")
        A(f"v_add_u32 v{32+i}, {STG}, v{32+i}")
        A(f"ds_write2_b32 v{32+i}, v{40+4*i}, v{41+4*i} offset0:0 offset1:1")
    A("s_mov_b64 exec, -1")
    A.c("waves 0..3 publish start|len<<16 of bucket 4*lane+wave")
    A("s_cmp_ge_u32 s3, 4\ns_cbranch_scc1 L_k1_nooff")
    A("v_mov_b32 v72, v68\nv_mov_b32 v73, v60")
    for w in (1, 2, 3):
        A(f"s_cmp_lg_u32 s3, {w}\ns_cbranch_scc1 L_k1_o{w}")
        A(f"v_mov_b32 v72, v{68+w}\nv_mov_b32 v73, v{60+w}")
        A(f"L_k1_o{w}:")
    A("v_lshl_or_b32 v72, v73, 16, v72")
    A("v_lshlrev_b32 v73, 12, v7")
    A("s_lshl_b32 s50, s3, 10\ns_lshl_b32 s51, s16, 2\ns_add_u32 s50, s50, s51")
    if WS_OFF: A(f"s_add_u32 s50, s50, {WS_OFF}")
    sf = o.get("k1_store_flags", "")
    A(f"buffer_store_dword v72, v73, s[44:47], s50 offen {sf}")
    A("L_k1_nooff:")
    A(f"s_mul_i32 s50, s16, {RSTR}\ns_add_u32 s50, s50, {WS_REC}")
    A(f"s_movk_i32 s17, {CH*12//16 - 1280}\nv_cmp_gt_u32 s[18:19], s17, v0")
    A("s_add_u32 s51, s50, 10240\ns_add_u32 s52, s50, 20480")
    A("s_waitcnt lgkmcnt(0)")
    A("s_barrier")
    st.mark("sorted")
    for q in range(3): A(f"ds_read_b128 v[{8+4*q}:{11+4*q}], v4 offset:{STG + 10240*q}")
    A("s_waitcnt lgkmcnt(2)")
    A(f"buffer_store_dwordx4 v[8:11], v4, s[44:47], s50 offen {sf}")
    A("s_waitcnt lgkmcnt(1)")
    A(f"buffer_store_dwordx4 v[12:15], v4, s[44:47], s51 offen {sf}")
    A("s_waitcnt lgkmcnt(0)")
    A("s_mov_b64 exec, s[18:19]")
    A(f"buffer_store_dwordx4 v[16:19], v4, s[44:47], s52 offen {sf}")
    if st.on:
        st.mark("issued")
        A("s_waitcnt vmcnt(0)")
    st.flush(14, 3, 20, 52)
    A("L_k1_end:")
    A("s_endpgm")
    return A.finish(o.get("verbose")), lds, 80, 96 if st.on else 56, st.names

NIT = 5
WIN = 64 * NIT
CAP = 10 * WIN + 320
L_ZERO, L_RND, L_CNT, L_KEY = 0, 64, 128, 512
L_COEF = L_KEY + CAP*4 + 128
L_W = L_COEF + CAP*8 + 256
L_STG = L_W + 40960
SROW, SWAVE = 416, 16*416
L_END = L_STG + 10*SWAVE
assert L_W % 128 == 0 and L_END <= 163840

def gen_k2(name, o):
    A = Asm()
    st = Stamps(A, o.get("stamps"), 72, 1)
    vLane, vOff, vKA, vK2A, vCA, vSh = 1, 2, 3, 4, 5, 6
    vK2 = 8
    vAF = 10
    vK = 14
    vT = 22
    vD = 38
    vC = 102
    NV = 166
    sWave, sB = 3, 16
    SX, SWS, SOUT, SW0, SW1, SWM, SWR = 20, 24, 28, 32, 36, 40, 44
    sMask = 48
    sTot, sRnd, sRound, sN, sRem, sStep, sT1, sT2, sT3 = 58, 59, 60, 61, 62, 63, 64, 65, 66
    sP0, sP1, sRowM = 67, 68, 69
    sTmp = 17
    A(f".globl {name}\n.p2align 8\n.type {name},@function\n{name}:")
    A(f"s_cmp_ge_u32 s2, {NWG}\ns_cbranch_scc1 L_k2_end")
    st.mark("start")
    A("s_load_dwordx2 s[14:15], s[0:1], 88")
    A("s_load_dwordx2 s[4:5], s[0:1], 0")
    A("s_load_dwordx4 s[8:11], s[0:1], 40")
    A("s_load_dwordx2 s[6:7], s[0:1], 56")
    A("s_load_dwordx2 s[12:13], s[0:1], 72")
    A(f"s_and_b32 s{sB}, s2, 7\ns_lshl_b32 s{sB}, s{sB}, 5\ns_lshr_b32 s17, s2, 3\ns_add_u32 s{sB}, s{sB}, s17")
    A("v_lshrrev_b32 v7, 6, v0")
    A(f"v_and_b32 v{vLane}, 63, v0")
    A(f"v_readfirstlane_b32 s{sWave}, v7")
    A(f"s_mov_b32 s{sRound}, 0")
    A.c("this wave reads chunks seg0 .. seg0+nseg-1 of the bucket")
    sSeg0, sNseg, sMk = 70, 71, 18
    A(f"s_lshl_b32 s{sSeg0}, s{sWave}, 7\ns_mul_i32 s{sSeg0}, s{sSeg0}, 52429\ns_lshr_b32 s{sSeg0}, s{sSeg0}, 18")
    A(f"s_add_u32 s17, s{sWave}, 1\ns_lshl_b32 s17, s17, 7\ns_mul_i32 s17, s17, 52429\ns_lshr_b32 s17, s17, 18")
    A(f"s_sub_u32 s{sNseg}, s17, s{sSeg0}")
    A(f"s_mul_i32 s{sMk}, s{sWave}, {SWAVE}\ns_add_u32 s{sMk}, s{sMk}, {L_STG}")
    vz = vD + 40
    def lds_init():
        A(f"v_lshlrev_b32 v7, 4, v0")
        for i in range(4): A(f"v_mov_b32 v{vz+i}, {PADKEY:#x}" if i == 0 else f"v_mov_b32 v{vz+i}, v{vz}")
        A(f"ds_write_b128 v7, v[{vz}:{vz+3}] offset:{L_KEY}")
        A(f"ds_write_b128 v7, v[{vz}:{vz+3}] offset:{L_KEY+10240}")
        for i in range(4): A(f"v_mov_b32 v{vz+4+i}, 0")
        A(f"v_lshlrev_b32 v7, 4, v{vLane}")
        A(f"v_add_u32 v{vz+8}, s{sMk}, v7")
        A(f"ds_write_b128 v{vz+8}, v[{vz+4}:{vz+7}]")
        A(f"ds_write_b128 v{vz+8}, v[{vz+4}:{vz+7}] offset:1024")
    lds_init()
    A(f"s_mov_b32 exec_lo, -1\ns_mov_b32 exec_hi, 0")
    A(f"ds_write_b128 v7, v[{vz+4}:{vz+7}]")
    A("s_mov_b64 exec, -1")
    vOf = vD
    A(f"v_add_u32 v{vD+1}, s{sSeg0}, v{vLane}")
    A(f"v_lshlrev_b32 v{vD+2}, 2, v{vD+1}")
    A(f"v_cmp_gt_u32 vcc, s{sNseg}, v{vLane}")
    A(f"v_bfrev_b32 v{vD+3}, -2")
    A(f"s_lshl_b32 s17, s{sB}, 10")
    if WS_OFF: A(f"s_add_u32 s17, s17, {WS_OFF}")
    A(f"v_cndmask_b32 v{vD+2}, v{vD+3}, v{vD+2}, vcc")
    A("s_waitcnt lgkmcnt(0)")
    srd(A, SWS, 14, 15, WS_USED)
    A(f"buffer_load_dword v{vOf}, v{vD+2}, s[{SWS}:{SWS+3}], s17 offen")
    A.c("weights: 40 wave-loads of 8 rows; load w+10q comes from w_si0 when < 16, else from w_si1")
    srd(A, SW0, 10, 11, 128*128)
    srd(A, SW1, 6, 7, 192*128)
    srd(A, SWR, 8, 9, 640)
    A(f"s_cmp_lt_u32 s{sWave}, 6")
    A(f"s_cselect_b32 s{SWM}, s10, s6\ns_cselect_b32 s{SWM+1}, s11, s7")
    A(f"s_cselect_b32 s{SWM+2}, s{SW0+2}, s{SW1+2}\ns_mov_b32 s{SWM+3}, 0x00020000")
    A(f"s_cselect_b32 s19, 0, 16384\ns_sub_u32 s19, 10240, s19")
    A(f"s_lshl_b32 s17, s{sWave}, 10")
    A(f"s_add_u32 s19, s19, s17")
    vW = vD + 8
    vWr = vD + 24
    A(f"buffer_load_dwordx4 v[{vW}:{vW+3}], v7, s[{SW0}:{SW0+3}], s17 offen")
    A(f"buffer_load_dwordx4 v[{vW+4}:{vW+7}], v7, s[{SWM}:{SWM+3}], s19 offen")
    A(f"s_add_u32 s19, s17, {20480-16384}")
    A(f"buffer_load_dwordx4 v[{vW+8}:{vW+11}], v7, s[{SW1}:{SW1+3}], s19 offen")
    A(f"s_add_u32 s19, s17, {30720-16384}")
    A(f"buffer_load_dwordx4 v[{vW+12}:{vW+15}], v7, s[{SW1}:{SW1+3}], s19 offen")
    A(f"v_lshrrev_b32 v{vD+4}, 3, v{vLane}")
    A(f"v_lshlrev_b32 v{vD+4}, 1, v{vD+4}")
    A(f"s_lshl_b32 s17, s{sWave}, 4")
    for q in range(4):
        A(f"buffer_load_ushort v{vWr+q}, v{vD+4}, s[{SWR}:{SWR+3}], s17 offen offset:{160*q}")
    srd(A, SX, 4, 5, N*512)
    srd(A, SOUT, 12, 13, N*512)
    nt = 0
    touch = o.get("k2_touch")
    if touch:
        A(f"v_lshlrev_b32 v{vD+5}, 7, v{vLane}")
        A(f"s_lshr_b32 s19, s2, 3\ns_mul_i32 s19, s19, 10\ns_add_u32 s19, s19, s{sWave}")
        nt = touch_x(A, touch, 19, 17, vD+5, vD+6, SX)
        assert nt <= 2
    A.c("lane constants of the main loop")
    A(f"v_and_b32 v{vOff}, 15, v{vLane}\nv_lshlrev_b32 v{vOff}, 4, v{vOff}")
    A(f"v_and_b32 v{vSh}, 3, v{vLane}\nv_add_u32 v{vSh}, 28, v{vSh}")
    A(f"s_mov_b32 s{sP0}, 0x05040100\ns_mov_b32 s{sP1}, 0x07060302\ns_mov_b32 s{sRowM}, 0x007ffe00")
    for i in range(64): A(f"v_mov_b32 v{vC+i}, 0")
    A("s_barrier")
    A(f"s_waitcnt vmcnt({8+nt})")
    st.mark("off")
    A("L_k2_round:")
    vLen, vInc, vM, vPos = vD+2, vD+3, vD+28, vD+29
    vMk = vD + 30
    vR = vT
    A(f"v_lshrrev_b32 v{vLen}, 16, v{vOf}")
    A(f"v_mov_b32 v{vInc}, v{vLen}")
    A(f"v_and_b32 v{vM}, 0xffff, v{vOf}")
    steps = scan_steps("v_add_u32", vInc, upto=32)
    A(f"s_mov_b32 s17, {RSTR}")
    A(steps[0])
    A(f"v_mul_lo_u32 v{vPos}, v{vD+1}, s17")
    A(steps[1]); A(steps[2]); A(steps[3]); A(steps[4])
    A(f"v_readlane_b32 s{sTot}, v{vInc}, 31")
    A(f"v_sub_u32 v{vInc}, v{vInc}, v{vLen}")
    A(f"v_sub_u32 v{vM}, v{vM}, v{vInc}")
    A(f"v_mad_i32_i24 v{vM}, v{vM}, 12, v{vPos}")
    A(f"s_mul_i32 s17, s{sRound}, {WIN}")
    A(f"v_subrev_u32 v{vPos}, s17, v{vInc}")
    A(f"s_movk_i32 s19, 383")
    A(f"v_med3_i32 v{vPos}, v{vPos}, 0, s19")
    A(f"v_lshl_add_u32 v{vPos}, v{vPos}, 2, s{sMk}")
    A(f"s_mov_b32 exec_lo, -1\ns_mov_b32 exec_hi, 0")
    A(f"ds_max_u32 v{vPos}, v{vM}")
    A("s_mov_b64 exec, -1")
    A(f"v_lshl_add_u32 v{vPos}, v{vLane}, 2, s{sMk}")
    for it in range(NIT): A(f"ds_read_b32 v{vMk+it}, v{vPos} offset:{256*it}")
    A(f"s_sub_u32 s{sRem}, s{sTot}, s17")
    A(f"s_mul_i32 s17, s17, 12\ns_add_u32 s17, s17, {WS_REC}")
    for it in range(NIT):
        A(f"v_add_u32 v{vPos}, {64*it}, v{vLane}" if it else f"v_mov_b32 v{vPos}, v{vLane}")
        A(f"v_cmp_gt_i32 s[{sMask+2*it}:{sMask+2*it+1}], s{sRem}, v{vPos}")
    A(f"v_mul_u32_u24 v{vPos}, 12, v{vLane}")
    A("s_waitcnt lgkmcnt(0)")
    sc = [scan_steps("v_max_u32", vMk+it) for it in range(NIT)]
    for k in range(6):
        for it in range(NIT): A(sc[it][k])
    for it in range(NIT):
        if it:
            A(f"v_readlane_b32 s19, v{vMk+it-1}, 63")
            A(f"v_max_u32 v{vMk+it}, s19, v{vMk+it}")
    for it in range(NIT):
        A(f"v_add_u32 v{vMk+it}, v{vMk+it}, v{vPos}")
    vSave = vD + 36
    A(f"v_mov_b32 v{vSave}, v{vOf}\nv_mov_b32 v{vSave+1}, v{vD+1}")
    for it in range(NIT):
        A(f"buffer_load_dwordx3 v[{vR+4*it}:{vR+4*it+2}], v{vMk+it}, s[{SWS}:{SWS+3}], s17 offen offset:{768*it}")
    st.mark("recissue")
    A(f"s_cmp_lg_u32 s{sRound}, 0\ns_cbranch_scc1 L_k2_now")
    A.c("first round only: number of rounds, and the weights scaled by w_rad into LDS")
    A(f"s_cmp_le_u32 s{sTot}, {WIN}\ns_cbranch_scc1 L_k2_one")
    A(f"v_mov_b32 v{vPos}, s{sTot}\nv_mov_b32 v{vM}, {L_RND}")
    A("s_mov_b64 exec, 1")
    A(f"ds_max_u32 v{vM}, v{vPos}")
    A("s_mov_b64 exec, -1")
    A("L_k2_one:")
    vWA = vD + 28
    A(f"v_lshrrev_b32 v{vWA}, 4, v{vLane}\nv_and_b32 v{vWA}, 1, v{vWA}")
    A(f"s_and_b32 s19, s{sWave}, 1\ns_lshl_b32 s19, s19, 1")
    A(f"v_or_b32 v{vWA}, s19, v{vWA}\nv_lshlrev_b32 v{vWA}, 3, v{vWA}")
    A(f"v_xor_b32 v{vWA}, v7, v{vWA}")
    A(f"s_lshl_b32 s19, s{sWave}, 10\ns_add_u32 s19, s19, {L_W}")
    A(f"v_add_u32 v{vWA}, s19, v{vWA}")
    A(f"v_xor_b32 v{vWA+1}, 8, v{vWA}")
    A(f"s_mov_b32 s19, 0xffff0000")
    A(f"s_waitcnt vmcnt({NIT+nt})")
    for q in range(4):
        A(f"v_lshlrev_b32 v{vWr+q}, 16, v{vWr+q}")
        for d in range(4):
            r = vW + 4*q + d
            A(f"v_lshlrev_b32 v{vz}, 16, v{r}\nv_and_b32 v{vz+1}, s19, v{r}")
            A(f"v_mul_f32 v{vz}, v{vWr+q}, v{vz}\nv_mul_f32 v{vz+1}, v{vWr+q}, v{vz+1}")
            A(f"v_cvt_pk_bf16_f32 v{r}, v{vz}, v{vz+1}")
        A(f"ds_write_b64 v{vWA}, v[{vW+4*q}:{vW+4*q+1}] offset:{10240*q}")
        A(f"ds_write_b64 v{vWA+1}, v[{vW+4*q+2}:{vW+4*q+3}] offset:{10240*q}")
    A("L_k2_now:")
    vBin = vMk
    vRank = vD + 44
    A(f"v_mov_b32 v{vPos}, 1")
    for it in range(NIT):
        A(f"s_waitcnt vmcnt({NIT-1-it})")
        if it == 0: st.mark("rec0")
        A(f"v_and_b32 v{vBin+it}, 0xfc, v{vR+4*it+2}")
        A(f"s_mov_b64 exec, s[{sMask+2*it}:{sMask+2*it+1}]")
        A(f"ds_add_rtn_u32 v{vRank+it}, v{vBin+it}, v{vPos} offset:{L_CNT}")
        A("s_mov_b64 exec, -1")
    vc, vs, vtq, vx, vm1, vm2 = vD+50, vD+51, vD+52, vD+53, vD+54, vD+55
    A(f"v_and_b32 v{vx}, 3, v{vLane}")
    A(f"v_cmp_lt_u32 vcc, 0, v{vx}\nv_lshlrev_b32 v{vPos}, 2, v{vLane}\nv_cndmask_b32 v{vm1}, 0, -1, vcc")
    A(f"v_cmp_lt_u32 vcc, 1, v{vx}\nv_mov_b32 v{vM}, {L_RND}\nv_cndmask_b32 v{vm2}, 0, -1, vcc")
    A("s_waitcnt lgkmcnt(0)")
    A("s_barrier")
    st.mark("ranked")
    A(f"ds_read_b32 v{vc}, v{vPos} offset:{L_CNT}")
    A(f"ds_read_b32 v{vM}, v{vM}")
    A("s_waitcnt lgkmcnt(1)")
    A(f"v_and_b32_dpp v{vx}, v{vc}, v{vm1} quad_perm:[0,0,1,2] row_mask:0xf bank_mask:0xf")
    A(f"v_add_u32 v{vs}, v{vc}, v{vx}")
    A(f"v_and_b32_dpp v{vx}, v{vs}, v{vm2} quad_perm:[0,0,0,1] row_mask:0xf bank_mask:0xf")
    A(f"v_add_u32 v{vs}, v{vs}, v{vx}")
    A(f"v_mov_b32_dpp v{vtq}, v{vs} quad_perm:[3,3,3,3] row_mask:0xf bank_mask:0xf")
    A(f"v_add_u32 v{vx}, 31, v{vtq}\nv_and_b32 v{vx}, 0xffffffe0, v{vx}")
    A(f"v_sub_u32 v{vs}, v{vs}, v{vc}")
    A(f"v_sub_u32 v{vs}, v{vs}, v{vx}")
    A(f"v_mov_b32 v{vc}, v{vx}")
    for s in scan_steps("v_add_u32", vx, first=4): A(s)
    A(f"s_lshl_b32 s19, s{sWave}, 2")
    A(f"v_add_u32 v{vs}, v{vs}, v{vx}")
    A(f"v_sub_u32 v{vc}, v{vx}, v{vc}")
    for it in range(NIT): A(f"ds_bpermute_b32 v{vBin+it}, v{vBin+it}, v{vs}")
    A(f"v_readlane_b32 s{sN}, v{vtq}, s19")
    A(f"v_readlane_b32 s17, v{vc}, s19")
    A(f"s_cmp_lg_u32 s{sRound}, 0\ns_cbranch_scc1 L_k2_havernd")
    A(f"s_waitcnt lgkmcnt({NIT})")
    A(f"v_readfirstlane_b32 s{sRnd}, v{vM}")
    A("L_k2_havernd:")
    A(f"s_mov_b32 s19, 0xffffffe0")
    for it in range(NIT):
        p = vBin + it
        A(f"s_waitcnt lgkmcnt({NIT-1-it + 2*it})")
        A(f"v_add_u32 v{p}, v{p}, v{vRank+it}")
        A(f"v_bfe_u32 v{vx}, v{p}, 2, 3\nv_and_b32 v{vm1}, 3, v{p}")
        A(f"v_lshl_or_b32 v{vx}, v{vm1}, 3, v{vx}")
        A(f"v_and_or_b32 v{p}, v{p}, s19, v{vx}")
        A(f"v_lshlrev_b32 v{vx}, 2, v{p}\nv_lshlrev_b32 v{p}, 3, v{p}")
        A(f"s_mov_b64 exec, s[{sMask+2*it}:{sMask+2*it+1}]")
        A(f"ds_write_b32 v{vx}, v{vR+4*it+2} offset:{L_KEY}")
        A(f"ds_write_b64 v{p}, v[{vR+4*it}:{vR+4*it+1}] offset:{L_COEF}")
        A("s_mov_b64 exec, -1")
    A.c("LDS addresses of this wave's slots")
    A(f"v_lshrrev_b32 v{vx}, 4, v{vLane}\nv_lshlrev_b32 v{vx}, 3, v{vx}\nv_add_u32 v{vx}, s17, v{vx}")
    A(f"v_lshlrev_b32 v{vKA}, 2, v{vx}")
    A(f"v_bfe_u32 v{vm1}, v{vLane}, 2, 2\nv_add_u32 v{vx}, v{vx}, v{vm1}")
    A(f"v_lshlrev_b32 v{vK2A}, 2, v{vx}")
    A(f"v_lshlrev_b32 v{vCA}, 3, v{vx}\nv_add_u32 v{vCA}, {L_COEF}, v{vCA}")
    A(f"v_mov_b32 v7, v{vSave}\nv_mov_b32 v0, v{vSave+1}")
    A(f"s_add_u32 s17, s{sN}, 31\ns_lshr_b32 s17, s17, 5")
    A(f"s_add_u32 s{sT1}, s17, 2\ns_lshr_b32 s{sT1}, s{sT1}, 2")
    A(f"s_add_u32 s{sT2}, s17, 1\ns_lshr_b32 s{sT2}, s{sT2}, 1")
    A(f"s_mul_i32 s{sT3}, s17, 3\ns_add_u32 s{sT3}, s{sT3}, 2\ns_lshr_b32 s{sT3}, s{sT3}, 2")
    A("s_waitcnt lgkmcnt(0)")
    for i in range(64): A(f"v_mov_b32 v{vD+i}, 0")
    A("s_barrier")
    st.mark("sorted")
    def rd_keys():
        A(f"ds_read_b128 v[{vK}:{vK+3}], v{vKA} offset:{L_KEY}")
        A(f"ds_read_b128 v[{vK+4}:{vK+7}], v{vKA} offset:{L_KEY+16}")
        A(f"ds_read2_b32 v[{vK2}:{vK2+1}], v{vK2A} offset0:{L_KEY//4} offset1:{L_KEY//4+4}")
        A(f"v_add_u32 v{vKA}, 128, v{vKA}\nv_add_u32 v{vK2A}, 128, v{vK2A}")
    def addr():
        for i in range(8): A(f"v_and_or_b32 v{vK+i}, v{vK+i}, s{sRowM}, v{vOff}")
        for u in range(2):
            A(f"v_bfe_i32 v{vK2+u}, v{vK2+u}, v{vSh}, 1")
            A(f"v_and_b32 v{vK2+u}, v{vK2+u}, v{vCA}")
        A(f"v_add_u32 v{vCA}, 256, v{vCA}")
    def rd_coef():
        A(f"ds_read_b64_tr_b16 v[{vAF}:{vAF+1}], v{vK2}")
        A(f"ds_read_b64_tr_b16 v[{vAF+2}:{vAF+3}], v{vK2+1} offset:32")
    gf = o.get("gather_flags", "")
    def load(h, i):
        d = vD + h*32 + i*4
        A(f"buffer_load_dwordx4 v[{d}:{d+3}], v{vK+i}, s[{SX}:{SX+3}], 0 offen offset:{h*256} {gf}")
    def loads(h):
        for i in range(8): load(h, i)
    def loads_part(h, tag, wait):
        for i in range(8):
            if i: A(f"s_cmp_le_i32 s{sRem}, {4*i}\ns_cbranch_scc1 L_{tag}_{i}")
            load(h, i)
        if wait:
            A(f"s_waitcnt vmcnt(8)\ns_branch L_{tag}_done")
            for i in range(1, 8):
                A(f"L_{tag}_{i}:\ns_waitcnt vmcnt({i})")
                if i < 7: A(f"s_branch L_{tag}_done")
            A(f"L_{tag}_done:")
        else:
            for i in range(1, 8): A(f"L_{tag}_{i}:")
    def comp(h, lgkm=False, filler=None):
        def mf(g):
            t = vT + (g % 4)*4
            c = vC + (h*8 + g)*4
            A(f"v_mfma_f32_16x16x32_bf16 v[{c}:{c+3}], v[{vAF}:{vAF+3}], v[{t}:{t+3}], v[{c}:{c+3}]")
        for g in range(8):
            u, par = g >> 1, g & 1
            t = vT + (g % 4)*4
            for q in range(4):
                a = vD + h*32 + (2*q)*4 + u
                b = vD + h*32 + (2*q+1)*4 + u
                A(f"v_perm_b32 v{t+q}, v{b}, v{a}, s{sP0+par}")
            if lgkm and g == 1: A("s_waitcnt lgkmcnt(0)")
            if g: mf(g-1)
        if filler: filler()
        mf(7)
    prio = o.get("prio", True)
    A(f"s_cmp_eq_u32 s{sN}, 0\ns_cbranch_scc1 L_k2_done")
    if prio: A("s_setprio 3")
    rd_keys()
    A(f"s_mov_b32 s{sRem}, s{sN}\ns_mov_b32 s{sStep}, 1")
    A("s_waitcnt lgkmcnt(0)")
    addr()
    rd_coef()
    loads_part(0, "p0", False)
    loads_part(1, "p1", False)
    rd_keys()
    A(f"s_sub_u32 s{sRem}, s{sRem}, 32")
    A(f"s_cmp_lt_i32 s{sRem}, 32\ns_cbranch_scc1 L_k2_tail")
    A(".p2align 3")
    A("L_k2_loop:")
    if prio:
        for k, t in enumerate((sT1, sT2, sT3)):
            A(f"s_cmp_lg_u32 s{sStep}, s{t}\ns_cbranch_scc1 L_k2_pr{k}\ns_setprio {2-k}\nL_k2_pr{k}:")
        A(f"s_add_u32 s{sStep}, s{sStep}, 1")
    A("s_waitcnt vmcnt(8)")
    comp(0, True, addr)
    loads(0)
    A("s_waitcnt vmcnt(8)")
    comp(1, False, lambda: load(1, 0))
    for i in range(1, 8): load(1, i)
    rd_coef()
    rd_keys()
    A(f"s_sub_u32 s{sRem}, s{sRem}, 32")
    A(f"s_cmp_ge_i32 s{sRem}, 32\ns_cbranch_scc1 L_k2_loop")
    A("L_k2_tail:")
    if prio: A("s_setprio 0")
    A(f"s_cmp_le_i32 s{sRem}, 0\ns_cbranch_scc1 L_k2_last")
    A("s_waitcnt vmcnt(8)")
    comp(0, True, addr)
    loads_part(0, "t0", True)
    comp(1)
    loads_part(1, "t1", False)
    rd_coef()
    A("L_k2_last:")
    A("s_waitcnt vmcnt(0)")
    comp(0, True)
    comp(1)
    A("L_k2_done:")
    st.mark("loopend")
    A(f"s_add_u32 s{sRound}, s{sRound}, 1")
    A(f"s_mul_i32 s17, s{sRound}, {WIN}")
    A(f"s_cmp_ge_u32 s17, s{sRnd}\ns_cbranch_scc1 L_k2_epi")
    A.c("rare: a wave found more records than one window holds; sort and gather the next window")
    A("s_waitcnt lgkmcnt(0)")
    A("s_barrier")
    A(f"v_mov_b32 v{vOf}, v7\nv_mov_b32 v{vD+1}, v0")
    A(f"s_lshl_b32 s17, s{sWave}, 6\nv_add_u32 v0, s17, v{vLane}")
    lds_init()
    A(f"s_mov_b32 exec_lo, 0xffff\ns_mov_b32 exec_hi, 0")
    A(f"ds_write_b128 v7, v[{vz+4}:{vz+7}] offset:{L_CNT}")
    A("s_mov_b64 exec, -1")
    A("s_waitcnt lgkmcnt(0)")
    A("s_barrier")
    A("s_branch L_k2_round")
    A("L_k2_epi:")
    vH, vSA, vt = vK, vK+1, vK+2
    sH = sMask
    A(f"v_bfe_u32 v{vt}, v{vLane}, 3, 1")
    A(f"v_cmp_eq_u32 s[{sH}:{sH+1}], 1, v{vt}")
    A(f"v_cvt_f32_u32 v{vH}, v{vt}")
    A(f"v_lshrrev_b32 v{vSA}, 4, v{vLane}\nv_mul_u32_u24 v{vSA}, {4*SROW}, v{vSA}")
    A(f"v_and_b32 v{vt+1}, 7, v{vLane}\nv_lshl_add_u32 v{vSA}, v{vt+1}, 4, v{vSA}")
    A(f"v_add_u32 v{vSA}, s{sMk}, v{vSA}")
    slots = [((0,0),(1,1)), ((2,1),(3,1)), ((1,0),(0,1)), ((2,0),(3,2)), ((3,0),(2,2)), ((0,2),(1,2))]
    vSW = vT
    for k, (l, h) in enumerate(slots):
        offL, offH = l[0]*SROW + l[1]*128, h[0]*SROW + h[1]*128
        A(f"s_movk_i32 s17, {offH-offL}")
        A(f"v_mad_i32_i24 v{vSW+k}, v{vt}, s17, v{vSA}")
    U = lambda jj, a: vC + jj*4 + a
    V = lambda jj, a: vC + (8+jj)*4 + a
    ror = "row_ror:8 row_mask:0xf bank_mask:0xf"
    for jj in range(8):
        t0, t1 = vT + 8 + 2*(jj & 1), vT + 9 + 2*(jj & 1)
        A(f"v_add_f32_dpp v{t0}, v{V(jj,2)}, v{V(jj,3)} {ror}")
        A(f"v_sub_f32_dpp v{t1}, v{V(jj,1)}, v{U(jj,2)} {ror}")
        A(f"v_subrev_f32_dpp v{V(jj,2)}, v{V(jj,3)}, v{V(jj,2)} {ror}")
        A(f"v_fma_f32 v{U(jj,3)}, -v{V(jj,1)}, v{vH}, v{U(jj,3)}")
        A(f"v_fma_f32 v{U(jj,1)}, v{t0}, v{vH}, v{U(jj,1)}")
        A(f"v_cndmask_b32 v{U(jj,2)}, v{U(jj,2)}, v{t1}, s[{sH}:{sH+1}]")
    srcs = [lambda jj: U(jj,0), lambda jj: V(jj,0), lambda jj: U(jj,1), lambda jj: U(jj,2), lambda jj: U(jj,3), lambda jj: V(jj,2)]
    for k, (l, h) in enumerate(slots):
        r = vD + 4*k
        for q in range(4): A(f"v_cvt_pk_bf16_f32 v{r+q}, v{srcs[k](2*q)}, v{srcs[k](2*q+1)}")
        A(f"ds_write_b128 v{vSW+k}, v[{r}:{r+3}] offset:{l[0]*SROW + l[1]*128}")
    vSR, vWB = vK+2, vK+4
    A(f"v_and_b32 v{vSR}, 15, v{vLane}\nv_mul_u32_u24 v{vSR}, {SROW}, v{vSR}")
    A(f"v_lshrrev_b32 v{vSR+1}, 4, v{vLane}\nv_lshl_add_u32 v{vSR}, v{vSR+1}, 4, v{vSR}")
    A(f"v_add_u32 v{vSR}, s{sMk}, v{vSR}")
    vS = vC
    vX, vY = vC + 24, vC + 40
    for kk in range(6): A(f"ds_read_b128 v[{vS+4*kk}:{vS+4*kk+3}], v{vSR} offset:{64*kk}")
    A.c("weight fragment address: row 8g+r, column block 32c, 8-byte chunk t ^ f")
    A(f"v_bfe_u32 v{vWB+1}, v{vLane}, 2, 2")
    A(f"v_lshl_add_u32 v{vWB}, v{vSR+1}, 3, v{vWB+1}\nv_lshlrev_b32 v{vWB}, 7, v{vWB}")
    A(f"v_and_b32 v{vWB+2}, 3, v{vLane}\nv_lshl_add_u32 v{vWB}, v{vWB+2}, 5, v{vWB}")
    A(f"v_lshrrev_b32 v{vWB+1}, 1, v{vWB+1}\nv_and_b32 v{vWB+2}, 1, v{vSR+1}")
    A(f"v_lshl_or_b32 v{vWB+1}, v{vWB+2}, 1, v{vWB+1}")
    A(f"v_lshl_add_u32 v{vWB}, v{vWB+1}, 3, v{vWB}\nv_add_u32 v{vWB}, {L_W}, v{vWB}")
    for t in range(1, 4): A(f"v_xor_b32 v{vWB+t}, {8*t}, v{vWB}")
    for i in range(32): A(f"v_mov_b32 v{vX+i}, 0")
    vF = vD + 24
    NF = 10
    jobs = [(kk, t) for kk in range(10) for t in range(4)]
    def rdw(n):
        kk, t = jobs[n]; r = vF + 4*(n % NF)
        A(f"ds_read_b64_tr_b16 v[{r}:{r+1}], v{vWB+t} offset:{kk*4096}")
        A(f"ds_read_b64_tr_b16 v[{r+2}:{r+3}], v{vWB+t} offset:{kk*4096+512}")
    AH = 7
    for n in range(AH): rdw(n)
    for n, (kk, t) in enumerate(jobs):
        out = min(len(jobs) - 1 - n, AH - 1)
        A(f"s_waitcnt lgkmcnt({2*out})")
        r = vF + 4*(n % NF)
        acc = (vX if kk < 4 else vY) + 4*t
        sk = kk if kk < 4 else kk - 4
        A(f"v_mfma_f32_16x16x32_bf16 v[{acc}:{acc+3}], v[{r}:{r+3}], v[{vS+4*sk}:{vS+4*sk+3}], v[{acc}:{acc+3}]")
        if n + AH < len(jobs): rdw(n + AH)
    A.c("output address: node = bucket + 256*(4*wave + j); rows past the last node fall outside the descriptor")
    vO = vK
    A(f"v_bfe_u32 v{vO}, v{vLane}, 2, 2\nv_lshlrev_b32 v{vO}, 17, v{vO}")
    A(f"v_and_b32 v{vO+1}, 3, v{vLane}")
    A(f"v_cmp_eq_u32 s[{sH}:{sH+1}], 0, v{vO+1}")
    A(f"v_lshl_add_u32 v{vO}, v{vO+1}, 7, v{vO}")
    A(f"v_lshl_add_u32 v{vO}, v{vSR+1}, 5, v{vO}")
    A(f"s_lshl_b32 s17, s{sWave}, 19\ns_lshl_b32 s19, s{sB}, 9\ns_add_u32 s17, s17, s19")
    A(f"s_mov_b32 s19, 0xbfb8aa3b")
    vG = vD
    for i in range(16): A(f"v_mul_f32 v{vG+i}, s19, v{vX+i}")
    for i in range(16): A(f"v_exp_f32 v{vG+i}, v{vG+i}")
    for i in range(16): A(f"v_add_f32 v{vG+i}, 1.0, v{vG+i}")
    for i in range(16): A(f"v_rcp_f32 v{vG+i}, v{vG+i}")
    for i in range(16): A(f"v_mul_f32_dpp v{vY+i}, v{vG+i}, v{vY+i} quad_perm:[0,0,0,0] row_mask:0xf bank_mask:0xf")
    for i in range(16): A(f"v_cndmask_b32 v{vY+i}, v{vY+i}, v{vX+i}, s[{sH}:{sH+1}]")
    for i in range(8): A(f"v_cvt_pk_bf16_f32 v{vG+i}, v{vY+2*i}, v{vY+2*i+1}")
    of = o.get("out_flags", "")
    A(f"buffer_store_dwordx4 v[{vG}:{vG+3}], v{vO}, s[{SOUT}:{SOUT+3}], s17 offen {of}")
    A(f"buffer_store_dwordx4 v[{vG+4}:{vG+7}], v{vO}, s[{SOUT}:{SOUT+3}], s17 offen offset:16 {of}")
    if st.on:
        st.mark("issued")
        A("s_waitcnt vmcnt(0)")
    st.flush(14, sWave, vT, 48)
    A("L_k2_end:")
    A("s_endpgm")
    return A.finish(o.get("verbose")), L_END, NV, 100 if st.on else 72, st.names

HEADER = """; Equivariant tensor-product message passing, N=10000 nodes, E=640000 edges, C=64.
"""
def build(o=None):
    o = o or {}
    n1, n2 = "tp_sort_kernel", "tp_gather_kernel"
    t1, lds1, v1, s1, names1 = gen_k1(n1, o)
    t2, lds2, v2, s2, names2 = gen_k2(n2, o)
    txt = HEADER
    empty = "; @launch kernel=tp_empty_kernel grid=(1,1,1) block=(64,1,1) lds=0\n"
    txt += empty * o.get("empty_pre", 0)
    txt += f"; @launch kernel={n1} grid=({NWG},1,1) block=(640,1,1) lds={lds1}\n" * o.get("k1_times", 1)
    txt += f"; @launch kernel={n2} grid=({NWG},1,1) block=(640,1,1) lds={lds2}\n" * o.get("k2_times", 1)
    txt += empty * o.get("empty_post", 0)
    txt += '.amdgcn_target "amdgcn-amd-amdhsa--gfx950"\n.text\n'
    txt += t1 + t2
    em = o.get("empty_pre") or o.get("empty_post")
    if em: txt += ".globl tp_empty_kernel\n.p2align 8\n.type tp_empty_kernel,@function\ntp_empty_kernel:\n    s_endpgm\n"
    txt += '.section .rodata,"a"\n' + kd(n1, v1, s1) + kd(n2, v2, s2)
    if em: txt += kd("tp_empty_kernel", 8, 16)
    return txt, [(n1, lds1, v1, names1), (n2, lds2, v2, names2)]

if __name__ == "__main__":
    out = sys.argv[1] if len(sys.argv) > 1 else "gather_scatter__tensor_product_equiv_equiformer__graph.s"
    txt, info = build({"verbose": True})
    open(out, "w").write(txt)
    print(info, len(txt))
```

```python
import sys, json
import gen as G
a = sys.argv[1:]
for n, j in zip(a[::2], a[1::2]):
    o = json.loads(j)
    for kk in ("k2_touch0", "k2_touch", "k2_touchb"):
        if o.get(kk): o[kk] = tuple(o[kk])
    txt, info = G.build(o)
    open(f"var/{n}.s", "w").write(txt)
```

```python
import sys
from asmlib import Asm, kd

N, E = 10000, 640000
NWG = 256
CH = E // NWG
RSTR = 30080
WS_OFF = 0
WS_REC = 262144
WS_USED = WS_REC + NWG * RSTR
WS_STAMP = 16 << 20
PADKEY = 0x0FFFFFFF

def srd(A, s, lo, hi, size):
    A(f"s_mov_b32 s{s}, s{lo}\ns_mov_b32 s{s+1}, s{hi}")
    A(f"s_mov_b32 s{s+2}, {size}\ns_mov_b32 s{s+3}, 0x00020000")

def scan_steps(op, v, upto=64, first=1):
    out = []
    for sh in (1, 2, 4, 8):
        if sh >= first:
            out.append(f"{op}_dpp v{v}, v{v}, v{v} row_shr:{sh} row_mask:0xf bank_mask:0xf bound_ctrl:0")
    if upto >= 32: out.append(f"{op}_dpp v{v}, v{v}, v{v} row_bcast:15 row_mask:0xa bank_mask:0xf")
    if upto >= 64: out.append(f"{op}_dpp v{v}, v{v}, v{v} row_bcast:31 row_mask:0xc bank_mask:0xf")
    return out

class Stamps:
    def __init__(self, A, on, base, kid):
        self.A, self.on, self.base, self.n, self.kid = A, on, base, 0, kid
        self.names = []
    def mark(self, name):
        if self.on:
            r = self.base + 2 * self.n
            self.A(f"s_memrealtime s[{r}:{r+1}]"); self.n += 1; self.names.append(name)
    def flush(self, ws_lo, wave_s, v0, tmp_s):
        if not self.on: return
        A = self.A
        self.mark("end")
        if self.on == "dbg":
            A(f"s_load_dwordx2 s[{tmp_s+4}:{tmp_s+5}], s[0:1], 80")
            A("s_waitcnt lgkmcnt(0)")
            A("s_mov_b64 exec, 1")
            srd(A, tmp_s, tmp_s+4, tmp_s+5, 256)
            A(f"v_mov_b32 v{v0}, 0")
            A(f"s_not_b32 s{tmp_s+4}, s{self.base}")
            A(f"v_mov_b32 v{v0+1}, s{tmp_s+4}")
            A(f"buffer_atomic_umax v{v0+1}, v{v0}, s[{tmp_s}:{tmp_s+3}], 0 offen")
            for i in range(self.n):
                A(f"v_mov_b32 v{v0+2+i}, s{self.base + 2*i}")
                A(f"buffer_atomic_umax v{v0+2+i}, v{v0}, s[{tmp_s}:{tmp_s+3}], 0 offen offset:{4*i+4}")
            return
        A("s_waitcnt lgkmcnt(0)")
        A("s_mov_b64 exec, 1")
        srd(A, tmp_s, ws_lo, ws_lo + 1, 0x10000000)
        A(f"s_lshl_b32 s{tmp_s+4}, s2, 4\ns_add_u32 s{tmp_s+4}, s{tmp_s+4}, s{wave_s}\ns_lshl_b32 s{tmp_s+4}, s{tmp_s+4}, 6")
        A(f"s_add_u32 s{tmp_s+4}, s{tmp_s+4}, {WS_STAMP + self.kid * (1 << 20)}")
        A(f"v_mov_b32 v{v0}, 0")
        for i in range(self.n):
            A(f"v_mov_b32 v{v0+1}, s{self.base + 2*i}")
            A(f"buffer_store_dword v{v0+1}, v{v0}, s[{tmp_s}:{tmp_s+3}], s{tmp_s+4} offen offset:{4*i}")

def touch_x(A, spec, s_rank, s_tmp, v_addr, v_dst, srd_x):
    kind, lanes_list = spec[0], spec[1:]
    pos = 0
    for n, lanes in enumerate(lanes_list):
        A(f"s_mul_i32 s{s_tmp}, s{s_rank}, {lanes*128}")
        if pos: A(f"s_add_u32 s{s_tmp}, s{s_tmp}, {pos}")
        m = (1 << lanes) - 1
        if lanes < 64: A(f"s_mov_b32 exec_lo, {m & 0xffffffff}\ns_mov_b32 exec_hi, {m >> 32}")
        A(f"buffer_load_dword v{v_dst+n}, v{v_addr}, s[{srd_x}:{srd_x+3}], s{s_tmp} offen")
        if lanes < 64: A("s_mov_b64 exec, -1")
        pos += lanes * 128 * 10 * (256 if kind == "mall" else 32)
    return len(lanes_list)

def gen_k1(name, o):
    A = Asm()
    CNT, PFX, STG = 0, 1024, 2048
    lds = STG + 30720
    st = Stamps(A, o.get("stamps"), 64, 0)
    A(f".globl {name}\n.p2align 8\n.type {name},@function\n{name}:")
    A(f"s_cmp_ge_u32 s2, {NWG}\ns_cbranch_scc1 L_k1_end")
    st.mark("start")
    A("s_load_dwordx4 s[4:7], s[0:1], 0")
    A("s_load_dwordx4 s[8:11], s[0:1], 16")
    A("s_load_dwordx2 s[12:13], s[0:1], 32")
    A("s_load_dwordx2 s[14:15], s[0:1], 88")
    A.c("chunk id: workgroups that share an XCD under round-robin dispatch get neighbouring chunks")
    A("s_and_b32 s16, s2, 7\ns_lshl_b32 s16, s16, 5\ns_lshr_b32 s17, s2, 3\ns_add_u32 s16, s16, s17")
    A("v_lshrrev_b32 v1, 6, v0")
    A("v_lshlrev_b32 v2, 2, v0")
    A("v_readfirstlane_b32 s3, v1")
    A("v_mov_b32 v3, 0")
    A(f"ds_write_b32 v2, v3 offset:{CNT}")
    A("v_lshlrev_b32 v4, 4, v0")
    A("v_lshlrev_b32 v5, 3, v0")
    A("v_mul_u32_u24 v6, 24, v0")
    A("v_and_b32 v7, 63, v0")
    A(f"s_movk_i32 s17, {CH//4}\nv_cmp_gt_u32 s[18:19], s17, v0")
    A(f"s_mul_i32 s40, s16, {CH*4}\ns_mul_i32 s41, s16, {CH*2}\ns_mul_i32 s42, s16, {CH*6}")
    A("s_waitcnt lgkmcnt(0)")
    srd(A, 20, 12, 13, E*4)
    srd(A, 24, 10, 11, E*4)
    srd(A, 28, 8, 9, E*2)
    srd(A, 32, 6, 7, E*6)
    A("s_mov_b64 exec, s[18:19]")
    lf = o.get("k1_load_flags", "")
    A(f"buffer_load_dwordx4 v[8:11], v4, s[20:23], s40 offen {lf}")
    A(f"buffer_load_dwordx4 v[12:15], v4, s[24:27], s40 offen {lf}")
    A(f"buffer_load_dwordx2 v[16:17], v5, s[28:31], s41 offen {lf}")
    A(f"buffer_load_dwordx4 v[20:23], v6, s[32:35], s42 offen {lf}")
    A(f"buffer_load_dwordx2 v[24:25], v6, s[32:35], s42 offen offset:16 {lf}")
    A("s_mov_b64 exec, -1")
    srd(A, 36, 4, 5, N*512)
    nt = 0
    touch = o.get("k1_touch", ("mall", 16))
    if touch:
        A.c("touch x once so that the gather of the second launch finds it on chip")
        A("v_lshlrev_b32 v26, 7, v7")
        if touch[0] == "mall": A("s_mul_i32 s43, s16, 10")
        else: A("s_lshr_b32 s43, s2, 3\ns_mul_i32 s43, s43, 10")
        A("s_add_u32 s43, s43, s3")
        nt = touch_x(A, touch, 43, 48, 26, 28, 36)
    srd(A, 44, 14, 15, WS_USED)
    A("s_barrier")
    A("v_mov_b32 v3, 1")
    A("s_mov_b64 exec, s[18:19]")
    A(f"s_waitcnt vmcnt({4+nt})")
    st.mark("dst")
    for i in range(4):
        A(f"v_lshlrev_b32 v{32+i}, 2, v{8+i}")
        A(f"v_and_b32 v{32+i}, 0x3fc, v{32+i}")
        A(f"ds_add_rtn_u32 v{36+i}, v{32+i}, v3 offset:{CNT}")
    A("s_mov_b64 exec, -1")
    A("v_lshlrev_b32 v59, 4, v7")
    A("s_waitcnt lgkmcnt(0)")
    A("s_barrier")
    st.mark("ranked")
    A(f"ds_read_b128 v[60:63], v59 offset:{CNT}")
    A(f"s_waitcnt vmcnt({3+nt})")
    A.c("key = src<<9 | onehot(node)<<28 | (group*4 + source quarter)<<2 ; record i = v[40+4i : 42+4i] = c01, c23, key")
    A("s_mov_b32 s48, 0x10000000")
    for i in range(4):
        d, s, k = 8+i, 12+i, 42+4*i
        A(f"v_bfe_u32 v56, v{d}, 8, 2")
        A(f"v_lshlrev_b32_e64 v56, v56, s48")
        A(f"v_lshl_or_b32 v56, v{s}, 9, v56")
        A(f"v_mul_u32_u24 v57, 13, v{s}")
        A(f"v_lshrrev_b32 v57, 15, v57")
        A(f"v_lshrrev_b32 v58, 10, v{d}")
        A(f"v_lshl_or_b32 v57, v58, 2, v57")
        A(f"v_lshl_or_b32 v{k}, v57, 2, v56")
    A("s_waitcnt lgkmcnt(0)")
    A("v_add_u32 v65, v60, v61\nv_add_u32 v66, v65, v62\nv_add_u32 v67, v66, v63")
    A("v_mov_b32 v68, v67")
    for s in scan_steps("v_add_u32", 68): A(s)
    A("v_sub_u32 v68, v68, v67")
    A("v_add_u32 v69, v68, v60\nv_add_u32 v70, v68, v65\nv_add_u32 v71, v68, v66")
    A.c("every wave writes the same prefix table and then reads only after its own write")
    A(f"ds_write_b128 v59, v[68:71] offset:{PFX}")
    A("s_mov_b64 exec, s[18:19]")
    for i in range(4): A(f"ds_read_b32 v{32+i}, v{32+i} offset:{PFX}")
    A.c("coefficients a, a*Y0, a*Y1, a*Y2 in bf16")
    A(f"s_waitcnt vmcnt({nt})")
    st.mark("alldata")
    A("s_mov_b32 s49, 0xffff0000")
    def unpack(dst, reg, hi):
        if hi: A(f"v_and_b32 v{dst}, s49, v{reg}")
        else: A(f"v_lshlrev_b32 v{dst}, 16, v{reg}")
    for i in range(4):
        unpack(56, 16 + i//2, i & 1)
        for j in range(3):
            h = 3*i + j
            unpack(72+j, 20 + h//2, h & 1)
        for j in range(3): A(f"v_mul_f32 v{72+j}, v56, v{72+j}")
        A(f"v_cvt_pk_bf16_f32 v{40+4*i}, v56, v72")
        A(f"v_cvt_pk_bf16_f32 v{41+4*i}, v73, v74")
    A("s_waitcnt lgkmcnt(0)")
    for i in range(4):
        A(f"v_add_u32 v{32+i}, v{32+i}, v{36+i}")
        A(f"v_mul_u32_u24 v{32+i}, 12, v{32+i}")
        A(f"ds_write_b32 v{32+i}, v{42+4*i} offset:{STG+8}")
        A(f"v_add_u32 v{32+i}, {STG}, v{32+i}")
        A(f"ds_write2_b32 v{32+i}, v{40+4*i}, v{41+4*i} offset0:0 offset1:1")
    A("s_mov_b64 exec, -1")
    A.c("waves 0..3 publish start|len<<16 of bucket 4*lane+wave")
    A("s_cmp_ge_u32 s3, 4\ns_cbranch_scc1 L_k1_nooff")
    A("v_mov_b32 v72, v68\nv_mov_b32 v73, v60")
    for w in (1, 2, 3):
        A(f"s_cmp_lg_u32 s3, {w}\ns_cbranch_scc1 L_k1_o{w}")
        A(f"v_mov_b32 v72, v{68+w}\nv_mov_b32 v73, v{60+w}")
        A(f"L_k1_o{w}:")
    A("v_lshl_or_b32 v72, v73, 16, v72")
    A("v_lshlrev_b32 v73, 12, v7")
    A("s_lshl_b32 s50, s3, 10\ns_lshl_b32 s51, s16, 2\ns_add_u32 s50, s50, s51")
    if WS_OFF: A(f"s_add_u32 s50, s50, {WS_OFF}")
    sf = o.get("k1_store_flags", "")
    A(f"buffer_store_dword v72, v73, s[44:47], s50 offen {sf}")
    A("L_k1_nooff:")
    A(f"s_mul_i32 s50, s16, {RSTR}\ns_add_u32 s50, s50, {WS_REC}")
    A(f"s_movk_i32 s17, {CH*12//16 - 1280}\nv_cmp_gt_u32 s[18:19], s17, v0")
    A("s_add_u32 s51, s50, 10240\ns_add_u32 s52, s50, 20480")
    A("s_waitcnt lgkmcnt(0)")
    A("s_barrier")
    st.mark("sorted")
    for q in range(3): A(f"ds_read_b128 v[{8+4*q}:{11+4*q}], v4 offset:{STG + 10240*q}")
    A("s_waitcnt lgkmcnt(2)")
    A(f"buffer_store_dwordx4 v[8:11], v4, s[44:47], s50 offen {sf}")
    A("s_waitcnt lgkmcnt(1)")
    A(f"buffer_store_dwordx4 v[12:15], v4, s[44:47], s51 offen {sf}")
    A("s_waitcnt lgkmcnt(0)")
    A("s_mov_b64 exec, s[18:19]")
    A(f"buffer_store_dwordx4 v[16:19], v4, s[44:47], s52 offen {sf}")
    if st.on:
        st.mark("issued")
        A("s_waitcnt vmcnt(0)")
    st.flush(14, 3, 20, 52)
    A("L_k1_end:")
    A("s_endpgm")
    return A.finish(o.get("verbose")), lds, 80, 96 if st.on else 56, st.names

NIT = 5
WIN = 64 * NIT
CAP = 10 * WIN + 320
L_ZERO, L_RND, L_CNT, L_KEY = 0, 64, 128, 512
L_COEF = L_KEY + CAP*4 + 128
L_W = L_COEF + CAP*8 + 256
L_STG = L_W + 40960
SROW, SWAVE = 416, 16*416
L_END = L_STG + 10*SWAVE
assert L_W % 128 == 0 and L_END <= 163840

def gen_k2(name, o):
    A = Asm()
    st = Stamps(A, o.get("stamps"), 72, 1)
    vLane, vOff, vKA, vK2A, vCA, vSh = 1, 2, 3, 4, 5, 6
    vK2 = 8
    vAF = 10
    vK = 14
    vT = 22
    vD = 38
    vC = 102
    NV = 166
    sWave, sB = 3, 16
    SX, SWS, SOUT, SW0, SW1, SWM, SWR = 20, 24, 28, 32, 36, 40, 44
    sMask = 48
    sTot, sRnd, sRound, sN, sRem, sStep, sT1, sT2, sT3 = 58, 59, 60, 61, 62, 63, 64, 65, 66
    sP0, sP1, sRowM = 67, 68, 69
    sTmp = 17
    A(f".globl {name}\n.p2align 8\n.type {name},@function\n{name}:")
    A(f"s_cmp_ge_u32 s2, {NWG}\ns_cbranch_scc1 L_k2_end")
    st.mark("start")
    A("s_load_dwordx2 s[14:15], s[0:1], 88")
    A("s_load_dwordx2 s[4:5], s[0:1], 0")
    A("s_load_dwordx4 s[8:11], s[0:1], 40")
    A("s_load_dwordx2 s[6:7], s[0:1], 56")
    A("s_load_dwordx2 s[12:13], s[0:1], 72")
    A(f"s_and_b32 s{sB}, s2, 7\ns_lshl_b32 s{sB}, s{sB}, 5\ns_lshr_b32 s17, s2, 3\ns_add_u32 s{sB}, s{sB}, s17")
    A("v_lshrrev_b32 v7, 6, v0")
    A(f"v_and_b32 v{vLane}, 63, v0")
    A(f"v_readfirstlane_b32 s{sWave}, v7")
    A(f"s_mov_b32 s{sRound}, 0")
    A.c("this wave reads chunks seg0 .. seg0+nseg-1 of the bucket")
    sSeg0, sNseg, sMk = 70, 71, 18
    A(f"s_lshl_b32 s{sSeg0}, s{sWave}, 7\ns_mul_i32 s{sSeg0}, s{sSeg0}, 52429\ns_lshr_b32 s{sSeg0}, s{sSeg0}, 18")
    A(f"s_add_u32 s17, s{sWave}, 1\ns_lshl_b32 s17, s17, 7\ns_mul_i32 s17, s17, 52429\ns_lshr_b32 s17, s17, 18")
    A(f"s_sub_u32 s{sNseg}, s17, s{sSeg0}")
    A(f"s_mul_i32 s{sMk}, s{sWave}, {SWAVE}\ns_add_u32 s{sMk}, s{sMk}, {L_STG}")
    vz = vD + 40
    def lds_init():
        A(f"v_lshlrev_b32 v7, 4, v0")
        for i in range(4): A(f"v_mov_b32 v{vz+i}, {PADKEY:#x}" if i == 0 else f"v_mov_b32 v{vz+i}, v{vz}")
        A(f"ds_write_b128 v7, v[{vz}:{vz+3}] offset:{L_KEY}")
        A(f"ds_write_b128 v7, v[{vz}:{vz+3}] offset:{L_KEY+10240}")
        for i in range(4): A(f"v_mov_b32 v{vz+4+i}, 0")
        A(f"v_lshlrev_b32 v7, 4, v{vLane}")
        A(f"v_add_u32 v{vz+8}, s{sMk}, v7")
        A(f"ds_write_b128 v{vz+8}, v[{vz+4}:{vz+7}]")
        A(f"ds_write_b128 v{vz+8}, v[{vz+4}:{vz+7}] offset:1024")
    lds_init()
    A(f"s_mov_b32 exec_lo, -1\ns_mov_b32 exec_hi, 0")
    A(f"ds_write_b128 v7, v[{vz+4}:{vz+7}]")
    A("s_mov_b64 exec, -1")
    vOf = vD
    A(f"v_add_u32 v{vD+1}, s{sSeg0}, v{vLane}")
    A(f"v_lshlrev_b32 v{vD+2}, 2, v{vD+1}")
    A(f"v_cmp_gt_u32 vcc, s{sNseg}, v{vLane}")
    A(f"v_bfrev_b32 v{vD+3}, -2")
    A(f"s_lshl_b32 s17, s{sB}, 10")
    if WS_OFF: A(f"s_add_u32 s17, s17, {WS_OFF}")
    A(f"v_cndmask_b32 v{vD+2}, v{vD+3}, v{vD+2}, vcc")
    A("s_waitcnt lgkmcnt(0)")
    srd(A, SWS, 14, 15, WS_USED)
    A(f"buffer_load_dword v{vOf}, v{vD+2}, s[{SWS}:{SWS+3}], s17 offen")
    A.c("weights: 40 wave-loads of 8 rows; load w+10q comes from w_si0 when < 16, else from w_si1")
    srd(A, SW0, 10, 11, 128*128)
    srd(A, SW1, 6, 7, 192*128)
    srd(A, SWR, 8, 9, 640)
    A(f"s_cmp_lt_u32 s{sWave}, 6")
    A(f"s_cselect_b32 s{SWM}, s10, s6\ns_cselect_b32 s{SWM+1}, s11, s7")
    A(f"s_cselect_b32 s{SWM+2}, s{SW0+2}, s{SW1+2}\ns_mov_b32 s{SWM+3}, 0x00020000")
    A(f"s_cselect_b32 s19, 0, 16384\ns_sub_u32 s19, 10240, s19")
    A(f"s_lshl_b32 s17, s{sWave}, 10")
    A(f"s_add_u32 s19, s19, s17")
    vW = vD + 8
    vWr = vD + 24
    A(f"buffer_load_dwordx4 v[{vW}:{vW+3}], v7, s[{SW0}:{SW0+3}], s17 offen")
    A(f"buffer_load_dwordx4 v[{vW+4}:{vW+7}], v7, s[{SWM}:{SWM+3}], s19 offen")
    A(f"s_add_u32 s19, s17, {20480-16384}")
    A(f"buffer_load_dwordx4 v[{vW+8}:{vW+11}], v7, s[{SW1}:{SW1+3}], s19 offen")
    A(f"s_add_u32 s19, s17, {30720-16384}")
    A(f"buffer_load_dwordx4 v[{vW+12}:{vW+15}], v7, s[{SW1}:{SW1+3}], s19 offen")
    A(f"v_lshrrev_b32 v{vD+4}, 3, v{vLane}")
    A(f"v_lshlrev_b32 v{vD+4}, 1, v{vD+4}")
    A(f"s_lshl_b32 s17, s{sWave}, 4")
    for q in range(4):
        A(f"buffer_load_ushort v{vWr+q}, v{vD+4}, s[{SWR}:{SWR+3}], s17 offen offset:{160*q}")
    srd(A, SX, 4, 5, N*512)
    srd(A, SOUT, 12, 13, N*512)
    nt = 0
    touch = o.get("k2_touch")
    if touch:
        A(f"v_lshlrev_b32 v{vD+5}, 7, v{vLane}")
        A(f"s_lshr_b32 s19, s2, 3\ns_mul_i32 s19, s19, 10\ns_add_u32 s19, s19, s{sWave}")
        nt = touch_x(A, touch, 19, 17, vD+5, vD+6, SX)
        assert nt <= 2
    A.c("lane constants of the main loop")
    A(f"v_and_b32 v{vOff}, 15, v{vLane}\nv_lshlrev_b32 v{vOff}, 4, v{vOff}")
    A(f"v_and_b32 v{vSh}, 3, v{vLane}\nv_add_u32 v{vSh}, 28, v{vSh}")
    A(f"s_mov_b32 s{sP0}, 0x05040100\ns_mov_b32 s{sP1}, 0x07060302\ns_mov_b32 s{sRowM}, 0x007ffe00")
    for i in range(64): A(f"v_mov_b32 v{vC+i}, 0")
    A("s_barrier")
    A(f"s_waitcnt vmcnt({8+nt})")
    st.mark("off")
    A("L_k2_round:")
    vLen, vInc, vM, vPos = vD+2, vD+3, vD+28, vD+29
    vMk = vD + 30
    vR = vT
    A(f"v_lshrrev_b32 v{vLen}, 16, v{vOf}")
    A(f"v_mov_b32 v{vInc}, v{vLen}")
    A(f"v_and_b32 v{vM}, 0xffff, v{vOf}")
    steps = scan_steps("v_add_u32", vInc, upto=32)
    A(f"s_mov_b32 s17, {RSTR}")
    A(steps[0])
    A(f"v_mul_lo_u32 v{vPos}, v{vD+1}, s17")
    A(steps[1]); A(steps[2]); A(steps[3]); A(steps[4])
    A(f"v_readlane_b32 s{sTot}, v{vInc}, 31")
    A(f"v_sub_u32 v{vInc}, v{vInc}, v{vLen}")
    A(f"v_sub_u32 v{vM}, v{vM}, v{vInc}")
    A(f"v_mad_i32_i24 v{vM}, v{vM}, 12, v{vPos}")
    A(f"s_mul_i32 s17, s{sRound}, {WIN}")
    A(f"v_subrev_u32 v{vPos}, s17, v{vInc}")
    A(f"s_movk_i32 s19, 383")
    A(f"v_med3_i32 v{vPos}, v{vPos}, 0, s19")
    A(f"v_lshl_add_u32 v{vPos}, v{vPos}, 2, s{sMk}")
    A(f"s_mov_b32 exec_lo, -1\ns_mov_b32 exec_hi, 0")
    A(f"ds_max_u32 v{vPos}, v{vM}")
    A("s_mov_b64 exec, -1")
    A(f"v_lshl_add_u32 v{vPos}, v{vLane}, 2, s{sMk}")
    for it in range(NIT): A(f"ds_read_b32 v{vMk+it}, v{vPos} offset:{256*it}")
    A(f"s_sub_u32 s{sRem}, s{sTot}, s17")
    A(f"s_mul_i32 s17, s17, 12\ns_add_u32 s17, s17, {WS_REC}")
    for it in range(NIT):
        A(f"v_add_u32 v{vPos}, {64*it}, v{vLane}" if it else f"v_mov_b32 v{vPos}, v{vLane}")
        A(f"v_cmp_gt_i32 s[{sMask+2*it}:{sMask+2*it+1}], s{sRem}, v{vPos}")
    A(f"v_mul_u32_u24 v{vPos}, 12, v{vLane}")
    A("s_waitcnt lgkmcnt(0)")
    sc = [scan_steps("v_max_u32", vMk+it) for it in range(NIT)]
    for k in range(6):
        for it in range(NIT): A(sc[it][k])
    for it in range(NIT):
        if it:
            A(f"v_readlane_b32 s19, v{vMk+it-1}, 63")
            A(f"v_max_u32 v{vMk+it}, s19, v{vMk+it}")
    for it in range(NIT):
        A(f"v_add_u32 v{vMk+it}, v{vMk+it}, v{vPos}")
    vSave = vD + 36
    A(f"v_mov_b32 v{vSave}, v{vOf}\nv_mov_b32 v{vSave+1}, v{vD+1}")
    for it in range(NIT):
        A(f"buffer_load_dwordx3 v[{vR+4*it}:{vR+4*it+2}], v{vMk+it}, s[{SWS}:{SWS+3}], s17 offen offset:{768*it}")
    st.mark("recissue")
    A(f"s_cmp_lg_u32 s{sRound}, 0\ns_cbranch_scc1 L_k2_now")
    A.c("first round only: number of rounds, and the weights scaled by w_rad into LDS")
    A(f"s_cmp_le_u32 s{sTot}, {WIN}\ns_cbranch_scc1 L_k2_one")
    A(f"v_mov_b32 v{vPos}, s{sTot}\nv_mov_b32 v{vM}, {L_RND}")
    A("s_mov_b64 exec, 1")
    A(f"ds_max_u32 v{vM}, v{vPos}")
    A("s_mov_b64 exec, -1")
    A("L_k2_one:")
    vWA = vD + 28
    A(f"v_lshrrev_b32 v{vWA}, 4, v{vLane}\nv_and_b32 v{vWA}, 1, v{vWA}")
    A(f"s_and_b32 s19, s{sWave}, 1\ns_lshl_b32 s19, s19, 1")
    A(f"v_or_b32 v{vWA}, s19, v{vWA}\nv_lshlrev_b32 v{vWA}, 3, v{vWA}")
    A(f"v_xor_b32 v{vWA}, v7, v{vWA}")
    A(f"s_lshl_b32 s19, s{sWave}, 10\ns_add_u32 s19, s19, {L_W}")
    A(f"v_add_u32 v{vWA}, s19, v{vWA}")
    A(f"v_xor_b32 v{vWA+1}, 8, v{vWA}")
    A(f"s_mov_b32 s19, 0xffff0000")
    A(f"s_waitcnt vmcnt({NIT+nt})")
    for q in range(4):
        A(f"v_lshlrev_b32 v{vWr+q}, 16, v{vWr+q}")
        for d in range(4):
            r = vW + 4*q + d
            A(f"v_lshlrev_b32 v{vz}, 16, v{r}\nv_and_b32 v{vz+1}, s19, v{r}")
            A(f"v_mul_f32 v{vz}, v{vWr+q}, v{vz}\nv_mul_f32 v{vz+1}, v{vWr+q}, v{vz+1}")
            A(f"v_cvt_pk_bf16_f32 v{r}, v{vz}, v{vz+1}")
        A(f"ds_write_b64 v{vWA}, v[{vW+4*q}:{vW+4*q+1}] offset:{10240*q}")
        A(f"ds_write_b64 v{vWA+1}, v[{vW+4*q+2}:{vW+4*q+3}] offset:{10240*q}")
    A("L_k2_now:")
    vBin = vMk
    vRank = vD + 44
    A(f"v_mov_b32 v{vPos}, 1")
    for it in range(NIT):
        A(f"s_waitcnt vmcnt({NIT-1-it})")
        if it == 0: st.mark("rec0")
        A(f"v_and_b32 v{vBin+it}, 0xfc, v{vR+4*it+2}")
        A(f"s_mov_b64 exec, s[{sMask+2*it}:{sMask+2*it+1}]")
        A(f"ds_add_rtn_u32 v{vRank+it}, v{vBin+it}, v{vPos} offset:{L_CNT}")
        A("s_mov_b64 exec, -1")
    vc, vs, vtq, vx, vm1, vm2 = vD+50, vD+51, vD+52, vD+53, vD+54, vD+55
    A(f"v_and_b32 v{vx}, 3, v{vLane}")
    A(f"v_cmp_lt_u32 vcc, 0, v{vx}\nv_lshlrev_b32 v{vPos}, 2, v{vLane}\nv_cndmask_b32 v{vm1}, 0, -1, vcc")
    A(f"v_cmp_lt_u32 vcc, 1, v{vx}\nv_mov_b32 v{vM}, {L_RND}\nv_cndmask_b32 v{vm2}, 0, -1, vcc")
    A("s_waitcnt lgkmcnt(0)")
    A("s_barrier")
    st.mark("ranked")
    A(f"ds_read_b32 v{vc}, v{vPos} offset:{L_CNT}")
    A(f"ds_read_b32 v{vM}, v{vM}")
    A("s_waitcnt lgkmcnt(1)")
    A(f"v_and_b32_dpp v{vx}, v{vc}, v{vm1} quad_perm:[0,0,1,2] row_mask:0xf bank_mask:0xf")
    A(f"v_add_u32 v{vs}, v{vc}, v{vx}")
    A(f"v_and_b32_dpp v{vx}, v{vs}, v{vm2} quad_perm:[0,0,0,1] row_mask:0xf bank_mask:0xf")
    A(f"v_add_u32 v{vs}, v{vs}, v{vx}")
    A(f"v_mov_b32_dpp v{vtq}, v{vs} quad_perm:[3,3,3,3] row_mask:0xf bank_mask:0xf")
    A(f"v_add_u32 v{vx}, 31, v{vtq}\nv_and_b32 v{vx}, 0xffffffe0, v{vx}")
    A(f"v_sub_u32 v{vs}, v{vs}, v{vc}")
    A(f"v_sub_u32 v{vs}, v{vs}, v{vx}")
    A(f"v_mov_b32 v{vc}, v{vx}")
    for s in scan_steps("v_add_u32", vx, first=4): A(s)
    A(f"s_lshl_b32 s19, s{sWave}, 2")
    A(f"v_add_u32 v{vs}, v{vs}, v{vx}")
    A(f"v_sub_u32 v{vc}, v{vx}, v{vc}")
    for it in range(NIT): A(f"ds_bpermute_b32 v{vBin+it}, v{vBin+it}, v{vs}")
    A(f"v_readlane_b32 s{sN}, v{vtq}, s19")
    A(f"v_readlane_b32 s17, v{vc}, s19")
    A(f"s_cmp_lg_u32 s{sRound}, 0\ns_cbranch_scc1 L_k2_havernd")
    A(f"s_waitcnt lgkmcnt({NIT})")
    A(f"v_readfirstlane_b32 s{sRnd}, v{vM}")
    A("L_k2_havernd:")
    A(f"s_mov_b32 s19, 0xffffffe0")
    for it in range(NIT):
        p = vBin + it
        A(f"s_waitcnt lgkmcnt({NIT-1-it + 2*it})")
        A(f"v_add_u32 v{p}, v{p}, v{vRank+it}")
        A(f"v_bfe_u32 v{vx}, v{p}, 2, 3\nv_and_b32 v{vm1}, 3, v{p}")
        A(f"v_lshl_or_b32 v{vx}, v{vm1}, 3, v{vx}")
        A(f"v_and_or_b32 v{p}, v{p}, s19, v{vx}")
        A(f"v_lshlrev_b32 v{vx}, 2, v{p}\nv_lshlrev_b32 v{p}, 3, v{p}")
        A(f"s_mov_b64 exec, s[{sMask+2*it}:{sMask+2*it+1}]")
        A(f"ds_write_b32 v{vx}, v{vR+4*it+2} offset:{L_KEY}")
        A(f"ds_write_b64 v{p}, v[{vR+4*it}:{vR+4*it+1}] offset:{L_COEF}")
        A("s_mov_b64 exec, -1")
    A.c("LDS addresses of this wave's slots")
    A(f"v_lshrrev_b32 v{vx}, 4, v{vLane}\nv_lshlrev_b32 v{vx}, 3, v{vx}\nv_add_u32 v{vx}, s17, v{vx}")
    A(f"v_lshlrev_b32 v{vKA}, 2, v{vx}")
    A(f"v_bfe_u32 v{vm1}, v{vLane}, 2, 2\nv_add_u32 v{vx}, v{vx}, v{vm1}")
    A(f"v_lshlrev_b32 v{vK2A}, 2, v{vx}")
    A(f"v_lshlrev_b32 v{vCA}, 3, v{vx}\nv_add_u32 v{vCA}, {L_COEF}, v{vCA}")
    A(f"v_mov_b32 v7, v{vSave}\nv_mov_b32 v0, v{vSave+1}")
    A(f"s_add_u32 s17, s{sN}, 31\ns_lshr_b32 s17, s17, 5")
    A(f"s_add_u32 s{sT1}, s17, 2\ns_lshr_b32 s{sT1}, s{sT1}, 2")
    A(f"s_add_u32 s{sT2}, s17, 1\ns_lshr_b32 s{sT2}, s{sT2}, 1")
    A(f"s_mul_i32 s{sT3}, s17, 3\ns_add_u32 s{sT3}, s{sT3}, 2\ns_lshr_b32 s{sT3}, s{sT3}, 2")
    A("s_waitcnt lgkmcnt(0)")
    for i in range(64): A(f"v_mov_b32 v{vD+i}, 0")
    A("s_barrier")
    st.mark("sorted")
    def rd_keys():
        A(f"ds_read_b128 v[{vK}:{vK+3}], v{vKA} offset:{L_KEY}")
        A(f"ds_read_b128 v[{vK+4}:{vK+7}], v{vKA} offset:{L_KEY+16}")
        A(f"ds_read2_b32 v[{vK2}:{vK2+1}], v{vK2A} offset0:{L_KEY//4} offset1:{L_KEY//4+4}")
        A(f"v_add_u32 v{vKA}, 128, v{vKA}\nv_add_u32 v{vK2A}, 128, v{vK2A}")
    def addr():
        for i in range(8): A(f"v_and_or_b32 v{vK+i}, v{vK+i}, s{sRowM}, v{vOff}")
        for u in range(2):
            A(f"v_bfe_i32 v{vK2+u}, v{vK2+u}, v{vSh}, 1")
            A(f"v_and_b32 v{vK2+u}, v{vK2+u}, v{vCA}")
        A(f"v_add_u32 v{vCA}, 256, v{vCA}")
    def rd_coef():
        A(f"ds_read_b64_tr_b16 v[{vAF}:{vAF+1}], v{vK2}")
        A(f"ds_read_b64_tr_b16 v[{vAF+2}:{vAF+3}], v{vK2+1} offset:32")
    gf = o.get("gather_flags", "")
    def load(h, i):
        d = vD + h*32 + i*4
        A(f"buffer_load_dwordx4 v[{d}:{d+3}], v{vK+i}, s[{SX}:{SX+3}], 0 offen offset:{h*256} {gf}")
    def loads(h):
        for i in range(8): load(h, i)
    def loads_part(h, tag, wait):
        for i in range(8):
            if i: A(f"s_cmp_le_i32 s{sRem}, {4*i}\ns_cbranch_scc1 L_{tag}_{i}")
            load(h, i)
        if wait:
            A(f"s_waitcnt vmcnt(8)\ns_branch L_{tag}_done")
            for i in range(1, 8):
                A(f"L_{tag}_{i}:\ns_waitcnt vmcnt({i})")
                if i < 7: A(f"s_branch L_{tag}_done")
            A(f"L_{tag}_done:")
        else:
            for i in range(1, 8): A(f"L_{tag}_{i}:")
    def comp(h, lgkm=False, filler=None):
        def mf(g):
            t = vT + (g % 4)*4
            c = vC + (h*8 + g)*4
            A(f"v_mfma_f32_16x16x32_bf16 v[{c}:{c+3}], v[{vAF}:{vAF+3}], v[{t}:{t+3}], v[{c}:{c+3}]")
        for g in range(8):
            u, par = g >> 1, g & 1
            t = vT + (g % 4)*4
            for q in range(4):
                a = vD + h*32 + (2*q)*4 + u
                b = vD + h*32 + (2*q+1)*4 + u
                A(f"v_perm_b32 v{t+q}, v{b}, v{a}, s{sP0+par}")
            if lgkm and g == 1: A("s_waitcnt lgkmcnt(0)")
            if g: mf(g-1)
        if filler: filler()
        mf(7)
    prio = o.get("prio", True)
    A(f"s_cmp_eq_u32 s{sN}, 0\ns_cbranch_scc1 L_k2_done")
    if prio: A("s_setprio 3")
    rd_keys()
    A(f"s_mov_b32 s{sRem}, s{sN}\ns_mov_b32 s{sStep}, 1")
    A("s_waitcnt lgkmcnt(0)")
    addr()
    rd_coef()
    loads_part(0, "p0", False)
    loads_part(1, "p1", False)
    rd_keys()
    A(f"s_sub_u32 s{sRem}, s{sRem}, 32")
    A(f"s_cmp_lt_i32 s{sRem}, 32\ns_cbranch_scc1 L_k2_tail")
    A(".p2align 3")
    A("L_k2_loop:")
    if prio:
        for k, t in enumerate((sT1, sT2, sT3)):
            A(f"s_cmp_lg_u32 s{sStep}, s{t}\ns_cbranch_scc1 L_k2_pr{k}\ns_setprio {2-k}\nL_k2_pr{k}:")
        A(f"s_add_u32 s{sStep}, s{sStep}, 1")
    A("s_waitcnt vmcnt(8)")
    comp(0, True, addr)
    loads(0)
    A("s_waitcnt vmcnt(8)")
    comp(1, False, lambda: load(1, 0))
    for i in range(1, 8): load(1, i)
    rd_coef()
    rd_keys()
    A(f"s_sub_u32 s{sRem}, s{sRem}, 32")
    A(f"s_cmp_ge_i32 s{sRem}, 32\ns_cbranch_scc1 L_k2_loop")
    A("L_k2_tail:")
    if prio: A("s_setprio 0")
    A(f"s_cmp_le_i32 s{sRem}, 0\ns_cbranch_scc1 L_k2_last")
    A("s_waitcnt vmcnt(8)")
    comp(0, True, addr)
    loads_part(0, "t0", True)
    comp(1)
    loads_part(1, "t1", False)
    rd_coef()
    A("L_k2_last:")
    A("s_waitcnt vmcnt(0)")
    comp(0, True)
    comp(1)
    A("L_k2_done:")
    st.mark("loopend")
    A(f"s_add_u32 s{sRound}, s{sRound}, 1")
    A(f"s_mul_i32 s17, s{sRound}, {WIN}")
    A(f"s_cmp_ge_u32 s17, s{sRnd}\ns_cbranch_scc1 L_k2_epi")
    A.c("rare: a wave found more records than one window holds; sort and gather the next window")
    A("s_waitcnt lgkmcnt(0)")
    A("s_barrier")
    A(f"v_mov_b32 v{vOf}, v7\nv_mov_b32 v{vD+1}, v0")
    A(f"s_lshl_b32 s17, s{sWave}, 6\nv_add_u32 v0, s17, v{vLane}")
    lds_init()
    A(f"s_mov_b32 exec_lo, 0xffff\ns_mov_b32 exec_hi, 0")
    A(f"ds_write_b128 v7, v[{vz+4}:{vz+7}] offset:{L_CNT}")
    A("s_mov_b64 exec, -1")
    A("s_waitcnt lgkmcnt(0)")
    A("s_barrier")
    A("s_branch L_k2_round")
    A("L_k2_epi:")
    vH, vSA, vt = vK, vK+1, vK+2
    sH = sMask
    A(f"v_bfe_u32 v{vt}, v{vLane}, 3, 1")
    A(f"v_cmp_eq_u32 s[{sH}:{sH+1}], 1, v{vt}")
    A(f"v_cvt_f32_u32 v{vH}, v{vt}")
    A(f"v_lshrrev_b32 v{vSA}, 4, v{vLane}\nv_mul_u32_u24 v{vSA}, {4*SROW}, v{vSA}")
    A(f"v_and_b32 v{vt+1}, 7, v{vLane}\nv_lshl_add_u32 v{vSA}, v{vt+1}, 4, v{vSA}")
    A(f"v_add_u32 v{vSA}, s{sMk}, v{vSA}")
    slots = [((0,0),(1,1)), ((2,1),(3,1)), ((1,0),(0,1)), ((2,0),(3,2)), ((3,0),(2,2)), ((0,2),(1,2))]
    vSW = vT
    for k, (l, h) in enumerate(slots):
        offL, offH = l[0]*SROW + l[1]*128, h[0]*SROW + h[1]*128
        A(f"s_movk_i32 s17, {offH-offL}")
        A(f"v_mad_i32_i24 v{vSW+k}, v{vt}, s17, v{vSA}")
    U = lambda jj, a: vC + jj*4 + a
    V = lambda jj, a: vC + (8+jj)*4 + a
    ror = "row_ror:8 row_mask:0xf bank_mask:0xf"
    for jj in range(8):
        t0, t1 = vT + 8 + 2*(jj & 1), vT + 9 + 2*(jj & 1)
        A(f"v_add_f32_dpp v{t0}, v{V(jj,2)}, v{V(jj,3)} {ror}")
        A(f"v_sub_f32_dpp v{t1}, v{V(jj,1)}, v{U(jj,2)} {ror}")
        A(f"v_subrev_f32_dpp v{V(jj,2)}, v{V(jj,3)}, v{V(jj,2)} {ror}")
        A(f"v_fma_f32 v{U(jj,3)}, -v{V(jj,1)}, v{vH}, v{U(jj,3)}")
        A(f"v_fma_f32 v{U(jj,1)}, v{t0}, v{vH}, v{U(jj,1)}")
        A(f"v_cndmask_b32 v{U(jj,2)}, v{U(jj,2)}, v{t1}, s[{sH}:{sH+1}]")
    srcs = [lambda jj: U(jj,0), lambda jj: V(jj,0), lambda jj: U(jj,1), lambda jj: U(jj,2), lambda jj: U(jj,3), lambda jj: V(jj,2)]
    for k, (l, h) in enumerate(slots):
        r = vD + 4*k
        for q in range(4): A(f"v_cvt_pk_bf16_f32 v{r+q}, v{srcs[k](2*q)}, v{srcs[k](2*q+1)}")
        A(f"ds_write_b128 v{vSW+k}, v[{r}:{r+3}] offset:{l[0]*SROW + l[1]*128}")
    vSR, vWB = vK+2, vK+4
    A(f"v_and_b32 v{vSR}, 15, v{vLane}\nv_mul_u32_u24 v{vSR}, {SROW}, v{vSR}")
    A(f"v_lshrrev_b32 v{vSR+1}, 4, v{vLane}\nv_lshl_add_u32 v{vSR}, v{vSR+1}, 4, v{vSR}")
    A(f"v_add_u32 v{vSR}, s{sMk}, v{vSR}")
    vS = vC
    vX, vY = vC + 24, vC + 40
    for kk in range(6): A(f"ds_read_b128 v[{vS+4*kk}:{vS+4*kk+3}], v{vSR} offset:{64*kk}")
    A.c("weight fragment address: row 8g+r, column block 32c, 8-byte chunk t ^ f")
    A(f"v_bfe_u32 v{vWB+1}, v{vLane}, 2, 2")
    A(f"v_lshl_add_u32 v{vWB}, v{vSR+1}, 3, v{vWB+1}\nv_lshlrev_b32 v{vWB}, 7, v{vWB}")
    A(f"v_and_b32 v{vWB+2}, 3, v{vLane}\nv_lshl_add_u32 v{vWB}, v{vWB+2}, 5, v{vWB}")
    A(f"v_lshrrev_b32 v{vWB+1}, 1, v{vWB+1}\nv_and_b32 v{vWB+2}, 1, v{vSR+1}")
    A(f"v_lshl_or_b32 v{vWB+1}, v{vWB+2}, 1, v{vWB+1}")
    A(f"v_lshl_add_u32 v{vWB}, v{vWB+1}, 3, v{vWB}\nv_add_u32 v{vWB}, {L_W}, v{vWB}")
    for t in range(1, 4): A(f"v_xor_b32 v{vWB+t}, {8*t}, v{vWB}")
    for i in range(32): A(f"v_mov_b32 v{vX+i}, 0")
    vF = vD + 24
    NF = 10
    jobs = [(kk, t) for kk in range(10) for t in range(4)]
    def rdw(n):
        kk, t = jobs[n]; r = vF + 4*(n % NF)
        A(f"ds_read_b64_tr_b16 v[{r}:{r+1}], v{vWB+t} offset:{kk*4096}")
        A(f"ds_read_b64_tr_b16 v[{r+2}:{r+3}], v{vWB+t} offset:{kk*4096+512}")
    AH = 7
    for n in range(AH): rdw(n)
    for n, (kk, t) in enumerate(jobs):
        out = min(len(jobs) - 1 - n, AH - 1)
        A(f"s_waitcnt lgkmcnt({2*out})")
        r = vF + 4*(n % NF)
        acc = (vX if kk < 4 else vY) + 4*t
        sk = kk if kk < 4 else kk - 4
        A(f"v_mfma_f32_16x16x32_bf16 v[{acc}:{acc+3}], v[{r}:{r+3}], v[{vS+4*sk}:{vS+4*sk+3}], v[{acc}:{acc+3}]")
        if n + AH < len(jobs): rdw(n + AH)
    A.c("output address: node = bucket + 256*(4*wave + j); rows past the last node fall outside the descriptor")
    vO = vK
    A(f"v_bfe_u32 v{vO}, v{vLane}, 2, 2\nv_lshlrev_b32 v{vO}, 17, v{vO}")
    A(f"v_and_b32 v{vO+1}, 3, v{vLane}")
    A(f"v_cmp_eq_u32 s[{sH}:{sH+1}], 0, v{vO+1}")
    A(f"v_lshl_add_u32 v{vO}, v{vO+1}, 7, v{vO}")
    A(f"v_lshl_add_u32 v{vO}, v{vSR+1}, 5, v{vO}")
    A(f"s_lshl_b32 s17, s{sWave}, 19\ns_lshl_b32 s19, s{sB}, 9\ns_add_u32 s17, s17, s19")
    A(f"s_mov_b32 s19, 0xbfb8aa3b")
    vG = vD
    for i in range(16): A(f"v_mul_f32 v{vG+i}, s19, v{vX+i}")
    for i in range(16): A(f"v_exp_f32 v{vG+i}, v{vG+i}")
    for i in range(16): A(f"v_add_f32 v{vG+i}, 1.0, v{vG+i}")
    for i in range(16): A(f"v_rcp_f32 v{vG+i}, v{vG+i}")
    for i in range(16): A(f"v_mul_f32_dpp v{vY+i}, v{vG+i}, v{vY+i} quad_perm:[0,0,0,0] row_mask:0xf bank_mask:0xf")
    for i in range(16): A(f"v_cndmask_b32 v{vY+i}, v{vY+i}, v{vX+i}, s[{sH}:{sH+1}]")
    for i in range(8): A(f"v_cvt_pk_bf16_f32 v{vG+i}, v{vY+2*i}, v{vY+2*i+1}")
    of = o.get("out_flags", "")
    A(f"buffer_store_dwordx4 v[{vG}:{vG+3}], v{vO}, s[{SOUT}:{SOUT+3}], s17 offen {of}")
    A(f"buffer_store_dwordx4 v[{vG+4}:{vG+7}], v{vO}, s[{SOUT}:{SOUT+3}], s17 offen offset:16 {of}")
    if st.on:
        st.mark("issued")
        A("s_waitcnt vmcnt(0)")
    st.flush(14, sWave, vT, 48)
    A("L_k2_end:")
    A("s_endpgm")
    return A.finish(o.get("verbose")), L_END, NV, 100 if st.on else 72, st.names

HEADER = """; Equivariant tensor-product message passing, N=10000 nodes, E=640000 edges, C=64.
"""
def build(o=None):
    o = o or {}
    n1, n2 = "tp_sort_kernel", "tp_gather_kernel"
    t1, lds1, v1, s1, names1 = gen_k1(n1, o)
    t2, lds2, v2, s2, names2 = gen_k2(n2, o)
    txt = HEADER
    empty = "; @launch kernel=tp_empty_kernel grid=(1,1,1) block=(64,1,1) lds=0\n"
    txt += empty * o.get("empty_pre", 0)
    txt += f"; @launch kernel={n1} grid=({NWG},1,1) block=(640,1,1) lds={lds1}\n" * o.get("k1_times", 1)
    txt += f"; @launch kernel={n2} grid=({NWG},1,1) block=(640,1,1) lds={lds2}\n" * o.get("k2_times", 1)
    txt += empty * o.get("empty_post", 0)
    txt += '.amdgcn_target "amdgcn-amd-amdhsa--gfx950"\n.text\n'
    txt += t1 + t2
    em = o.get("empty_pre") or o.get("empty_post")
    if em: txt += ".globl tp_empty_kernel\n.p2align 8\n.type tp_empty_kernel,@function\ntp_empty_kernel:\n    s_endpgm\n"
    txt += '.section .rodata,"a"\n' + kd(n1, v1, s1) + kd(n2, v2, s2)
    if em: txt += kd("tp_empty_kernel", 8, 16)
    return txt, [(n1, lds1, v1, names1), (n2, lds2, v2, names2)]

if __name__ == "__main__":
    out = sys.argv[1] if len(sys.argv) > 1 else "gather_scatter__tensor_product_equiv_equiformer__graph.s"
    txt, info = build({"verbose": True})
    open(out, "w").write(txt)
    print(info, len(txt))
```

```python
import sys
from asmlib import Asm, kd

N, E = 10000, 640000
NWG = 256
CH = E // NWG
RSTR = 30080
WS_OFF = 0
WS_REC = 262144
WS_USED = WS_REC + NWG * RSTR
WS_STAMP = 16 << 20
PADKEY = 0x0FFFFFFF

def srd(A, s, lo, hi, size):
    A(f"s_mov_b32 s{s}, s{lo}\ns_mov_b32 s{s+1}, s{hi}")
    A(f"s_mov_b32 s{s+2}, {size}\ns_mov_b32 s{s+3}, 0x00020000")

def scan_steps(op, v, upto=64, first=1):
    out = []
    for sh in (1, 2, 4, 8):
        if sh >= first:
            out.append(f"{op}_dpp v{v}, v{v}, v{v} row_shr:{sh} row_mask:0xf bank_mask:0xf bound_ctrl:0")
    if upto >= 32: out.append(f"{op}_dpp v{v}, v{v}, v{v} row_bcast:15 row_mask:0xa bank_mask:0xf")
    if upto >= 64: out.append(f"{op}_dpp v{v}, v{v}, v{v} row_bcast:31 row_mask:0xc bank_mask:0xf")
    return out

class Stamps:
    def __init__(self, A, on, base, kid):
        self.A, self.on, self.base, self.n, self.kid = A, on, base, 0, kid
        self.names = []
    def mark(self, name):
        if self.on:
            r = self.base + 2 * self.n
            self.A(f"s_memrealtime s[{r}:{r+1}]"); self.n += 1; self.names.append(name)
    def flush(self, ws_lo, wave_s, v0, tmp_s):
        if not self.on: return
        A = self.A
        self.mark("end")
        if self.on == "dbg":
            A(f"s_load_dwordx2 s[{tmp_s+4}:{tmp_s+5}], s[0:1], 80")
            A("s_waitcnt lgkmcnt(0)")
            A("s_mov_b64 exec, 1")
            srd(A, tmp_s, tmp_s+4, tmp_s+5, 256)
            A(f"v_mov_b32 v{v0}, 0")
            A(f"s_not_b32 s{tmp_s+4}, s{self.base}")
            A(f"v_mov_b32 v{v0+1}, s{tmp_s+4}")
            A(f"buffer_atomic_umax v{v0+1}, v{v0}, s[{tmp_s}:{tmp_s+3}], 0 offen")
            for i in range(self.n):
                A(f"v_mov_b32 v{v0+2+i}, s{self.base + 2*i}")
                A(f"buffer_atomic_umax v{v0+2+i}, v{v0}, s[{tmp_s}:{tmp_s+3}], 0 offen offset:{4*i+4}")
            return
        A("s_waitcnt lgkmcnt(0)")
        A("s_mov_b64 exec, 1")
        srd(A, tmp_s, ws_lo, ws_lo + 1, 0x10000000)
        A(f"s_lshl_b32 s{tmp_s+4}, s2, 4\ns_add_u32 s{tmp_s+4}, s{tmp_s+4}, s{wave_s}\ns_lshl_b32 s{tmp_s+4}, s{tmp_s+4}, 6")
        A(f"s_add_u32 s{tmp_s+4}, s{tmp_s+4}, {WS_STAMP + self.kid * (1 << 20)}")
        A(f"v_mov_b32 v{v0}, 0")
        for i in range(self.n):
            A(f"v_mov_b32 v{v0+1}, s{self.base + 2*i}")
            A(f"buffer_store_dword v{v0+1}, v{v0}, s[{tmp_s}:{tmp_s+3}], s{tmp_s+4} offen offset:{4*i}")

def touch_x(A, spec, s_rank, s_tmp, v_addr, v_dst, srd_x, nw=10):
    kind, lanes_list = spec[0], spec[1:]
    pos = 0
    for n, lanes in enumerate(lanes_list):
        A(f"s_mul_i32 s{s_tmp}, s{s_rank}, {lanes*128}")
        if pos: A(f"s_add_u32 s{s_tmp}, s{s_tmp}, {pos}")
        m = (1 << lanes) - 1
        if lanes < 64: A(f"s_mov_b32 exec_lo, {m & 0xffffffff}\ns_mov_b32 exec_hi, {m >> 32}")
        A(f"buffer_load_dword v{v_dst+n}, v{v_addr}, s[{srd_x}:{srd_x+3}], s{s_tmp} offen")
        if lanes < 64: A("s_mov_b64 exec, -1")
        pos += lanes * 128 * nw * (256 if kind == "mall" else 32)
    return len(lanes_list)

def gen_k1(name, o):
    A = Asm()
    CNT, PFX, STG = 0, 1024, 2048
    lds = STG + 30720
    st = Stamps(A, o.get("stamps"), 64, 0)
    A(f".globl {name}\n.p2align 8\n.type {name},@function\n{name}:")
    A(f"s_cmp_ge_u32 s2, {NWG}\ns_cbranch_scc1 L_k1_end")
    st.mark("start")
    A("s_load_dwordx4 s[4:7], s[0:1], 0")
    A("s_load_dwordx4 s[8:11], s[0:1], 16")
    A("s_load_dwordx2 s[12:13], s[0:1], 32")
    A("s_load_dwordx2 s[14:15], s[0:1], 88")
    A.c("chunk id: workgroups that share an XCD under round-robin dispatch get neighbouring chunks")
    A("s_and_b32 s16, s2, 7\ns_lshl_b32 s16, s16, 5\ns_lshr_b32 s17, s2, 3\ns_add_u32 s16, s16, s17")
    A("v_lshrrev_b32 v1, 6, v0")
    A("v_lshlrev_b32 v2, 2, v0")
    A("v_readfirstlane_b32 s3, v1")
    A("v_mov_b32 v3, 0")
    A(f"ds_write_b32 v2, v3 offset:{CNT}")
    A("v_lshlrev_b32 v4, 4, v0")
    A("v_lshlrev_b32 v5, 3, v0")
    A("v_mul_u32_u24 v6, 24, v0")
    A("v_and_b32 v7, 63, v0")
    A(f"s_movk_i32 s17, {CH//4}\nv_cmp_gt_u32 s[18:19], s17, v0")
    A(f"s_mul_i32 s40, s16, {CH*4}\ns_mul_i32 s41, s16, {CH*2}\ns_mul_i32 s42, s16, {CH*6}")
    A("s_waitcnt lgkmcnt(0)")
    srd(A, 20, 12, 13, E*4)
    srd(A, 24, 10, 11, E*4)
    srd(A, 28, 8, 9, E*2)
    srd(A, 32, 6, 7, E*6)
    A("s_mov_b64 exec, s[18:19]")
    lf = o.get("k1_load_flags", "nt")
    A(f"buffer_load_dwordx4 v[8:11], v4, s[20:23], s40 offen {lf}")
    A(f"buffer_load_dwordx4 v[12:15], v4, s[24:27], s40 offen {lf}")
    A(f"buffer_load_dwordx2 v[16:17], v5, s[28:31], s41 offen {lf}")
    A(f"buffer_load_dwordx4 v[20:23], v6, s[32:35], s42 offen {lf}")
    A(f"buffer_load_dwordx2 v[24:25], v6, s[32:35], s42 offen offset:16 {lf}")
    A("s_mov_b64 exec, -1")
    srd(A, 36, 4, 5, N*512)
    nt = 0
    touch = o.get("k1_touch", ("mall", 16))
    late = o.get("k1_late", False)
    def do_touch():
        A.c("touch x once so that the gather of the second launch finds it on chip")
        A("v_lshlrev_b32 v26, 7, v7")
        if touch[0] == "mall": A("s_mul_i32 s43, s16, 10")
        else: A("s_lshr_b32 s43, s2, 3\ns_mul_i32 s43, s43, 10")
        A("s_add_u32 s43, s43, s3")
        return touch_x(A, touch, 43, 53, 26, 28, 36)
    if touch and touch[0] == "scalar":
        A.c("touch x once (scalar path) so that the gather of the second launch finds it on chip")
        cnt, stride = touch[1], touch[2]
        A(f"s_mul_i32 s43, s16, 10\ns_add_u32 s43, s43, s3\ns_mul_i32 s43, s43, {cnt*stride}")
        A(f"s_min_u32 s43, s43, {N*512 - cnt*stride}")
        A("s_add_u32 s4, s4, s43\ns_addc_u32 s5, s5, 0")
        for b in range(cnt): A(f"s_load_dword s54, s[4:5], {b*stride}")
        touch = None
    if touch and not late: nt = do_touch()
    srd(A, 44, 14, 15, WS_USED)
    A("s_barrier")
    A("v_mov_b32 v3, 1")
    A("s_mov_b64 exec, s[18:19]")
    A(f"s_waitcnt vmcnt({4+nt})")
    st.mark("dst")
    for i in range(4):
        A(f"v_lshlrev_b32 v{32+i}, 2, v{8+i}")
        A(f"v_and_b32 v{32+i}, 0x3fc, v{32+i}")
        A(f"ds_add_rtn_u32 v{36+i}, v{32+i}, v3 offset:{CNT}")
    A("s_mov_b64 exec, -1")
    A("v_lshlrev_b32 v59, 4, v7")
    A("s_waitcnt lgkmcnt(0)")
    A("s_barrier")
    st.mark("ranked")
    A(f"ds_read_b128 v[60:63], v59 offset:{CNT}")
    A(f"s_waitcnt vmcnt({3+nt})")
    A.c("key = src<<9 | onehot(node)<<28 | (group*4 + source quarter)<<2 ; record i = v[40+4i : 42+4i] = c01, c23, key")
    A("s_mov_b32 s48, 0x10000000")
    for i in range(4):
        d, s, k = 8+i, 12+i, 42+4*i
        A(f"v_lshrrev_b32 v58, 8, v{d}")
        A(f"v_mul_u32_u24 v56, 43, v58\nv_lshrrev_b32 v56, 9, v56")
        A(f"v_mad_i32_i24 v58, v56, -12, v58")
        A(f"v_lshlrev_b32_e64 v56, v56, s48")
        A(f"v_lshl_or_b32 v56, v{s}, 9, v56")
        A(f"v_mul_u32_u24 v57, 13, v{s}")
        A(f"v_lshrrev_b32 v57, 15, v57")
        A(f"v_lshl_or_b32 v57, v58, 2, v57")
        A(f"v_lshl_or_b32 v{k}, v57, 2, v56")
    A("s_waitcnt lgkmcnt(0)")
    A("v_add_u32 v65, v60, v61\nv_add_u32 v66, v65, v62\nv_add_u32 v67, v66, v63")
    A("v_mov_b32 v68, v67")
    for s in scan_steps("v_add_u32", 68): A(s)
    A("v_sub_u32 v68, v68, v67")
    A("v_add_u32 v69, v68, v60\nv_add_u32 v70, v68, v65\nv_add_u32 v71, v68, v66")
    A.c("every wave writes the same prefix table and then reads only after its own write")
    A(f"ds_write_b128 v59, v[68:71] offset:{PFX}")
    A("s_mov_b64 exec, s[18:19]")
    for i in range(4): A(f"ds_read_b32 v{32+i}, v{32+i} offset:{PFX}")
    A.c("coefficients a, a*Y0, a*Y1, a*Y2 in bf16")
    A(f"s_waitcnt vmcnt({nt})")
    st.mark("alldata")
    if touch and late == 1:
        A("s_mov_b64 exec, -1")
        do_touch()
        A("s_mov_b64 exec, s[18:19]")
    A("s_mov_b32 s49, 0xffff0000")
    def unpack(dst, reg, hi):
        if hi: A(f"v_and_b32 v{dst}, s49, v{reg}")
        else: A(f"v_lshlrev_b32 v{dst}, 16, v{reg}")
    for i in range(4):
        unpack(56, 16 + i//2, i & 1)
        for j in range(3):
            h = 3*i + j
            unpack(72+j, 20 + h//2, h & 1)
        for j in range(3): A(f"v_mul_f32 v{72+j}, v56, v{72+j}")
        A(f"v_cvt_pk_bf16_f32 v{40+4*i}, v56, v72")
        A(f"v_cvt_pk_bf16_f32 v{41+4*i}, v73, v74")
    A("s_waitcnt lgkmcnt(0)")
    for i in range(4):
        A(f"v_add_u32 v{32+i}, v{32+i}, v{36+i}")
        A(f"v_mul_u32_u24 v{32+i}, 12, v{32+i}")
        A(f"ds_write_b32 v{32+i}, v{42+4*i} offset:{STG+8}")
        A(f"v_add_u32 v{32+i}, {STG}, v{32+i}")
        A(f"ds_write2_b32 v{32+i}, v{40+4*i}, v{41+4*i} offset0:0 offset1:1")
    A("s_mov_b64 exec, -1")
    A.c("waves 0..3 publish start|len<<16 of bucket 4*lane+wave")
    A("s_cmp_ge_u32 s3, 4\ns_cbranch_scc1 L_k1_nooff")
    A("v_mov_b32 v72, v68\nv_mov_b32 v73, v60")
    for w in (1, 2, 3):
        A(f"s_cmp_lg_u32 s3, {w}\ns_cbranch_scc1 L_k1_o{w}")
        A(f"v_mov_b32 v72, v{68+w}\nv_mov_b32 v73, v{60+w}")
        A(f"L_k1_o{w}:")
    A("v_lshl_or_b32 v72, v73, 16, v72")
    A("v_lshlrev_b32 v73, 12, v7")
    A("s_lshl_b32 s50, s3, 10\ns_lshl_b32 s51, s16, 2\ns_add_u32 s50, s50, s51")
    if WS_OFF: A(f"s_add_u32 s50, s50, {WS_OFF}")
    sf = o.get("k1_store_flags", "")
    A(f"buffer_store_dword v72, v73, s[44:47], s50 offen {sf}")
    A("L_k1_nooff:")
    A(f"s_mul_i32 s50, s16, {RSTR}\ns_add_u32 s50, s50, {WS_REC}")
    A(f"s_movk_i32 s17, {CH*12//16 - 1280}\nv_cmp_gt_u32 s[18:19], s17, v0")
    A("s_add_u32 s51, s50, 10240\ns_add_u32 s52, s50, 20480")
    A("s_waitcnt lgkmcnt(0)")
    A("s_barrier")
    st.mark("sorted")
    for q in range(3): A(f"ds_read_b128 v[{8+4*q}:{11+4*q}], v4 offset:{STG + 10240*q}")
    A("s_waitcnt lgkmcnt(2)")
    A(f"buffer_store_dwordx4 v[8:11], v4, s[44:47], s50 offen {sf}")
    A("s_waitcnt lgkmcnt(1)")
    A(f"buffer_store_dwordx4 v[12:15], v4, s[44:47], s51 offen {sf}")
    A("s_waitcnt lgkmcnt(0)")
    A("s_mov_b64 exec, s[18:19]")
    A(f"buffer_store_dwordx4 v[16:19], v4, s[44:47], s52 offen {sf}")
    if touch and late == 2:
        A("s_mov_b64 exec, -1")
        do_touch()
    if st.on:
        st.mark("issued")
        A("s_waitcnt vmcnt(0)")
    st.flush(14, 3, 20, 52)
    A("L_k1_end:")
    A("s_endpgm")
    return A.finish(o.get("verbose")), lds, 80, 96 if st.on else 56, st.names

NW = 12
NIT = 5
WIN = 64 * NIT
CAP = NW * WIN + NW * 32
L_ZERO, L_RND, L_CNT, L_KEY = 0, 64, 128, 512
L_COEF = L_KEY + CAP*4 + 128
L_W = L_COEF + CAP*8 + 256
L_STG = L_W + 40960
SROW = 416
L_END = L_STG + 40*4*SROW
assert L_W % 128 == 0 and L_END <= 163840, (L_W, L_END)

def gen_k2(name, o):
    A = Asm()
    st = Stamps(A, o.get("stamps"), 72, 1)
    vLane, vOff, vKA, vK2A, vCA, vSh = 1, 2, 3, 4, 5, 6
    vK2 = 8
    vAF = 10
    vK = 14
    vT = 22
    vD = 38
    vC = 102
    NV = 166
    sWave, sB = 3, 16
    SX, SWS, SOUT, SW0, SW1, SWM, SWR = 20, 24, 28, 32, 36, 40, 44
    sMask = 48
    sTot, sRnd, sRound, sN, sRem, sStep, sT1, sT2, sT3 = 58, 59, 60, 61, 62, 63, 64, 65, 66
    sP0, sP1, sRowM = 67, 68, 69
    sSeg0, sNseg, sMk = 70, 71, 18
    A(f".globl {name}\n.p2align 8\n.type {name},@function\n{name}:")
    A(f"s_cmp_ge_u32 s2, {NWG}\ns_cbranch_scc1 L_k2_end")
    st.mark("start")
    A("s_load_dwordx2 s[14:15], s[0:1], 88")
    A("s_load_dwordx2 s[4:5], s[0:1], 0")
    A("s_load_dwordx4 s[8:11], s[0:1], 40")
    A("s_load_dwordx2 s[6:7], s[0:1], 56")
    A("s_load_dwordx2 s[12:13], s[0:1], 72")
    A(f"s_and_b32 s{sB}, s2, 7\ns_lshl_b32 s{sB}, s{sB}, 5\ns_lshr_b32 s17, s2, 3\ns_add_u32 s{sB}, s{sB}, s17")
    A("v_lshrrev_b32 v7, 6, v0")
    A(f"v_and_b32 v{vLane}, 63, v0")
    A(f"v_readfirstlane_b32 s{sWave}, v7")
    A(f"s_mov_b32 s{sRound}, 0")
    A.c("this wave reads chunks seg0 .. seg0+nseg-1 of the bucket, seg0 = floor(wave*64/3)")
    A(f"s_mul_i32 s{sSeg0}, s{sWave}, {64*21846}\ns_lshr_b32 s{sSeg0}, s{sSeg0}, 16")
    A(f"s_add_u32 s17, s{sWave}, 1\ns_mul_i32 s17, s17, {64*21846}\ns_lshr_b32 s17, s17, 16")
    A(f"s_sub_u32 s{sNseg}, s17, s{sSeg0}")
    A.c("private LDS area: 16 staging rows for waves 0..3 (four nodes), 12 for the others")
    A(f"s_min_u32 s17, s{sWave}, 4\ns_mul_i32 s19, s{sWave}, 3\ns_add_u32 s17, s17, s19")
    A(f"s_mul_i32 s{sMk}, s17, {4*SROW}\ns_add_u32 s{sMk}, s{sMk}, {L_STG}")
    vOf = vD
    A(f"v_add_u32 v{vD+1}, s{sSeg0}, v{vLane}")
    A(f"v_lshlrev_b32 v{vD+2}, 2, v{vD+1}")
    A(f"v_cmp_gt_u32 vcc, s{sNseg}, v{vLane}")
    A(f"v_bfrev_b32 v{vD+3}, -2")
    A(f"s_lshl_b32 s17, s{sB}, 10")
    if WS_OFF: A(f"s_add_u32 s17, s17, {WS_OFF}")
    A(f"v_cndmask_b32 v{vD+2}, v{vD+3}, v{vD+2}, vcc")
    A(f"v_lshlrev_b32 v7, 4, v{vLane}")
    A("s_waitcnt lgkmcnt(0)")
    srd(A, SWS, 14, 15, WS_USED)
    A(f"buffer_load_dword v{vOf}, v{vD+2}, s[{SWS}:{SWS+3}], s17 offen")
    A.c("weights: 40 wave-loads of 8 rows; load w+12q comes from w_si0 when < 16, else from w_si1")
    srd(A, SW0, 10, 11, 128*128)
    srd(A, SW1, 6, 7, 192*128)
    srd(A, SWR, 8, 9, 640)
    A(f"s_cmp_lt_u32 s{sWave}, 4")
    A(f"s_cselect_b32 s{SWM}, s10, s6\ns_cselect_b32 s{SWM+1}, s11, s7")
    A(f"s_cselect_b32 s{SWM+2}, s{SW0+2}, s{SW1+2}\ns_mov_b32 s{SWM+3}, 0x00020000")
    A(f"s_cselect_b32 s19, 0, 16384\ns_sub_u32 s19, 12288, s19")
    A(f"s_lshl_b32 s17, s{sWave}, 10")
    A(f"s_add_u32 s19, s19, s17")
    vW = vD + 8
    vWr = vD + 24
    A(f"buffer_load_dwordx4 v[{vW}:{vW+3}], v7, s[{SW0}:{SW0+3}], s17 offen")
    A(f"buffer_load_dwordx4 v[{vW+4}:{vW+7}], v7, s[{SWM}:{SWM+3}], s19 offen")
    A(f"s_add_u32 s19, s17, {24576-16384}")
    A(f"buffer_load_dwordx4 v[{vW+8}:{vW+11}], v7, s[{SW1}:{SW1+3}], s19 offen")
    A(f"v_lshrrev_b32 v{vD+4}, 3, v{vLane}")
    A(f"v_lshlrev_b32 v{vD+4}, 1, v{vD+4}")
    A(f"s_lshl_b32 s19, s{sWave}, 4")
    for q in range(4):
        A(f"buffer_load_ushort v{vWr+q}, v{vD+4}, s[{SWR}:{SWR+3}], s19 offen offset:{192*q}")
    A(f"s_add_u32 s19, s17, {36864-16384}")
    A(f"buffer_load_dwordx4 v[{vW+12}:{vW+15}], v7, s[{SW1}:{SW1+3}], s19 offen")
    srd(A, SX, 4, 5, N*512)
    srd(A, SOUT, 12, 13, N*512)
    vz = vD + 40
    def lds_init():
        A(f"v_lshlrev_b32 v{vz+9}, 4, v0")
        for i in range(4): A(f"v_mov_b32 v{vz+i}, {PADKEY:#x}" if i == 0 else f"v_mov_b32 v{vz+i}, v{vz}")
        A(f"ds_write_b128 v{vz+9}, v[{vz}:{vz+3}] offset:{L_KEY}")
        A(f"ds_write_b128 v{vz+9}, v[{vz}:{vz+3}] offset:{L_KEY+NW*1024}")
        for i in range(4): A(f"v_mov_b32 v{vz+4+i}, 0")
        A(f"v_add_u32 v{vz+8}, s{sMk}, v7")
        A(f"ds_write_b128 v{vz+8}, v[{vz+4}:{vz+7}]")
        A(f"ds_write_b128 v{vz+8}, v[{vz+4}:{vz+7}] offset:1024")
    assert 2*NW*1024 >= CAP*4 + 128 and L_KEY + 2*NW*1024 <= L_W
    lds_init()
    A(f"s_mov_b32 exec_lo, -1\ns_mov_b32 exec_hi, 0")
    A(f"ds_write_b128 v7, v[{vz+4}:{vz+7}]")
    A("s_mov_b64 exec, -1")
    A.c("lane constants of the main loop")
    A(f"v_and_b32 v{vOff}, 15, v{vLane}\nv_lshlrev_b32 v{vOff}, 4, v{vOff}")
    A(f"v_and_b32 v{vSh}, 3, v{vLane}\nv_add_u32 v{vSh}, 28, v{vSh}")
    A(f"s_mov_b32 s{sP0}, 0x05040100\ns_mov_b32 s{sP1}, 0x07060302\ns_mov_b32 s{sRowM}, 0x007ffe00")
    for i in range(64): A(f"v_mov_b32 v{vC+i}, 0")
    A("s_waitcnt lgkmcnt(0)")
    A("s_barrier")
    A(f"s_waitcnt vmcnt(8)")
    st.mark("off")
    A("L_k2_round:")
    vLen, vInc, vM, vPos = vD+2, vD+3, vD+28, vD+29
    vMk = vD + 30
    vR = vT
    A(f"v_lshrrev_b32 v{vLen}, 16, v{vOf}")
    A(f"v_mov_b32 v{vInc}, v{vLen}")
    A(f"v_and_b32 v{vM}, 0xffff, v{vOf}")
    steps = scan_steps("v_add_u32", vInc, upto=32)
    A(f"s_mov_b32 s17, {RSTR}")
    vSave = vD + 36
    A(steps[0])
    A(f"v_mul_lo_u32 v{vPos}, v{vD+1}, s17")
    A(f"s_mul_i32 s17, s{sRound}, {WIN}")
    A(steps[1])
    A(f"v_mov_b32 v{vSave}, v{vOf}\nv_mov_b32 v{vSave+1}, v{vD+1}")
    A(steps[2])
    A(f"s_movk_i32 s19, 383")
    A(steps[3]); A(steps[4])
    A(f"v_readlane_b32 s{sTot}, v{vInc}, 31")
    A(f"v_sub_u32 v{vInc}, v{vInc}, v{vLen}")
    A(f"v_sub_u32 v{vM}, v{vM}, v{vInc}")
    A(f"v_mad_i32_i24 v{vM}, v{vM}, 12, v{vPos}")
    A(f"v_subrev_u32 v{vPos}, s17, v{vInc}")
    A(f"v_med3_i32 v{vPos}, v{vPos}, 0, s19")
    A(f"v_lshl_add_u32 v{vPos}, v{vPos}, 2, s{sMk}")
    A(f"s_mov_b32 exec_hi, 0")
    A(f"ds_max_u32 v{vPos}, v{vM}")
    A("s_mov_b32 exec_hi, -1")
    A(f"v_lshl_add_u32 v{vPos}, v{vLane}, 2, s{sMk}")
    for it in range(NIT): A(f"ds_read_b32 v{vMk+it}, v{vPos} offset:{256*it}")
    A(f"s_sub_u32 s{sRem}, s{sTot}, s17")
    A(f"s_mul_i32 s17, s17, 12\ns_add_u32 s17, s17, {WS_REC}")
    for it in range(NIT):
        if it: A(f"s_sub_u32 s19, s{sRem}, {64*it}")
        A(f"v_cmp_gt_i32 s[{sMask+2*it}:{sMask+2*it+1}], s{19 if it else sRem}, v{vLane}")
    A(f"v_mul_u32_u24 v{vPos}, 12, v{vLane}")
    A("s_waitcnt lgkmcnt(0)")
    sc = [scan_steps("v_max_u32", vMk+it) for it in range(NIT)]
    for k in range(6):
        for it in range(NIT): A(sc[it][k])
    sCar = [19, sN, sStep, sT1]
    for it in range(NIT-1): A(f"v_readlane_b32 s{sCar[it]}, v{vMk+it}, 63")
    A(f"v_add_u32 v{vMk}, v{vMk}, v{vPos}")
    for it in range(1, NIT-1): A(f"s_max_u32 s{sCar[it]}, s{sCar[it]}, s{sCar[it-1]}")
    for it in range(1, NIT):
        A(f"v_max_u32 v{vMk+it}, s{sCar[it-1]}, v{vMk+it}")
        A(f"v_add_u32 v{vMk+it}, v{vMk+it}, v{vPos}")
    def recload(it):
        A(f"buffer_load_dwordx3 v[{vR+4*it}:{vR+4*it+2}], v{vMk+it}, s[{SWS}:{SWS+3}], s17 offen offset:{768*it}")
    A.c("the last window is nearly always empty: it goes first, so the counted waits below do not depend on it")
    A(f"s_cmp_le_i32 s{sRem}, {64*(NIT-1)}\ns_cbranch_scc1 L_k2_skip4")
    recload(NIT-1)
    A("L_k2_skip4:")
    for it in range(NIT-1): recload(it)
    st.mark("recissue")
    A(f"s_cmp_lg_u32 s{sRound}, 0\ns_cbranch_scc1 L_k2_now")
    A.c("first round only: number of rounds, and the weights scaled by w_rad into LDS")
    A(f"s_cmp_le_u32 s{sTot}, {WIN}\ns_cbranch_scc1 L_k2_one")
    A(f"v_mov_b32 v{vPos}, s{sTot}\nv_mov_b32 v{vM}, {L_RND}")
    A("s_mov_b64 exec, 1")
    A(f"ds_max_u32 v{vM}, v{vPos}")
    A("s_mov_b64 exec, -1")
    A("L_k2_one:")
    vWA = vD + 28
    A(f"v_lshrrev_b32 v{vWA}, 4, v{vLane}\nv_and_b32 v{vWA}, 1, v{vWA}")
    A(f"s_and_b32 s19, s{sWave}, 1\ns_lshl_b32 s19, s19, 1")
    A(f"v_or_b32 v{vWA}, s19, v{vWA}\nv_lshlrev_b32 v{vWA}, 3, v{vWA}")
    A(f"v_xor_b32 v{vWA}, v7, v{vWA}")
    A(f"s_lshl_b32 s19, s{sWave}, 10\ns_add_u32 s19, s19, {L_W}")
    A(f"v_add_u32 v{vWA}, s19, v{vWA}")
    A(f"v_xor_b32 v{vWA+1}, 8, v{vWA}")
    A(f"s_mov_b32 s19, 0xffff0000")
    A(f"s_waitcnt vmcnt({NIT-1})")
    for q in range(4):
        if q == 3: A(f"s_cmp_ge_u32 s{sWave}, 4\ns_cbranch_scc1 L_k2_now")
        A(f"v_lshlrev_b32 v{vWr+q}, 16, v{vWr+q}")
        for d in range(4):
            r = vW + 4*q + d
            A(f"v_lshlrev_b32 v{vz}, 16, v{r}\nv_and_b32 v{vz+1}, s19, v{r}")
            A(f"v_mul_f32 v{vz}, v{vWr+q}, v{vz}\nv_mul_f32 v{vz+1}, v{vWr+q}, v{vz+1}")
            A(f"v_cvt_pk_bf16_f32 v{r}, v{vz}, v{vz+1}")
        A(f"ds_write_b64 v{vWA}, v[{vW+4*q}:{vW+4*q+1}] offset:{12288*q}")
        A(f"ds_write_b64 v{vWA+1}, v[{vW+4*q+2}:{vW+4*q+3}] offset:{12288*q}")
    A("L_k2_now:")
    nt = 0
    touch = o.get("k2_touch")
    if touch:
        A.c("pull the first rows of x into this XCD's L2 while the records are being ranked")
        A(f"v_lshlrev_b32 v{vD+5}, 7, v{vLane}")
        A(f"s_lshr_b32 s19, s2, 3\ns_mul_i32 s19, s19, {NW}\ns_add_u32 s19, s19, s{sWave}")
        nt = touch_x(A, touch, 19, 17, vD+5, vD+6, SX, NW)
        assert nt <= 2
    vBin = vMk
    vRank = vD + 44
    A(f"v_mov_b32 v{vPos}, 1")
    for it in range(NIT):
        if it < NIT-1: A(f"s_waitcnt vmcnt({NIT-2-it+nt})")
        if it == 0: st.mark("rec0")
        A(f"v_and_b32 v{vBin+it}, 0xfc, v{vR+4*it+2}")
        A(f"s_mov_b64 exec, s[{sMask+2*it}:{sMask+2*it+1}]")
        A(f"ds_add_rtn_u32 v{vRank+it}, v{vBin+it}, v{vPos} offset:{L_CNT}")
        A("s_mov_b64 exec, -1")
    vc, vs, vtq, vx, vm1, vm2 = vD+50, vD+51, vD+52, vD+53, vD+54, vD+55
    A(f"v_and_b32 v{vx}, 3, v{vLane}")
    A(f"v_cmp_lt_u32 vcc, 0, v{vx}\nv_lshlrev_b32 v{vPos}, 2, v{vLane}\nv_mov_b32 v{vM}, {L_RND}\nv_cndmask_b32 v{vm1}, 0, -1, vcc")
    A(f"v_cmp_lt_u32 vcc, 1, v{vx}")
    A(f"v_lshrrev_b32 v{vKA}, 4, v{vLane}\nv_lshlrev_b32 v{vKA}, 3, v{vKA}")
    A(f"v_cndmask_b32 v{vm2}, 0, -1, vcc")
    A(f"v_bfe_u32 v{vK2A}, v{vLane}, 2, 2\nv_add_u32 v{vK2A}, v{vK2A}, v{vKA}")
    A(f"v_mov_b32 v7, v{vSave}\nv_mov_b32 v0, v{vSave+1}")
    A("s_waitcnt lgkmcnt(0)")
    A("s_barrier")
    st.mark("ranked")
    A(f"ds_read_b32 v{vc}, v{vPos} offset:{L_CNT}")
    A(f"ds_read_b32 v{vM}, v{vM}")
    A(f"s_lshl_b32 s19, s{sWave}, 2")
    A("s_waitcnt lgkmcnt(1)")
    A(f"v_and_b32_dpp v{vx}, v{vc}, v{vm1} quad_perm:[0,0,1,2] row_mask:0xf bank_mask:0xf")
    A(f"v_add_u32 v{vs}, v{vc}, v{vx}")
    A(f"v_and_b32_dpp v{vx}, v{vs}, v{vm2} quad_perm:[0,0,0,1] row_mask:0xf bank_mask:0xf")
    A(f"v_add_u32 v{vs}, v{vs}, v{vx}")
    A(f"v_mov_b32_dpp v{vtq}, v{vs} quad_perm:[3,3,3,3] row_mask:0xf bank_mask:0xf")
    A(f"v_add_u32 v{vx}, 31, v{vtq}\nv_and_b32 v{vx}, 0xffffffe0, v{vx}")
    A(f"v_sub_u32 v{vs}, v{vs}, v{vc}")
    A(f"v_sub_u32 v{vs}, v{vs}, v{vx}")
    sq = scan_steps("v_add_u32", vx, first=4)
    A(f"v_mov_b32 v{vc}, v{vx}")
    A(sq[0])
    A(f"v_readlane_b32 s{sN}, v{vtq}, s19")
    for s_ in sq[1:]: A(s_)
    A(f"v_add_u32 v{vs}, v{vs}, v{vx}")
    A(f"v_sub_u32 v{vc}, v{vx}, v{vc}")
    for it in range(NIT): A(f"ds_bpermute_b32 v{vBin+it}, v{vBin+it}, v{vs}")
    A(f"v_readlane_b32 s17, v{vc}, s19")
    A(f"s_cmp_lg_u32 s{sRound}, 0\ns_cbranch_scc1 L_k2_havernd")
    A(f"s_waitcnt lgkmcnt({NIT})")
    A(f"v_readfirstlane_b32 s{sRnd}, v{vM}")
    A("L_k2_havernd:")
    A.c("LDS addresses of this wave's slots")
    A(f"v_add_lshl_u32 v{vKA}, v{vKA}, s17, 2")
    A(f"v_add_lshl_u32 v{vK2A}, v{vK2A}, s17, 2")
    A(f"s_movk_i32 s19, {L_COEF}")
    A(f"v_lshl_add_u32 v{vCA}, v{vK2A}, 1, s19")
    A(f"s_add_u32 s17, s{sN}, 31\ns_lshr_b32 s17, s17, 5")
    prio = o.get("prio", [3, 2, 1])
    np_ = len(prio) if prio else 0
    for k in range(1, np_):
        t = (sT1, sT2, sT3)[k-1]
        A(f"s_mul_i32 s{t}, s17, {(k*256 + np_-1)//np_}\ns_add_u32 s{t}, s{t}, 128\ns_lshr_b32 s{t}, s{t}, 8")
    A(f"s_mov_b32 s19, 0xffffffe0")
    for it in range(NIT):
        p = vBin + it
        if it == NIT-1: A(f"s_cmp_le_i32 s{sRem}, {64*(NIT-1)}\ns_cbranch_scc1 L_k2_skip4b")
        A(f"s_waitcnt lgkmcnt({NIT-1-it + 2*it})")
        A(f"v_add_u32 v{p}, v{p}, v{vRank+it}")
        A(f"v_bfe_u32 v{vx}, v{p}, 2, 3\nv_and_b32 v{vm1}, 3, v{p}")
        A(f"v_lshl_or_b32 v{vx}, v{vm1}, 3, v{vx}")
        A(f"v_and_or_b32 v{p}, v{p}, s19, v{vx}")
        A(f"v_lshlrev_b32 v{vx}, 2, v{p}\nv_lshlrev_b32 v{p}, 3, v{p}")
        A(f"s_mov_b64 exec, s[{sMask+2*it}:{sMask+2*it+1}]")
        A(f"ds_write_b32 v{vx}, v{vR+4*it+2} offset:{L_KEY}")
        A(f"ds_write_b64 v{p}, v[{vR+4*it}:{vR+4*it+1}] offset:{L_COEF}")
        A("s_mov_b64 exec, -1")
    A("L_k2_skip4b:")
    A("s_waitcnt lgkmcnt(0)")
    A("s_barrier")
    st.mark("sorted")
    def rd_keys():
        A(f"ds_read_b128 v[{vK}:{vK+3}], v{vKA} offset:{L_KEY}")
        A(f"ds_read_b128 v[{vK+4}:{vK+7}], v{vKA} offset:{L_KEY+16}")
        A(f"ds_read2_b32 v[{vK2}:{vK2+1}], v{vK2A} offset0:{L_KEY//4} offset1:{L_KEY//4+4}")
        A(f"v_add_u32 v{vKA}, 128, v{vKA}\nv_add_u32 v{vK2A}, 128, v{vK2A}")
    def addr():
        for i in range(8): A(f"v_and_or_b32 v{vK+i}, v{vK+i}, s{sRowM}, v{vOff}")
        for u in range(2):
            A(f"v_bfe_i32 v{vK2+u}, v{vK2+u}, v{vSh}, 1")
            A(f"v_and_b32 v{vK2+u}, v{vK2+u}, v{vCA}")
        A(f"v_add_u32 v{vCA}, 256, v{vCA}")
    def rd_coef():
        A(f"ds_read_b64_tr_b16 v[{vAF}:{vAF+1}], v{vK2}")
        A(f"ds_read_b64_tr_b16 v[{vAF+2}:{vAF+3}], v{vK2+1} offset:32")
    gf = o.get("gather_flags", "")
    def load(h, i):
        d = vD + h*32 + i*4
        A(f"buffer_load_dwordx4 v[{d}:{d+3}], v{vK+i}, s[{SX}:{SX+3}], 0 offen offset:{h*256} {gf}")
    def loads(h):
        for i in range(8): load(h, i)
    def loads_part(h, tag, wait):
        for i in range(8):
            if i: A(f"s_cmp_le_i32 s{sRem}, {4*i}\ns_cbranch_scc1 L_{tag}_{i}")
            load(h, i)
        if wait:
            A(f"s_waitcnt vmcnt(8)\ns_branch L_{tag}_done")
            for i in range(1, 8):
                A(f"L_{tag}_{i}:\ns_waitcnt vmcnt({i})")
                if i < 7: A(f"s_branch L_{tag}_done")
            A(f"L_{tag}_done:")
        else:
            for i in range(1, 8): A(f"L_{tag}_{i}:")
    def comp(h, lgkm=False, filler=None):
        def mf(g):
            t = vT + (g % 4)*4
            c = vC + (h*8 + g)*4
            A(f"v_mfma_f32_16x16x32_bf16 v[{c}:{c+3}], v[{vAF}:{vAF+3}], v[{t}:{t+3}], v[{c}:{c+3}]")
        for g in range(8):
            u, par = g >> 1, g & 1
            t = vT + (g % 4)*4
            for q in range(4):
                a = vD + h*32 + (2*q)*4 + u
                b = vD + h*32 + (2*q+1)*4 + u
                A(f"v_perm_b32 v{t+q}, v{b}, v{a}, s{sP0+par}")
            if lgkm and g == 1: A("s_waitcnt lgkmcnt(0)")
            if g: mf(g-1)
        if filler: filler()
        mf(7)
    if prio: A(f"s_setprio {prio[0]}")
    rd_keys()
    A(f"s_mov_b32 s{sRem}, s{sN}\ns_mov_b32 s{sStep}, 1")
    A(f"s_cmp_ge_u32 s{sN}, 32\ns_cbranch_scc1 L_k2_full")
    A.c("fewer than 32 edges: the row registers that no load fills must not hold NaN patterns")
    A("s_waitcnt vmcnt(0) lgkmcnt(0)")
    A(f"s_cmp_eq_u32 s{sN}, 0\ns_cbranch_scc1 L_k2_done")
    for i in range(64): A(f"v_mov_b32 v{vD+i}, 0")
    addr()
    rd_coef()
    loads_part(0, "p0", False)
    loads_part(1, "p1", False)
    A("s_branch L_k2_last")
    A("L_k2_full:")
    A("s_waitcnt lgkmcnt(0)")
    addr()
    rd_coef()
    loads(0); loads(1)
    rd_keys()
    A(f"s_sub_u32 s{sRem}, s{sRem}, 32")
    A(f"s_cmp_lt_i32 s{sRem}, 32\ns_cbranch_scc1 L_k2_tail")
    A(".p2align 3")
    A("L_k2_loop:")
    if np_ > 1:
        for k in range(1, np_):
            t = (sT1, sT2, sT3)[k-1]
            A(f"s_cmp_lg_u32 s{sStep}, s{t}\ns_cbranch_scc1 L_k2_pr{k}\ns_setprio {prio[k]}\nL_k2_pr{k}:")
        A(f"s_add_u32 s{sStep}, s{sStep}, 1")
    A("s_waitcnt vmcnt(8)")
    comp(0, True, addr)
    loads(0)
    A("s_waitcnt vmcnt(8)")
    comp(1, False, lambda: load(1, 0))
    for i in range(1, 8): load(1, i)
    rd_coef()
    rd_keys()
    A(f"s_sub_u32 s{sRem}, s{sRem}, 32")
    A(f"s_cmp_ge_i32 s{sRem}, 32\ns_cbranch_scc1 L_k2_loop")
    A("L_k2_tail:")
    if prio: A(f"s_setprio {prio[-1]}")
    A(f"s_cmp_le_i32 s{sRem}, 0\ns_cbranch_scc1 L_k2_last")
    A("s_waitcnt vmcnt(8)")
    comp(0, True, addr)
    loads_part(0, "t0", True)
    comp(1)
    loads_part(1, "t1", False)
    rd_coef()
    A("L_k2_last:")
    A("s_waitcnt vmcnt(0)")
    comp(0, True)
    comp(1)
    A("L_k2_done:")
    if prio: A("s_setprio 0")
    st.mark("loopend")
    A(f"s_add_u32 s{sRound}, s{sRound}, 1")
    A(f"s_mul_i32 s17, s{sRound}, {WIN}")
    A(f"s_cmp_ge_u32 s17, s{sRnd}\ns_cbranch_scc1 L_k2_epi")
    A.c("rare: a wave found more records than one window holds; sort and gather the next window")
    A("s_waitcnt vmcnt(0) lgkmcnt(0)")
    A("s_barrier")
    A(f"v_mov_b32 v{vOf}, v7\nv_mov_b32 v{vD+1}, v0")
    A(f"s_lshl_b32 s17, s{sWave}, 6\nv_add_u32 v0, s17, v{vLane}")
    A(f"v_lshlrev_b32 v7, 4, v{vLane}")
    lds_init()
    A(f"s_mov_b32 exec_lo, 0xffff\ns_mov_b32 exec_hi, 0")
    A(f"ds_write_b128 v7, v[{vz+4}:{vz+7}] offset:{L_CNT}")
    A("s_mov_b64 exec, -1")
    A("s_waitcnt lgkmcnt(0)")
    A("s_barrier")
    A("s_branch L_k2_round")
    A("L_k2_epi:")
    vH, vSA, vt = vK, vK+1, vK+2
    sH = sMask
    A(f"v_bfe_u32 v{vt}, v{vLane}, 3, 1")
    A(f"v_cmp_eq_u32 s[{sH}:{sH+1}], 1, v{vt}")
    A(f"v_cvt_f32_u32 v{vH}, v{vt}")
    A(f"v_lshrrev_b32 v{vSA}, 4, v{vLane}\nv_mul_u32_u24 v{vSA}, {4*SROW}, v{vSA}")
    A(f"v_and_b32 v{vt+1}, 7, v{vLane}\nv_lshl_add_u32 v{vSA}, v{vt+1}, 4, v{vSA}")
    A(f"v_add_u32 v{vSA}, s{sMk}, v{vSA}")
    slots = [((0,0),(1,1)), ((2,1),(3,1)), ((1,0),(0,1)), ((2,0),(3,2)), ((3,0),(2,2)), ((0,2),(1,2))]
    vSW = vT
    for k, (l, h) in enumerate(slots):
        offL, offH = l[0]*SROW + l[1]*128, h[0]*SROW + h[1]*128
        A(f"s_movk_i32 s17, {offH-offL}")
        A(f"v_mad_i32_i24 v{vSW+k}, v{vt}, s17, v{vSA}")
    vSR, vWB = vK+2, vK+4
    A(f"v_lshrrev_b32 v{vSR+1}, 4, v{vLane}")
    A.c("weight fragment address: row 8g+r, column block 32c, 8-byte chunk t ^ f")
    A(f"v_bfe_u32 v{vWB+1}, v{vLane}, 2, 2")
    A(f"v_lshl_add_u32 v{vWB}, v{vSR+1}, 3, v{vWB+1}\nv_lshlrev_b32 v{vWB}, 7, v{vWB}")
    A(f"v_and_b32 v{vWB+2}, 3, v{vLane}\nv_lshl_add_u32 v{vWB}, v{vWB+2}, 5, v{vWB}")
    A(f"v_lshrrev_b32 v{vWB+1}, 1, v{vWB+1}\nv_and_b32 v{vWB+2}, 1, v{vSR+1}")
    A(f"v_lshl_or_b32 v{vWB+1}, v{vWB+2}, 1, v{vWB+1}")
    A(f"v_lshl_add_u32 v{vWB}, v{vWB+1}, 3, v{vWB}\nv_add_u32 v{vWB}, {L_W}, v{vWB}")
    for t in range(1, 4): A(f"v_xor_b32 v{vWB+t}, {8*t}, v{vWB}")
    vF = vD + 24
    NF = 10
    jobs = [(kk, t) for kk in range(10) for t in range(4)]
    def rdw(n):
        kk, t = jobs[n]; r = vF + 4*(n % NF)
        A(f"ds_read_b64_tr_b16 v[{r}:{r+1}], v{vWB+t} offset:{kk*4096}")
        A(f"ds_read_b64_tr_b16 v[{r+2}:{r+3}], v{vWB+t} offset:{kk*4096+512}")
    AH = 7
    for n in range(AH): rdw(n)
    A(f"v_and_b32 v{vSR}, 15, v{vLane}\nv_mul_u32_u24 v{vSR}, {SROW}, v{vSR}")
    A(f"v_lshl_add_u32 v{vSR}, v{vSR+1}, 4, v{vSR}")
    A(f"v_add_u32 v{vSR}, s{sMk}, v{vSR}")
    U = lambda jj, a: vC + jj*4 + a
    V = lambda jj, a: vC + (8+jj)*4 + a
    ror = "row_ror:8 row_mask:0xf bank_mask:0xf"
    for jj in range(8):
        t0, t1 = vT + 8 + 2*(jj & 1), vT + 9 + 2*(jj & 1)
        A(f"v_add_f32_dpp v{t0}, v{V(jj,2)}, v{V(jj,3)} {ror}")
        A(f"v_sub_f32_dpp v{t1}, v{V(jj,1)}, v{U(jj,2)} {ror}")
        A(f"v_subrev_f32_dpp v{V(jj,2)}, v{V(jj,3)}, v{V(jj,2)} {ror}")
        A(f"v_fma_f32 v{U(jj,3)}, -v{V(jj,1)}, v{vH}, v{U(jj,3)}")
        A(f"v_fma_f32 v{U(jj,1)}, v{t0}, v{vH}, v{U(jj,1)}")
        A(f"v_cndmask_b32 v{U(jj,2)}, v{U(jj,2)}, v{t1}, s[{sH}:{sH+1}]")
    srcs = [lambda jj: U(jj,0), lambda jj: V(jj,0), lambda jj: U(jj,1), lambda jj: U(jj,2), lambda jj: U(jj,3), lambda jj: V(jj,2)]
    A.c("waves with three nodes own twelve staging rows: their fourth lane group does not write")
    A(f"s_cmp_lt_u32 s{sWave}, 4\ns_cselect_b32 exec_hi, -1, 0xffff")
    for k, (l, h) in enumerate(slots):
        r = vD + 4*k
        for q in range(4): A(f"v_cvt_pk_bf16_f32 v{r+q}, v{srcs[k](2*q)}, v{srcs[k](2*q+1)}")
        A(f"ds_write_b128 v{vSW+k}, v[{r}:{r+3}] offset:{l[0]*SROW + l[1]*128}")
    A("s_mov_b32 exec_hi, -1")
    vS = vC
    vX, vY = vC + 24, vC + 40
    for kk in range(6): A(f"ds_read_b128 v[{vS+4*kk}:{vS+4*kk+3}], v{vSR} offset:{64*kk}")
    A.c("output address: node = bucket + 256*(wave + 12*j); rows past the last node fall outside the descriptor")
    vO = vK
    A(f"v_bfe_u32 v{vO}, v{vLane}, 2, 2\nv_mul_u32_u24 v{vO}, {12 << 17}, v{vO}")
    A(f"v_and_b32 v{vO+1}, 3, v{vLane}")
    A(f"v_cmp_eq_u32 s[{sH}:{sH+1}], 0, v{vO+1}")
    A(f"v_lshl_add_u32 v{vO}, v{vO+1}, 7, v{vO}")
    A(f"v_lshl_add_u32 v{vO}, v{vSR+1}, 5, v{vO}")
    A(f"s_lshl_b32 s17, s{sWave}, 17\ns_lshl_b32 s19, s{sB}, 9\ns_add_u32 s17, s17, s19")
    A(f"s_mov_b32 s19, 0xbfb8aa3b")
    for n, (kk, t) in enumerate(jobs):
        if n == 0: A("s_waitcnt lgkmcnt(5)")
        elif n < AH:
            if n == 4: A("s_waitcnt lgkmcnt(8)")
        else: A(f"s_waitcnt lgkmcnt({2*min(len(jobs) - 1 - n, AH - 1)})")
        r = vF + 4*(n % NF)
        acc = (vX if kk < 4 else vY) + 4*t
        sk = kk if kk < 4 else kk - 4
        cin = "0" if kk in (0, 4) else f"v[{acc}:{acc+3}]"
        A(f"v_mfma_f32_16x16x32_bf16 v[{acc}:{acc+3}], v[{r}:{r+3}], v[{vS+4*sk}:{vS+4*sk+3}], {cin}")
        if n + AH < len(jobs): rdw(n + AH)
    vG = vD
    for i in range(16): A(f"v_mul_f32 v{vG+i}, s19, v{vX+i}")
    for i in range(16): A(f"v_exp_f32 v{vG+i}, v{vG+i}")
    for i in range(16): A(f"v_add_f32 v{vG+i}, 1.0, v{vG+i}")
    for i in range(16): A(f"v_rcp_f32 v{vG+i}, v{vG+i}")
    for i in range(16): A(f"v_mul_f32_dpp v{vY+i}, v{vG+i}, v{vY+i} quad_perm:[0,0,0,0] row_mask:0xf bank_mask:0xf")
    for i in range(16): A(f"v_cndmask_b32 v{vY+i}, v{vY+i}, v{vX+i}, s[{sH}:{sH+1}]")
    for i in range(8): A(f"v_cvt_pk_bf16_f32 v{vG+i}, v{vY+2*i}, v{vY+2*i+1}")
    of = o.get("out_flags", "")
    A(f"buffer_store_dwordx4 v[{vG}:{vG+3}], v{vO}, s[{SOUT}:{SOUT+3}], s17 offen {of}")
    A(f"buffer_store_dwordx4 v[{vG+4}:{vG+7}], v{vO}, s[{SOUT}:{SOUT+3}], s17 offen offset:16 {of}")
    if st.on:
        st.mark("issued")
        A("s_waitcnt vmcnt(0)")
    st.flush(14, sWave, vT, 48)
    A("L_k2_end:")
    A("s_endpgm")
    return A.finish(o.get("verbose")), L_END, NV, 100 if st.on else 72, st.names

def gen_agg(name, want, encode=None, nws=(10, 12)):
    A = Asm()
    A(f".globl {name}\n.p2align 8\n.type {name},@function\n{name}:")
    A("s_cmp_ge_u32 s2, 1\ns_cbranch_scc1 L_agg_end")
    A("s_load_dwordx4 s[4:7], s[0:1], 80")
    A("v_lshlrev_b32 v1, 2, v0\nv_mov_b32 v2, 0\nds_write_b32 v1, v2")
    A("v_lshlrev_b32 v3, 10, v0")
    A("s_waitcnt lgkmcnt(0)\ns_barrier")
    srd(A, 8, 6, 7, 0x10000000); srd(A, 12, 4, 5, 256)
    for n, (kid, idx, how) in enumerate(want):
        A(f"s_mov_b32 s16, {WS_STAMP + kid*(1 << 20) + 4*idx}")
        for w in range(nws[kid]): A(f"buffer_load_dword v{10+w}, v3, s[8:11], s16 offen offset:{64*w}")
        A("s_waitcnt vmcnt(0)")
        for w in range(nws[kid]):
            if how == "min": A(f"v_not_b32 v{10+w}, v{10+w}")
            A(f"ds_max_u32 v2, v{10+w} offset:{4*n}")
    A("s_waitcnt lgkmcnt(0)\ns_barrier")
    A("ds_read_b32 v4, v1\nds_read_b32 v5, v2\ns_waitcnt lgkmcnt(0)")
    A("v_not_b32 v5, v5")
    mins = sum(1 << n for n, w in enumerate(want) if w[2] == "min")
    A(f"s_mov_b32 s20, {mins}\ns_mov_b32 s21, 0\nv_not_b32 v6, v4\nv_cndmask_b32 v4, v4, v6, s[20:21]")
    A("v_sub_u32 v4, v4, v5")
    if encode is not None:
        A(f"s_nop 1\nv_readlane_b32 s22, v4, {len(want)-1}")
        A(f"s_min_u32 s22, s22, 10000\ns_mul_i32 s22, s22, {encode}")
        A("s_memrealtime s[24:25]\ns_waitcnt lgkmcnt(0)")
        A("L_agg_spin:\ns_memrealtime s[26:27]\ns_waitcnt lgkmcnt(0)\ns_sub_u32 s26, s26, s24\ns_cmp_lt_u32 s26, s22\ns_cbranch_scc1 L_agg_spin")
    A(f"s_mov_b32 exec_lo, {(1 << len(want)) - 1}\ns_mov_b32 exec_hi, 0")
    A("s_cmp_lg_u32 0, 0")
    A("v_cmp_gt_u32 vcc, 16, v0\ns_and_b64 exec, exec, vcc\ns_cbranch_execz L_agg_end")
    A("buffer_store_dword v4, v1, s[12:15], 0 offen")
    A("L_agg_end:\ns_endpgm")
    return A.finish()

HEADER = """; Equivariant tensor-product message passing, N=10000 nodes, E=640000 edges, C=64.
"""
def build(o=None):
    o = o or {}
    n1, n2 = "tp_sort_kernel", "tp_gather_kernel"
    t1, lds1, v1, s1, names1 = gen_k1(n1, o)
    t2, lds2, v2, s2, names2 = gen_k2(n2, o)
    txt = HEADER
    empty = "; @launch kernel=tp_empty_kernel grid=(1,1,1) block=(64,1,1) lds=0\n"
    txt += empty * o.get("empty_pre", 0)
    txt += f"; @launch kernel={n1} grid=({NWG},1,1) block=(640,1,1) lds={lds1}\n" * o.get("k1_times", 1)
    txt += f"; @launch kernel={n2} grid=({NWG},1,1) block=({NW*64},1,1) lds={lds2}\n" * o.get("k2_times", 1)
    txt += empty * o.get("empty_post", 0)
    if o.get("agg"): txt += "; @launch kernel=tp_agg_kernel grid=(1,1,1) block=(256,1,1) lds=1024\n"
    txt += '.amdgcn_target "amdgcn-amd-amdhsa--gfx950"\n.text\n'
    txt += t1 + t2
    if o.get("agg"):
        nm = [names1, names2]
        want = [(k, nm[k].index(n), h) for k, n, h in o["agg"]]
        txt += gen_agg("tp_agg_kernel", want, o.get("encode"))
    em = o.get("empty_pre") or o.get("empty_post")
    if em: txt += ".globl tp_empty_kernel\n.p2align 8\n.type tp_empty_kernel,@function\ntp_empty_kernel:\n    s_endpgm\n"
    txt += '.section .rodata,"a"\n' + kd(n1, v1, s1) + kd(n2, v2, s2)
    if em: txt += kd("tp_empty_kernel", 8, 16)
    if o.get("agg"): txt += kd("tp_agg_kernel", 32, 32)
    return txt, [(n1, lds1, v1, names1, 10), (n2, lds2, v2, names2, NW)]

if __name__ == "__main__":
    out = sys.argv[1] if len(sys.argv) > 1 else "gather_scatter__tensor_product_equiv_equiformer__graph.s"
    txt, info = build({"verbose": True})
    open(out, "w").write(txt)
    print(info, len(txt))
```

```python
import sys
from asmlib import Asm, kd

N, E = 10000, 640000
NWG = 256
CH = E // NWG
RSTR = 30080
WS_OFF = 0
WS_W = 262144
WS_REC = WS_W + 40960
WS_FLAG = WS_REC + NWG * RSTR
WS_USED = WS_FLAG + 64 * 1024
WS_STAMP = 16 << 20
PADKEY = 0x0FFFFFFF

def srd(A, s, lo, hi, size):
    A(f"s_mov_b32 s{s}, s{lo}\ns_mov_b32 s{s+1}, s{hi}")
    A(f"s_mov_b32 s{s+2}, {size}\ns_mov_b32 s{s+3}, 0x00020000")

def scan_steps(op, v, upto=64, first=1):
    out = []
    for sh in (1, 2, 4, 8):
        if sh >= first:
            out.append(f"{op}_dpp v{v}, v{v}, v{v} row_shr:{sh} row_mask:0xf bank_mask:0xf bound_ctrl:0")
    if upto >= 32: out.append(f"{op}_dpp v{v}, v{v}, v{v} row_bcast:15 row_mask:0xa bank_mask:0xf")
    if upto >= 64: out.append(f"{op}_dpp v{v}, v{v}, v{v} row_bcast:31 row_mask:0xc bank_mask:0xf")
    return out

class Stamps:
    def __init__(self, A, on, base, kid):
        self.A, self.on, self.base, self.n, self.kid = A, on, base, 0, kid
        self.names = []
        self.skip = set()
    def mark(self, name):
        if self.on and name not in self.skip:
            r = self.base + 2 * self.n
            self.A(f"s_memrealtime s[{r}:{r+1}]"); self.n += 1; self.names.append(name)
    def flush(self, ws_lo, wave_s, v0, tmp_s):
        if not self.on: return
        A = self.A
        self.mark("end")
        if self.on == "dbg":
            A(f"s_load_dwordx2 s[{tmp_s+4}:{tmp_s+5}], s[0:1], 80")
            A("s_waitcnt lgkmcnt(0)")
            A("s_mov_b64 exec, 1")
            srd(A, tmp_s, tmp_s+4, tmp_s+5, 256)
            A(f"v_mov_b32 v{v0}, 0")
            A(f"s_not_b32 s{tmp_s+4}, s{self.base}")
            A(f"v_mov_b32 v{v0+1}, s{tmp_s+4}")
            A(f"buffer_atomic_umax v{v0+1}, v{v0}, s[{tmp_s}:{tmp_s+3}], 0 offen")
            for i in range(self.n):
                A(f"v_mov_b32 v{v0+2+i}, s{self.base + 2*i}")
                A(f"buffer_atomic_umax v{v0+2+i}, v{v0}, s[{tmp_s}:{tmp_s+3}], 0 offen offset:{4*i+4}")
            return
        A("s_waitcnt lgkmcnt(0)")
        A("s_mov_b64 exec, 1")
        srd(A, tmp_s, ws_lo, ws_lo + 1, 0x10000000)
        A(f"s_lshl_b32 s{tmp_s+4}, s2, 4\ns_add_u32 s{tmp_s+4}, s{tmp_s+4}, s{wave_s}\ns_lshl_b32 s{tmp_s+4}, s{tmp_s+4}, 6")
        A(f"s_add_u32 s{tmp_s+4}, s{tmp_s+4}, {WS_STAMP + self.kid * (1 << 20)}")
        A(f"v_mov_b32 v{v0}, 0")
        for i in range(self.n):
            A(f"v_mov_b32 v{v0+1}, s{self.base + 2*i}")
            A(f"buffer_store_dword v{v0+1}, v{v0}, s[{tmp_s}:{tmp_s+3}], s{tmp_s+4} offen offset:{4*i}")

def touch_x(A, spec, s_rank, s_tmp, v_addr, v_dst, srd_x, nw=10, s_rot=None, pos0=0):
    kind, lanes_list = spec[0], spec[1:]
    pos = pos0
    for n, lanes in enumerate(lanes_list):
        A(f"s_mul_i32 s{s_tmp}, s{s_rank}, {lanes*128}")
        if pos: A(f"s_add_u32 s{s_tmp}, s{s_tmp}, {pos}")
        if s_rot is not None:
            A(f"s_add_u32 s{s_tmp}, s{s_tmp}, s{s_rot}\ns_sub_u32 s{s_rot+1}, s{s_tmp}, {N*512}\ns_min_u32 s{s_tmp}, s{s_tmp}, s{s_rot+1}")
        m = (1 << lanes) - 1
        if lanes < 64: A(f"s_mov_b32 exec_lo, {m & 0xffffffff}\ns_mov_b32 exec_hi, {m >> 32}")
        A(f"buffer_load_dword v{v_dst+n}, v{v_addr}, s[{srd_x}:{srd_x+3}], s{s_tmp} offen")
        if lanes < 64: A("s_mov_b64 exec, -1")
        pos += lanes * 128 * nw * (256 if kind == "mall" else 32)
    return len(lanes_list)

def gen_k1(name, o):
    A = Asm()
    CNT, PFX, STG = 0, 1024, 2048
    lds = STG + 30720
    st = Stamps(A, o.get("stamps"), 64, 0)
    A(f".globl {name}\n.p2align 8\n.type {name},@function\n{name}:")
    A(f"s_cmp_ge_u32 s2, {NWG}\ns_cbranch_scc1 L_k1_end")
    st.mark("start")
    A("s_load_dwordx4 s[4:7], s[0:1], 0")
    A("s_load_dwordx4 s[8:11], s[0:1], 16")
    A("s_load_dwordx2 s[12:13], s[0:1], 32")
    A("s_load_dwordx2 s[14:15], s[0:1], 88")
    A.c("chunk id: workgroups that share an XCD under round-robin dispatch get neighbouring chunks")
    A("s_and_b32 s16, s2, 7\ns_lshl_b32 s16, s16, 5\ns_lshr_b32 s17, s2, 3\ns_add_u32 s16, s16, s17")
    A("v_lshrrev_b32 v1, 6, v0")
    A("v_lshlrev_b32 v2, 2, v0")
    A("v_readfirstlane_b32 s3, v1")
    A("v_and_b32 v7, 63, v0")
    A("s_cmp_eq_u32 s3, 10\ns_cbranch_scc1 L_k1_helper")
    A("v_mov_b32 v3, 0")
    A(f"ds_write_b32 v2, v3 offset:{CNT}")
    A("v_lshlrev_b32 v4, 4, v0")
    A("v_lshlrev_b32 v5, 3, v0")
    A("v_mul_u32_u24 v6, 24, v0")
    A(f"s_movk_i32 s17, {CH//4}\nv_cmp_gt_u32 s[18:19], s17, v0")
    A(f"s_mul_i32 s40, s16, {CH*4}\ns_mul_i32 s41, s16, {CH*2}\ns_mul_i32 s42, s16, {CH*6}")
    A("s_waitcnt lgkmcnt(0)")
    srd(A, 20, 12, 13, E*4)
    srd(A, 24, 10, 11, E*4)
    srd(A, 28, 8, 9, E*2)
    srd(A, 32, 6, 7, E*6)
    A("s_mov_b64 exec, s[18:19]")
    lf = o.get("k1_load_flags", "nt")
    A(f"buffer_load_dwordx4 v[8:11], v4, s[20:23], s40 offen {lf}")
    A(f"buffer_load_dwordx4 v[12:15], v4, s[24:27], s40 offen {lf}")
    A(f"buffer_load_dwordx2 v[16:17], v5, s[28:31], s41 offen {lf}")
    A(f"buffer_load_dwordx4 v[20:23], v6, s[32:35], s42 offen {lf}")
    A(f"buffer_load_dwordx2 v[24:25], v6, s[32:35], s42 offen offset:16 {lf}")
    srd(A, 44, 14, 15, WS_USED)
    A("v_mov_b32 v3, 1")
    A("s_barrier")
    A(f"s_waitcnt vmcnt(4)")
    st.mark("dst")
    for i in range(4):
        A(f"v_lshlrev_b32 v{32+i}, 2, v{8+i}")
        A(f"v_and_b32 v{32+i}, 0x3fc, v{32+i}")
        A(f"ds_add_rtn_u32 v{36+i}, v{32+i}, v3 offset:{CNT}")
    A("s_mov_b64 exec, -1")
    A("v_lshlrev_b32 v59, 4, v7")
    A("s_waitcnt lgkmcnt(0)")
    A("s_barrier")
    st.mark("ranked")
    A(f"ds_read_b128 v[60:63], v59 offset:{CNT}")
    A(f"s_waitcnt vmcnt(3)")
    A.c("key = src<<9 | onehot(j)<<28 | (wave*4 + source quarter)<<2 ; record i = v[40+4i : 42+4i] = c01, c23, key")
    A(f"s_mov_b32 s48, 0x10000000\ns_mov_b32 s53, {-(-(1 << 32) // 3072)}\ns_mov_b32 s54, {(1 << 34) // N}\ns_movk_i32 s55, -3072\ns_movk_i32 s56, {-N//8}")
    def key(i):
        d, s, k = 8+i, 12+i, 42+4*i
        if o.get("rot"):
            q = [f"v_bfe_u32 v57, v{d}, 5, 3", f"v_mad_i32_i24 v57, v57, s56, v{s}", f"v_add_u32 v64, {N}, v57",
                 f"v_min_u32 v57, v57, v64", f"v_mul_hi_u32_u24 v57, s54, v57"]
        else: q = [f"v_mul_hi_u32_u24 v57, s54, v{s}"]
        return [f"v_mul_hi_u32_u24 v56, s53, v{d}"] + q + [
                f"v_mad_i32_i24 v58, v56, s55, v{d}",
                f"v_lshlrev_b32_e64 v56, v56, s48",
                f"v_lshrrev_b32 v58, 8, v58",
                f"v_lshl_or_b32 v56, v{s}, 9, v56",
                f"v_lshl_or_b32 v57, v58, 2, v57",
                f"v_lshl_or_b32 v{k}, v57, 2, v56"]
    for l in key(0) + key(1): A(l)
    A("s_waitcnt lgkmcnt(0)")
    A("v_add_u32 v65, v60, v61\nv_add_u32 v66, v65, v62\nv_add_u32 v67, v66, v63")
    A("v_mov_b32 v68, v67")
    fill = key(2) + key(3)
    for n, s_ in enumerate(scan_steps("v_add_u32", 68)):
        A(fill[2*n]); A(fill[2*n+1]); A(s_)
    A("v_sub_u32 v68, v68, v67")
    A("v_add_u32 v69, v68, v60\nv_add_u32 v70, v68, v65\nv_add_u32 v71, v68, v66")
    A.c("every wave writes the same prefix table and then reads only after its own write")
    A(f"ds_write_b128 v59, v[68:71] offset:{PFX}")
    A("s_mov_b64 exec, s[18:19]")
    for i in range(4): A(f"ds_read_b32 v{32+i}, v{32+i} offset:{PFX}")
    for l in fill[12:]: A(l)
    A(f"s_movk_i32 s53, {STG}")
    A.c("coefficients a, a*Y0, a*Y1, a*Y2 in bf16")
    A(f"s_waitcnt vmcnt(0)")
    st.mark("alldata")
    A("s_mov_b32 s49, 0xffff0000")
    def unpack(dst, reg, hi):
        if hi: A(f"v_and_b32 v{dst}, s49, v{reg}")
        else: A(f"v_lshlrev_b32 v{dst}, 16, v{reg}")
    for i in range(4):
        unpack(56, 16 + i//2, i & 1)
        for j in range(3):
            h = 3*i + j
            unpack(72+j, 20 + h//2, h & 1)
        for j in range(3): A(f"v_mul_f32 v{72+j}, v56, v{72+j}")
        A(f"v_cvt_pk_bf16_f32 v{40+4*i}, v56, v72")
        A(f"v_cvt_pk_bf16_f32 v{41+4*i}, v73, v74")
        if i == 0: A("s_waitcnt lgkmcnt(0)")
        A(f"v_add_u32 v{32+i}, v{32+i}, v{36+i}")
        A(f"v_mad_u32_u24 v{32+i}, v{32+i}, 12, s53")
        A(f"ds_write_b32 v{32+i}, v{42+4*i} offset:8")
        A(f"ds_write2_b32 v{32+i}, v{40+4*i}, v{41+4*i} offset0:0 offset1:1")
    A("s_mov_b64 exec, -1")
    A.c("waves 0..3 publish start|len<<16 of bucket 4*lane+wave")
    A("s_cmp_ge_u32 s3, 4\ns_cbranch_scc1 L_k1_nooff")
    A("v_mov_b32 v72, v68\nv_mov_b32 v73, v60")
    for w in (1, 2, 3):
        A(f"s_cmp_lg_u32 s3, {w}\ns_cbranch_scc1 L_k1_o{w}")
        A(f"v_mov_b32 v72, v{68+w}\nv_mov_b32 v73, v{60+w}")
        A(f"L_k1_o{w}:")
    A("v_lshl_or_b32 v72, v73, 16, v72")
    A("v_lshlrev_b32 v73, 12, v7")
    A("s_lshl_b32 s50, s3, 10\ns_lshl_b32 s51, s16, 2\ns_add_u32 s50, s50, s51")
    if WS_OFF: A(f"s_add_u32 s50, s50, {WS_OFF}")
    sf = o.get("k1_store_flags", "")
    A(f"buffer_store_dword v72, v73, s[44:47], s50 offen {sf}")
    A("L_k1_nooff:")
    A(f"s_mul_i32 s50, s16, {RSTR}\ns_add_u32 s50, s50, {WS_REC}")
    A.c("the copy covers whole 128-byte lines: a partly written last line is slow to read back")
    A(f"s_movk_i32 s17, {RSTR//16 - 1280}\nv_cmp_gt_u32 s[18:19], s17, v0")
    A("s_add_u32 s51, s50, 10240\ns_add_u32 s52, s50, 20480")
    A("s_waitcnt lgkmcnt(0)")
    A("s_barrier")
    st.mark("sorted")
    if o.get("diag_nostore"): A("s_mov_b32 s46, 0")
    for q in range(3): A(f"ds_read_b128 v[{8+4*q}:{11+4*q}], v4 offset:{STG + 10240*q}")
    A("s_waitcnt lgkmcnt(2)")
    A(f"buffer_store_dwordx4 v[8:11], v4, s[44:47], s50 offen {sf}")
    A("s_waitcnt lgkmcnt(1)")
    A(f"buffer_store_dwordx4 v[12:15], v4, s[44:47], s51 offen {sf}")
    A("s_waitcnt lgkmcnt(0)")
    A("s_mov_b64 exec, s[18:19]")
    A(f"buffer_store_dwordx4 v[16:19], v4, s[44:47], s52 offen {sf}")
    if o.get("k1_wb"):
        A("s_mov_b64 exec, -1")
        A("s_cmp_lg_u32 s3, 9\ns_cbranch_scc1 L_k1_nowb")
        A("s_waitcnt vmcnt(0)")
        A("buffer_wbl2 sc1")
        A("L_k1_nowb:")
    if st.on:
        st.mark("issued")
        A("s_waitcnt vmcnt(0)")
    st.flush(14, 3, 20, 52)
    A("s_endpgm")
    A("L_k1_helper:")
    A("s_load_dwordx4 s[52:55], s[0:1], 40")
    A("s_load_dwordx2 s[56:57], s[0:1], 56")
    A("v_lshlrev_b32 v26, 7, v7")
    A(f"s_mul_i32 s43, s16, {N*512//NWG}\ns_and_b32 s43, s43, 0xffffff80")
    A("s_lshr_b32 s40, s2, 2\ns_and_b32 s41, s2, 3")
    A.c("fragment (k step, tile t): lane (n, g) holds rows 32*step + 8g .. +7 of column 4n + t")
    A("v_lshrrev_b32 v8, 4, v7\nv_and_b32 v9, 15, v7")
    A("v_lshlrev_b32 v11, 10, v8\nv_lshl_add_u32 v11, v9, 3, v11")
    A("v_lshlrev_b32 v8, 4, v8")
    A("s_lshl_b32 s42, s40, 12\ns_lshl_b32 s41, s41, 1\ns_add_u32 s42, s42, s41")
    A("s_lshl_b32 s41, s40, 6")
    A("s_waitcnt lgkmcnt(0)")
    srd(A, 36, 4, 5, N*512)
    srd(A, 44, 14, 15, WS_USED)
    srd(A, 24, 52, 53, 640)
    A("s_cmp_lt_u32 s40, 4")
    A("s_cselect_b32 s20, s54, s56\ns_cselect_b32 s21, s55, s57")
    A(f"s_mov_b32 s22, {192*128}\ns_cselect_b32 s22, {128*128}, s22\ns_mov_b32 s23, 0x00020000")
    A("s_cselect_b32 s17, 0, 16384\ns_sub_u32 s42, s42, s17")
    touch = o.get("k1_touch", True)
    tb = o.get("k1_touch_after", 1)
    def helper_touch():
        if touch:
            A.c("touch x once so that the gather of the second launch finds it on chip")
            A("buffer_load_dword v28, v26, s[36:39], s43 offen")
            A("s_add_u32 s43, s43, 8192")
            A("buffer_load_dword v29, v26, s[36:39], s43 offen")
            A("s_add_u32 s43, s43, 8192\ns_mov_b32 exec_hi, 0")
            A("buffer_load_dword v30, v26, s[36:39], s43 offen")
            A("s_mov_b32 exec_hi, -1")
    if o.get("code_touch"):
        A.c("read the second kernel's instructions once per XCD so that its first fetches find them in L2")
        A("s_getpc_b64 s[28:29]")
        A("L_k1_pc:")
        A(f"s_add_u32 s28, s28, {o['k2name']}-L_k1_pc\ns_addc_u32 s29, s29, 0")
        A("s_lshr_b32 s30, s2, 3\ns_lshl_b32 s30, s30, 9")
        A(f"v_add_u32 v32, s30, v26\nv_min_u32 v32, L_k2_end-{o['k2name']}, v32")
        A("v_mov_b32 v33, s29\nv_add_co_u32 v32, vcc, s28, v32\nv_addc_co_u32 v33, vcc, 0, v33, vcc")
        A("s_mov_b64 exec, 15")
        A("global_load_dword v31, v[32:33], off")
        if o.get("kd_touch"):
            A("s_getpc_b64 s[28:29]")
            A(f"s_add_u32 s28, s28, L_kd2@rel32@lo+4\ns_addc_u32 s29, s29, L_kd2@rel32@hi+12")
            A("v_mov_b32 v32, s28\nv_mov_b32 v33, s29")
            A("s_mov_b64 exec, 1")
            A("global_load_dword v34, v[32:33], off")
        A("s_mov_b64 exec, -1")
    for b in range(3):
        if b == tb: helper_touch()
        if b == 1:
            A("s_cmp_ge_u32 s2, 40\ns_cbranch_scc1 L_k1_now")
            A("buffer_load_dwordx4 v[12:15], v8, s[24:27], s41 offen")
            for i in range(8): A(f"buffer_load_ushort v{16+i}, v11, s[20:23], s42 offen offset:{128*i}")
            A("L_k1_now:")
        A("s_barrier")
    if tb == 3: helper_touch()
    A("s_cmp_ge_u32 s2, 40\ns_cbranch_scc1 L_k1_end")
    A("s_mov_b32 s49, 0xffff0000")
    A("s_waitcnt vmcnt(0)" if tb != 3 or not touch else "s_waitcnt vmcnt(3)")
    for i in range(8):
        unpack(24, 12 + i//2, i & 1)
        A(f"v_lshlrev_b32 v{16+i}, 16, v{16+i}\nv_mul_f32 v{16+i}, v24, v{16+i}")
    for q in range(4): A(f"v_cvt_pk_bf16_f32 v{12+q}, v{16+2*q}, v{17+2*q}")
    A(f"v_lshlrev_b32 v8, 4, v7\ns_lshl_b32 s41, s2, 10\ns_add_u32 s41, s41, {WS_W}")
    A("buffer_store_dwordx4 v[12:15], v8, s[44:47], s41 offen")
    A("L_k1_end:")
    A("s_endpgm")
    return A.finish(o.get("verbose")), lds, 80, 96 if st.on else 58, st.names

NW = 12
NIT = 5
WIN = 288
CAP = NW * WIN + NW * 32
L_ZERO, L_RND, L_CNT, L_KEY = 0, 192, 256, 512
L_COEF = L_KEY + CAP*4 + 128
L_W = L_COEF + CAP*8 + 256
L_STG = L_W + 40960
SPITCH = 256
SNODE = 6*SPITCH + 32
L_GATE = L_STG + 40*SNODE
L_END = L_GATE + 3*4096
L_FLAG = 208
assert L_END <= 163840, L_END
MKW = 1536
L_WT = L_STG + 40*SNODE - 40960
L_NONCE = L_GATE
assert L_WT >= L_STG + NW*MKW

def gen_k2(name, o):
    A = Asm()
    fused = o.get("fused")
    st = Stamps(A, o.get("stamps"), 80 if fused else 76, 1)
    if fused: st.skip = set(o.get("skip", ["recissue", "staged", "issued", "rec0", "wok", "wdone", "stiss"]))
    vLane, vOff, vKA, vK2A, vCA, vSh = 1, 2, 3, 4, 5, 6
    vK2 = 8
    vAF = 10
    vK = 14
    vT = 22
    vD = 38
    vC = 102
    NV = 166
    sWave, sB = 3, 16
    SX, SWS, SOUT = 20, 24, 28
    sH = 32
    sMask = 48
    sTot, sRnd, sRound, sN, sRem, sStep, sT1, sT2, sT3 = 58, 59, 60, 61, 62, 63, 64, 65, 66
    sP0, sP1, sRowM = 67, 68, 69
    sSeg0, sNseg, sMk = 70, 71, 18
    sCar = [72, 73, 74, 75]
    sGrp, sSaid = 38, 39
    A(f".globl {name}\n.p2align 8\n.type {name},@function\n{name}:")
    A(f"s_cmp_ge_u32 s2, {NWG}\ns_cbranch_scc1 L_k2_end")
    st.mark("start")
    vOf = vD
    vz = vD + 40
    wpos = o.get("wpos", 0) if not fused else -1
    hf = "sc1" if fused else ""
    def ids():
        A(f"s_and_b32 s{sB}, s2, 7\ns_lshl_b32 s{sB}, s{sB}, 5\ns_lshr_b32 s17, s2, 3\ns_add_u32 s{sB}, s{sB}, s17")
        A("v_lshrrev_b32 v7, 6, v0")
        A(f"v_and_b32 v{vLane}, 63, v0")
        A(f"v_readfirstlane_b32 s{sWave}, v7")
    def ids2():
        A(f"s_mov_b32 s{sRound}, 0\ns_mov_b32 s{sSaid}, 0")
        if o.get("gshift"):
            A(f"s_add_u32 s{sGrp}, s{sWave}, {o['gshift']}\ns_sub_u32 s17, s{sGrp}, {NW}\ns_min_u32 s{sGrp}, s{sGrp}, s17")
        else: A(f"s_mov_b32 s{sGrp}, s{sWave}")
        A.c("this wave reads chunks seg0 .. seg0+nseg-1 of the bucket, seg0 = floor(wave*64/3)")
        A(f"s_mul_i32 s{sSeg0}, s{sWave}, {64*21846}\ns_lshr_b32 s{sSeg0}, s{sSeg0}, 16")
        A(f"s_add_u32 s17, s{sWave}, 1\ns_mul_i32 s17, s17, {64*21846}\ns_lshr_b32 s17, s17, 16")
        A(f"s_sub_u32 s{sNseg}, s17, s{sSeg0}")
        A(f"v_add_u32 v{vD+1}, s{sSeg0}, v{vLane}")
        A(f"v_lshlrev_b32 v{vD+2}, {10 if fused else 2}, v{vD+1}")
        A(f"v_cmp_gt_u32 vcc, s{sNseg}, v{vLane}")
        A(f"v_bfrev_b32 v{vD+3}, -2")
        A(f"v_lshlrev_b32 v7, 4, v{vLane}")
        A(f"v_cndmask_b32 v{vD+2}, v{vD+3}, v{vD+2}, vcc")
        A.c("private marker area of this wave (inside the staging area of the epilogue)")
        A(f"s_mul_i32 s{sMk}, s{sWave}, {MKW}\ns_add_u32 s{sMk}, s{sMk}, {L_STG}")
    def lds_init():
        for i in range(4): A(f"v_mov_b32 v{vz+4+i}, 0")
        A(f"v_add_u32 v{vz+8}, s{sMk}, v7")
        A(f"ds_write_b128 v{vz+8}, v[{vz+4}:{vz+7}]")
        A("s_mov_b32 exec_hi, 0")
        A(f"ds_write_b128 v{vz+8}, v[{vz+4}:{vz+7}] offset:1024")
        A("s_mov_b32 exec_hi, -1")
        A(f"v_lshlrev_b32 v{vz+9}, 4, v0")
        for i in range(4): A(f"v_mov_b32 v{vz+i}, {PADKEY:#x}" if i == 0 else f"v_mov_b32 v{vz+i}, v{vz}")
        A(f"ds_write_b128 v{vz+9}, v[{vz}:{vz+3}] offset:{L_KEY}")
        A(f"v_cmp_gt_u32 vcc, {(L_COEF - L_KEY - NW*1024)//16}, v0\ns_mov_b64 exec, vcc")
        A(f"ds_write_b128 v{vz+9}, v[{vz}:{vz+3}] offset:{L_KEY+NW*1024}")
        A("s_mov_b64 exec, -1")
    assert 2*NW*1024 >= CAP*4 + 128 and L_KEY + 2*NW*1024 <= L_W
    def consts():
        A(f"s_mov_b32 s{sP0}, 0x05040100\ns_mov_b32 s{sP1}, 0x07060302\ns_mov_b32 s{sRowM}, {o.get('diag_rowmask', 0x007ffe00):#x}")
        A(f"s_mov_b32 s{sH}, 0xff00ff00\ns_mov_b32 s{sH+1}, 0xff00ff00")
    def wdma(vl):
        A.c("the 40 weight fragments go straight to LDS: w, w+12, w+24 and 36+(w&3) by wave w (the last four land three times)")
        A(f"s_lshl_b32 s19, s{sWave}, 10\ns_add_u32 m0, s19, {L_W}\ns_add_u32 s19, s19, {WS_W}")
        for q in range(3):
            A(f"buffer_load_dwordx4 v{vl}, s[{SWS}:{SWS+3}], s19 offen lds")
            if q < 2: A(f"s_add_u32 m0, m0, {NW*1024}\ns_add_u32 s19, s19, {NW*1024}")
        A(f"s_and_b32 s19, s{sWave}, 3\ns_lshl_b32 s19, s19, 10\ns_add_u32 m0, s19, {L_W + 36*1024}\ns_add_u32 s19, s19, {WS_W + 36*1024}")
        A(f"buffer_load_dwordx4 v{vl}, s[{SWS}:{SWS+3}], s19 offen lds")
    sRot = 36 if o.get("rot") else None
    def rotc():
        if sRot: A(f"s_lshr_b32 s{sRot}, s{sB}, 5\ns_mul_i32 s{sRot}, s{sRot}, {N*512//8}")
    def mall_touch(start):
        lanes = -(-(N*512 - start) // (128 * NW * NWG))
        A.c("every remaining line of x is touched once, chip-wide")
        A(f"v_lshlrev_b32 v{vD+4}, 7, v{vLane}")
        A(f"s_mul_i32 s35, s{sB}, {NW}\ns_add_u32 s35, s35, s{sWave}\ns_mul_i32 s35, s35, {lanes*128}")
        if start: A(f"s_add_u32 s35, s35, {start}")
        A(f"s_mov_b32 exec_lo, {(1 << lanes) - 1}\ns_mov_b32 exec_hi, 0")
        A(f"buffer_load_dword v{vD+7}, v{vD+4}, s[{SX}:{SX+3}], s35 offen")
        A("s_mov_b64 exec, -1")
    nt0 = 0
    touch0 = o.get("k2_touch0")
    tpos = N*512//8 if o.get("rot") and (o.get("f_early") if fused else o.get("k1_touch", True)) else 0
    def do_touch0(va, vd):
        A.c("pull the first rows of x into this XCD's L2")
        A(f"v_lshlrev_b32 v{va}, 7, v{vLane}")
        A(f"s_lshr_b32 s34, s2, 3\ns_mul_i32 s34, s34, {NW}\ns_add_u32 s34, s34, s{sWave}")
        return touch_x(A, touch0, 34, 17, va, vd, SX, NW, sRot, tpos)
    nacc0 = o.get("nacc0", 32) if not fused else 64
    if not fused:
        A("s_load_dwordx2 s[14:15], s[0:1], 88")
        A("s_load_dwordx2 s[4:5], s[0:1], 0")
        A("s_load_dwordx2 s[12:13], s[0:1], 72")
        ids(); ids2()
        A(f"s_lshl_b32 s17, s{sB}, 10")
        if WS_OFF: A(f"s_add_u32 s17, s17, {WS_OFF}")
        A("s_waitcnt lgkmcnt(0)")
        srd(A, SWS, 14, 15, WS_USED)
        A(f"buffer_load_dword v{vOf}, v{vD+2}, s[{SWS}:{SWS+3}], s17 offen")
        if wpos == 0: wdma(7)
        srd(A, SX, 4, 5, N*512)
        srd(A, SOUT, 12, 13, N*512)
        rotc()
        if touch0:
            nt0 = do_touch0(vD+5, vD+6)
            tpos += sum(touch0[1:]) * 128 * NW * 32
        tall = tpos + (sum(o["k2_touch"][1:]) * 128 * NW * 32 if o.get("k2_touch") else 0)
        if o.get("k2_mall") == 0:
            mall_touch(tpos if o.get("k2_mall_all") else tall); nt0 += 1
        lds_init()
        A(f"s_mov_b32 exec_hi, 0")
        A(f"ds_write_b128 v7, v[{vz+4}:{vz+7}]")
        A("s_mov_b32 exec_hi, -1")
        consts()
        for i in range(nacc0): A(f"v_mov_b32 v{vC+i}, 0")
        A(f"s_waitcnt vmcnt({(4 if wpos == 0 else 0)+nt0})")
    else:
        R = o.get("R", 32)
        aCNT, aPFX, aSTG = L_KEY, L_KEY + 4096, L_COEF
        vDst, vSrc, vEa, vRh, vBk, vRk, vRec = 38, 42, 46, 50, 62, 66, 70
        t0, t1, t2, t3 = 86, 87, 88, 94
        vL16, vCn, vW, vWr = 89, 90, 106, 122
        v16, v8, v24, vOne1 = 126, 127, 128, 129
        SD, SS, SE, SR, SDBG = 64, 68, 72, 76, 40
        sAct = 46
        A("s_load_dwordx16 s[48:63], s[0:1], 0")
        A("s_load_dwordx4 s[8:11], s[0:1], 72")
        A("s_load_dwordx2 s[14:15], s[0:1], 88")
        ids()
        A(f"v_lshlrev_b32 v{t0}, 2, v0\nv_mov_b32 v{t1}, 0")
        A(f"ds_write_b32 v{t0}, v{t1} offset:{aCNT}")
        A(f"v_lshlrev_b32 v{v16}, 4, v0\nv_lshlrev_b32 v{v8}, 3, v0\nv_mul_u32_u24 v{v24}, 24, v0")
        A(f"v_lshlrev_b32 v{vL16}, 4, v{vLane}\nv_mov_b32 v{vOne1}, 1")
        A(f"s_movk_i32 s17, {CH//4}\nv_cmp_gt_u32 s[{sAct}:{sAct+1}], s17, v0")
        A(f"s_mul_i32 s4, s{sB}, {CH*4}\ns_mul_i32 s5, s{sB}, {CH*2}\ns_mul_i32 s6, s{sB}, {CH*6}")
        A("s_waitcnt lgkmcnt(0)")
        A(f"s_cmp_ge_u32 s{sWave}, 10\ns_cbranch_scc1 L_f_noload")
        srd(A, SD, 56, 57, E*4); srd(A, SS, 54, 55, E*4); srd(A, SE, 52, 53, E*2); srd(A, SR, 50, 51, E*6)
        A(f"s_mov_b64 exec, s[{sAct}:{sAct+1}]")
        lf = o.get("k1_load_flags", "nt")
        A(f"buffer_load_dwordx4 v[{vDst}:{vDst+3}], v{v16}, s[{SD}:{SD+3}], s4 offen {lf}")
        A(f"buffer_load_dwordx4 v[{vSrc}:{vSrc+3}], v{v16}, s[{SS}:{SS+3}], s4 offen {lf}")
        A(f"buffer_load_dwordx2 v[{vEa}:{vEa+1}], v{v8}, s[{SE}:{SE+3}], s5 offen {lf}")
        A(f"buffer_load_dwordx4 v[{vRh}:{vRh+3}], v{v24}, s[{SR}:{SR+3}], s6 offen {lf}")
        A(f"buffer_load_dwordx2 v[{vRh+4}:{vRh+5}], v{v24}, s[{SR}:{SR+3}], s6 offen offset:16 {lf}")
        A("s_mov_b64 exec, -1")
        A("L_f_noload:")
        srd(A, SWS, 14, 15, WS_USED); srd(A, SX, 48, 49, N*512); srd(A, SOUT, 8, 9, N*512); srd(A, SDBG, 10, 11, 256)
        if o.get("code_touch", 1):
            A.c("wave 10 reads a share of this kernel's instructions so that later fetches find them in L2")
            A(f"s_cmp_lg_u32 s{sWave}, 10\ns_cbranch_scc1 L_f_nocode")
            A("s_getpc_b64 s[6:7]")
            A("L_f_pc:")
            A(f"s_lshr_b32 s17, s2, 3\ns_lshl_b32 s17, s17, 9\nv_lshl_add_u32 v{t0}, v{vLane}, 7, s17")
            A(f"v_min_u32 v{t0}, L_k2_end-L_f_pc, v{t0}")
            A(f"v_mov_b32 v{t0+1}, s7\nv_add_co_u32 v{t0}, vcc, s6, v{t0}\nv_addc_co_u32 v{t0+1}, vcc, 0, v{t0+1}, vcc")
            A("s_mov_b64 exec, 15")
            A(f"global_load_dword v{t3}, v[{t0}:{t0+1}], off")
            A("s_mov_b64 exec, -1")
            A("L_f_nocode:")
        A.c("one wave of the launch picks the word that marks this launch's arrival flags")
        A(f"s_cmp_lg_u32 s{sWave}, 11\ns_cbranch_scc1 L_f_nononce\ns_cmp_lg_u32 s2, 0\ns_cbranch_scc1 L_f_nononce")
        A(f"s_memrealtime s[6:7]\nv_lshlrev_b32 v{t0}, 2, v{vLane}\ns_waitcnt lgkmcnt(0)\ns_or_b32 s6, s6, 1\nv_mov_b32 v{t1}, s6")
        A(f"buffer_store_dword v{t1}, v{t0}, s[{SDBG}:{SDBG+3}], 0 offen sc1")
        A("L_f_nononce:")
        A("s_barrier")
        fw = o.get("f_wpos", 1)
        nw0 = 8 if fw == 0 else 0
        def wloads(tw):
            A.c("weights: 40 wave-loads of 8 rows; load w+12q comes from w_si0 when < 16, else from w_si1")
            srd(A, SD, 60, 61, 128*128); srd(A, SS, 62, 63, 192*128); srd(A, SE, 58, 59, 640)
            A(f"s_cmp_lt_u32 s{sWave}, 4")
            A(f"s_cselect_b32 s{SR}, s60, s62\ns_cselect_b32 s{SR+1}, s61, s63")
            A(f"s_cselect_b32 s{SR+2}, s{SD+2}, s{SS+2}\ns_mov_b32 s{SR+3}, 0x00020000")
            A(f"s_cselect_b32 s19, 0, 16384\ns_sub_u32 s19, 12288, s19")
            A(f"s_lshl_b32 s17, s{sWave}, 10\ns_add_u32 s19, s19, s17")
            A(f"buffer_load_dwordx4 v[{vW}:{vW+3}], v{vL16}, s[{SD}:{SD+3}], s17 offen")
            A(f"buffer_load_dwordx4 v[{vW+4}:{vW+7}], v{vL16}, s[{SR}:{SR+3}], s19 offen")
            A(f"s_add_u32 s19, s17, {24576-16384}")
            A(f"buffer_load_dwordx4 v[{vW+8}:{vW+11}], v{vL16}, s[{SS}:{SS+3}], s19 offen")
            A(f"s_add_u32 s19, s17, {36864-16384}")
            A(f"buffer_load_dwordx4 v[{vW+12}:{vW+15}], v{vL16}, s[{SS}:{SS+3}], s19 offen")
            A(f"v_lshrrev_b32 v{tw}, 3, v{vLane}\nv_lshlrev_b32 v{tw}, 1, v{tw}\ns_lshl_b32 s19, s{sWave}, 4")
            for q in range(4): A(f"buffer_load_ushort v{vWr+q}, v{tw}, s[{SE}:{SE+3}], s19 offen offset:{192*q}")
        if fw == 0: wloads(t0)
        A(f"s_cmp_ge_u32 s{sWave}, 10\ns_cbranch_scc1 L_f_helper")
        A(f"s_mov_b64 exec, s[{sAct}:{sAct+1}]")
        A(f"s_waitcnt vmcnt({4+nw0})")
        st.mark("dst")
        for i in range(4):
            A(f"v_lshlrev_b32 v{vBk+i}, 2, v{vDst+i}\nv_and_b32 v{vBk+i}, 0x3fc, v{vBk+i}")
            A(f"ds_add_rtn_u32 v{vRk+i}, v{vBk+i}, v{vOne1} offset:{aCNT}")
        A("s_mov_b64 exec, -1")
        A("s_waitcnt lgkmcnt(0)")
        A("s_barrier")
        A(f"ds_read_b128 v[{vCn}:{vCn+3}], v{vL16} offset:{aCNT}")
        A(f"s_waitcnt vmcnt({3+nw0})")
        A.c("key = src<<9 | onehot(j)<<28 | (group*4 + source quarter)<<2 ; record i = c01, c23, key")
        A(f"s_mov_b32 s4, 0x10000000\ns_mov_b32 s5, {-(-(1 << 32) // 3072)}\ns_mov_b32 s6, {(1 << 34) // N}\ns_movk_i32 s7, -3072\ns_movk_i32 s19, {-N//8}")
        def key(i):
            d, s_, k = vDst+i, vSrc+i, vRec+2+4*i
            if o.get("rot"):
                q = [f"v_bfe_u32 v{t1}, v{d}, 5, 3", f"v_mad_i32_i24 v{t1}, v{t1}, s19, v{s_}", f"v_add_u32 v{t3}, {N}, v{t1}",
                     f"v_min_u32 v{t1}, v{t1}, v{t3}", f"v_mul_hi_u32_u24 v{t1}, s6, v{t1}"]
            else: q = [f"v_mul_hi_u32_u24 v{t1}, s6, v{s_}"]
            return [f"v_mul_hi_u32_u24 v{t0}, s5, v{d}"] + q + [
                    f"v_mad_i32_i24 v{t2}, v{t0}, s7, v{d}", f"v_lshlrev_b32_e64 v{t0}, v{t0}, s4", f"v_lshrrev_b32 v{t2}, 8, v{t2}",
                    f"v_lshl_or_b32 v{t0}, v{s_}, 9, v{t0}", f"v_lshl_or_b32 v{t1}, v{t2}, 2, v{t1}", f"v_lshl_or_b32 v{k}, v{t1}, 2, v{t0}"]
        for l in key(0) + key(1): A(l)
        A("s_waitcnt lgkmcnt(0)")
        A(f"v_add_u32 v95, v{vCn}, v{vCn+1}\nv_add_u32 v96, v95, v{vCn+2}\nv_add_u32 v97, v96, v{vCn+3}\nv_mov_b32 v98, v97")
        fill = key(2) + key(3)
        for n, s_ in enumerate(scan_steps("v_add_u32", 98)):
            A(fill[2*n]); A(fill[2*n+1]); A(s_)
        A("v_sub_u32 v98, v98, v97")
        A(f"v_add_u32 v99, v98, v{vCn}\nv_add_u32 v100, v98, v95\nv_add_u32 v101, v98, v96")
        A.c("every wave writes the same prefix table and then reads only after its own write")
        A(f"ds_write_b128 v{vL16}, v[98:101] offset:{aPFX}")
        A(f"s_mov_b64 exec, s[{sAct}:{sAct+1}]")
        for i in range(4): A(f"ds_read_b32 v{vBk+i}, v{vBk+i} offset:{aPFX}")
        for l in fill[12:]: A(l)
        A(f"s_movk_i32 s5, {aSTG}\ns_mov_b32 s4, 0xffff0000")
        A.c("coefficients a, a*Y0, a*Y1, a*Y2 in bf16")
        A(f"s_waitcnt vmcnt({nw0})")
        if fw == 1:
            A("s_mov_b64 exec, -1")
            wloads(105)
            A(f"s_mov_b64 exec, s[{sAct}:{sAct+1}]")
        def unpack(dst, reg, hi):
            if hi: A(f"v_and_b32 v{dst}, s4, v{reg}")
            else: A(f"v_lshlrev_b32 v{dst}, 16, v{reg}")
        for i in range(4):
            unpack(t0, vEa + i//2, i & 1)
            for j in range(3):
                h = 3*i + j
                unpack(102+j, vRh + h//2, h & 1)
            for j in range(3): A(f"v_mul_f32 v{102+j}, v{t0}, v{102+j}")
            A(f"v_cvt_pk_bf16_f32 v{vRec+4*i}, v{t0}, v102\nv_cvt_pk_bf16_f32 v{vRec+1+4*i}, v103, v104")
            if i == 0: A("s_waitcnt lgkmcnt(0)")
            A(f"v_add_u32 v{vBk+i}, v{vBk+i}, v{vRk+i}\nv_mad_u32_u24 v{vBk+i}, v{vBk+i}, 12, s5")
            A(f"ds_write_b32 v{vBk+i}, v{vRec+2+4*i} offset:8")
            A(f"ds_write2_b32 v{vBk+i}, v{vRec+4*i}, v{vRec+1+4*i} offset0:0 offset1:1")
        A("s_mov_b64 exec, -1")
        A.c("wave 0 publishes start|len<<16 of the 256 buckets")
        A(f"s_cmp_lg_u32 s{sWave}, 0\ns_cbranch_scc1 L_f_nooff")
        for i in range(4): A(f"v_lshl_or_b32 v{98+i}, v{vCn+i}, 16, v{98+i}")
        A(f"s_lshl_b32 s4, s{sB}, 10")
        A(f"buffer_store_dwordx4 v[98:101], v{vL16}, s[{SWS}:{SWS+3}], s4 offen sc1")
        A("L_f_nooff:")
        A(f"s_mul_i32 s4, s{sB}, {RSTR}\ns_add_u32 s4, s4, {WS_REC}\ns_add_u32 s5, s4, 10240\ns_add_u32 s6, s4, 20480")
        A(f"s_movk_i32 s17, {RSTR//16 - 1280}\nv_cmp_gt_u32 s[{sAct}:{sAct+1}], s17, v0")
        A("s_setprio 3")
        A("s_waitcnt lgkmcnt(0)")
        A("s_barrier")
        st.mark("sortedA")
        for q in range(3): A(f"ds_read_b128 v[{vRh+4*q}:{vRh+4*q+3}], v{v16} offset:{aSTG + 10240*q}")
        for q in range(3):
            A(f"s_waitcnt lgkmcnt({2-q})")
            if q == 2: A(f"s_mov_b64 exec, s[{sAct}:{sAct+1}]")
            A(f"buffer_store_dwordx4 v[{vRh+4*q}:{vRh+4*q+3}], v{v16}, s[{SWS}:{SWS+3}], s{4+q} offen sc1")
        A("s_mov_b64 exec, -1")
        A("s_setprio 0")
        A("s_branch L_f_join")
        A.c("waves 10 and 11 carry no edges; wave 11 fetches the launch's mark and leaves it in LDS")
        A("L_f_helper:")
        if fw >= 1: wloads(105)
        if o.get("f_early"):
            A.c("the two spare waves touch this workgroup's share of x")
            A(f"s_mul_i32 s4, s{sB}, {N*512//NWG}\ns_and_b32 s4, s4, 0xffffff80\ns_sub_u32 s5, s{sWave}, 10\ns_mul_i32 s5, s5, {80*128}\ns_add_u32 s4, s4, s5")
            A(f"v_lshlrev_b32 v{t0}, 7, v{vLane}")
            A(f"buffer_load_dword v{t3}, v{t0}, s[{SX}:{SX+3}], s4 offen")
            A(f"s_add_u32 s4, s4, 8192\ns_mov_b64 exec, 0xffff")
            A(f"buffer_load_dword v{t3}, v{t0}, s[{SX}:{SX+3}], s4 offen")
            A("s_mov_b64 exec, -1")
        A("s_barrier")
        if st.on: st.n -= 2; st.names = st.names[:-2]; st.mark("dst")

        A(f"s_cmp_lg_u32 s{sWave}, 11\ns_cbranch_scc1 L_f_have0")
        A(f"s_and_b32 s4, s2, 63\ns_lshl_b32 s4, s4, 2\nv_mov_b32 v{t0}, 0\ns_mov_b32 s5, 0x40000")
        A(f"buffer_load_dword v{t1}, v{t0}, s[{SDBG}:{SDBG+3}], s4 offen")
        A("L_f_again:")
        A("s_waitcnt vmcnt(0)")
        A(f"v_readfirstlane_b32 s6, v{t1}")
        A("s_cmp_lg_u32 s6, 0\ns_cbranch_scc1 L_f_got")
        A("s_sub_u32 s5, s5, 1\ns_cbranch_scc1 L_f_got")
        A(f"s_sleep 2\nbuffer_load_dword v{t1}, v{t0}, s[{SDBG}:{SDBG+3}], s4 offen sc1\ns_branch L_f_again")
        A("L_f_got:")
        A(f"v_mov_b32 v{t0}, {L_NONCE}\nds_write_b32 v{t0}, v{t1}\ns_waitcnt lgkmcnt(0)")
        A("L_f_have0:")
        A("s_barrier")
        st.mark("sortedA")
        A("s_waitcnt vmcnt(0)")
        A("L_f_join:")
        st.mark("stiss")
        sNonce = 35
        A(f"v_mov_b32 v{t0}, {L_NONCE}\nds_read_b32 v{t1}, v{t0}")
        ids2(); rotc(); consts()
        A.c("while the stores are under way: weights scaled by w_rad, row k as [tile t ^ (k&3)][16 columns 4n+t]")
        vA = 95
        A(f"v_lshrrev_b32 v{t0}, 3, v{vLane}\nv_and_b32 v{vA}, 7, v{vLane}\nv_lshlrev_b32 v{vA}, 2, v{vA}")
        A(f"v_lshl_add_u32 v{vA}, v{t0}, 7, v{vA}\nv_and_b32 v{t0}, 3, v{t0}\nv_lshl_add_u32 v{vA}, v{t0}, 5, v{vA}")
        A(f"s_lshl_b32 s4, s{sWave}, 10\ns_add_u32 s4, s4, {L_WT}\nv_add_u32 v{vA}, s4, v{vA}")
        for t in range(1, 4): A(f"v_xor_b32 v{vA+t}, {32*t}, v{vA}")
        A("s_mov_b32 s4, 0xffff0000")
        A("s_waitcnt vmcnt(3) lgkmcnt(0)")
        A(f"v_readfirstlane_b32 s{sNonce}, v{t1}")
        st.mark("wok")
        for q in range(4):
            if q == 3: A(f"s_cmp_ge_u32 s{sWave}, 4\ns_cbranch_scc1 L_f_w3")
            A(f"v_lshlrev_b32 v{vWr+q}, 16, v{vWr+q}")
            for t in range(4):
                unpack(99, vW + 4*q + t//2, t & 1); unpack(100, vW + 4*q + 2 + t//2, t & 1)
                A(f"v_mul_f32 v99, v{vWr+q}, v99\nv_mul_f32 v100, v{vWr+q}, v100")
                A(f"v_cvt_pk_bf16_f32 v{92+(t & 1)}, v99, v100")
                A(f"ds_write_b32 v{vA+t}, v{92+(t & 1)} offset:{12288*q}")
        A("L_f_w3:")
        lds_init()
        A.c("zero block, round word, flags, counters: bytes 0..511")
        A(f"s_mov_b32 exec_hi, 0")
        A(f"ds_write_b128 v7, v[{vz+4}:{vz+7}]")
        A("s_mov_b32 exec_hi, -1")
        A.c("fragment w+12q = (k step (w>>2)+3q, tile w&3): two transposing reads")
        A(f"v_lshrrev_b32 v{t0}, 4, v{vLane}\nv_bfe_u32 v{t2}, v{vLane}, 2, 2\nv_lshl_add_u32 v{vA}, v{t0}, 3, v{t2}\nv_lshlrev_b32 v{vA}, 7, v{vA}")
        A(f"s_and_b32 s4, s{sWave}, 3\nv_xor_b32 v{t2}, s4, v{t2}\nv_lshl_add_u32 v{vA}, v{t2}, 5, v{vA}")
        A(f"v_and_b32 v{t2}, 3, v{vLane}\nv_lshl_add_u32 v{vA}, v{t2}, 3, v{vA}")
        A(f"s_lshr_b32 s4, s{sWave}, 2\ns_lshl_b32 s4, s4, 12\ns_add_u32 s4, s4, {L_WT}\nv_add_u32 v{vA}, s4, v{vA}")
        A(f"s_lshl_b32 s4, s{sWave}, 10\ns_add_u32 s4, s4, {L_W}\nv_add_u32 v{vA+1}, s4, v7")
        vFa, vFv, vFs, vFp = 99, 100, 101, 98
        A(f"v_lshrrev_b32 v{vFa}, 8, v{vD+2}")
        A(f"v_cmp_gt_u32 s[4:5], s{sNseg}, v{vLane}")
        A(f"s_and_b32 s6, s2, {R-1}\ns_lshl_b32 s6, s6, 10\ns_add_u32 s6, s6, {WS_FLAG}\ns_mov_b32 s7, 0x40000")
        A(f"v_lshlrev_b32 v{vFs}, 10, v{vLane}\nv_mov_b32 v{vFv}, s{sNonce}\ns_lshl_b32 s17, s{sB}, 2\ns_add_u32 s19, s17, {WS_FLAG}")
        st.mark("wdone")
        facc = o.get("f_acc", 0)
        for i in range(facc): A(f"v_mov_b32 v{vC+i}, 0")
        A(f"s_waitcnt vmcnt(0) lgkmcnt(0)")
        A("s_barrier")
        st.mark("acked")
        A.c(f"every store of this workgroup has been acknowledged: raise its flag in all {R} copies")
        A(f"s_cmp_lg_u32 s{sWave}, 0\ns_cbranch_scc1 L_f_noflag")
        if R < 64: A(f"s_mov_b32 exec_lo, {(1 << R) - 1 & 0xffffffff}\ns_mov_b32 exec_hi, 0")
        A(f"buffer_store_dword v{vFv}, v{vFs}, s[{SWS}:{SWS+3}], s19 offen sc1")
        A("s_mov_b64 exec, -1")
        A("L_f_noflag:")
        vW2 = 46
        for q in range(4):
            A(f"ds_read_b64_tr_b16 v[{vW2+4*q}:{vW2+4*q+1}], v{vA} offset:{12288*q}")
            A(f"ds_read_b64_tr_b16 v[{vW2+4*q+2}:{vW2+4*q+3}], v{vA} offset:{12288*q+512}")
        if touch0 and o.get("f_touch_pos", 1) == 1: do_touch0(t2, t3); A(f"s_lshl_b32 s17, s{sB}, 2")
        if touch0: tpos += sum(touch0[1:]) * 128 * NW * 32
        tall = tpos
        A.c("wait for the flags of this wave's chunks")
        A(f"buffer_load_dword v{vFp}, v{vFa}, s[{SWS}:{SWS+3}], s6 offen sc1")
        for q in range(4):
            if q == 3: A(f"s_cmp_ge_u32 s{sWave}, 4\ns_cbranch_scc1 L_f_w4")
            A(f"s_waitcnt lgkmcnt({6-2*q})")
            A(f"ds_write_b128 v{vA+1}, v[{vW2+4*q}:{vW2+4*q+3}] offset:{12288*q}")
        A("L_f_w4:")
        for i in range(facc, 64): A(f"v_mov_b32 v{vC+i}, 0")
        A("L_f_poll:")
        A("s_waitcnt vmcnt(0)")
        A(f"v_cmp_ne_u32 vcc, s{sNonce}, v{vFp}")
        A("s_and_b64 vcc, vcc, s[4:5]\ns_cbranch_scc0 L_f_seen")
        A("s_sub_u32 s7, s7, 1\ns_cbranch_scc1 L_f_seen")
        if o.get("f_sleep", 1): A(f"s_sleep {o.get('f_sleep', 1)}")
        A(f"buffer_load_dword v{vFp}, v{vFa}, s[{SWS}:{SWS+3}], s6 offen sc1\ns_branch L_f_poll")
        A("L_f_seen:")
        st.mark("seen")
        A(f"buffer_load_dword v{vOf}, v{vD+2}, s[{SWS}:{SWS+3}], s17 offen sc1")
        A("s_waitcnt vmcnt(0)")
    st.mark("off")
    A("L_k2_round:")
    vLen, vInc, vM, vPos = vD+2, vD+3, vD+28, vD+29
    vMk = vD + 30
    vR = vT
    vL12 = vD + 35
    A(f"v_lshrrev_b32 v{vLen}, 16, v{vOf}")
    A(f"v_mov_b32 v{vInc}, v{vLen}")
    A(f"v_and_b32 v{vM}, 0xffff, v{vOf}")
    steps = scan_steps("v_add_u32", vInc, upto=32)
    A(f"s_mov_b32 s17, {RSTR}")
    vSave = vD + 36
    A(steps[0])
    A(f"v_mul_lo_u32 v{vPos}, v{vD+1}, s17")
    A(f"s_mul_i32 s17, s{sRound}, {WIN}")
    A(steps[1])
    A(f"v_mov_b32 v{vSave}, v{vOf}\nv_mov_b32 v{vSave+1}, v{vD+1}")
    A(steps[2])
    A(f"s_movk_i32 s19, 383\nv_mul_u32_u24 v{vL12}, 12, v{vLane}")
    A(steps[3])
    A(f"v_lshl_add_u32 v{vMk+4}, v{vLane}, 2, s{sMk}")
    A(f"v_add_u32 v{vM}, v{vM}, v{vLen}")
    A(steps[4])
    A(f"v_sub_u32 v{vM}, v{vM}, v{vInc}")
    A(f"v_readlane_b32 s{sTot}, v{vInc}, 31")
    A(f"v_sub_u32 v{vInc}, v{vInc}, v{vLen}")
    A(f"v_mad_i32_i24 v{vM}, v{vM}, 12, v{vPos}")
    A(f"v_subrev_u32 v{vPos}, s17, v{vInc}")
    A(f"v_med3_i32 v{vPos}, v{vPos}, 0, s19")
    A(f"v_lshl_add_u32 v{vPos}, v{vPos}, 2, s{sMk}")
    A(f"s_mov_b32 exec_hi, 0")
    A(f"ds_max_u32 v{vPos}, v{vM}")
    A("s_mov_b32 exec_hi, -1")
    for it in range(NIT): A(f"ds_read_b32 v{vMk+it}, v{vMk+4} offset:{256*it}")
    A(f"s_sub_u32 s{sRem}, s{sTot}, s17\ns_min_i32 s{sRem}, s{sRem}, {WIN}")
    A(f"s_mul_i32 s17, s17, 12\ns_add_u32 s17, s17, {WS_REC}")
    A("s_waitcnt lgkmcnt(1)")
    sc = [scan_steps("v_max_u32", vMk+it) for it in range(NIT)]
    for k in range(6):
        for it in range(NIT-1): A(sc[it][k])
    def recload(it):
        A(f"buffer_load_dwordx3 v[{vR+4*it}:{vR+4*it+2}], v{vMk+it}, s[{SWS}:{SWS+3}], s17 offen offset:{768*it} {hf}")
    for it in range(NIT-1): A(f"v_readlane_b32 s{sCar[it]}, v{vMk+it}, 63")
    A(f"v_add_u32 v{vMk}, v{vMk}, v{vL12}")
    for it in range(1, NIT-1): A(f"s_max_u32 s{sCar[it]}, s{sCar[it]}, s{sCar[it-1]}")
    A.c("the last window is nearly always empty: it goes first, so the counted waits below do not depend on it")
    A(f"s_cmp_le_i32 s{sRem}, {64*(NIT-1)}\ns_cbranch_scc1 L_k2_skip4")
    A("s_waitcnt lgkmcnt(0)")
    for k in range(6): A(sc[NIT-1][k])
    A(f"v_max_u32 v{vMk+NIT-1}, s{sCar[NIT-2]}, v{vMk+NIT-1}")
    A(f"v_add_u32 v{vMk+NIT-1}, v{vMk+NIT-1}, v{vL12}")
    recload(NIT-1)
    A("L_k2_skip4:")
    recload(0)
    for it in range(1, NIT-1):
        A(f"v_max_u32 v{vMk+it}, s{sCar[it-1]}, v{vMk+it}")
        A(f"v_add_u32 v{vMk+it}, v{vMk+it}, v{vL12}")
        recload(it)
    st.mark("recissue")
    for it in range(NIT):
        if it: A(f"s_sub_u32 s19, s{sRem}, {64*it}")
        A(f"v_cmp_gt_i32 s[{sMask+2*it}:{sMask+2*it+1}], s{19 if it else sRem}, v{vLane}")
    A.c("lane constants of the main loop")
    A(f"v_and_b32 v{vOff}, 15, v{vLane}\nv_lshlrev_b32 v{vOff}, 4, v{vOff}")
    A(f"v_and_b32 v{vSh}, 3, v{vLane}\nv_add_u32 v{vSh}, 28, v{vSh}")
    if nacc0 < 64:
        A(f"s_cmp_lg_u32 s{sRound}, 0\ns_cbranch_scc1 L_k2_acc")
        for i in range(nacc0, 64): A(f"v_mov_b32 v{vC+i}, 0")
        A("L_k2_acc:")
    vBin = vMk
    vRank = vD + 44
    vc, vs, vtq, vx, vm1, vm2 = vD+50, vD+51, vD+52, vD+53, vD+54, vD+55
    vOne = vD + 56
    A(f"v_and_b32 v{vx}, 3, v{vLane}")
    A(f"v_cmp_lt_u32 vcc, 0, v{vx}\nv_lshlrev_b32 v{vPos}, 2, v{vLane}\nv_mov_b32 v{vM}, {L_RND}\nv_cndmask_b32 v{vm1}, 0, -1, vcc")
    A(f"v_cmp_lt_u32 vcc, 1, v{vx}")
    A(f"v_lshrrev_b32 v{vKA}, 4, v{vLane}\nv_lshlrev_b32 v{vKA}, 2, v{vKA}")
    A(f"v_cndmask_b32 v{vm2}, 0, -1, vcc")
    A(f"v_and_b32 v{vK2A}, 12, v{vLane}\nv_lshl_add_u32 v{vK2A}, v{vK2A}, 2, v{vKA}")
    A(f"v_mov_b32 v7, v{vSave}\nv_mov_b32 v0, v{vSave+1}")
    A(f"v_mov_b32 v{vOne}, 4")
    A.c("lanes without a record keep a rank that puts their LDS writes out of range")
    for it in range(NIT): A(f"v_mov_b32 v{vRank+it}, 0x100000" if it == 0 else f"v_mov_b32 v{vRank+it}, v{vRank}")
    tb = o.get("k2_touchb")
    ntb = 0
    A.c("counters and pad keys of every wave are in place, every record load of the workgroup is under way")
    A("s_waitcnt lgkmcnt(0)")
    A("s_barrier")
    A.c("a wave with more records than one window raises the number of rounds")
    A(f"s_cmp_le_u32 s{sTot}, {WIN}\ns_cbranch_scc1 L_k2_one")
    A(f"v_mov_b32 v{vx}, s{sTot}")
    A("s_mov_b64 exec, 1")
    A(f"ds_max_u32 v{vM}, v{vx}")
    A("s_mov_b64 exec, -1")
    A("L_k2_one:")
    if wpos == 1:
        A(f"v_lshlrev_b32 v{vD+4}, 4, v{vLane}")
        wdma(vD+4); ntb += 4
    if tb:
        A.c("every record load of the workgroup is under way: pull rows of x into this XCD's L2 behind them")
        A(f"v_lshlrev_b32 v{vD+5}, 7, v{vLane}")
        A(f"s_lshr_b32 s34, s2, 3\ns_mul_i32 s34, s34, {NW}\ns_add_u32 s34, s34, s{sWave}")
        ntb += touch_x(A, tb, 34, 17, vD+5, vD+6, SX, NW, sRot, tpos)
        tpos += sum(tb[1:]) * 128 * NW * 32
        if o.get("k2_mall") == 2: mall_touch(tpos); ntb += 1
    for it in range(NIT):
        if it < NIT-1: A(f"s_waitcnt vmcnt({NIT-2-it+ntb})")
        else: A(f"s_cmp_le_i32 s{sRem}, {64*(NIT-1)}\ns_cbranch_scc1 L_k2_skip4a")
        if it == 0: st.mark("rec0")
        A(f"v_and_b32 v{vBin+it}, 0xfc, v{vR+4*it+2}")
        A(f"s_mov_b64 exec, s[{sMask+2*it}:{sMask+2*it+1}]")
        A(f"ds_add_rtn_u32 v{vRank+it}, v{vBin+it}, v{vOne} offset:{L_CNT}")
        A("s_mov_b64 exec, -1")
    A("L_k2_skip4a:")
    A("s_waitcnt lgkmcnt(0)")
    A("s_barrier")
    st.mark("ranked")
    A(f"ds_read_b32 v{vc}, v{vPos} offset:{L_CNT}")
    A(f"ds_read_b32 v{vM}, v{vM}")
    if wpos in (3, 4):
        A(f"s_cmp_lg_u32 s{sRound}, 0\ns_cbranch_scc1 L_k2_now")
        A(f"v_lshlrev_b32 v{vD+4}, 4, v{vLane}")
        wdma(vD+4)
        A("L_k2_now:")
    nt = 0
    touch = o.get("k2_touch")
    if touch:
        A.c("pull rows of x into this XCD's L2 while the records are being placed")
        A(f"v_lshlrev_b32 v{vD+5}, 7, v{vLane}")
        A(f"s_lshr_b32 s34, s2, 3\ns_mul_i32 s34, s34, {NW}\ns_add_u32 s34, s34, s{sWave}")
        nt = touch_x(A, touch, 34, 17, vD+5, vD+6, SX, NW, sRot, tpos)
        assert nt <= 1
    if o.get("k2_mall") == 1: mall_touch(tall)
    A(f"s_lshl_b32 s19, s{sGrp}, 2")
    A("s_waitcnt lgkmcnt(1)")
    A(f"v_and_b32_dpp v{vx}, v{vc}, v{vm1} quad_perm:[0,0,1,2] row_mask:0xf bank_mask:0xf")
    A(f"v_add_u32 v{vs}, v{vc}, v{vx}")
    A(f"v_and_b32_dpp v{vx}, v{vs}, v{vm2} quad_perm:[0,0,0,1] row_mask:0xf bank_mask:0xf")
    A(f"v_add_u32 v{vs}, v{vs}, v{vx}")
    A(f"v_mov_b32_dpp v{vtq}, v{vs} quad_perm:[3,3,3,3] row_mask:0xf bank_mask:0xf")
    A(f"v_add_u32 v{vx}, 127, v{vtq}\nv_and_b32 v{vx}, 0xffffff80, v{vx}")
    A(f"v_sub_u32 v{vs}, v{vs}, v{vc}")
    A(f"v_sub_u32 v{vs}, v{vs}, v{vx}")
    sq = scan_steps("v_add_u32", vx, first=4)
    A(f"v_mov_b32 v{vc}, v{vx}")
    A(sq[0])
    A(f"v_readlane_b32 s{sN}, v{vtq}, s19")
    for s_ in sq[1:]: A(s_)
    A(f"v_add_u32 v{vs}, v{vs}, v{vx}")
    A(f"v_sub_u32 v{vc}, v{vx}, v{vc}")
    A(f"s_cmp_le_i32 s{sRem}, {64*(NIT-1)}\ns_cbranch_scc1 L_k2_skip4c")
    A(f"ds_bpermute_b32 v{vBin+NIT-1}, v{vBin+NIT-1}, v{vs}")
    A("L_k2_skip4c:")
    for it in range(NIT-1): A(f"ds_bpermute_b32 v{vBin+it}, v{vBin+it}, v{vs}")
    A(f"v_readlane_b32 s17, v{vc}, s19")
    A(f"s_cmp_lg_u32 s{sRound}, 0\ns_cbranch_scc1 L_k2_havernd")
    A(f"s_waitcnt lgkmcnt({NIT-1})")
    A(f"v_readfirstlane_b32 s{sRnd}, v{vM}")
    A("L_k2_havernd:")
    A.c("LDS addresses of this wave's slots (counts and starts are in units of 4 bytes)")
    A(f"v_add_u32 v{vKA}, s17, v{vKA}")
    A(f"v_add_u32 v{vK2A}, s17, v{vK2A}")
    A(f"s_movk_i32 s19, {L_COEF}")
    A(f"v_lshl_add_u32 v{vCA}, v{vK2A}, 1, s19")
    A(f"s_lshr_b32 s{sN}, s{sN}, 2")
    A(f"s_add_u32 s17, s{sN}, 31\ns_lshr_b32 s17, s17, 5")
    prio = o.get("prio", [3, 2, 1])
    frac = o.get("frac")
    np_ = len(prio) if prio else 0
    for k in range(1, np_):
        t = (sT1, sT2, sT3)[k-1]
        f = int(256 * (frac[k-1] if frac else k / np_) + 0.999)
        A(f"s_mul_i32 s{t}, s17, {f}\ns_add_u32 s{t}, s{t}, 128\ns_lshr_b32 s{t}, s{t}, 8")
    for it in range(NIT):
        p = vBin + it
        if it == NIT-1: A(f"s_cmp_le_i32 s{sRem}, {64*(NIT-1)}\ns_cbranch_scc1 L_k2_skip4b")
        if it < NIT-1: A(f"s_waitcnt lgkmcnt({NIT-2-it + 2*it})")
        A(f"v_add_u32 v{p}, v{p}, v{vRank+it}")
        A(f"ds_write_b32 v{p}, v{vR+4*it+2} offset:{L_KEY}")
        A(f"v_lshlrev_b32 v{vRank+it}, 1, v{p}")
        A(f"ds_write_b64 v{vRank+it}, v[{vR+4*it}:{vR+4*it+1}] offset:{L_COEF}")
    A("L_k2_skip4b:")
    younger = (ntb - 4 if wpos == 1 else 0) + nt + (1 if o.get("k2_mall") == 1 else 0)
    A(f"s_waitcnt vmcnt({younger}) lgkmcnt(0)" if wpos in (1, 3) else "s_waitcnt lgkmcnt(0)")
    A("s_barrier")
    st.mark("sorted")
    def rd_keys():
        for q in range(4):
            A(f"ds_read2_b32 v[{vK+2*q}:{vK+2*q+1}], v{vKA} offset0:{L_KEY//4+8*q} offset1:{L_KEY//4+8*q+4}")
        A(f"ds_read2_b32 v[{vK2}:{vK2+1}], v{vK2A} offset0:{L_KEY//4} offset1:{L_KEY//4+16}")
        A(f"v_add_u32 v{vKA}, 128, v{vKA}\nv_add_u32 v{vK2A}, 128, v{vK2A}")
    def addr():
        for i in range(8): A(f"v_and_or_b32 v{vK+i}, v{vK+i}, s{sRowM}, v{vOff}")
        for u in range(2):
            A(f"v_bfe_i32 v{vK2+u}, v{vK2+u}, v{vSh}, 1")
            A(f"v_and_b32 v{vK2+u}, v{vK2+u}, v{vCA}")
        A(f"v_add_u32 v{vCA}, 256, v{vCA}")
    def rd_coef():
        A(f"ds_read_b64_tr_b16 v[{vAF}:{vAF+1}], v{vK2}")
        A(f"ds_read_b64_tr_b16 v[{vAF+2}:{vAF+3}], v{vK2+1} offset:128")
    gf = o.get("gather_flags", "")
    def load(h, i):
        d = vD + h*32 + i*4
        A(f"buffer_load_dwordx4 v[{d}:{d+3}], v{vK+i}, s[{SX}:{SX+3}], 0 offen offset:{h*256} {gf}")
    def loads(h):
        for i in range(8): load(h, i)
    def loads_part(h, tag, wait):
        for i in range(8):
            if i: A(f"s_cmp_le_i32 s{sRem}, {4*i}\ns_cbranch_scc1 L_{tag}_{i}")
            load(h, i)
        if wait:
            A(f"s_waitcnt vmcnt(8)\ns_branch L_{tag}_done")
            for i in range(1, 8):
                A(f"L_{tag}_{i}:\ns_waitcnt vmcnt({i})")
                if i < 7: A(f"s_branch L_{tag}_done")
            A(f"L_{tag}_done:")
        else:
            for i in range(1, 8): A(f"L_{tag}_{i}:")
    def comp(h, lgkm=False, filler=None):
        if o.get("diag_nocomp"):
            if lgkm: A("s_waitcnt lgkmcnt(0)")
            if filler: filler()
            return
        def mf(g):
            t = vT + (g % 4)*4
            c = vC + (h*8 + g)*4
            A(f"v_mfma_f32_16x16x32_bf16 v[{c}:{c+3}], v[{vAF}:{vAF+3}], v[{t}:{t+3}], v[{c}:{c+3}]")
        for g in range(8):
            u, par = g >> 1, g & 1
            t = vT + (g % 4)*4
            for q in range(4):
                a = vD + h*32 + (2*q)*4 + u
                b = vD + h*32 + (2*q+1)*4 + u
                A(f"v_perm_b32 v{t+q}, v{b}, v{a}, s{sP0+par}")
            if lgkm and g == 1: A("s_waitcnt lgkmcnt(0)")
            if g: mf(g-1)
        if filler: filler()
        mf(7)
    vH, vSW, vGA, vWB, vO, vFl = vK, vK+1, vK+2, vK+3, vK+4, vK+5
    vY0 = vKA
    sS, sOut = 41, 42
    assert o.get("gshift", 0) % 4 == 0
    def epi_consts():
        g, n = vK+6, vK+7
        A.c("waves 4q..4q+3 share a tile of nodes; once all four have staged their sums, wave 4q+s multiplies component s")
        A(f"s_and_b32 s{sS}, s{sWave}, 3\ns_and_b32 s40, s{sGrp}, 12")
        A(f"v_lshrrev_b32 v{g}, 4, v{vLane}\nv_and_b32 v{n}, 15, v{vLane}")
        A(f"v_bfe_u32 v{vH}, v{vLane}, 3, 1\nv_cvt_f32_u32 v{vH}, v{vH}")
        A.c("staging rows: four for each of groups 0..3, three for the others")
        A(f"s_min_u32 s17, s{sGrp}, 4\ns_mul_i32 s19, s{sGrp}, 3\ns_add_u32 s17, s17, s19")
        A(f"s_mul_i32 s17, s17, {SNODE}\ns_add_u32 s17, s17, {L_STG}\ns_movk_i32 s19, {SNODE}")
        A(f"v_lshl_add_u32 v{vSW}, v{n}, 4, s17")
        A(f"v_mad_u32_u24 v{vSW}, v{g}, s19, v{vSW}")
        A(f"s_min_u32 s17, s40, 4\ns_mul_i32 s46, s40, 3\ns_add_u32 s17, s17, s46")
        A(f"s_mul_i32 s17, s17, {SNODE}\ns_add_u32 s17, s17, {L_STG}")
        A(f"v_lshl_add_u32 v{vGA}, v{g}, 4, s17")
        A(f"v_mad_u32_u24 v{vGA}, v{n}, s19, v{vGA}")
        A(f"s_cmp_eq_u32 s40, 0\ns_cselect_b32 s19, 0, {-SNODE}")
        A(f"v_lshrrev_b32 v{vO}, 2, v{n}\nv_mad_i32_i24 v{vGA}, v{vO}, s19, v{vGA}")
        A.c("block p of component s sits in slot (k, high); one byte per s, in units of 128 bytes")
        ent = {0: [(0,0),(2,0),(3,0),(4,0)], 1: [(2,1),(0,1),(1,0),(1,1)], 2: [(0,0),(5,1),(4,1),(3,1)]}
        A(f"s_lshl_b32 s19, s{sS}, 3")
        for p in range(3):
            c = sum((2*k + h) << (8*i) for i, (k, h) in enumerate(ent[p]))
            A(f"s_lshr_b32 s17, {c:#x}, s19\ns_and_b32 s17, s17, 0xff\ns_lshl_b32 s17, s17, 7")
            A(f"v_add_u32 v{vY0+p}, s17, v{vGA}")
        A(f"s_min_u32 s17, s{sS}, 1\ns_lshl_b32 s17, s17, 14\ns_add_u32 s17, s17, {L_W}")
        A(f"v_lshl_add_u32 v{vWB}, v{vLane}, 4, s17")
        A(f"s_lshl_b32 s17, s40, 10\ns_add_u32 s17, s17, {L_GATE}")
        A(f"v_lshl_add_u32 v{vGA}, v{vLane}, 4, s17")
        A(f"s_lshl_b32 s17, s40, 1\ns_add_u32 s17, s17, {L_FLAG}\nv_mov_b32 v{vFl}, s17")
        A.c("output row = bucket + 256*(first group + g + 12r); rows past the last node fall outside the descriptor")
        A(f"v_lshlrev_b32 v{vO}, 17, v{g}\nv_lshl_add_u32 v{vO}, v{n}, 3, v{vO}")
        A(f"s_lshl_b32 s{sOut}, s40, 17\ns_lshl_b32 s17, s{sB}, 9\ns_add_u32 s{sOut}, s{sOut}, s17")
        A(f"s_lshl_b32 s17, s{sS}, 7\ns_add_u32 s{sOut}, s{sOut}, s17")
        for r in range(1, 4): A(f"s_add_u32 s{sOut+r}, s{sOut}, {r*12 << 17}")
        A(f"s_cmp_lt_u32 s{sGrp}, 4\ns_cselect_b32 s46, -1, 0xffff")
        A(f"s_add_u32 s47, s{sRound}, 1\ns_mul_i32 s47, s47, {WIN}")
    if prio: A(f"s_setprio {prio[0]}")
    rd_keys()
    A(f"s_mov_b32 s{sRem}, s{sN}\ns_mov_b32 s{sStep}, 1")
    A(f"s_cmp_ge_u32 s{sN}, 32\ns_cbranch_scc1 L_k2_full")
    A.c("fewer than 32 edges: the row registers that no load fills must not hold NaN patterns")
    A("s_waitcnt vmcnt(0) lgkmcnt(0)")
    for i in range(64): A(f"v_mov_b32 v{vD+i}, 0")
    addr()
    rd_coef()
    A(f"s_cmp_eq_u32 s{sN}, 0\ns_cbranch_scc1 L_k2_last")
    loads_part(0, "p0", False)
    loads_part(1, "p1", False)
    A("s_branch L_k2_last")
    A("L_k2_full:")
    A("s_waitcnt lgkmcnt(0)")
    addr()
    rd_coef()
    loads(0); loads(1)
    rd_keys()
    A(f"s_sub_u32 s{sRem}, s{sRem}, 32")
    A(f"s_cmp_lt_i32 s{sRem}, 32\ns_cbranch_scc1 L_k2_tail")
    A(".p2align 3")
    A("L_k2_loop:")
    if np_ > 1:
        for k in range(1, np_):
            t = (sT1, sT2, sT3)[k-1]
            A(f"s_cmp_lg_u32 s{sStep}, s{t}\ns_cbranch_scc1 L_k2_pr{k}\ns_setprio {prio[k]}\nL_k2_pr{k}:")
        A(f"s_add_u32 s{sStep}, s{sStep}, 1")
    A("s_waitcnt vmcnt(8)")
    if wpos == 4:
        A(f"s_cmp_lg_u32 s{sSaid}, 0\ns_cbranch_scc1 L_k2_said1")
        A(f"v_mov_b32 v{vT}, {L_FLAG+32}\nv_mov_b32 v{vT+1}, 1")
        A(f"s_mov_b64 exec, 1\nds_add_u32 v{vT}, v{vT+1}\ns_mov_b64 exec, -1\ns_mov_b32 s{sSaid}, 1")
        A("L_k2_said1:")
    comp(0, True, addr)
    loads(0)
    A("s_waitcnt vmcnt(8)")
    comp(1, False, lambda: load(1, 0))
    for i in range(1, 8): load(1, i)
    rd_coef()
    rd_keys()
    A(f"s_sub_u32 s{sRem}, s{sRem}, 32")
    A(f"s_cmp_ge_i32 s{sRem}, 32\ns_cbranch_scc1 L_k2_loop")
    A("L_k2_tail:")
    if prio: A(f"s_setprio {prio[-1]}")
    A(f"s_cmp_le_i32 s{sRem}, 0\ns_cbranch_scc1 L_k2_last")
    A("s_waitcnt vmcnt(8)")
    comp(0, True, addr)
    loads_part(0, "t0", True)
    comp(1)
    loads_part(1, "t1", False)
    rd_coef()
    A("L_k2_last:")
    A("s_waitcnt lgkmcnt(0)")
    epi_consts()
    A("s_waitcnt vmcnt(0)")
    if wpos == 4:
        A.c("this wave's share of the weights has landed; they are read once all twelve waves have said so")
        A(f"v_mov_b32 v{vK+6}, {L_FLAG+32}\nv_mov_b32 v{vK+7}, 1")
        A(f"s_cmp_lg_u32 s{sSaid}, 0\ns_cbranch_scc1 L_k2_said")
        A(f"s_mov_b64 exec, 1\nds_add_u32 v{vK+6}, v{vK+7}\ns_mov_b64 exec, -1\ns_mov_b32 s{sSaid}, 1")
        A("L_k2_said:")
        A(f"ds_read_b32 v{vK+7}, v{vK+6}")
    comp(0)
    if wpos == 4:
        A("L_k2_wait0:")
        A("s_waitcnt lgkmcnt(0)")
        A(f"v_readfirstlane_b32 s17, v{vK+7}")
        A(f"s_cmp_ge_u32 s17, {NW}\ns_cbranch_scc1 L_k2_go0")
        A(f"s_cmp_lt_u32 s47, s{sRnd}\ns_cbranch_scc1 L_k2_go0")
        A(f"s_sleep 1\nds_read_b32 v{vK+7}, v{vK+6}\ns_branch L_k2_wait0")
        A("L_k2_go0:")
    vPk = vT + 4
    wreg = [vD + 4*n for n in range(16)] + [vC + 40 + 4*n for n in range(6)] + [vAF, vT + 12]
    jobs = [(kk, t) for kk in range(6) for t in range(4)]
    def rdw(n):
        A(f"ds_read_b128 v[{wreg[n]}:{wreg[n]+3}], v{vWB} offset:{n*1024}")
    for n in range(8): rdw(n)
    comp(1)
    eprio = o.get("eprio", 0)
    if prio: A(f"s_setprio {eprio}")
    st.mark("loopend")
    A(f"s_add_u32 s{sRound}, s{sRound}, 1")
    A(f"s_mul_i32 s17, s{sRound}, {WIN}")
    A(f"s_cmp_ge_u32 s17, s{sRnd}\ns_cbranch_scc1 L_k2_epi")
    A.c("rare: a wave found more records than one window holds; sort and gather the next window")
    A("s_waitcnt vmcnt(0) lgkmcnt(0)")
    A("s_barrier")
    A(f"v_mov_b32 v{vOf}, v7\nv_mov_b32 v{vD+1}, v0")
    A(f"s_lshl_b32 s17, s{sWave}, 6\nv_add_u32 v0, s17, v{vLane}")
    A(f"v_lshlrev_b32 v7, 4, v{vLane}")
    lds_init()
    A(f"s_mov_b32 exec_lo, 0xffff\ns_mov_b32 exec_hi, 0")
    A(f"ds_write_b128 v7, v[{vz+4}:{vz+7}] offset:{L_CNT}")
    A("s_mov_b64 exec, -1")
    A("s_waitcnt lgkmcnt(0)")
    A("s_barrier")
    A("s_branch L_k2_round")
    A("L_k2_epi:")
    if o.get("diag_noepi"):
        if st.on: st.mark("issued")
        st.flush(14, sWave, vT, 48)
        A("s_endpgm")
        st.on = False
    U = lambda jj, a: vC + jj*4 + a
    V = lambda jj, a: vC + (8+jj)*4 + a
    ror = "row_ror:8 row_mask:0xf bank_mask:0xf"
    srcs = [lambda jj: U(jj,0), lambda jj: V(jj,0), lambda jj: U(jj,1), lambda jj: U(jj,2), lambda jj: U(jj,3), lambda jj: V(jj,2)]
    npk = [0]
    def pack(k):
        r = vPk + 4*(npk[0] % 2); npk[0] += 1
        for q in range(4): A(f"v_cvt_pk_bf16_f32 v{r+q}, v{srcs[k](2*q)}, v{srcs[k](2*q+1)}")
        A(f"ds_write_b128 v{vSW}, v[{r}:{r+3}] offset:{k*SPITCH}")
    A.c("groups with three nodes own three staging rows: their fourth lane group does not write")
    A("s_mov_b32 exec_hi, s46")
    pack(0); pack(1)
    for jj in range(8):
        t0, t1 = vT + 2*(jj & 1), vT + 1 + 2*(jj & 1)
        A(f"v_add_f32_dpp v{t0}, v{V(jj,2)}, v{V(jj,3)} {ror}")
        A(f"v_sub_f32_dpp v{t1}, v{V(jj,1)}, v{U(jj,2)} {ror}")
        A(f"v_subrev_f32_dpp v{V(jj,2)}, v{V(jj,3)}, v{V(jj,2)} {ror}")
        A(f"v_fma_f32 v{U(jj,1)}, v{t0}, v{vH}, v{U(jj,1)}")
        A(f"v_fma_f32 v{U(jj,3)}, -v{V(jj,1)}, v{vH}, v{U(jj,3)}")
        A(f"v_cndmask_b32 v{U(jj,2)}, v{U(jj,2)}, v{t1}, s[{sH}:{sH+1}]")
    for k in (2, 3, 4, 5): pack(k)
    vS = vC
    vY = vC + 24
    vG = vD
    vF1, vF2 = vT, vT + 1
    A(f"v_mov_b32 v{vF1}, 1")
    A.c("LDS serves a wave's requests in order: the count goes up after the six writes")
    A("s_mov_b64 exec, 1")
    A(f"ds_add_u32 v{vFl}, v{vF1}")
    A("s_mov_b64 exec, -1")
    st.mark("staged")
    for n in range(8, 24): rdw(n)
    A(f"s_mov_b32 s19, 0xbfb8aa3b")
    A("L_k2_wait1:")
    A(f"ds_read_b32 v{vF2}, v{vFl}")
    for kk in range(6): A(f"ds_read_b128 v[{vS+4*kk}:{vS+4*kk+3}], v{vY0+kk//2} offset:{64*(kk & 1)}")
    A("s_waitcnt lgkmcnt(6)")
    A(f"v_readfirstlane_b32 s17, v{vF2}")
    A("s_cmp_ge_u32 s17, 4\ns_cbranch_scc1 L_k2_go1")
    A("s_waitcnt lgkmcnt(0)\ns_sleep 1\ns_branch L_k2_wait1")
    A("L_k2_go1:")
    of = o.get("out_flags", "sc1")
    def finish():
        for r in range(4):
            A(f"v_cvt_pk_bf16_f32 v{vD+16+2*r}, v{vY+r}, v{vY+4+r}\nv_cvt_pk_bf16_f32 v{vD+17+2*r}, v{vY+8+r}, v{vY+12+r}")
            A(f"buffer_store_dwordx2 v[{vD+16+2*r}:{vD+17+2*r}], v{vO}, s[{SOUT}:{SOUT+3}], s{sOut+r} offen {of}")
    def mm(kk, t):
        r, acc = wreg[4*kk + t], vY + 4*t
        cin = "0" if kk == 0 else f"v[{acc}:{acc+3}]"
        A(f"v_mfma_f32_16x16x32_bf16 v[{acc}:{acc+3}], v[{vS+4*kk}:{vS+4*kk+3}], v[{r}:{r+3}], {cin}")
    A(f"s_cmp_eq_u32 s{sS}, 0\ns_cbranch_scc1 L_k2_x")
    for kk in range(6):
        A(f"s_waitcnt lgkmcnt({5-kk})")
        for t in range(4): mm(kk, t)
    A.c("vector outputs: the gates of this node tile")
    A("L_k2_wait2:")
    A(f"ds_read_b32 v{vF2}, v{vFl} offset:4")
    for t in range(4): A(f"ds_read_b128 v[{vG+4*t}:{vG+4*t+3}], v{vGA} offset:{1024*t}")
    A("s_waitcnt lgkmcnt(4)")
    A(f"v_readfirstlane_b32 s17, v{vF2}")
    A("s_cmp_lg_u32 s17, 0\ns_cbranch_scc1 L_k2_go2")
    A("s_waitcnt lgkmcnt(0)\ns_branch L_k2_wait2")
    A("L_k2_go2:")
    for t in range(4):
        A(f"s_waitcnt lgkmcnt({3-t})")
        for r in (0, 2): A(f"v_pk_mul_f32 v[{vY+4*t+r}:{vY+4*t+r+1}], v[{vG+4*t+r}:{vG+4*t+r+1}], v[{vY+4*t+r}:{vY+4*t+r+1}]")
    finish()
    A("s_branch L_k2_fin")
    A("L_k2_x:")
    A.c("scalar output and the gates, tile by tile behind the matrix instructions")
    vG = vC + 40
    def sig(t):
        return ([f"v_mul_f32 v{vG+4*t+r}, s19, v{vY+4*t+r}" for r in range(4)] + [f"v_exp_f32 v{vG+4*t+r}, v{vG+4*t+r}" for r in range(4)]
                + [f"v_add_f32 v{vG+4*t+r}, 1.0, v{vG+4*t+r}" for r in range(4)] + [f"v_rcp_f32 v{vG+4*t+r}, v{vG+4*t+r}" for r in range(4)]
                + ["s_nop 0", f"ds_write_b128 v{vGA}, v[{vG+4*t}:{vG+4*t+3}] offset:{1024*t}"])
    A("s_waitcnt lgkmcnt(0)")
    for kk in range(4): mm(kk, 0)
    for kk in range(4): mm(kk, 1)
    pend = sig(0)
    for t in (2, 3):
        for kk in range(4):
            mm(kk, t)
            if t == 3 or kk >= 2:
                for _ in range(3): A(pend.pop(0))
    for l in pend + sig(1) + sig(2) + sig(3): A(l)
    A("s_mov_b64 exec, 1")
    A(f"ds_write_b32 v{vFl}, v{vF1} offset:4")
    A("s_mov_b64 exec, -1")
    finish()
    A("L_k2_fin:")
    if st.on:
        st.mark("issued")
        A("s_waitcnt vmcnt(0)")
    st.flush(14, sWave, vT, 48)
    A("L_k2_end:")
    A("s_endpgm")
    return A.finish(o.get("verbose")), L_END, NV, 102 if o.get("stamps") else 80 if fused else 76, st.names

def gen_agg(name, want, encode=None, nws=(10, 12)):
    A = Asm()
    A(f".globl {name}\n.p2align 8\n.type {name},@function\n{name}:")
    A("s_cmp_ge_u32 s2, 1\ns_cbranch_scc1 L_agg_end")
    A("s_load_dwordx4 s[4:7], s[0:1], 80")
    A("v_lshlrev_b32 v1, 2, v0\nv_mov_b32 v2, 0\nds_write_b32 v1, v2")
    A("v_lshlrev_b32 v3, 10, v0")
    A("s_waitcnt lgkmcnt(0)\ns_barrier")
    srd(A, 8, 6, 7, 0x10000000); srd(A, 12, 4, 5, 256)
    for n, (kid, idx, how) in enumerate(want):
        A(f"s_mov_b32 s16, {WS_STAMP + kid*(1 << 20) + 4*idx}")
        for w in range(nws[kid]): A(f"buffer_load_dword v{10+w}, v3, s[8:11], s16 offen offset:{64*w}")
        A("s_waitcnt vmcnt(0)")
        for w in range(nws[kid]):
            if how == "min": A(f"v_not_b32 v{10+w}, v{10+w}")
            A(f"ds_max_u32 v2, v{10+w} offset:{4*n}")
    A("s_waitcnt lgkmcnt(0)\ns_barrier")
    A("ds_read_b32 v4, v1\nds_read_b32 v5, v2\ns_waitcnt lgkmcnt(0)")
    A("v_not_b32 v5, v5")
    mins = sum(1 << n for n, w in enumerate(want) if w[2] == "min")
    A(f"s_mov_b32 s20, {mins}\ns_mov_b32 s21, 0\nv_not_b32 v6, v4\nv_cndmask_b32 v4, v4, v6, s[20:21]")
    A("v_sub_u32 v4, v4, v5")
    if encode is not None:
        A("v_readfirstlane_b32 s23, v0\ns_cmp_lg_u32 s23, 0\ns_cbranch_scc1 L_agg_end")
        A(f"s_nop 1\nv_readlane_b32 s22, v4, {len(want)-1}")
        A(f"s_min_u32 s22, s22, 10000\ns_mul_i32 s22, s22, {encode}")
        A("s_memrealtime s[24:25]\ns_waitcnt lgkmcnt(0)")
        A("L_agg_spin:\ns_memrealtime s[26:27]\ns_waitcnt lgkmcnt(0)\ns_sub_u32 s26, s26, s24\ns_cmp_lt_u32 s26, s22\ns_cbranch_scc1 L_agg_spin")
    A(f"s_mov_b32 exec_lo, {(1 << len(want)) - 1}\ns_mov_b32 exec_hi, 0")
    A("s_cmp_lg_u32 0, 0")
    A("v_cmp_gt_u32 vcc, 16, v0\ns_and_b64 exec, exec, vcc\ns_cbranch_execz L_agg_end")
    A("buffer_store_dword v4, v1, s[12:15], 0 offen")
    A("L_agg_end:\ns_endpgm")
    return A.finish()

HEADER = """; Equivariant tensor-product message passing, N=10000 nodes, E=640000 edges, C=64.
"""
HEADER_F = HEADER
DEFAULTS = {"out_flags": "nt", "prio": [2, 1], "k2_touch0": None, "k2_touchb": ("l2", 30), "gshift": 4, "frac": [0.4], "rot": 1, "k1_touch": False}
def build(o=None):
    o = dict(DEFAULTS, **(o or {}))
    n1, n2 = "tp_sort_kernel", "tp_gather_kernel"
    if o.get("fused"):
        n = "gather_scatter__tensor_product_equiv_equiformer__graph_kernel"
        t2, lds2, v2, s2, names2 = gen_k2(n, o)
        txt = HEADER_F + f"; @launch grid=({NWG},1,1) block=({NW*64},1,1) lds={lds2}\n"
        txt += '.amdgcn_target "amdgcn-amd-amdhsa--gfx950"\n.text\n' + t2 + '.section .rodata,"a"\n' + kd(n, v2, s2)
        return txt, [(n, lds2, v2, names2, NW)]
    o["k2name"] = n2
    t1, lds1, v1, s1, names1 = gen_k1(n1, o)
    t2, lds2, v2, s2, names2 = gen_k2(n2, o)
    txt = HEADER
    empty = "; @launch kernel=tp_empty_kernel grid=(1,1,1) block=(64,1,1) lds=0\n"
    txt += empty * o.get("empty_pre", 0)
    txt += f"; @launch kernel={n1} grid=({NWG},1,1) block=(704,1,1) lds={lds1}\n" * o.get("k1_times", 1)
    txt += f"; @launch kernel={n2} grid=({NWG},1,1) block=({NW*64},1,1) lds={lds2}\n" * o.get("k2_times", 1)
    txt += empty * o.get("empty_post", 0)
    if o.get("agg"): txt += "; @launch kernel=tp_agg_kernel grid=(1,1,1) block=(256,1,1) lds=1024\n"
    txt += '.amdgcn_target "amdgcn-amd-amdhsa--gfx950"\n.text\n'
    txt += t1 + t2
    if o.get("agg"):
        nm = [names1, names2]
        want = [(k, nm[k].index(n), h) for k, n, h in o["agg"]]
        txt += gen_agg("tp_agg_kernel", want, o.get("encode"))
    em = o.get("empty_pre") or o.get("empty_post")
    if em: txt += ".globl tp_empty_kernel\n.p2align 8\n.type tp_empty_kernel,@function\ntp_empty_kernel:\n    s_endpgm\n"
    txt += '.section .rodata,"a"\n' + kd(n1, v1, s1) + (".p2align 6\nL_kd2:\n" if o.get("kd_touch") else "") + kd(n2, v2, s2)
    if em: txt += kd("tp_empty_kernel", 8, 16)
    if o.get("agg"): txt += kd("tp_agg_kernel", 32, 32)
    return txt, [(n1, lds1, v1, names1, 11), (n2, lds2, v2, names2, NW)]

if __name__ == "__main__":
    out = sys.argv[1] if len(sys.argv) > 1 else "gather_scatter__tensor_product_equiv_equiformer__graph.s"
    txt, info = build({"verbose": True})
    open(out, "w").write(txt)
    print(info, len(txt))
```

```python
import sys
from asmlib import Asm, kd

N, E = 10000, 640000
NWG = 256
CH = E // NWG
RSTR = 30080
WS_OFF = 0
WS_W = 524288
WS_REC = WS_W + 40960
WS_FLAG = WS_REC + NWG * RSTR
WS_USED = WS_FLAG + 64 * 1024
WS_STAMP = 16 << 20
PADKEY = 0x0FFFFFFF

def srd(A, s, lo, hi, size):
    A(f"s_mov_b32 s{s}, s{lo}\ns_mov_b32 s{s+1}, s{hi}")
    A(f"s_mov_b32 s{s+2}, {size}\ns_mov_b32 s{s+3}, 0x00020000")

def scan_steps(op, v, upto=64, first=1):
    out = []
    for sh in (1, 2, 4, 8):
        if sh >= first:
            out.append(f"{op}_dpp v{v}, v{v}, v{v} row_shr:{sh} row_mask:0xf bank_mask:0xf bound_ctrl:0")
    if upto >= 32: out.append(f"{op}_dpp v{v}, v{v}, v{v} row_bcast:15 row_mask:0xa bank_mask:0xf")
    if upto >= 64: out.append(f"{op}_dpp v{v}, v{v}, v{v} row_bcast:31 row_mask:0xc bank_mask:0xf")
    return out

class Stamps:
    def __init__(self, A, on, base, kid):
        self.A, self.on, self.base, self.n, self.kid = A, on, base, 0, kid
        self.names = []
        self.skip = set()
    def mark(self, name):
        if self.on and name not in self.skip:
            r = self.base + 2 * self.n
            self.A(f"s_memrealtime s[{r}:{r+1}]"); self.n += 1; self.names.append(name)
    def flush(self, ws_lo, wave_s, v0, tmp_s):
        if not self.on: return
        A = self.A
        self.mark("end")
        if self.on == "dbg":
            A(f"s_load_dwordx2 s[{tmp_s+4}:{tmp_s+5}], s[0:1], 80")
            A("s_waitcnt lgkmcnt(0)")
            A("s_mov_b64 exec, 1")
            srd(A, tmp_s, tmp_s+4, tmp_s+5, 256)
            A(f"v_mov_b32 v{v0}, 0")
            A(f"s_not_b32 s{tmp_s+4}, s{self.base}")
            A(f"v_mov_b32 v{v0+1}, s{tmp_s+4}")
            A(f"buffer_atomic_umax v{v0+1}, v{v0}, s[{tmp_s}:{tmp_s+3}], 0 offen")
            for i in range(self.n):
                A(f"v_mov_b32 v{v0+2+i}, s{self.base + 2*i}")
                A(f"buffer_atomic_umax v{v0+2+i}, v{v0}, s[{tmp_s}:{tmp_s+3}], 0 offen offset:{4*i+4}")
            return
        A("s_waitcnt lgkmcnt(0)")
        A("s_mov_b64 exec, 1")
        srd(A, tmp_s, ws_lo, ws_lo + 1, 0x10000000)
        A(f"s_lshl_b32 s{tmp_s+4}, s2, 4\ns_add_u32 s{tmp_s+4}, s{tmp_s+4}, s{wave_s}\ns_lshl_b32 s{tmp_s+4}, s{tmp_s+4}, 6")
        A(f"s_add_u32 s{tmp_s+4}, s{tmp_s+4}, {WS_STAMP + self.kid * (1 << 20)}")
        A(f"v_mov_b32 v{v0}, 0")
        for i in range(self.n):
            A(f"v_mov_b32 v{v0+1}, s{self.base + 2*i}")
            A(f"buffer_store_dword v{v0+1}, v{v0}, s[{tmp_s}:{tmp_s+3}], s{tmp_s+4} offen offset:{4*i}")

def touch_x(A, spec, s_rank, s_tmp, v_addr, v_dst, srd_x, nw=10, s_rot=None, pos0=0):
    kind, lanes_list = spec[0], spec[1:]
    pos = pos0
    for n, lanes in enumerate(lanes_list):
        A(f"s_mul_i32 s{s_tmp}, s{s_rank}, {lanes*128}")
        if pos: A(f"s_add_u32 s{s_tmp}, s{s_tmp}, {pos}")
        if s_rot is not None:
            A(f"s_add_u32 s{s_tmp}, s{s_tmp}, s{s_rot}\ns_sub_u32 s{s_rot+1}, s{s_tmp}, {N*512}\ns_min_u32 s{s_tmp}, s{s_tmp}, s{s_rot+1}")
        m = (1 << lanes) - 1
        if lanes < 64: A(f"s_mov_b32 exec_lo, {m & 0xffffffff}\ns_mov_b32 exec_hi, {m >> 32}")
        A(f"buffer_load_dword v{v_dst+n}, v{v_addr}, s[{srd_x}:{srd_x+3}], s{s_tmp} offen")
        if lanes < 64: A("s_mov_b64 exec, -1")
        pos += lanes * 128 * nw * (256 if kind == "mall" else 32)
    return len(lanes_list)

def gen_k1(name, o):
    A = Asm()
    CNT, PFX, STG = 0, 1024, 2048
    lds = STG + 30720
    st = Stamps(A, o.get("stamps"), 64, 0)
    A(f".globl {name}\n.p2align 8\n.type {name},@function\n{name}:")
    A(f"s_cmp_ge_u32 s2, {NWG}\ns_cbranch_scc1 L_k1_end")
    st.mark("start")
    A("s_load_dwordx4 s[4:7], s[0:1], 0")
    A("s_load_dwordx4 s[8:11], s[0:1], 16")
    A("s_load_dwordx2 s[12:13], s[0:1], 32")
    A("s_load_dwordx2 s[14:15], s[0:1], 88")
    A.c("chunk id: workgroups that share an XCD under round-robin dispatch get neighbouring chunks")
    A("s_and_b32 s16, s2, 7\ns_lshl_b32 s16, s16, 5\ns_lshr_b32 s17, s2, 3\ns_add_u32 s16, s16, s17")
    A("v_lshrrev_b32 v1, 6, v0")
    A("v_lshlrev_b32 v2, 2, v0")
    A("v_readfirstlane_b32 s3, v1")
    A("v_and_b32 v7, 63, v0")
    A("s_cmp_eq_u32 s3, 10\ns_cbranch_scc1 L_k1_helper")
    A("v_mov_b32 v3, 0")
    A(f"ds_write_b32 v2, v3 offset:{CNT}")
    A("v_lshlrev_b32 v4, 4, v0")
    A("v_lshlrev_b32 v5, 3, v0")
    A("v_mul_u32_u24 v6, 24, v0")
    A(f"s_movk_i32 s17, {CH//4}\nv_cmp_gt_u32 s[18:19], s17, v0")
    A(f"s_mul_i32 s40, s16, {CH*4}\ns_mul_i32 s41, s16, {CH*2}\ns_mul_i32 s42, s16, {CH*6}")
    A("s_waitcnt lgkmcnt(0)")
    srd(A, 20, 12, 13, E*4)
    srd(A, 24, 10, 11, E*4)
    srd(A, 28, 8, 9, E*2)
    srd(A, 32, 6, 7, E*6)
    A("s_mov_b64 exec, s[18:19]")
    lf = o.get("k1_load_flags", "nt")
    A(f"buffer_load_dwordx4 v[8:11], v4, s[20:23], s40 offen {lf}")
    A(f"buffer_load_dwordx4 v[12:15], v4, s[24:27], s40 offen {lf}")
    A(f"buffer_load_dwordx2 v[16:17], v5, s[28:31], s41 offen {lf}")
    A(f"buffer_load_dwordx4 v[20:23], v6, s[32:35], s42 offen {lf}")
    A(f"buffer_load_dwordx2 v[24:25], v6, s[32:35], s42 offen offset:16 {lf}")
    srd(A, 44, 14, 15, WS_USED)
    A("v_mov_b32 v3, 1")
    A("s_barrier")
    A(f"s_waitcnt vmcnt(4)")
    st.mark("dst")
    for i in range(4):
        A(f"v_lshlrev_b32 v{32+i}, 2, v{8+i}")
        A(f"v_and_b32 v{32+i}, 0x3fc, v{32+i}")
        A(f"ds_add_rtn_u32 v{36+i}, v{32+i}, v3 offset:{CNT}")
    A("s_mov_b64 exec, -1")
    A("v_lshlrev_b32 v59, 4, v7")
    A("s_waitcnt lgkmcnt(0)")
    A("s_barrier")
    st.mark("ranked")
    A(f"ds_read_b128 v[60:63], v59 offset:{CNT}")
    A(f"s_waitcnt vmcnt(3)")
    A.c("key = src<<9 | onehot(j)<<28 | (wave*4 + source quarter)<<2 ; record i = v[40+4i : 42+4i] = c01, c23, key")
    A(f"s_mov_b32 s48, 0x10000000\ns_mov_b32 s53, {-(-(1 << 32) // 3072)}\ns_mov_b32 s54, {(1 << 34) // N}\ns_movk_i32 s55, -3072\ns_movk_i32 s56, {-N//8}")
    def key(i):
        d, s, k = 8+i, 12+i, 42+4*i
        if o.get("rot"):
            q = [f"v_bfe_u32 v57, v{d}, 5, 3", f"v_mad_i32_i24 v57, v57, s56, v{s}", f"v_add_u32 v64, {N}, v57",
                 f"v_min_u32 v57, v57, v64", f"v_mul_hi_u32_u24 v57, s54, v57"]
        else: q = [f"v_mul_hi_u32_u24 v57, s54, v{s}"]
        return [f"v_mul_hi_u32_u24 v56, s53, v{d}"] + q + [
                f"v_mad_i32_i24 v58, v56, s55, v{d}",
                f"v_lshlrev_b32_e64 v56, v56, s48",
                f"v_lshrrev_b32 v58, 8, v58",
                f"v_lshl_or_b32 v56, v{s}, 9, v56",
                f"v_lshl_or_b32 v57, v58, 2, v57",
                f"v_lshl_or_b32 v{k}, v57, 2, v56"]
    for l in key(0) + key(1): A(l)
    A("s_waitcnt lgkmcnt(0)")
    A("v_add_u32 v65, v60, v61\nv_add_u32 v66, v65, v62\nv_add_u32 v67, v66, v63")
    A("v_mov_b32 v68, v67")
    fill = key(2) + key(3)
    for n, s_ in enumerate(scan_steps("v_add_u32", 68)):
        A(fill[2*n]); A(fill[2*n+1]); A(s_)
    A("v_sub_u32 v68, v68, v67")
    A("v_add_u32 v69, v68, v60\nv_add_u32 v70, v68, v65\nv_add_u32 v71, v68, v66")
    A.c("every wave writes the same prefix table and then reads only after its own write")
    A(f"ds_write_b128 v59, v[68:71] offset:{PFX}")
    A("s_mov_b64 exec, s[18:19]")
    for i in range(4): A(f"ds_read_b32 v{32+i}, v{32+i} offset:{PFX}")
    for l in fill[12:]: A(l)
    A(f"s_movk_i32 s53, {STG}")
    A.c("coefficients a, a*Y0, a*Y1, a*Y2 in bf16")
    A(f"s_waitcnt vmcnt(0)")
    st.mark("alldata")
    A("s_mov_b32 s49, 0xffff0000")
    def unpack(dst, reg, hi):
        if hi: A(f"v_and_b32 v{dst}, s49, v{reg}")
        else: A(f"v_lshlrev_b32 v{dst}, 16, v{reg}")
    for i in range(4):
        unpack(56, 16 + i//2, i & 1)
        for j in range(3):
            h = 3*i + j
            unpack(72+j, 20 + h//2, h & 1)
        for j in range(3): A(f"v_mul_f32 v{72+j}, v56, v{72+j}")
        A(f"v_cvt_pk_bf16_f32 v{40+4*i}, v56, v72")
        A(f"v_cvt_pk_bf16_f32 v{41+4*i}, v73, v74")
        if i == 0: A("s_waitcnt lgkmcnt(0)")
        A(f"v_add_u32 v{32+i}, v{32+i}, v{36+i}")
        A(f"v_mad_u32_u24 v{32+i}, v{32+i}, 12, s53")
        A(f"ds_write_b32 v{32+i}, v{42+4*i} offset:8")
        A(f"ds_write2_b32 v{32+i}, v{40+4*i}, v{41+4*i} offset0:0 offset1:1")
    A("s_mov_b64 exec, -1")
    A.c("waves 0..3 publish start|len<<16 of bucket 4*lane+wave")
    A("s_cmp_ge_u32 s3, 4\ns_cbranch_scc1 L_k1_nooff")
    A("v_mov_b32 v72, v68\nv_mov_b32 v73, v60")
    for w in (1, 2, 3):
        A(f"s_cmp_lg_u32 s3, {w}\ns_cbranch_scc1 L_k1_o{w}")
        A(f"v_mov_b32 v72, v{68+w}\nv_mov_b32 v73, v{60+w}")
        A(f"L_k1_o{w}:")
    A("v_lshl_or_b32 v72, v73, 16, v72")
    A("v_lshlrev_b32 v73, 12, v7")
    A("s_lshl_b32 s50, s3, 10\ns_lshl_b32 s51, s16, 2\ns_add_u32 s50, s50, s51")
    if WS_OFF: A(f"s_add_u32 s50, s50, {WS_OFF}")
    sf = o.get("k1_store_flags", "")
    A(f"buffer_store_dword v72, v73, s[44:47], s50 offen {sf}")
    A("L_k1_nooff:")
    A(f"s_mul_i32 s50, s16, {RSTR}\ns_add_u32 s50, s50, {WS_REC}")
    A.c("the copy covers whole 128-byte lines: a partly written last line is slow to read back")
    A(f"s_movk_i32 s17, {RSTR//16 - 1280}\nv_cmp_gt_u32 s[18:19], s17, v0")
    A("s_add_u32 s51, s50, 10240\ns_add_u32 s52, s50, 20480")
    A("s_waitcnt lgkmcnt(0)")
    A("s_barrier")
    st.mark("sorted")
    if o.get("diag_nostore"): A("s_mov_b32 s46, 0")
    for q in range(3): A(f"ds_read_b128 v[{8+4*q}:{11+4*q}], v4 offset:{STG + 10240*q}")
    A("s_waitcnt lgkmcnt(2)")
    A(f"buffer_store_dwordx4 v[8:11], v4, s[44:47], s50 offen {sf}")
    A("s_waitcnt lgkmcnt(1)")
    A(f"buffer_store_dwordx4 v[12:15], v4, s[44:47], s51 offen {sf}")
    A("s_waitcnt lgkmcnt(0)")
    A("s_mov_b64 exec, s[18:19]")
    A(f"buffer_store_dwordx4 v[16:19], v4, s[44:47], s52 offen {sf}")
    if o.get("k1_wb"):
        A("s_mov_b64 exec, -1")
        A("s_cmp_lg_u32 s3, 9\ns_cbranch_scc1 L_k1_nowb")
        A("s_waitcnt vmcnt(0)")
        A("buffer_wbl2 sc1")
        A("L_k1_nowb:")
    if st.on:
        st.mark("issued")
        A("s_waitcnt vmcnt(0)")
    st.flush(14, 3, 20, 52)
    A("s_endpgm")
    A("L_k1_helper:")
    A("s_load_dwordx4 s[52:55], s[0:1], 40")
    A("s_load_dwordx2 s[56:57], s[0:1], 56")
    A("v_lshlrev_b32 v26, 7, v7")
    A(f"s_mul_i32 s43, s16, {N*512//NWG}\ns_and_b32 s43, s43, 0xffffff80")
    A("s_lshr_b32 s40, s2, 2\ns_and_b32 s41, s2, 3")
    A.c("fragment (k step, tile t): lane (n, g) holds rows 32*step + 8g .. +7 of column 4n + t")
    A("v_lshrrev_b32 v8, 4, v7\nv_and_b32 v9, 15, v7")
    A("v_lshlrev_b32 v11, 10, v8\nv_lshl_add_u32 v11, v9, 3, v11")
    A("v_lshlrev_b32 v8, 4, v8")
    A("s_lshl_b32 s42, s40, 12\ns_lshl_b32 s41, s41, 1\ns_add_u32 s42, s42, s41")
    A("s_lshl_b32 s41, s40, 6")
    A("s_waitcnt lgkmcnt(0)")
    srd(A, 36, 4, 5, N*512)
    srd(A, 44, 14, 15, WS_USED)
    srd(A, 24, 52, 53, 640)
    A("s_cmp_lt_u32 s40, 4")
    A("s_cselect_b32 s20, s54, s56\ns_cselect_b32 s21, s55, s57")
    A(f"s_mov_b32 s22, {192*128}\ns_cselect_b32 s22, {128*128}, s22\ns_mov_b32 s23, 0x00020000")
    A("s_cselect_b32 s17, 0, 16384\ns_sub_u32 s42, s42, s17")
    touch = o.get("k1_touch", True)
    tb = o.get("k1_touch_after", 1)
    def helper_touch():
        if touch:
            A.c("touch x once so that the gather of the second launch finds it on chip")
            A("buffer_load_dword v28, v26, s[36:39], s43 offen")
            A("s_add_u32 s43, s43, 8192")
            A("buffer_load_dword v29, v26, s[36:39], s43 offen")
            A("s_add_u32 s43, s43, 8192\ns_mov_b32 exec_hi, 0")
            A("buffer_load_dword v30, v26, s[36:39], s43 offen")
            A("s_mov_b32 exec_hi, -1")
    if o.get("code_touch"):
        A.c("read the second kernel's instructions once per XCD so that its first fetches find them in L2")
        A("s_getpc_b64 s[28:29]")
        A("L_k1_pc:")
        A(f"s_add_u32 s28, s28, {o['k2name']}-L_k1_pc\ns_addc_u32 s29, s29, 0")
        A("s_lshr_b32 s30, s2, 3\ns_lshl_b32 s30, s30, 9")
        A(f"v_add_u32 v32, s30, v26\nv_min_u32 v32, L_k2_end-{o['k2name']}, v32")
        A("v_mov_b32 v33, s29\nv_add_co_u32 v32, vcc, s28, v32\nv_addc_co_u32 v33, vcc, 0, v33, vcc")
        A("s_mov_b64 exec, 15")
        A("global_load_dword v31, v[32:33], off")
        if o.get("kd_touch"):
            A("s_getpc_b64 s[28:29]")
            A(f"s_add_u32 s28, s28, L_kd2@rel32@lo+4\ns_addc_u32 s29, s29, L_kd2@rel32@hi+12")
            A("v_mov_b32 v32, s28\nv_mov_b32 v33, s29")
            A("s_mov_b64 exec, 1")
            A("global_load_dword v34, v[32:33], off")
        A("s_mov_b64 exec, -1")
    for b in range(3):
        if b == tb: helper_touch()
        if b == 1:
            A("s_cmp_ge_u32 s2, 40\ns_cbranch_scc1 L_k1_now")
            A("buffer_load_dwordx4 v[12:15], v8, s[24:27], s41 offen")
            for i in range(8): A(f"buffer_load_ushort v{16+i}, v11, s[20:23], s42 offen offset:{128*i}")
            A("L_k1_now:")
        A("s_barrier")
    if tb == 3: helper_touch()
    A("s_cmp_ge_u32 s2, 40\ns_cbranch_scc1 L_k1_end")
    A("s_mov_b32 s49, 0xffff0000")
    A("s_waitcnt vmcnt(0)" if tb != 3 or not touch else "s_waitcnt vmcnt(3)")
    for i in range(8):
        unpack(24, 12 + i//2, i & 1)
        A(f"v_lshlrev_b32 v{16+i}, 16, v{16+i}\nv_mul_f32 v{16+i}, v24, v{16+i}")
    for q in range(4): A(f"v_cvt_pk_bf16_f32 v{12+q}, v{16+2*q}, v{17+2*q}")
    A(f"v_lshlrev_b32 v8, 4, v7\ns_lshl_b32 s41, s2, 10\ns_add_u32 s41, s41, {WS_W}")
    A("buffer_store_dwordx4 v[12:15], v8, s[44:47], s41 offen")
    A("L_k1_end:")
    A("s_endpgm")
    return A.finish(o.get("verbose")), lds, 80, 96 if st.on else 58, st.names

NW = 12
NIT = 5
WIN = 288
CAP = NW * WIN + NW * 32
L_ZERO, L_RND, L_CNT, L_KEY = 0, 192, 256, 512
L_COEF = L_KEY + CAP*4 + 128
L_W = L_COEF + CAP*8 + 256
L_STG = L_W + 40960
SPITCH = 256
SNODE = 6*SPITCH + 32
L_GATE = L_STG + 40*SNODE
L_END = L_GATE + 3*4096
L_FLAG = 208
assert L_END <= 163840, L_END
MKW = 1536
L_WT = L_STG + 40*SNODE - 40960
L_NONCE = L_GATE
assert L_WT >= L_STG + NW*MKW

def gen_k2(name, o):
    A = Asm()
    fused = o.get("fused")
    st = Stamps(A, o.get("stamps"), 80 if fused else 76, 1)
    if fused: st.skip = set(o.get("skip", ["recissue", "staged", "issued", "rec0", "wok", "wdone", "stiss"]))
    vLane, vOff, vKA, vK2A, vCA, vSh = 1, 2, 3, 4, 5, 6
    vK2 = 8
    vAF = 10
    vK = 14
    vT = 22
    vD = 38
    vC = 102
    NV = 166
    sWave, sB = 3, 16
    SX, SWS, SOUT = 20, 24, 28
    sH = 32
    sMask = 48
    sTot, sRnd, sRound, sN, sRem, sStep, sT1, sT2, sT3 = 58, 59, 60, 61, 62, 63, 64, 65, 66
    sP0, sP1, sRowM = 67, 68, 69
    sSeg0, sNseg, sMk = 70, 71, 18
    sCar = [72, 73, 74, 75]
    sGrp, sSaid = 38, 39
    A(f".globl {name}\n.p2align 8\n.type {name},@function\n{name}:")
    A(f"s_cmp_ge_u32 s2, {NWG}\ns_cbranch_scc1 L_k2_end")
    st.mark("start")
    vOf = vD
    vz = vD + 40
    wpos = o.get("wpos", 0) if not fused else -1
    hf = "sc1" if fused else ""
    def ids():
        A(f"s_and_b32 s{sB}, s2, 7\ns_lshl_b32 s{sB}, s{sB}, 5\ns_lshr_b32 s17, s2, 3\ns_add_u32 s{sB}, s{sB}, s17")
        A("v_lshrrev_b32 v7, 6, v0")
        A(f"v_and_b32 v{vLane}, 63, v0")
        A(f"v_readfirstlane_b32 s{sWave}, v7")
    def ids2():
        A(f"s_mov_b32 s{sRound}, 0\ns_mov_b32 s{sSaid}, 0")
        if o.get("gshift"):
            A(f"s_add_u32 s{sGrp}, s{sWave}, {o['gshift']}\ns_sub_u32 s17, s{sGrp}, {NW}\ns_min_u32 s{sGrp}, s{sGrp}, s17")
        else: A(f"s_mov_b32 s{sGrp}, s{sWave}")
        A.c("this wave reads chunks seg0 .. seg0+nseg-1 of the bucket, seg0 = floor(wave*64/3)")
        A(f"s_mul_i32 s{sSeg0}, s{sWave}, {64*21846}\ns_lshr_b32 s{sSeg0}, s{sSeg0}, 16")
        A(f"s_add_u32 s17, s{sWave}, 1\ns_mul_i32 s17, s17, {64*21846}\ns_lshr_b32 s17, s17, 16")
        A(f"s_sub_u32 s{sNseg}, s17, s{sSeg0}")
        A(f"v_add_u32 v{vD+1}, s{sSeg0}, v{vLane}")
        A(f"v_lshlrev_b32 v{vD+2}, {(11 if o.get('f_tag') else 10) if fused else 2}, v{vD+1}")
        A(f"v_cmp_gt_u32 vcc, s{sNseg}, v{vLane}")
        A(f"v_bfrev_b32 v{vD+3}, -2")
        A(f"v_lshlrev_b32 v7, 4, v{vLane}")
        A(f"v_cndmask_b32 v{vD+2}, v{vD+3}, v{vD+2}, vcc")
        A.c("private marker area of this wave (inside the staging area of the epilogue)")
        A(f"s_mul_i32 s{sMk}, s{sWave}, {MKW}\ns_add_u32 s{sMk}, s{sMk}, {L_STG}")
    def lds_init():
        for i in range(4): A(f"v_mov_b32 v{vz+4+i}, 0")
        A(f"v_add_u32 v{vz+8}, s{sMk}, v7")
        A(f"ds_write_b128 v{vz+8}, v[{vz+4}:{vz+7}]")
        A("s_mov_b32 exec_hi, 0")
        A(f"ds_write_b128 v{vz+8}, v[{vz+4}:{vz+7}] offset:1024")
        A("s_mov_b32 exec_hi, -1")
        A(f"v_lshlrev_b32 v{vz+9}, 4, v0")
        for i in range(4): A(f"v_mov_b32 v{vz+i}, {PADKEY:#x}" if i == 0 else f"v_mov_b32 v{vz+i}, v{vz}")
        A(f"ds_write_b128 v{vz+9}, v[{vz}:{vz+3}] offset:{L_KEY}")
        A(f"v_cmp_gt_u32 vcc, {(L_COEF - L_KEY - NW*1024)//16}, v0\ns_mov_b64 exec, vcc")
        A(f"ds_write_b128 v{vz+9}, v[{vz}:{vz+3}] offset:{L_KEY+NW*1024}")
        A("s_mov_b64 exec, -1")
    assert 2*NW*1024 >= CAP*4 + 128 and L_KEY + 2*NW*1024 <= L_W
    def consts():
        A(f"s_mov_b32 s{sP0}, 0x05040100\ns_mov_b32 s{sP1}, 0x07060302\ns_mov_b32 s{sRowM}, {o.get('diag_rowmask', 0x007ffe00):#x}")
        A(f"s_mov_b32 s{sH}, 0xff00ff00\ns_mov_b32 s{sH+1}, 0xff00ff00")
    def wdma(vl):
        A.c("the 40 weight fragments go straight to LDS: w, w+12, w+24 and 36+(w&3) by wave w (the last four land three times)")
        A(f"s_lshl_b32 s19, s{sWave}, 10\ns_add_u32 m0, s19, {L_W}\ns_add_u32 s19, s19, {WS_W}")
        for q in range(3):
            A(f"buffer_load_dwordx4 v{vl}, s[{SWS}:{SWS+3}], s19 offen lds")
            if q < 2: A(f"s_add_u32 m0, m0, {NW*1024}\ns_add_u32 s19, s19, {NW*1024}")
        A(f"s_and_b32 s19, s{sWave}, 3\ns_lshl_b32 s19, s19, 10\ns_add_u32 m0, s19, {L_W + 36*1024}\ns_add_u32 s19, s19, {WS_W + 36*1024}")
        A(f"buffer_load_dwordx4 v{vl}, s[{SWS}:{SWS+3}], s19 offen lds")
    sRot = 36 if o.get("rot") else None
    def rotc():
        if sRot: A(f"s_lshr_b32 s{sRot}, s{sB}, 5\ns_mul_i32 s{sRot}, s{sRot}, {N*512//8}")
    def mall_touch(start):
        lanes = -(-(N*512 - start) // (128 * NW * NWG))
        A.c("every remaining line of x is touched once, chip-wide")
        A(f"v_lshlrev_b32 v{vD+4}, 7, v{vLane}")
        A(f"s_mul_i32 s35, s{sB}, {NW}\ns_add_u32 s35, s35, s{sWave}\ns_mul_i32 s35, s35, {lanes*128}")
        if start: A(f"s_add_u32 s35, s35, {start}")
        A(f"s_mov_b32 exec_lo, {(1 << lanes) - 1}\ns_mov_b32 exec_hi, 0")
        A(f"buffer_load_dword v{vD+7}, v{vD+4}, s[{SX}:{SX+3}], s35 offen")
        A("s_mov_b64 exec, -1")
    nt0 = 0
    touch0 = o.get("k2_touch0")
    tpos = N*512//8 if o.get("rot") and (o.get("f_early") if fused else o.get("k1_touch", True)) else 0
    def do_touch0(va, vd):
        A.c("pull the first rows of x into this XCD's L2")
        A(f"v_lshlrev_b32 v{va}, 7, v{vLane}")
        A(f"s_lshr_b32 s34, s2, 3\ns_mul_i32 s34, s34, {NW}\ns_add_u32 s34, s34, s{sWave}")
        return touch_x(A, touch0, 34, 17, va, vd, SX, NW, sRot, tpos)
    nacc0 = o.get("nacc0", 0 if fused else 32)
    if not fused:
        A("s_load_dwordx2 s[14:15], s[0:1], 88")
        A("s_load_dwordx2 s[4:5], s[0:1], 0")
        A("s_load_dwordx2 s[12:13], s[0:1], 72")
        ids(); ids2()
        A(f"s_lshl_b32 s17, s{sB}, 10")
        if WS_OFF: A(f"s_add_u32 s17, s17, {WS_OFF}")
        A("s_waitcnt lgkmcnt(0)")
        srd(A, SWS, 14, 15, WS_USED)
        A(f"buffer_load_dword v{vOf}, v{vD+2}, s[{SWS}:{SWS+3}], s17 offen")
        if wpos == 0: wdma(7)
        srd(A, SX, 4, 5, N*512)
        srd(A, SOUT, 12, 13, N*512)
        rotc()
        if touch0:
            nt0 = do_touch0(vD+5, vD+6)
            tpos += sum(touch0[1:]) * 128 * NW * 32
        tall = tpos + (sum(o["k2_touch"][1:]) * 128 * NW * 32 if o.get("k2_touch") else 0)
        if o.get("k2_mall") == 0:
            mall_touch(tpos if o.get("k2_mall_all") else tall); nt0 += 1
        lds_init()
        A(f"s_mov_b32 exec_hi, 0")
        A(f"ds_write_b128 v7, v[{vz+4}:{vz+7}]")
        A("s_mov_b32 exec_hi, -1")
        consts()
        for i in range(nacc0): A(f"v_mov_b32 v{vC+i}, 0")
        A(f"s_waitcnt vmcnt({(4 if wpos == 0 else 0)+nt0})")
    else:
        R = o.get("R", 32)
        aCNT, aPFX, aSTG = L_KEY, L_KEY + 4096, L_COEF
        vDst, vSrc, vEa, vRh, vBk, vRk, vRec = 38, 42, 46, 50, 62, 66, 70
        t0, t1, t2, t3 = 86, 87, 88, 94
        vL16, vCn, vL16b = 89, 90, 150
        v16, v8, v24, vOne1 = 126, 127, 128, 129
        SD, SS, SE, SR, SDBG = 64, 68, 72, 76, 40
        sAct = 46
        A("s_load_dwordx16 s[48:63], s[0:1], 0")
        A("s_load_dwordx4 s[8:11], s[0:1], 72")
        A("s_load_dwordx2 s[14:15], s[0:1], 88")
        ids()
        def code_touch(w):
            A.c("one wave reads a share of this kernel's instructions so that later fetches find them in L2")
            A(f"s_cmp_lg_u32 s{sWave}, {w}\ns_cbranch_scc1 L_f_nocode")
            A("s_getpc_b64 s[6:7]")
            A("L_f_pc:")
            A(f"s_lshr_b32 s17, s2, 3\ns_lshl_b32 s17, s17, 9\nv_lshl_add_u32 v{t0}, v{vLane}, 7, s17")
            A(f"v_min_u32 v{t0}, L_k2_end-L_f_pc, v{t0}")
            A(f"v_mov_b32 v{t0+1}, s7\nv_add_co_u32 v{t0}, vcc, s6, v{t0}\nv_addc_co_u32 v{t0+1}, vcc, 0, v{t0+1}, vcc")
            A("s_mov_b64 exec, 15")
            A(f"global_load_dword v{t3}, v[{t0}:{t0+1}], off")
            A("s_mov_b64 exec, -1")
            A("L_f_nocode:")
        if o.get("code_touch", 1) == 1: code_touch(o.get("code_wave", 10))
        A(f"v_lshlrev_b32 v{t0}, 2, v0\nv_mov_b32 v{t1}, 0")
        A(f"ds_write_b32 v{t0}, v{t1} offset:{aCNT}")
        A(f"v_lshlrev_b32 v{v16}, 4, v0\nv_lshlrev_b32 v{v8}, 3, v0\nv_mul_u32_u24 v{v24}, 24, v0")
        A(f"v_lshlrev_b32 v{vL16}, 4, v{vLane}\nv_mov_b32 v{vOne1}, 1\nv_mov_b32 v{vL16b}, v{vL16}")
        A(f"s_movk_i32 s17, {CH//4}\nv_cmp_gt_u32 s[{sAct}:{sAct+1}], s17, v0")
        A(f"s_mul_i32 s4, s{sB}, {CH*4}\ns_mul_i32 s5, s{sB}, {CH*2}\ns_mul_i32 s6, s{sB}, {CH*6}")
        A("s_waitcnt lgkmcnt(0)")
        srd(A, SD, 56, 57, E*4); srd(A, SS, 54, 55, E*4)
        if not o.get("f_split", 1): srd(A, SE, 52, 53, E*2); srd(A, SR, 50, 51, E*6)
        A(f"s_cmp_ge_u32 s{sWave}, 10\ns_cbranch_scc1 L_f_noload")
        A(f"s_mov_b64 exec, s[{sAct}:{sAct+1}]")
        lf = o.get("k1_load_flags", "nt")
        A(f"buffer_load_dwordx4 v[{vDst}:{vDst+3}], v{v16}, s[{SD}:{SD+3}], s4 offen {lf}")
        A(f"buffer_load_dwordx4 v[{vSrc}:{vSrc+3}], v{v16}, s[{SS}:{SS+3}], s4 offen {lf}")
        split = o.get("f_split", 1)
        def late_loads():
            A(f"buffer_load_dwordx2 v[{vEa}:{vEa+1}], v{v8}, s[{SE}:{SE+3}], s5 offen {lf}")
            A(f"buffer_load_dwordx4 v[{vRh}:{vRh+3}], v{v24}, s[{SR}:{SR+3}], s6 offen {lf}")
            A(f"buffer_load_dwordx2 v[{vRh+4}:{vRh+5}], v{v24}, s[{SR}:{SR+3}], s6 offen offset:16 {lf}")
        if not split: late_loads()
        A("s_mov_b64 exec, -1")
        A("L_f_noload:")
        if split: srd(A, SE, 52, 53, E*2); srd(A, SR, 50, 51, E*6)
        srd(A, SWS, 14, 15, WS_USED); srd(A, SX, 48, 49, N*512); srd(A, SOUT, 8, 9, N*512); srd(A, SDBG, 10, 11, 256)
        if o.get("code_touch", 1) == 2: code_touch(10)
        A.c("one wave of the launch picks the word that marks this launch's arrival flags")
        A(f"s_cmp_lg_u32 s{sWave}, 11\ns_cbranch_scc1 L_f_nononce\ns_cmp_lg_u32 s2, 0\ns_cbranch_scc1 L_f_nononce")
        A(f"s_memrealtime s[6:7]\nv_lshlrev_b32 v{t0}, 2, v{vLane}\ns_waitcnt lgkmcnt(0)\ns_or_b32 s6, s6, 1\nv_mov_b32 v{t1}, s6")
        A(f"buffer_store_dword v{t1}, v{t0}, s[{SDBG}:{SDBG+3}], 0 offen sc1")
        A("L_f_nononce:")
        A("s_barrier")
        nw0 = 0
        A(f"s_cmp_ge_u32 s{sWave}, 10\ns_cbranch_scc1 L_f_helper")
        A(f"s_mov_b64 exec, s[{sAct}:{sAct+1}]")
        if split: late_loads()
        A(f"s_waitcnt vmcnt({4+nw0})")
        st.mark("dst")
        for i in range(4):
            A(f"v_lshlrev_b32 v{vBk+i}, 2, v{vDst+i}\nv_and_b32 v{vBk+i}, 0x3fc, v{vBk+i}")
            A(f"ds_add_rtn_u32 v{vRk+i}, v{vBk+i}, v{vOne1} offset:{aCNT}")
        A("s_mov_b64 exec, -1")
        A("s_waitcnt lgkmcnt(0)")
        A("s_barrier")
        A(f"ds_read_b128 v[{vCn}:{vCn+3}], v{vL16} offset:{aCNT}")
        A(f"s_waitcnt vmcnt({3+nw0})")
        A.c("key = src<<9 | onehot(j)<<28 | (group*4 + source quarter)<<2 ; record i = c01, c23, key")
        A(f"s_mov_b32 s4, 0x10000000\ns_mov_b32 s5, {-(-(1 << 32) // 3072)}\ns_mov_b32 s6, {(1 << 34) // N}\ns_movk_i32 s7, -3072\ns_movk_i32 s19, {-N//8}")
        def key(i):
            d, s_, k = vDst+i, vSrc+i, vRec+2+4*i
            if o.get("rot"):
                q = [f"v_bfe_u32 v{t1}, v{d}, 5, 3", f"v_mad_i32_i24 v{t1}, v{t1}, s19, v{s_}", f"v_add_u32 v{t3}, {N}, v{t1}",
                     f"v_min_u32 v{t1}, v{t1}, v{t3}", f"v_mul_hi_u32_u24 v{t1}, s6, v{t1}"]
            else: q = [f"v_mul_hi_u32_u24 v{t1}, s6, v{s_}"]
            return [f"v_mul_hi_u32_u24 v{t0}, s5, v{d}"] + q + [
                    f"v_mad_i32_i24 v{t2}, v{t0}, s7, v{d}", f"v_lshlrev_b32_e64 v{t0}, v{t0}, s4", f"v_lshrrev_b32 v{t2}, 8, v{t2}",
                    f"v_lshl_or_b32 v{t0}, v{s_}, 9, v{t0}", f"v_lshl_or_b32 v{t1}, v{t2}, 2, v{t1}", f"v_lshl_or_b32 v{k}, v{t1}, 2, v{t0}"]
        for l in key(0) + key(1): A(l)
        A("s_waitcnt lgkmcnt(0)")
        A(f"v_add_u32 v95, v{vCn}, v{vCn+1}\nv_add_u32 v96, v95, v{vCn+2}\nv_add_u32 v97, v96, v{vCn+3}\nv_mov_b32 v98, v97")
        fill = key(2) + key(3)
        for n, s_ in enumerate(scan_steps("v_add_u32", 98)):
            A(fill[2*n]); A(fill[2*n+1]); A(s_)
        A("v_sub_u32 v98, v98, v97")
        A(f"v_add_u32 v99, v98, v{vCn}\nv_add_u32 v100, v98, v95\nv_add_u32 v101, v98, v96")
        A.c("every wave writes the same prefix table and then reads only after its own write")
        A(f"ds_write_b128 v{vL16}, v[98:101] offset:{aPFX}")
        A(f"s_mov_b64 exec, s[{sAct}:{sAct+1}]")
        for i in range(4): A(f"ds_read_b32 v{vBk+i}, v{vBk+i} offset:{aPFX}")
        for l in fill[12:]: A(l)
        A(f"s_movk_i32 s5, {aSTG}\ns_mov_b32 s4, 0xffff0000")
        early = o.get("f_keyfirst", 1)
        if early:
            for i in range(4):
                A(f"s_waitcnt lgkmcnt({3-i+i})")
                A(f"v_add_u32 v{vBk+i}, v{vBk+i}, v{vRk+i}\nv_mad_u32_u24 v{vBk+i}, v{vBk+i}, 12, s5")
                A(f"ds_write_b32 v{vBk+i}, v{vRec+2+4*i} offset:8")
        A.c("coefficients a, a*Y0, a*Y1, a*Y2 in bf16")
        A(f"s_waitcnt vmcnt({nw0})")
        mW, mR, hA = 106, 122, 138
        def wloads():
            A.c("weights: 40 pieces of 8 rows; piece w+12q comes from w_si0 when < 16, else from w_si1")
            srd(A, SD, 60, 61, 128*128); srd(A, SS, 62, 63, 192*128); srd(A, SE, 58, 59, 640)
            A(f"s_cmp_lt_u32 s{sWave}, 4")
            A(f"s_cselect_b32 s{SR}, s60, s62\ns_cselect_b32 s{SR+1}, s61, s63")
            A(f"s_cselect_b32 s{SR+2}, s{SD+2}, s{SS+2}\ns_mov_b32 s{SR+3}, 0x00020000")
            A(f"s_cselect_b32 s19, 0, 16384\ns_sub_u32 s19, 12288, s19")
            A(f"s_lshl_b32 s17, s{sWave}, 10\ns_add_u32 s19, s19, s17")
            A(f"buffer_load_dwordx4 v[{mW}:{mW+3}], v{vL16}, s[{SD}:{SD+3}], s17 offen")
            A(f"buffer_load_dwordx4 v[{mW+4}:{mW+7}], v{vL16}, s[{SR}:{SR+3}], s19 offen")
            A(f"s_add_u32 s19, s17, {24576-16384}")
            A(f"buffer_load_dwordx4 v[{mW+8}:{mW+11}], v{vL16}, s[{SS}:{SS+3}], s19 offen")
            A(f"s_add_u32 s19, s17, {36864-16384}")
            A(f"buffer_load_dwordx4 v[{mW+12}:{mW+15}], v{vL16}, s[{SS}:{SS+3}], s19 offen")
            A(f"v_lshrrev_b32 v144, 3, v{vLane}\nv_lshlrev_b32 v145, 1, v144\ns_lshl_b32 s19, s{sWave}, 4")
            for q in range(4): A(f"buffer_load_ushort v{mR+q}, v145, s[{SE}:{SE+3}], s19 offen offset:{192*q}")
        A("s_mov_b64 exec, -1")
        wloads()
        A(f"s_mov_b64 exec, s[{sAct}:{sAct+1}]")
        def unpack(dst, reg, hi):
            if hi: A(f"v_and_b32 v{dst}, s4, v{reg}")
            else: A(f"v_lshlrev_b32 v{dst}, 16, v{reg}")
        for i in range(4):
            unpack(t0, vEa + i//2, i & 1)
            for j in range(3):
                h = 3*i + j
                unpack(102+j, vRh + h//2, h & 1)
            for j in range(3): A(f"v_mul_f32 v{102+j}, v{t0}, v{102+j}")
            A(f"v_cvt_pk_bf16_f32 v{vRec+4*i}, v{t0}, v102\nv_cvt_pk_bf16_f32 v{vRec+1+4*i}, v103, v104")
            if not early:
                if i == 0: A("s_waitcnt lgkmcnt(0)")
                A(f"v_add_u32 v{vBk+i}, v{vBk+i}, v{vRk+i}\nv_mad_u32_u24 v{vBk+i}, v{vBk+i}, 12, s5")
                A(f"ds_write_b32 v{vBk+i}, v{vRec+2+4*i} offset:8")
            A(f"ds_write2_b32 v{vBk+i}, v{vRec+4*i}, v{vRec+1+4*i} offset0:0 offset1:1")
        A("s_mov_b64 exec, -1")
        A.c("wave 0 publishes start|len<<16 of the 256 buckets")
        A(f"s_cmp_lg_u32 s{sWave}, 0\ns_cbranch_scc1 L_f_nooff")
        for i in range(4): A(f"v_lshl_or_b32 v{98+i}, v{vCn+i}, 16, v{98+i}")
        tag = o.get("f_tag")
        if tag:
            A(f"v_add_u32 v{t0}, {L_GATE+1024}, v{vL16}\nds_write_b128 v{t0}, v[98:101]")
            A(f"v_lshrrev_b32 v{t0}, 1, v{vL16}\nv_add_u32 v{t0}, {L_GATE+1024}, v{t0}")
            A(f"ds_read_b64 v[152:153], v{t0}\nds_read_b64 v[156:157], v{t0} offset:512")
        else:
            A(f"s_lshl_b32 s4, s{sB}, 10")
            A(f"buffer_store_dwordx4 v[98:101], v{vL16}, s[{SWS}:{SWS+3}], s4 offen sc1")
        A("L_f_nooff:")
        A(f"s_mul_i32 s4, s{sB}, {RSTR}\ns_add_u32 s4, s4, {WS_REC}\ns_add_u32 s5, s4, 10240\ns_add_u32 s6, s4, 20480")
        A(f"s_movk_i32 s17, {RSTR//16 - 1280}\nv_cmp_gt_u32 s[{sAct}:{sAct+1}], s17, v0")
        A("s_setprio 3")
        A("s_waitcnt lgkmcnt(0)")
        A("s_barrier")
        st.mark("sortedA")
        for q in range(3): A(f"ds_read_b128 v[{vRh+4*q}:{vRh+4*q+3}], v{v16} offset:{aSTG + 10240*q}")
        for q in range(3):
            A(f"s_waitcnt lgkmcnt({2-q})")
            if q == 2: A(f"s_mov_b64 exec, s[{sAct}:{sAct+1}]")
            A(f"buffer_store_dwordx4 v[{vRh+4*q}:{vRh+4*q+3}], v{v16}, s[{SWS}:{SWS+3}], s{4+q} offen sc1")
        A("s_mov_b64 exec, -1")
        A("s_setprio 0")
        A("s_branch L_f_join")
        A.c("waves 10 and 11 carry no edges: they fetch the launch's mark")
        A("L_f_helper:")
        A("s_barrier")
        if st.on and "dst" not in st.skip: st.n -= 2; st.names = st.names[:-2]; st.mark("dst")
        elif st.on: st.n -= 1; st.names = st.names[:-1]
        A(f"s_and_b32 s4, s2, 63\ns_lshl_b32 s4, s4, 2\nv_mov_b32 v142, 0\ns_mov_b32 s5, 0x40000")
        A(f"buffer_load_dword v143, v142, s[{SDBG}:{SDBG+3}], s4 offen sc1")
        wloads()
        A("s_waitcnt vmcnt(8)")
        A("L_f_again:")
        A(f"v_readfirstlane_b32 s6, v143")
        A("s_cmp_lg_u32 s6, 0\ns_cbranch_scc1 L_f_got")
        A("s_sub_u32 s5, s5, 1\ns_cbranch_scc1 L_f_got")
        A(f"s_sleep 2\nbuffer_load_dword v143, v142, s[{SDBG}:{SDBG+3}], s4 offen sc1\ns_waitcnt vmcnt(0)\ns_branch L_f_again")
        A("L_f_got:")
        A(f"v_mov_b32 v142, {L_NONCE}\nds_write_b32 v142, v143")
        A("s_waitcnt lgkmcnt(0)")
        A("s_barrier")
        st.mark("sortedA")
        A("L_f_join:")
        st.mark("stiss")
        sNonce = 35
        assert tag
        A(f"v_mov_b32 v{t0}, {L_NONCE}\nds_read_b32 v{t1}, v{t0}")
        ids2(); rotc(); consts()
        A("s_waitcnt lgkmcnt(0)")
        A(f"v_readfirstlane_b32 s{sNonce}, v{t1}")
        def pre_init():
            lds_init()
            A.c("zero block, round word, flags, counters: bytes 0..511")
            A(f"s_mov_b32 exec_hi, 0")
            A(f"ds_write_b128 v7, v[{vz+4}:{vz+7}]")
            A("s_mov_b32 exec_hi, -1")
        if o.get("f_preinit", 1): pre_init()
        A.c("offset words with the launch's mark beside each: 8-byte pairs that are written and read whole")
        A(f"v_mov_b32 v46, v152\nv_mov_b32 v47, s{sNonce}\nv_mov_b32 v48, v153\nv_mov_b32 v49, s{sNonce}")
        A(f"v_mov_b32 v62, v156\nv_mov_b32 v63, s{sNonce}\nv_mov_b32 v64, v157\nv_mov_b32 v65, s{sNonce}")
        A(f"s_lshl_b32 s19, s{sB}, 11\ns_lshl_b32 s17, s{sB}, 3\nv_mov_b32 v66, 0")
        A(f"v_cmp_gt_u32 s[6:7], s{sNseg}, v{vLane}\ns_mov_b32 s5, 0x40000")
        st.mark("wdone")
        A(f"s_waitcnt vmcnt(0)")
        A("s_barrier")
        st.mark("acked")
        A.c("every record store of this workgroup has been acknowledged: publish the offsets")
        A(f"s_cmp_lg_u32 s{sWave}, 0\ns_cbranch_scc1 L_f_noflag")
        A(f"buffer_store_dwordx4 v[46:49], v7, s[{SWS}:{SWS+3}], s19 offen sc1")
        A(f"buffer_store_dwordx4 v[62:65], v7, s[{SWS}:{SWS+3}], s19 offen offset:1024 sc1")
        A("L_f_noflag:")
        if not o.get("f_preinit", 1): pre_init()
        A.c("weights scaled by w_rad, row k as [tile t ^ (k&3)][16 columns 4n+t]")
        A(f"v_and_b32 v{hA}, 7, v{vLane}\nv_lshlrev_b32 v{hA}, 2, v{hA}")
        A(f"v_lshl_add_u32 v{hA}, v144, 7, v{hA}\nv_and_b32 v144, 3, v144\nv_lshl_add_u32 v{hA}, v144, 5, v{hA}")
        A(f"s_lshl_b32 s4, s{sWave}, 10\ns_add_u32 s4, s4, {L_WT}\nv_add_u32 v{hA}, s4, v{hA}")
        for t in range(1, 4): A(f"v_xor_b32 v{hA+t}, {32*t}, v{hA}")
        A("s_mov_b32 s4, 0xffff0000")
        for q in range(4):
            if q == 3: A(f"s_cmp_ge_u32 s{sWave}, 4\ns_cbranch_scc1 L_f_w3")
            A(f"v_lshlrev_b32 v{mR+q}, 16, v{mR+q}")
            for tp in (0, 2):
                for t in (tp, tp+1):
                    a = 144 + 4*(t & 1)
                    unpack(a, mW + 4*q + t//2, t & 1); unpack(a+1, mW + 4*q + 2 + t//2, t & 1)
                for a in (144, 148):
                    A(f"v_pk_mul_f32 v[{a}:{a+1}], v[{a}:{a+1}], v[{mR+q & ~1}:{(mR+q & ~1)+1}] op_sel:[0,{q & 1}] op_sel_hi:[1,{q & 1}]")
                for a in (144, 148): A(f"v_cvt_pk_bf16_f32 v{a+2+tp//2}, v{a}, v{a+1}")
                for t in (tp, tp+1): A(f"ds_write_b32 v{hA+t}, v{144+4*(t & 1)+2+tp//2} offset:{12288*q}")
        A("L_f_w3:")
        vA = 95
        A.c("fragment w+12q = (k step (w>>2)+3q, tile w&3): two transposing reads")
        A(f"v_lshrrev_b32 v{t0}, 4, v{vLane}\nv_bfe_u32 v{t2}, v{vLane}, 2, 2\nv_lshl_add_u32 v{vA}, v{t0}, 3, v{t2}\nv_lshlrev_b32 v{vA}, 7, v{vA}")
        A(f"s_and_b32 s4, s{sWave}, 3\nv_xor_b32 v{t2}, s4, v{t2}\nv_lshl_add_u32 v{vA}, v{t2}, 5, v{vA}")
        A(f"v_and_b32 v{t2}, 3, v{vLane}\nv_lshl_add_u32 v{vA}, v{t2}, 3, v{vA}")
        A(f"s_lshr_b32 s4, s{sWave}, 2\ns_lshl_b32 s4, s4, 12\ns_add_u32 s4, s4, {L_WT}\nv_add_u32 v{vA}, s4, v{vA}")
        A(f"s_lshl_b32 s4, s{sWave}, 10\ns_add_u32 s4, s4, {L_W}\nv_add_u32 v{vA+1}, s4, v7")
        def poll_load(): A(f"buffer_load_dwordx2 v[66:67], v{vD+2}, s[{SWS}:{SWS+3}], s17 offen sc1")
        A("s_waitcnt lgkmcnt(0)")
        A("s_barrier")
        vW2 = 68
        for q in range(4):
            A(f"ds_read_b64_tr_b16 v[{vW2+4*q}:{vW2+4*q+1}], v{vA} offset:{12288*q}")
            A(f"ds_read_b64_tr_b16 v[{vW2+4*q+2}:{vW2+4*q+3}], v{vA} offset:{12288*q+512}")
        A.c("read the pairs of this wave's chunks until each carries the mark")
        A("s_mov_b64 exec, s[6:7]")
        poll_load()
        A("s_mov_b64 exec, -1")
        assert not touch0
        tall = tpos
        for q in range(4):
            if q == 3: A(f"s_cmp_ge_u32 s{sWave}, 4\ns_cbranch_scc1 L_f_w4")
            A(f"s_waitcnt lgkmcnt({6-2*q})")
            A(f"ds_write_b128 v{vA+1}, v[{vW2+4*q}:{vW2+4*q+3}] offset:{12288*q}")
        A("L_f_w4:")
        for i in range(nacc0): A(f"v_mov_b32 v{vC+i}, 0")
        A("s_mov_b64 exec, s[6:7]")
        A("s_waitcnt vmcnt(0)")
        A("L_f_poll:")
        A(f"v_cmp_ne_u32 vcc, s{sNonce}, v67")
        A("s_and_b64 exec, exec, vcc\ns_cbranch_scc0 L_f_seen")
        A("s_sub_u32 s5, s5, 1\ns_cbranch_scc1 L_f_seen")
        if o.get("f_sleep", 1): A(f"s_sleep {o.get('f_sleep', 1)}")
        poll_load()
        A("s_waitcnt vmcnt(0)\ns_branch L_f_poll")
        A("L_f_seen:")
        A("s_mov_b64 exec, -1")
        st.mark("seen")
        if tag: A(f"v_mov_b32 v{vOf}, v66")
        else:
            A(f"buffer_load_dword v{vOf}, v{vD+2}, s[{SWS}:{SWS+3}], s17 offen sc1")
            A("s_waitcnt vmcnt(0)")
    st.mark("off")
    A("L_k2_round:")
    vLen, vInc, vM, vPos = vD+2, vD+3, vD+28, vD+29
    vMk = vD + 30
    vR = vT
    vL12 = vD + 35
    A(f"v_lshrrev_b32 v{vLen}, 16, v{vOf}")
    A(f"v_mov_b32 v{vInc}, v{vLen}")
    A(f"v_and_b32 v{vM}, 0xffff, v{vOf}")
    steps = scan_steps("v_add_u32", vInc, upto=32)
    A(f"s_mov_b32 s17, {RSTR}")
    vSave = vD + 36
    A(steps[0])
    A(f"v_mul_lo_u32 v{vPos}, v{vD+1}, s17")
    A(f"s_mul_i32 s17, s{sRound}, {WIN}")
    A(steps[1])
    A(f"v_mov_b32 v{vSave}, v{vOf}\nv_mov_b32 v{vSave+1}, v{vD+1}")
    A(steps[2])
    A(f"s_movk_i32 s19, 383\nv_mul_u32_u24 v{vL12}, 12, v{vLane}")
    A(steps[3])
    A(f"v_lshl_add_u32 v{vMk+4}, v{vLane}, 2, s{sMk}")
    A(f"v_add_u32 v{vM}, v{vM}, v{vLen}")
    A(steps[4])
    A(f"v_sub_u32 v{vM}, v{vM}, v{vInc}")
    A(f"v_readlane_b32 s{sTot}, v{vInc}, 31")
    A(f"v_sub_u32 v{vInc}, v{vInc}, v{vLen}")
    A(f"v_mad_i32_i24 v{vM}, v{vM}, 12, v{vPos}")
    A(f"v_subrev_u32 v{vPos}, s17, v{vInc}")
    A(f"v_med3_i32 v{vPos}, v{vPos}, 0, s19")
    A(f"v_lshl_add_u32 v{vPos}, v{vPos}, 2, s{sMk}")
    A(f"s_mov_b32 exec_hi, 0")
    A(f"ds_max_u32 v{vPos}, v{vM}")
    A("s_mov_b32 exec_hi, -1")
    for it in range(NIT): A(f"ds_read_b32 v{vMk+it}, v{vMk+4} offset:{256*it}")
    A(f"s_sub_u32 s{sRem}, s{sTot}, s17\ns_min_i32 s{sRem}, s{sRem}, {WIN}")
    A(f"s_mul_i32 s17, s17, 12\ns_add_u32 s17, s17, {WS_REC}")
    A("s_waitcnt lgkmcnt(1)")
    sc = [scan_steps("v_max_u32", vMk+it) for it in range(NIT)]
    for k in range(6):
        for it in range(NIT-1): A(sc[it][k])
    def recload(it):
        A(f"buffer_load_dwordx3 v[{vR+4*it}:{vR+4*it+2}], v{vMk+it}, s[{SWS}:{SWS+3}], s17 offen offset:{768*it} {hf}")
    for it in range(NIT-1): A(f"v_readlane_b32 s{sCar[it]}, v{vMk+it}, 63")
    A(f"v_add_u32 v{vMk}, v{vMk}, v{vL12}")
    for it in range(1, NIT-1): A(f"s_max_u32 s{sCar[it]}, s{sCar[it]}, s{sCar[it-1]}")
    A.c("the last window is nearly always empty: it goes first, so the counted waits below do not depend on it")
    A(f"s_cmp_le_i32 s{sRem}, {64*(NIT-1)}\ns_cbranch_scc1 L_k2_skip4")
    A("s_waitcnt lgkmcnt(0)")
    for k in range(6): A(sc[NIT-1][k])
    A(f"v_max_u32 v{vMk+NIT-1}, s{sCar[NIT-2]}, v{vMk+NIT-1}")
    A(f"v_add_u32 v{vMk+NIT-1}, v{vMk+NIT-1}, v{vL12}")
    recload(NIT-1)
    A("L_k2_skip4:")
    recload(0)
    for it in range(1, NIT-1):
        A(f"v_max_u32 v{vMk+it}, s{sCar[it-1]}, v{vMk+it}")
        A(f"v_add_u32 v{vMk+it}, v{vMk+it}, v{vL12}")
        recload(it)
    st.mark("recissue")
    for it in range(NIT):
        if it: A(f"s_sub_u32 s19, s{sRem}, {64*it}")
        A(f"v_cmp_gt_i32 s[{sMask+2*it}:{sMask+2*it+1}], s{19 if it else sRem}, v{vLane}")
    A.c("lane constants of the main loop")
    A(f"v_and_b32 v{vOff}, 15, v{vLane}\nv_lshlrev_b32 v{vOff}, 4, v{vOff}")
    A(f"v_and_b32 v{vSh}, 3, v{vLane}\nv_add_u32 v{vSh}, 28, v{vSh}")
    if nacc0 < 64:
        A(f"s_cmp_lg_u32 s{sRound}, 0\ns_cbranch_scc1 L_k2_acc")
        for i in range(nacc0, 64): A(f"v_mov_b32 v{vC+i}, 0")
        A("L_k2_acc:")
    vBin = vMk
    vRank = vD + 44
    vc, vs, vtq, vx, vm1, vm2 = vD+50, vD+51, vD+52, vD+53, vD+54, vD+55
    vOne = vD + 56
    A(f"v_and_b32 v{vx}, 3, v{vLane}")
    A(f"v_cmp_lt_u32 vcc, 0, v{vx}\nv_lshlrev_b32 v{vPos}, 2, v{vLane}\nv_mov_b32 v{vM}, {L_RND}\nv_cndmask_b32 v{vm1}, 0, -1, vcc")
    A(f"v_cmp_lt_u32 vcc, 1, v{vx}")
    A(f"v_lshrrev_b32 v{vKA}, 4, v{vLane}\nv_lshlrev_b32 v{vKA}, 2, v{vKA}")
    A(f"v_cndmask_b32 v{vm2}, 0, -1, vcc")
    A(f"v_and_b32 v{vK2A}, 12, v{vLane}\nv_lshl_add_u32 v{vK2A}, v{vK2A}, 2, v{vKA}")
    A(f"v_mov_b32 v7, v{vSave}\nv_mov_b32 v0, v{vSave+1}")
    A(f"v_mov_b32 v{vOne}, 4")
    A.c("lanes without a record keep a rank that puts their LDS writes out of range")
    for it in range(NIT): A(f"v_mov_b32 v{vRank+it}, 0x100000" if it == 0 else f"v_mov_b32 v{vRank+it}, v{vRank}")
    tb = o.get("k2_touchb")
    ntb = 0
    A.c("counters and pad keys of every wave are in place, every record load of the workgroup is under way")
    A("s_waitcnt lgkmcnt(0)")
    A("s_barrier")
    A.c("a wave with more records than one window raises the number of rounds")
    A(f"s_cmp_le_u32 s{sTot}, {WIN}\ns_cbranch_scc1 L_k2_one")
    A(f"v_mov_b32 v{vx}, s{sTot}")
    A("s_mov_b64 exec, 1")
    A(f"ds_max_u32 v{vM}, v{vx}")
    A("s_mov_b64 exec, -1")
    A("L_k2_one:")
    if wpos == 1:
        A(f"v_lshlrev_b32 v{vD+4}, 4, v{vLane}")
        wdma(vD+4); ntb += 4
    if tb:
        A.c("every record load of the workgroup is under way: pull rows of x into this XCD's L2 behind them")
        A(f"v_lshlrev_b32 v{vD+5}, 7, v{vLane}")
        A(f"s_lshr_b32 s34, s2, 3\ns_mul_i32 s34, s34, {NW}\ns_add_u32 s34, s34, s{sWave}")
        ntb += touch_x(A, tb, 34, 17, vD+5, vD+6, SX, NW, sRot, tpos)
        tpos += sum(tb[1:]) * 128 * NW * 32
        if o.get("k2_mall") == 2: mall_touch(tpos); ntb += 1
    for it in range(NIT):
        if it < NIT-1: A(f"s_waitcnt vmcnt({NIT-2-it+ntb})")
        else: A(f"s_cmp_le_i32 s{sRem}, {64*(NIT-1)}\ns_cbranch_scc1 L_k2_skip4a")
        if it == 0: st.mark("rec0")
        A(f"v_and_b32 v{vBin+it}, 0xfc, v{vR+4*it+2}")
        A(f"s_mov_b64 exec, s[{sMask+2*it}:{sMask+2*it+1}]")
        A(f"ds_add_rtn_u32 v{vRank+it}, v{vBin+it}, v{vOne} offset:{L_CNT}")
        A("s_mov_b64 exec, -1")
    A("L_k2_skip4a:")
    A("s_waitcnt lgkmcnt(0)")
    A("s_barrier")
    st.mark("ranked")
    A(f"ds_read_b32 v{vc}, v{vPos} offset:{L_CNT}")
    A(f"ds_read_b32 v{vM}, v{vM}")
    if wpos in (3, 4):
        A(f"s_cmp_lg_u32 s{sRound}, 0\ns_cbranch_scc1 L_k2_now")
        A(f"v_lshlrev_b32 v{vD+4}, 4, v{vLane}")
        wdma(vD+4)
        A("L_k2_now:")
    nt = 0
    touch = o.get("k2_touch")
    if touch:
        A.c("pull rows of x into this XCD's L2 while the records are being placed")
        A(f"v_lshlrev_b32 v{vD+5}, 7, v{vLane}")
        A(f"s_lshr_b32 s34, s2, 3\ns_mul_i32 s34, s34, {NW}\ns_add_u32 s34, s34, s{sWave}")
        nt = touch_x(A, touch, 34, 17, vD+5, vD+6, SX, NW, sRot, tpos)
        assert nt <= 1
    if o.get("k2_mall") == 1: mall_touch(tall)
    A(f"s_lshl_b32 s19, s{sGrp}, 2")
    A("s_waitcnt lgkmcnt(1)")
    A(f"v_and_b32_dpp v{vx}, v{vc}, v{vm1} quad_perm:[0,0,1,2] row_mask:0xf bank_mask:0xf")
    A(f"v_add_u32 v{vs}, v{vc}, v{vx}")
    A(f"v_and_b32_dpp v{vx}, v{vs}, v{vm2} quad_perm:[0,0,0,1] row_mask:0xf bank_mask:0xf")
    A(f"v_add_u32 v{vs}, v{vs}, v{vx}")
    A(f"v_mov_b32_dpp v{vtq}, v{vs} quad_perm:[3,3,3,3] row_mask:0xf bank_mask:0xf")
    A(f"v_add_u32 v{vx}, 127, v{vtq}\nv_and_b32 v{vx}, 0xffffff80, v{vx}")
    A(f"v_sub_u32 v{vs}, v{vs}, v{vc}")
    A(f"v_sub_u32 v{vs}, v{vs}, v{vx}")
    sq = scan_steps("v_add_u32", vx, first=4)
    A(f"v_mov_b32 v{vc}, v{vx}")
    A(sq[0])
    A(f"v_readlane_b32 s{sN}, v{vtq}, s19")
    for s_ in sq[1:]: A(s_)
    A(f"v_add_u32 v{vs}, v{vs}, v{vx}")
    A(f"v_sub_u32 v{vc}, v{vx}, v{vc}")
    A(f"s_cmp_le_i32 s{sRem}, {64*(NIT-1)}\ns_cbranch_scc1 L_k2_skip4c")
    A(f"ds_bpermute_b32 v{vBin+NIT-1}, v{vBin+NIT-1}, v{vs}")
    A("L_k2_skip4c:")
    for it in range(NIT-1): A(f"ds_bpermute_b32 v{vBin+it}, v{vBin+it}, v{vs}")
    A(f"v_readlane_b32 s17, v{vc}, s19")
    A(f"s_cmp_lg_u32 s{sRound}, 0\ns_cbranch_scc1 L_k2_havernd")
    A(f"s_waitcnt lgkmcnt({NIT-1})")
    A(f"v_readfirstlane_b32 s{sRnd}, v{vM}")
    A("L_k2_havernd:")
    A.c("LDS addresses of this wave's slots (counts and starts are in units of 4 bytes)")
    A(f"v_add_u32 v{vKA}, s17, v{vKA}")
    A(f"v_add_u32 v{vK2A}, s17, v{vK2A}")
    A(f"s_movk_i32 s19, {L_COEF}")
    A(f"v_lshl_add_u32 v{vCA}, v{vK2A}, 1, s19")
    A(f"s_lshr_b32 s{sN}, s{sN}, 2")
    A(f"s_add_u32 s17, s{sN}, 31\ns_lshr_b32 s17, s17, 5")
    prio = o.get("prio", [3, 2, 1])
    frac = o.get("frac")
    np_ = len(prio) if prio else 0
    for k in range(1, np_):
        t = (sT1, sT2, sT3)[k-1]
        f = int(256 * (frac[k-1] if frac else k / np_) + 0.999)
        A(f"s_mul_i32 s{t}, s17, {f}\ns_add_u32 s{t}, s{t}, 128\ns_lshr_b32 s{t}, s{t}, 8")
    for it in range(NIT):
        p = vBin + it
        if it == NIT-1: A(f"s_cmp_le_i32 s{sRem}, {64*(NIT-1)}\ns_cbranch_scc1 L_k2_skip4b")
        if it < NIT-1: A(f"s_waitcnt lgkmcnt({NIT-2-it + 2*it})")
        A(f"v_add_u32 v{p}, v{p}, v{vRank+it}")
        A(f"ds_write_b32 v{p}, v{vR+4*it+2} offset:{L_KEY}")
        A(f"v_lshlrev_b32 v{vRank+it}, 1, v{p}")
        A(f"ds_write_b64 v{vRank+it}, v[{vR+4*it}:{vR+4*it+1}] offset:{L_COEF}")
    A("L_k2_skip4b:")
    younger = (ntb - 4 if wpos == 1 else 0) + nt + (1 if o.get("k2_mall") == 1 else 0)
    A(f"s_waitcnt vmcnt({younger}) lgkmcnt(0)" if wpos in (1, 3) else "s_waitcnt lgkmcnt(0)")
    A("s_barrier")
    st.mark("sorted")
    def rd_keys():
        for q in range(4):
            A(f"ds_read2_b32 v[{vK+2*q}:{vK+2*q+1}], v{vKA} offset0:{L_KEY//4+8*q} offset1:{L_KEY//4+8*q+4}")
        A(f"ds_read2_b32 v[{vK2}:{vK2+1}], v{vK2A} offset0:{L_KEY//4} offset1:{L_KEY//4+16}")
        A(f"v_add_u32 v{vKA}, 128, v{vKA}\nv_add_u32 v{vK2A}, 128, v{vK2A}")
    def addr():
        for i in range(8): A(f"v_and_or_b32 v{vK+i}, v{vK+i}, s{sRowM}, v{vOff}")
        for u in range(2):
            A(f"v_bfe_i32 v{vK2+u}, v{vK2+u}, v{vSh}, 1")
            A(f"v_and_b32 v{vK2+u}, v{vK2+u}, v{vCA}")
        A(f"v_add_u32 v{vCA}, 256, v{vCA}")
    def rd_coef():
        A(f"ds_read_b64_tr_b16 v[{vAF}:{vAF+1}], v{vK2}")
        A(f"ds_read_b64_tr_b16 v[{vAF+2}:{vAF+3}], v{vK2+1} offset:128")
    gf = o.get("gather_flags", "")
    def load(h, i):
        d = vD + h*32 + i*4
        A(f"buffer_load_dwordx4 v[{d}:{d+3}], v{vK+i}, s[{SX}:{SX+3}], 0 offen offset:{h*256} {gf}")
    def loads(h):
        for i in range(8): load(h, i)
    def loads_part(h, tag, wait):
        for i in range(8):
            if i: A(f"s_cmp_le_i32 s{sRem}, {4*i}\ns_cbranch_scc1 L_{tag}_{i}")
            load(h, i)
        if wait:
            A(f"s_waitcnt vmcnt(8)\ns_branch L_{tag}_done")
            for i in range(1, 8):
                A(f"L_{tag}_{i}:\ns_waitcnt vmcnt({i})")
                if i < 7: A(f"s_branch L_{tag}_done")
            A(f"L_{tag}_done:")
        else:
            for i in range(1, 8): A(f"L_{tag}_{i}:")
    def comp(h, lgkm=False, filler=None):
        if o.get("diag_nocomp"):
            if lgkm: A("s_waitcnt lgkmcnt(0)")
            if filler: filler()
            return
        def mf(g):
            t = vT + (g % 4)*4
            c = vC + (h*8 + g)*4
            A(f"v_mfma_f32_16x16x32_bf16 v[{c}:{c+3}], v[{vAF}:{vAF+3}], v[{t}:{t+3}], v[{c}:{c+3}]")
        for g in range(8):
            u, par = g >> 1, g & 1
            t = vT + (g % 4)*4
            for q in range(4):
                a = vD + h*32 + (2*q)*4 + u
                b = vD + h*32 + (2*q+1)*4 + u
                A(f"v_perm_b32 v{t+q}, v{b}, v{a}, s{sP0+par}")
            if lgkm and g == 1: A("s_waitcnt lgkmcnt(0)")
            if g: mf(g-1)
        if filler: filler()
        mf(7)
    vH, vSW, vGA, vWB, vO, vFl = vK, vK+1, vK+2, vK+3, vK+4, vK+5
    vY0 = vKA
    sS, sOut = 41, 42
    assert o.get("gshift", 0) % 4 == 0
    def epi_consts():
        g, n = vK+6, vK+7
        A.c("waves 4q..4q+3 share a tile of nodes; once all four have staged their sums, wave 4q+s multiplies component s")
        A(f"s_and_b32 s{sS}, s{sWave}, 3\ns_and_b32 s40, s{sGrp}, 12")
        A(f"v_lshrrev_b32 v{g}, 4, v{vLane}\nv_and_b32 v{n}, 15, v{vLane}")
        A(f"v_bfe_u32 v{vH}, v{vLane}, 3, 1\nv_cvt_f32_u32 v{vH}, v{vH}")
        A.c("staging rows: four for each of groups 0..3, three for the others")
        A(f"s_min_u32 s17, s{sGrp}, 4\ns_mul_i32 s19, s{sGrp}, 3\ns_add_u32 s17, s17, s19")
        A(f"s_mul_i32 s17, s17, {SNODE}\ns_add_u32 s17, s17, {L_STG}\ns_movk_i32 s19, {SNODE}")
        A(f"v_lshl_add_u32 v{vSW}, v{n}, 4, s17")
        A(f"v_mad_u32_u24 v{vSW}, v{g}, s19, v{vSW}")
        A(f"s_min_u32 s17, s40, 4\ns_mul_i32 s46, s40, 3\ns_add_u32 s17, s17, s46")
        A(f"s_mul_i32 s17, s17, {SNODE}\ns_add_u32 s17, s17, {L_STG}")
        A(f"v_lshl_add_u32 v{vGA}, v{g}, 4, s17")
        A(f"v_mad_u32_u24 v{vGA}, v{n}, s19, v{vGA}")
        A(f"s_cmp_eq_u32 s40, 0\ns_cselect_b32 s19, 0, {-SNODE}")
        A(f"v_lshrrev_b32 v{vO}, 2, v{n}\nv_mad_i32_i24 v{vGA}, v{vO}, s19, v{vGA}")
        A.c("block p of component s sits in slot (k, high); one byte per s, in units of 128 bytes")
        ent = {0: [(0,0),(2,0),(3,0),(4,0)], 1: [(2,1),(0,1),(1,0),(1,1)], 2: [(0,0),(5,1),(4,1),(3,1)]}
        A(f"s_lshl_b32 s19, s{sS}, 3")
        for p in range(3):
            c = sum((2*k + h) << (8*i) for i, (k, h) in enumerate(ent[p]))
            A(f"s_lshr_b32 s17, {c:#x}, s19\ns_and_b32 s17, s17, 0xff\ns_lshl_b32 s17, s17, 7")
            A(f"v_add_u32 v{vY0+p}, s17, v{vGA}")
        A(f"s_min_u32 s17, s{sS}, 1\ns_lshl_b32 s17, s17, 14\ns_add_u32 s17, s17, {L_W}")
        A(f"v_lshl_add_u32 v{vWB}, v{vLane}, 4, s17")
        A(f"s_lshl_b32 s17, s40, 10\ns_add_u32 s17, s17, {L_GATE}")
        A(f"v_lshl_add_u32 v{vGA}, v{vLane}, 4, s17")
        A(f"s_lshl_b32 s17, s40, 1\ns_add_u32 s17, s17, {L_FLAG}\nv_mov_b32 v{vFl}, s17")
        A.c("output row = bucket + 256*(first group + g + 12r); rows past the last node fall outside the descriptor")
        A(f"v_lshlrev_b32 v{vO}, 17, v{g}\nv_lshl_add_u32 v{vO}, v{n}, 3, v{vO}")
        A(f"s_lshl_b32 s{sOut}, s40, 17\ns_lshl_b32 s17, s{sB}, 9\ns_add_u32 s{sOut}, s{sOut}, s17")
        A(f"s_lshl_b32 s17, s{sS}, 7\ns_add_u32 s{sOut}, s{sOut}, s17")
        for r in range(1, 4): A(f"s_add_u32 s{sOut+r}, s{sOut}, {r*12 << 17}")
        A(f"s_cmp_lt_u32 s{sGrp}, 4\ns_cselect_b32 s46, -1, 0xffff")
        A(f"s_add_u32 s47, s{sRound}, 1\ns_mul_i32 s47, s47, {WIN}")
    if prio: A(f"s_setprio {prio[0]}")
    rd_keys()
    A(f"s_mov_b32 s{sRem}, s{sN}\ns_mov_b32 s{sStep}, 1")
    A(f"s_cmp_ge_u32 s{sN}, 32\ns_cbranch_scc1 L_k2_full")
    A.c("fewer than 32 edges: the row registers that no load fills must not hold NaN patterns")
    A("s_waitcnt vmcnt(0) lgkmcnt(0)")
    for i in range(64): A(f"v_mov_b32 v{vD+i}, 0")
    addr()
    rd_coef()
    A(f"s_cmp_eq_u32 s{sN}, 0\ns_cbranch_scc1 L_k2_last")
    loads_part(0, "p0", False)
    loads_part(1, "p1", False)
    A("s_branch L_k2_last")
    A("L_k2_full:")
    A("s_waitcnt lgkmcnt(0)")
    addr()
    rd_coef()
    loads(0); loads(1)
    rd_keys()
    A(f"s_sub_u32 s{sRem}, s{sRem}, 32")
    A(f"s_cmp_lt_i32 s{sRem}, 32\ns_cbranch_scc1 L_k2_tail")
    A(".p2align 3")
    A("L_k2_loop:")
    if np_ > 1:
        for k in range(1, np_):
            t = (sT1, sT2, sT3)[k-1]
            A(f"s_cmp_lg_u32 s{sStep}, s{t}\ns_cbranch_scc1 L_k2_pr{k}\ns_setprio {prio[k]}\nL_k2_pr{k}:")
        A(f"s_add_u32 s{sStep}, s{sStep}, 1")
    A("s_waitcnt vmcnt(8)")
    if wpos == 4:
        A(f"s_cmp_lg_u32 s{sSaid}, 0\ns_cbranch_scc1 L_k2_said1")
        A(f"v_mov_b32 v{vT}, {L_FLAG+32}\nv_mov_b32 v{vT+1}, 1")
        A(f"s_mov_b64 exec, 1\nds_add_u32 v{vT}, v{vT+1}\ns_mov_b64 exec, -1\ns_mov_b32 s{sSaid}, 1")
        A("L_k2_said1:")
    comp(0, True, addr)
    loads(0)
    A("s_waitcnt vmcnt(8)")
    comp(1, False, lambda: load(1, 0))
    for i in range(1, 8): load(1, i)
    rd_coef()
    rd_keys()
    A(f"s_sub_u32 s{sRem}, s{sRem}, 32")
    A(f"s_cmp_ge_i32 s{sRem}, 32\ns_cbranch_scc1 L_k2_loop")
    A("L_k2_tail:")
    if prio: A(f"s_setprio {prio[-1]}")
    A(f"s_cmp_le_i32 s{sRem}, 0\ns_cbranch_scc1 L_k2_last")
    A("s_waitcnt vmcnt(8)")
    comp(0, True, addr)
    loads_part(0, "t0", True)
    comp(1)
    loads_part(1, "t1", False)
    rd_coef()
    A("L_k2_last:")
    A("s_waitcnt lgkmcnt(0)")
    epi_consts()
    A("s_waitcnt vmcnt(0)")
    if wpos == 4:
        A.c("this wave's share of the weights has landed; they are read once all twelve waves have said so")
        A(f"v_mov_b32 v{vK+6}, {L_FLAG+32}\nv_mov_b32 v{vK+7}, 1")
        A(f"s_cmp_lg_u32 s{sSaid}, 0\ns_cbranch_scc1 L_k2_said")
        A(f"s_mov_b64 exec, 1\nds_add_u32 v{vK+6}, v{vK+7}\ns_mov_b64 exec, -1\ns_mov_b32 s{sSaid}, 1")
        A("L_k2_said:")
        A(f"ds_read_b32 v{vK+7}, v{vK+6}")
    comp(0)
    if wpos == 4:
        A("L_k2_wait0:")
        A("s_waitcnt lgkmcnt(0)")
        A(f"v_readfirstlane_b32 s17, v{vK+7}")
        A(f"s_cmp_ge_u32 s17, {NW}\ns_cbranch_scc1 L_k2_go0")
        A(f"s_cmp_lt_u32 s47, s{sRnd}\ns_cbranch_scc1 L_k2_go0")
        A(f"s_sleep 1\nds_read_b32 v{vK+7}, v{vK+6}\ns_branch L_k2_wait0")
        A("L_k2_go0:")
    vPk = vT + 4
    wreg = [vD + 4*n for n in range(16)] + [vC + 40 + 4*n for n in range(6)] + [vAF, vT + 12]
    jobs = [(kk, t) for kk in range(6) for t in range(4)]
    def rdw(n):
        A(f"ds_read_b128 v[{wreg[n]}:{wreg[n]+3}], v{vWB} offset:{n*1024}")
    for n in range(8): rdw(n)
    comp(1)
    eprio = o.get("eprio", 0)
    if prio: A(f"s_setprio {eprio}")
    st.mark("loopend")
    A(f"s_add_u32 s{sRound}, s{sRound}, 1")
    A(f"s_mul_i32 s17, s{sRound}, {WIN}")
    A(f"s_cmp_ge_u32 s17, s{sRnd}\ns_cbranch_scc1 L_k2_epi")
    A.c("rare: a wave found more records than one window holds; sort and gather the next window")
    A("s_waitcnt vmcnt(0) lgkmcnt(0)")
    A("s_barrier")
    A(f"v_mov_b32 v{vOf}, v7\nv_mov_b32 v{vD+1}, v0")
    A(f"s_lshl_b32 s17, s{sWave}, 6\nv_add_u32 v0, s17, v{vLane}")
    A(f"v_lshlrev_b32 v7, 4, v{vLane}")
    lds_init()
    A(f"s_mov_b32 exec_lo, 0xffff\ns_mov_b32 exec_hi, 0")
    A(f"ds_write_b128 v7, v[{vz+4}:{vz+7}] offset:{L_CNT}")
    A("s_mov_b64 exec, -1")
    A("s_waitcnt lgkmcnt(0)")
    A("s_barrier")
    A("s_branch L_k2_round")
    A("L_k2_epi:")
    if o.get("diag_noepi"):
        if st.on: st.mark("issued")
        st.flush(14, sWave, vT, 48)
        A("s_endpgm")
        st.on = False
    U = lambda jj, a: vC + jj*4 + a
    V = lambda jj, a: vC + (8+jj)*4 + a
    ror = "row_ror:8 row_mask:0xf bank_mask:0xf"
    srcs = [lambda jj: U(jj,0), lambda jj: V(jj,0), lambda jj: U(jj,1), lambda jj: U(jj,2), lambda jj: U(jj,3), lambda jj: V(jj,2)]
    npk = [0]
    def pack(k):
        r = vPk + 4*(npk[0] % 2); npk[0] += 1
        for q in range(4): A(f"v_cvt_pk_bf16_f32 v{r+q}, v{srcs[k](2*q)}, v{srcs[k](2*q+1)}")
        A(f"ds_write_b128 v{vSW}, v[{r}:{r+3}] offset:{k*SPITCH}")
    A.c("groups with three nodes own three staging rows: their fourth lane group does not write")
    A("s_mov_b32 exec_hi, s46")
    pack(0); pack(1)
    for jj in range(8):
        t0, t1 = vT + 2*(jj & 1), vT + 1 + 2*(jj & 1)
        A(f"v_add_f32_dpp v{t0}, v{V(jj,2)}, v{V(jj,3)} {ror}")
        A(f"v_sub_f32_dpp v{t1}, v{V(jj,1)}, v{U(jj,2)} {ror}")
        A(f"v_subrev_f32_dpp v{V(jj,2)}, v{V(jj,3)}, v{V(jj,2)} {ror}")
        A(f"v_fma_f32 v{U(jj,1)}, v{t0}, v{vH}, v{U(jj,1)}")
        A(f"v_fma_f32 v{U(jj,3)}, -v{V(jj,1)}, v{vH}, v{U(jj,3)}")
        A(f"v_cndmask_b32 v{U(jj,2)}, v{U(jj,2)}, v{t1}, s[{sH}:{sH+1}]")
    for k in (2, 3, 4, 5): pack(k)
    vS = vC
    vY = vC + 24
    vG = vD
    vF1, vF2 = vT, vT + 1
    A(f"v_mov_b32 v{vF1}, 1")
    A.c("LDS serves a wave's requests in order: the count goes up after the six writes")
    A("s_mov_b64 exec, 1")
    A(f"ds_add_u32 v{vFl}, v{vF1}")
    A("s_mov_b64 exec, -1")
    st.mark("staged")
    for n in range(8, 24): rdw(n)
    A(f"s_mov_b32 s19, 0xbfb8aa3b")
    A("L_k2_wait1:")
    A(f"ds_read_b32 v{vF2}, v{vFl}")
    for kk in range(6): A(f"ds_read_b128 v[{vS+4*kk}:{vS+4*kk+3}], v{vY0+kk//2} offset:{64*(kk & 1)}")
    A("s_waitcnt lgkmcnt(6)")
    A(f"v_readfirstlane_b32 s17, v{vF2}")
    A("s_cmp_ge_u32 s17, 4\ns_cbranch_scc1 L_k2_go1")
    A("s_waitcnt lgkmcnt(0)\ns_sleep 1\ns_branch L_k2_wait1")
    A("L_k2_go1:")
    of = o.get("out_flags", "sc1")
    def finish():
        for r in range(4):
            A(f"v_cvt_pk_bf16_f32 v{vD+16+2*r}, v{vY+r}, v{vY+4+r}\nv_cvt_pk_bf16_f32 v{vD+17+2*r}, v{vY+8+r}, v{vY+12+r}")
            A(f"buffer_store_dwordx2 v[{vD+16+2*r}:{vD+17+2*r}], v{vO}, s[{SOUT}:{SOUT+3}], s{sOut+r} offen {of}")
    def mm(kk, t):
        r, acc = wreg[4*kk + t], vY + 4*t
        cin = "0" if kk == 0 else f"v[{acc}:{acc+3}]"
        A(f"v_mfma_f32_16x16x32_bf16 v[{acc}:{acc+3}], v[{vS+4*kk}:{vS+4*kk+3}], v[{r}:{r+3}], {cin}")
    A(f"s_cmp_eq_u32 s{sS}, 0\ns_cbranch_scc1 L_k2_x")
    for kk in range(6):
        A(f"s_waitcnt lgkmcnt({5-kk})")
        for t in range(4): mm(kk, t)
    A.c("vector outputs: the gates of this node tile")
    A("L_k2_wait2:")
    A(f"ds_read_b32 v{vF2}, v{vFl} offset:4")
    for t in range(4): A(f"ds_read_b128 v[{vG+4*t}:{vG+4*t+3}], v{vGA} offset:{1024*t}")
    A("s_waitcnt lgkmcnt(4)")
    A(f"v_readfirstlane_b32 s17, v{vF2}")
    A("s_cmp_lg_u32 s17, 0\ns_cbranch_scc1 L_k2_go2")
    A("s_waitcnt lgkmcnt(0)\ns_branch L_k2_wait2")
    A("L_k2_go2:")
    for t in range(4):
        A(f"s_waitcnt lgkmcnt({3-t})")
        for r in (0, 2): A(f"v_pk_mul_f32 v[{vY+4*t+r}:{vY+4*t+r+1}], v[{vG+4*t+r}:{vG+4*t+r+1}], v[{vY+4*t+r}:{vY+4*t+r+1}]")
    finish()
    A("s_branch L_k2_fin")
    A("L_k2_x:")
    A.c("scalar output and the gates, tile by tile behind the matrix instructions")
    vG = vC + 40
    def sig(t):
        return ([f"v_mul_f32 v{vG+4*t+r}, s19, v{vY+4*t+r}" for r in range(4)] + [f"v_exp_f32 v{vG+4*t+r}, v{vG+4*t+r}" for r in range(4)]
                + [f"v_add_f32 v{vG+4*t+r}, 1.0, v{vG+4*t+r}" for r in range(4)] + [f"v_rcp_f32 v{vG+4*t+r}, v{vG+4*t+r}" for r in range(4)]
                + ["s_nop 0", f"ds_write_b128 v{vGA}, v[{vG+4*t}:{vG+4*t+3}] offset:{1024*t}"])
    A("s_waitcnt lgkmcnt(0)")
    for kk in range(4): mm(kk, 0)
    for kk in range(4): mm(kk, 1)
    pend = sig(0)
    for t in (2, 3):
        for kk in range(4):
            mm(kk, t)
            if t == 3 or kk >= 2:
                for _ in range(3): A(pend.pop(0))
    for l in pend + sig(1) + sig(2) + sig(3): A(l)
    A("s_mov_b64 exec, 1")
    A(f"ds_write_b32 v{vFl}, v{vF1} offset:4")
    A("s_mov_b64 exec, -1")
    finish()
    A("L_k2_fin:")
    if st.on:
        st.mark("issued")
        A("s_waitcnt vmcnt(0)")
    st.flush(14, sWave, vT, 48)
    A("L_k2_end:")
    A("s_endpgm")
    return A.finish(o.get("verbose")), L_END, NV, 102 if o.get("stamps") else 80 if fused else 76, st.names

def gen_agg(name, want, encode=None, nws=(10, 12)):
    A = Asm()
    A(f".globl {name}\n.p2align 8\n.type {name},@function\n{name}:")
    A("s_cmp_ge_u32 s2, 1\ns_cbranch_scc1 L_agg_end")
    A("s_load_dwordx4 s[4:7], s[0:1], 80")
    A("v_lshlrev_b32 v1, 2, v0\nv_mov_b32 v2, 0\nds_write_b32 v1, v2")
    A("v_lshlrev_b32 v3, 10, v0")
    A("s_waitcnt lgkmcnt(0)\ns_barrier")
    srd(A, 8, 6, 7, 0x10000000); srd(A, 12, 4, 5, 256)
    for n, (kid, idx, how) in enumerate(want):
        A(f"s_mov_b32 s16, {WS_STAMP + kid*(1 << 20) + 4*idx}")
        for w in range(nws[kid]): A(f"buffer_load_dword v{10+w}, v3, s[8:11], s16 offen offset:{64*w}")
        A("s_waitcnt vmcnt(0)")
        for w in range(nws[kid]):
            if how == "min": A(f"v_not_b32 v{10+w}, v{10+w}")
            A(f"ds_max_u32 v2, v{10+w} offset:{4*n}")
    A("s_waitcnt lgkmcnt(0)\ns_barrier")
    A("ds_read_b32 v4, v1\nds_read_b32 v5, v2\ns_waitcnt lgkmcnt(0)")
    A("v_not_b32 v5, v5")
    mins = sum(1 << n for n, w in enumerate(want) if w[2] == "min")
    A(f"s_mov_b32 s20, {mins}\ns_mov_b32 s21, 0\nv_not_b32 v6, v4\nv_cndmask_b32 v4, v4, v6, s[20:21]")
    A("v_sub_u32 v4, v4, v5")
    if encode is not None:
        A("v_readfirstlane_b32 s23, v0\ns_cmp_lg_u32 s23, 0\ns_cbranch_scc1 L_agg_end")
        A(f"s_nop 1\nv_readlane_b32 s22, v4, {len(want)-1}")
        A(f"s_min_u32 s22, s22, 10000\ns_mul_i32 s22, s22, {encode}")
        A("s_memrealtime s[24:25]\ns_waitcnt lgkmcnt(0)")
        A("L_agg_spin:\ns_memrealtime s[26:27]\ns_waitcnt lgkmcnt(0)\ns_sub_u32 s26, s26, s24\ns_cmp_lt_u32 s26, s22\ns_cbranch_scc1 L_agg_spin")
    A(f"s_mov_b32 exec_lo, {(1 << len(want)) - 1}\ns_mov_b32 exec_hi, 0")
    A("s_cmp_lg_u32 0, 0")
    A("v_cmp_gt_u32 vcc, 16, v0\ns_and_b64 exec, exec, vcc\ns_cbranch_execz L_agg_end")
    A("buffer_store_dword v4, v1, s[12:15], 0 offen")
    A("L_agg_end:\ns_endpgm")
    return A.finish()

HEADER = """; Equivariant tensor-product message passing, N=10000 nodes, E=640000 edges, C=64.
; Launch 1 sorts every chunk of 2500 edges by bucket (dst & 255) into d_ws.
; Kernarg: x 0, rhat 8, e_attr 16, src 24, dst 32, w_rad 40, w_si0 48, w_si1 56, cg_eps 64, out 72, debug 80, ws 88
"""
HEADER_F = """; Equivariant tensor-product message passing, N=10000 nodes, E=640000 edges, C=64.
;  1. every workgroup sorts its chunk of 2500 edges by bucket (dst & 255) and writes records and offsets through to d_ws;
; Kernarg: x 0, rhat 8, e_attr 16, src 24, dst 32, w_rad 40, w_si0 48, w_si1 56, cg_eps 64, out 72, debug 80, ws 88
"""
DEFAULTS = {"out_flags": "nt", "prio": [2, 1], "k2_touch0": None, "k2_touchb": ("l2", 14), "gshift": 4, "frac": [0.35], "rot": 1, "k1_touch": False, "fused": 1, "f_tag": 1, "f_sleep": 2}
def build(o=None):
    o = dict(DEFAULTS, **(o or {}))
    n1, n2 = "tp_sort_kernel", "tp_gather_kernel"
    if o.get("fused"):
        n = "gather_scatter__tensor_product_equiv_equiformer__graph_kernel"
        t2, lds2, v2, s2, names2 = gen_k2(n, o)
        txt = HEADER_F + f"; @launch grid=({NWG},1,1) block=({NW*64},1,1) lds={lds2}\n"
        txt += '.amdgcn_target "amdgcn-amd-amdhsa--gfx950"\n.text\n' + t2 + '.section .rodata,"a"\n' + kd(n, v2, s2)
        return txt, [(n, lds2, v2, names2, NW)]
    o["k2name"] = n2
    t1, lds1, v1, s1, names1 = gen_k1(n1, o)
    t2, lds2, v2, s2, names2 = gen_k2(n2, o)
    txt = HEADER
    empty = "; @launch kernel=tp_empty_kernel grid=(1,1,1) block=(64,1,1) lds=0\n"
    txt += empty * o.get("empty_pre", 0)
    txt += f"; @launch kernel={n1} grid=({NWG},1,1) block=(704,1,1) lds={lds1}\n" * o.get("k1_times", 1)
    txt += f"; @launch kernel={n2} grid=({NWG},1,1) block=({NW*64},1,1) lds={lds2}\n" * o.get("k2_times", 1)
    txt += empty * o.get("empty_post", 0)
    if o.get("agg"): txt += "; @launch kernel=tp_agg_kernel grid=(1,1,1) block=(256,1,1) lds=1024\n"
    txt += '.amdgcn_target "amdgcn-amd-amdhsa--gfx950"\n.text\n'
    txt += t1 + t2
    if o.get("agg"):
        nm = [names1, names2]
        want = [(k, nm[k].index(n), h) for k, n, h in o["agg"]]
        txt += gen_agg("tp_agg_kernel", want, o.get("encode"))
    em = o.get("empty_pre") or o.get("empty_post")
    if em: txt += ".globl tp_empty_kernel\n.p2align 8\n.type tp_empty_kernel,@function\ntp_empty_kernel:\n    s_endpgm\n"
    txt += '.section .rodata,"a"\n' + kd(n1, v1, s1) + (".p2align 6\nL_kd2:\n" if o.get("kd_touch") else "") + kd(n2, v2, s2)
    if em: txt += kd("tp_empty_kernel", 8, 16)
    if o.get("agg"): txt += kd("tp_agg_kernel", 32, 32)
    return txt, [(n1, lds1, v1, names1, 11), (n2, lds2, v2, names2, NW)]

if __name__ == "__main__":
    out = sys.argv[1] if len(sys.argv) > 1 else "gather_scatter__tensor_product_equiv_equiformer__graph.s"
    txt, info = build({"verbose": True})
    open(out, "w").write(txt)
    print(info, len(txt))
```

```python
import sys
from asmlib import Asm, kd

N, E = 10000, 640000
NWG = 256
CH = E // NWG
RSTR = 30080
WS_OFF = 0
WS_W = 524288
WS_REC = WS_W + 40960
WS_FLAG = WS_REC + NWG * RSTR
WS_USED = WS_FLAG + 64 * 1024
WS_STAMP = 16 << 20
PADKEY = 0x0FFFFFFF

def srd(A, s, lo, hi, size):
    A(f"s_mov_b32 s{s}, s{lo}\ns_mov_b32 s{s+1}, s{hi}")
    A(f"s_mov_b32 s{s+2}, {size}\ns_mov_b32 s{s+3}, 0x00020000")

def scan_steps(op, v, upto=64, first=1):
    out = []
    for sh in (1, 2, 4, 8):
        if sh >= first:
            out.append(f"{op}_dpp v{v}, v{v}, v{v} row_shr:{sh} row_mask:0xf bank_mask:0xf bound_ctrl:0")
    if upto >= 32: out.append(f"{op}_dpp v{v}, v{v}, v{v} row_bcast:15 row_mask:0xa bank_mask:0xf")
    if upto >= 64: out.append(f"{op}_dpp v{v}, v{v}, v{v} row_bcast:31 row_mask:0xc bank_mask:0xf")
    return out

class Stamps:
    def __init__(self, A, on, base, kid):
        self.A, self.on, self.base, self.n, self.kid = A, on, base, 0, kid
        self.names = []
        self.skip = set()
        self.jitter = None
        self.nj = 0
    def mark(self, name):
        if self.jitter and name != "start":
            k = self.nj; self.nj += 1
            self.A(f"s_mov_b32 s101, scc_save" if False else "s_cselect_b32 s101, 1, 0")
            self.A("s_waitcnt lgkmcnt(0)\ns_memtime s[98:99]\ns_waitcnt lgkmcnt(0)")
            self.A(f"s_lshr_b32 s98, s98, 3\ns_and_b32 s99, s98, {self.jitter}\ns_cmp_lg_u32 s99, 0\ns_cbranch_scc1 L_jit{k}")
            self.A(f"s_lshr_b32 s98, s98, 4\ns_and_b32 s98, s98, 15")
            self.A(f"L_jl{k}:\ns_sleep 8\ns_sub_u32 s98, s98, 1\ns_cbranch_scc0 L_jl{k}")
            self.A(f"L_jit{k}:\ns_cmp_lg_u32 s101, 0")
        if self.on and name not in self.skip:
            r = self.base + 2 * self.n
            self.A(f"s_memrealtime s[{r}:{r+1}]"); self.n += 1; self.names.append(name)
    def flush(self, ws_lo, wave_s, v0, tmp_s):
        if not self.on: return
        A = self.A
        self.mark("end")
        if self.on == "dbg":
            A(f"s_load_dwordx2 s[{tmp_s+4}:{tmp_s+5}], s[0:1], 80")
            A("s_waitcnt lgkmcnt(0)")
            A("s_mov_b64 exec, 1")
            srd(A, tmp_s, tmp_s+4, tmp_s+5, 256)
            A(f"v_mov_b32 v{v0}, 0")
            A(f"s_not_b32 s{tmp_s+4}, s{self.base}")
            A(f"v_mov_b32 v{v0+1}, s{tmp_s+4}")
            A(f"buffer_atomic_umax v{v0+1}, v{v0}, s[{tmp_s}:{tmp_s+3}], 0 offen")
            for i in range(self.n):
                A(f"v_mov_b32 v{v0+2+i}, s{self.base + 2*i}")
                A(f"buffer_atomic_umax v{v0+2+i}, v{v0}, s[{tmp_s}:{tmp_s+3}], 0 offen offset:{4*i+4}")
            return
        A("s_waitcnt lgkmcnt(0)")
        A("s_mov_b64 exec, 1")
        srd(A, tmp_s, ws_lo, ws_lo + 1, 0x10000000)
        A(f"s_lshl_b32 s{tmp_s+4}, s2, 4\ns_add_u32 s{tmp_s+4}, s{tmp_s+4}, s{wave_s}\ns_lshl_b32 s{tmp_s+4}, s{tmp_s+4}, 6")
        A(f"s_add_u32 s{tmp_s+4}, s{tmp_s+4}, {WS_STAMP + self.kid * (1 << 20)}")
        A(f"v_mov_b32 v{v0}, 0")
        for i in range(self.n):
            A(f"v_mov_b32 v{v0+1}, s{self.base + 2*i}")
            A(f"buffer_store_dword v{v0+1}, v{v0}, s[{tmp_s}:{tmp_s+3}], s{tmp_s+4} offen offset:{4*i}")

def touch_x(A, spec, s_rank, s_tmp, v_addr, v_dst, srd_x, nw=10, s_rot=None, pos0=0):
    kind, lanes_list = spec[0], spec[1:]
    pos = pos0
    for n, lanes in enumerate(lanes_list):
        A(f"s_mul_i32 s{s_tmp}, s{s_rank}, {lanes*128}")
        if pos: A(f"s_add_u32 s{s_tmp}, s{s_tmp}, {pos}")
        if s_rot is not None:
            A(f"s_add_u32 s{s_tmp}, s{s_tmp}, s{s_rot}\ns_sub_u32 s{s_rot+1}, s{s_tmp}, {N*512}\ns_min_u32 s{s_tmp}, s{s_tmp}, s{s_rot+1}")
        m = (1 << lanes) - 1
        if lanes < 64: A(f"s_mov_b32 exec_lo, {m & 0xffffffff}\ns_mov_b32 exec_hi, {m >> 32}")
        A(f"buffer_load_dword v{v_dst+n}, v{v_addr}, s[{srd_x}:{srd_x+3}], s{s_tmp} offen")
        if lanes < 64: A("s_mov_b64 exec, -1")
        pos += lanes * 128 * nw * (256 if kind == "mall" else 32)
    return len(lanes_list)

def gen_k1(name, o):
    A = Asm()
    CNT, PFX, STG = 0, 1024, 2048
    lds = STG + 30720
    st = Stamps(A, o.get("stamps"), 64, 0)
    A(f".globl {name}\n.p2align 8\n.type {name},@function\n{name}:")
    A(f"s_cmp_ge_u32 s2, {NWG}\ns_cbranch_scc1 L_k1_end")
    st.mark("start")
    A("s_load_dwordx4 s[4:7], s[0:1], 0")
    A("s_load_dwordx4 s[8:11], s[0:1], 16")
    A("s_load_dwordx2 s[12:13], s[0:1], 32")
    A("s_load_dwordx2 s[14:15], s[0:1], 88")
    A.c("chunk id: workgroups that share an XCD under round-robin dispatch get neighbouring chunks")
    A("s_and_b32 s16, s2, 7\ns_lshl_b32 s16, s16, 5\ns_lshr_b32 s17, s2, 3\ns_add_u32 s16, s16, s17")
    A("v_lshrrev_b32 v1, 6, v0")
    A("v_lshlrev_b32 v2, 2, v0")
    A("v_readfirstlane_b32 s3, v1")
    A("v_and_b32 v7, 63, v0")
    A("s_cmp_eq_u32 s3, 10\ns_cbranch_scc1 L_k1_helper")
    A("v_mov_b32 v3, 0")
    A(f"ds_write_b32 v2, v3 offset:{CNT}")
    A("v_lshlrev_b32 v4, 4, v0")
    A("v_lshlrev_b32 v5, 3, v0")
    A("v_mul_u32_u24 v6, 24, v0")
    A(f"s_movk_i32 s17, {CH//4}\nv_cmp_gt_u32 s[18:19], s17, v0")
    A(f"s_mul_i32 s40, s16, {CH*4}\ns_mul_i32 s41, s16, {CH*2}\ns_mul_i32 s42, s16, {CH*6}")
    A("s_waitcnt lgkmcnt(0)")
    srd(A, 20, 12, 13, E*4)
    srd(A, 24, 10, 11, E*4)
    srd(A, 28, 8, 9, E*2)
    srd(A, 32, 6, 7, E*6)
    A("s_mov_b64 exec, s[18:19]")
    lf = o.get("k1_load_flags", "nt")
    A(f"buffer_load_dwordx4 v[8:11], v4, s[20:23], s40 offen {lf}")
    A(f"buffer_load_dwordx4 v[12:15], v4, s[24:27], s40 offen {lf}")
    A(f"buffer_load_dwordx2 v[16:17], v5, s[28:31], s41 offen {lf}")
    A(f"buffer_load_dwordx4 v[20:23], v6, s[32:35], s42 offen {lf}")
    A(f"buffer_load_dwordx2 v[24:25], v6, s[32:35], s42 offen offset:16 {lf}")
    srd(A, 44, 14, 15, WS_USED)
    A("v_mov_b32 v3, 1")
    A("s_barrier")
    A(f"s_waitcnt vmcnt(4)")
    st.mark("dst")
    for i in range(4):
        A(f"v_lshlrev_b32 v{32+i}, 2, v{8+i}")
        A(f"v_and_b32 v{32+i}, 0x3fc, v{32+i}")
        A(f"ds_add_rtn_u32 v{36+i}, v{32+i}, v3 offset:{CNT}")
    A("s_mov_b64 exec, -1")
    A("v_lshlrev_b32 v59, 4, v7")
    A("s_waitcnt lgkmcnt(0)")
    A("s_barrier")
    st.mark("ranked")
    A(f"ds_read_b128 v[60:63], v59 offset:{CNT}")
    A(f"s_waitcnt vmcnt(3)")
    A.c("key = src<<9 | onehot(j)<<28 | (wave*4 + source quarter)<<2 ; record i = v[40+4i : 42+4i] = c01, c23, key")
    A(f"s_mov_b32 s48, 0x10000000\ns_mov_b32 s53, {-(-(1 << 32) // 3072)}\ns_mov_b32 s54, {(1 << 34) // N}\ns_movk_i32 s55, -3072\ns_movk_i32 s56, {-N//8}")
    def key(i):
        d, s, k = 8+i, 12+i, 42+4*i
        if o.get("rot"):
            q = [f"v_bfe_u32 v57, v{d}, 5, 3", f"v_mad_i32_i24 v57, v57, s56, v{s}", f"v_add_u32 v64, {N}, v57",
                 f"v_min_u32 v57, v57, v64", f"v_mul_hi_u32_u24 v57, s54, v57"]
        else: q = [f"v_mul_hi_u32_u24 v57, s54, v{s}"]
        return [f"v_mul_hi_u32_u24 v56, s53, v{d}"] + q + [
                f"v_mad_i32_i24 v58, v56, s55, v{d}",
                f"v_lshlrev_b32_e64 v56, v56, s48",
                f"v_lshrrev_b32 v58, 8, v58",
                f"v_lshl_or_b32 v56, v{s}, 9, v56",
                f"v_lshl_or_b32 v57, v58, 2, v57",
                f"v_lshl_or_b32 v{k}, v57, 2, v56"]
    for l in key(0) + key(1): A(l)
    A("s_waitcnt lgkmcnt(0)")
    A("v_add_u32 v65, v60, v61\nv_add_u32 v66, v65, v62\nv_add_u32 v67, v66, v63")
    A("v_mov_b32 v68, v67")
    fill = key(2) + key(3)
    for n, s_ in enumerate(scan_steps("v_add_u32", 68)):
        A(fill[2*n]); A(fill[2*n+1]); A(s_)
    A("v_sub_u32 v68, v68, v67")
    A("v_add_u32 v69, v68, v60\nv_add_u32 v70, v68, v65\nv_add_u32 v71, v68, v66")
    A.c("every wave writes the same prefix table and then reads only after its own write")
    A(f"ds_write_b128 v59, v[68:71] offset:{PFX}")
    A("s_mov_b64 exec, s[18:19]")
    for i in range(4): A(f"ds_read_b32 v{32+i}, v{32+i} offset:{PFX}")
    for l in fill[12:]: A(l)
    A(f"s_movk_i32 s53, {STG}")
    A.c("coefficients a, a*Y0, a*Y1, a*Y2 in bf16")
    A(f"s_waitcnt vmcnt(0)")
    st.mark("alldata")
    A("s_mov_b32 s49, 0xffff0000")
    def unpack(dst, reg, hi):
        if hi: A(f"v_and_b32 v{dst}, s49, v{reg}")
        else: A(f"v_lshlrev_b32 v{dst}, 16, v{reg}")
    for i in range(4):
        unpack(56, 16 + i//2, i & 1)
        for j in range(3):
            h = 3*i + j
            unpack(72+j, 20 + h//2, h & 1)
        for j in range(3): A(f"v_mul_f32 v{72+j}, v56, v{72+j}")
        A(f"v_cvt_pk_bf16_f32 v{40+4*i}, v56, v72")
        A(f"v_cvt_pk_bf16_f32 v{41+4*i}, v73, v74")
        if i == 0: A("s_waitcnt lgkmcnt(0)")
        A(f"v_add_u32 v{32+i}, v{32+i}, v{36+i}")
        A(f"v_mad_u32_u24 v{32+i}, v{32+i}, 12, s53")
        A(f"ds_write_b32 v{32+i}, v{42+4*i} offset:8")
        A(f"ds_write2_b32 v{32+i}, v{40+4*i}, v{41+4*i} offset0:0 offset1:1")
    A("s_mov_b64 exec, -1")
    A.c("waves 0..3 publish start|len<<16 of bucket 4*lane+wave")
    A("s_cmp_ge_u32 s3, 4\ns_cbranch_scc1 L_k1_nooff")
    A("v_mov_b32 v72, v68\nv_mov_b32 v73, v60")
    for w in (1, 2, 3):
        A(f"s_cmp_lg_u32 s3, {w}\ns_cbranch_scc1 L_k1_o{w}")
        A(f"v_mov_b32 v72, v{68+w}\nv_mov_b32 v73, v{60+w}")
        A(f"L_k1_o{w}:")
    A("v_lshl_or_b32 v72, v73, 16, v72")
    A("v_lshlrev_b32 v73, 12, v7")
    A("s_lshl_b32 s50, s3, 10\ns_lshl_b32 s51, s16, 2\ns_add_u32 s50, s50, s51")
    if WS_OFF: A(f"s_add_u32 s50, s50, {WS_OFF}")
    sf = o.get("k1_store_flags", "")
    A(f"buffer_store_dword v72, v73, s[44:47], s50 offen {sf}")
    A("L_k1_nooff:")
    A(f"s_mul_i32 s50, s16, {RSTR}\ns_add_u32 s50, s50, {WS_REC}")
    A.c("the copy covers whole 128-byte lines: a partly written last line is slow to read back")
    A(f"s_movk_i32 s17, {RSTR//16 - 1280}\nv_cmp_gt_u32 s[18:19], s17, v0")
    A("s_add_u32 s51, s50, 10240\ns_add_u32 s52, s50, 20480")
    A("s_waitcnt lgkmcnt(0)")
    A("s_barrier")
    st.mark("sorted")
    if o.get("diag_nostore"): A("s_mov_b32 s46, 0")
    for q in range(3): A(f"ds_read_b128 v[{8+4*q}:{11+4*q}], v4 offset:{STG + 10240*q}")
    A("s_waitcnt lgkmcnt(2)")
    A(f"buffer_store_dwordx4 v[8:11], v4, s[44:47], s50 offen {sf}")
    A("s_waitcnt lgkmcnt(1)")
    A(f"buffer_store_dwordx4 v[12:15], v4, s[44:47], s51 offen {sf}")
    A("s_waitcnt lgkmcnt(0)")
    A("s_mov_b64 exec, s[18:19]")
    A(f"buffer_store_dwordx4 v[16:19], v4, s[44:47], s52 offen {sf}")
    if o.get("k1_wb"):
        A("s_mov_b64 exec, -1")
        A("s_cmp_lg_u32 s3, 9\ns_cbranch_scc1 L_k1_nowb")
        A("s_waitcnt vmcnt(0)")
        A("buffer_wbl2 sc1")
        A("L_k1_nowb:")
    if st.on:
        st.mark("issued")
        A("s_waitcnt vmcnt(0)")
    st.flush(14, 3, 20, 52)
    A("s_endpgm")
    A("L_k1_helper:")
    A("s_load_dwordx4 s[52:55], s[0:1], 40")
    A("s_load_dwordx2 s[56:57], s[0:1], 56")
    A("v_lshlrev_b32 v26, 7, v7")
    A(f"s_mul_i32 s43, s16, {N*512//NWG}\ns_and_b32 s43, s43, 0xffffff80")
    A("s_lshr_b32 s40, s2, 2\ns_and_b32 s41, s2, 3")
    A.c("fragment (k step, tile t): lane (n, g) holds rows 32*step + 8g .. +7 of column 4n + t")
    A("v_lshrrev_b32 v8, 4, v7\nv_and_b32 v9, 15, v7")
    A("v_lshlrev_b32 v11, 10, v8\nv_lshl_add_u32 v11, v9, 3, v11")
    A("v_lshlrev_b32 v8, 4, v8")
    A("s_lshl_b32 s42, s40, 12\ns_lshl_b32 s41, s41, 1\ns_add_u32 s42, s42, s41")
    A("s_lshl_b32 s41, s40, 6")
    A("s_waitcnt lgkmcnt(0)")
    srd(A, 36, 4, 5, N*512)
    srd(A, 44, 14, 15, WS_USED)
    srd(A, 24, 52, 53, 640)
    A("s_cmp_lt_u32 s40, 4")
    A("s_cselect_b32 s20, s54, s56\ns_cselect_b32 s21, s55, s57")
    A(f"s_mov_b32 s22, {192*128}\ns_cselect_b32 s22, {128*128}, s22\ns_mov_b32 s23, 0x00020000")
    A("s_cselect_b32 s17, 0, 16384\ns_sub_u32 s42, s42, s17")
    touch = o.get("k1_touch", True)
    tb = o.get("k1_touch_after", 1)
    def helper_touch():
        if touch:
            A.c("touch x once so that the gather of the second launch finds it on chip")
            A("buffer_load_dword v28, v26, s[36:39], s43 offen")
            A("s_add_u32 s43, s43, 8192")
            A("buffer_load_dword v29, v26, s[36:39], s43 offen")
            A("s_add_u32 s43, s43, 8192\ns_mov_b32 exec_hi, 0")
            A("buffer_load_dword v30, v26, s[36:39], s43 offen")
            A("s_mov_b32 exec_hi, -1")
    if o.get("code_touch"):
        A.c("read the second kernel's instructions once per XCD so that its first fetches find them in L2")
        A("s_getpc_b64 s[28:29]")
        A("L_k1_pc:")
        A(f"s_add_u32 s28, s28, {o['k2name']}-L_k1_pc\ns_addc_u32 s29, s29, 0")
        A("s_lshr_b32 s30, s2, 3\ns_lshl_b32 s30, s30, 9")
        A(f"v_add_u32 v32, s30, v26\nv_min_u32 v32, L_k2_end-{o['k2name']}, v32")
        A("v_mov_b32 v33, s29\nv_add_co_u32 v32, vcc, s28, v32\nv_addc_co_u32 v33, vcc, 0, v33, vcc")
        A("s_mov_b64 exec, 15")
        A("global_load_dword v31, v[32:33], off")
        if o.get("kd_touch"):
            A("s_getpc_b64 s[28:29]")
            A(f"s_add_u32 s28, s28, L_kd2@rel32@lo+4\ns_addc_u32 s29, s29, L_kd2@rel32@hi+12")
            A("v_mov_b32 v32, s28\nv_mov_b32 v33, s29")
            A("s_mov_b64 exec, 1")
            A("global_load_dword v34, v[32:33], off")
        A("s_mov_b64 exec, -1")
    for b in range(3):
        if b == tb: helper_touch()
        if b == 1:
            A("s_cmp_ge_u32 s2, 40\ns_cbranch_scc1 L_k1_now")
            A("buffer_load_dwordx4 v[12:15], v8, s[24:27], s41 offen")
            for i in range(8): A(f"buffer_load_ushort v{16+i}, v11, s[20:23], s42 offen offset:{128*i}")
            A("L_k1_now:")
        A("s_barrier")
    if tb == 3: helper_touch()
    A("s_cmp_ge_u32 s2, 40\ns_cbranch_scc1 L_k1_end")
    A("s_mov_b32 s49, 0xffff0000")
    A("s_waitcnt vmcnt(0)" if tb != 3 or not touch else "s_waitcnt vmcnt(3)")
    for i in range(8):
        unpack(24, 12 + i//2, i & 1)
        A(f"v_lshlrev_b32 v{16+i}, 16, v{16+i}\nv_mul_f32 v{16+i}, v24, v{16+i}")
    for q in range(4): A(f"v_cvt_pk_bf16_f32 v{12+q}, v{16+2*q}, v{17+2*q}")
    A(f"v_lshlrev_b32 v8, 4, v7\ns_lshl_b32 s41, s2, 10\ns_add_u32 s41, s41, {WS_W}")
    A("buffer_store_dwordx4 v[12:15], v8, s[44:47], s41 offen")
    A("L_k1_end:")
    A("s_endpgm")
    return A.finish(o.get("verbose")), lds, 80, 96 if st.on else 58, st.names

NW = 12
NIT = 5
WIN = 288
CAP = NW * WIN + NW * 32
L_ZERO, L_RND, L_CNT, L_KEY = 0, 192, 256, 512
L_COEF = L_KEY + CAP*4 + 128
L_W = L_COEF + CAP*8 + 256
L_STG = L_W + 40960
SPITCH = 256
SNODE = 6*SPITCH + 32
L_GATE = L_STG + 40*SNODE
L_END = L_GATE + 3*4096
L_FLAG = 208
assert L_END <= 163840, L_END
MKW = 1536
L_WT = L_STG + 40*SNODE - 40960
L_NONCE = L_GATE
assert L_WT >= L_STG + NW*MKW

def gen_k2(name, o):
    A = Asm()
    fused = o.get("fused")
    st = Stamps(A, o.get("stamps"), 80 if fused else 76, 1)
    if fused: st.skip = set(o.get("skip", ["recissue", "staged", "issued", "rec0", "wok", "wdone", "stiss"]))
    vLane, vOff, vKA, vK2A, vCA, vSh = 1, 2, 3, 4, 5, 6
    vK2 = 8
    vAF = 10
    vK = 14
    vT = 22
    vD = 38
    vC = 102
    NV = 166
    sWave, sB = 3, 16
    SX, SWS, SOUT = 20, 24, 28
    sH = 32
    sMask = 48
    sTot, sRnd, sRound, sN, sRem, sStep, sT1, sT2, sT3 = 58, 59, 60, 61, 62, 63, 64, 65, 66
    sP0, sP1, sRowM = 67, 68, 69
    sSeg0, sNseg, sMk = 70, 71, 18
    sCar = [72, 73, 74, 75]
    sGrp, sSaid = 38, 39
    A(f".globl {name}\n.p2align 8\n.type {name},@function\n{name}:")
    A(f"s_cmp_ge_u32 s2, {NWG}\ns_cbranch_scc1 L_k2_end")
    if o.get("diag_perm"): A(f"s_mul_i32 s2, s2, {o['diag_perm']}\ns_add_u32 s2, s2, 77\ns_and_b32 s2, s2, 255")
    st.jitter = o.get("diag_jitter")
    st.mark("start")
    vOf = vD
    vz = vD + 40
    wpos = o.get("wpos", 0) if not fused else -1
    hf = "sc1" if fused else ""
    def ids():
        A(f"s_and_b32 s{sB}, s2, 7\ns_lshl_b32 s{sB}, s{sB}, 5\ns_lshr_b32 s17, s2, 3\ns_add_u32 s{sB}, s{sB}, s17")
        A("v_lshrrev_b32 v7, 6, v0")
        A(f"v_and_b32 v{vLane}, 63, v0")
        A(f"v_readfirstlane_b32 s{sWave}, v7")
    def ids2():
        A(f"s_mov_b32 s{sRound}, 0\ns_mov_b32 s{sSaid}, 0")
        if o.get("gshift"):
            A(f"s_add_u32 s{sGrp}, s{sWave}, {o['gshift']}\ns_sub_u32 s17, s{sGrp}, {NW}\ns_min_u32 s{sGrp}, s{sGrp}, s17")
        else: A(f"s_mov_b32 s{sGrp}, s{sWave}")
        A.c("this wave reads chunks seg0 .. seg0+nseg-1 of the bucket, seg0 = floor(wave*64/3)")
        A(f"s_mul_i32 s{sSeg0}, s{sWave}, {64*21846}\ns_lshr_b32 s{sSeg0}, s{sSeg0}, 16")
        A(f"s_add_u32 s17, s{sWave}, 1\ns_mul_i32 s17, s17, {64*21846}\ns_lshr_b32 s17, s17, 16")
        A(f"s_sub_u32 s{sNseg}, s17, s{sSeg0}")
        A(f"v_add_u32 v{vD+1}, s{sSeg0}, v{vLane}")
        A(f"v_lshlrev_b32 v{vD+2}, {(11 if o.get('f_tag') else 10) if fused else 2}, v{vD+1}")
        A(f"v_cmp_gt_u32 vcc, s{sNseg}, v{vLane}")
        A(f"v_bfrev_b32 v{vD+3}, -2")
        A(f"v_lshlrev_b32 v7, 4, v{vLane}")
        A(f"v_cndmask_b32 v{vD+2}, v{vD+3}, v{vD+2}, vcc")
        A.c("private marker area of this wave (inside the staging area of the epilogue)")
        A(f"s_mul_i32 s{sMk}, s{sWave}, {MKW}\ns_add_u32 s{sMk}, s{sMk}, {L_STG}")
    def lds_init():
        for i in range(4): A(f"v_mov_b32 v{vz+4+i}, 0")
        A(f"v_add_u32 v{vz+8}, s{sMk}, v7")
        A(f"ds_write_b128 v{vz+8}, v[{vz+4}:{vz+7}]")
        A("s_mov_b32 exec_hi, 0")
        A(f"ds_write_b128 v{vz+8}, v[{vz+4}:{vz+7}] offset:1024")
        A("s_mov_b32 exec_hi, -1")
        A(f"v_lshlrev_b32 v{vz+9}, 4, v0")
        for i in range(4): A(f"v_mov_b32 v{vz+i}, {PADKEY:#x}" if i == 0 else f"v_mov_b32 v{vz+i}, v{vz}")
        A(f"ds_write_b128 v{vz+9}, v[{vz}:{vz+3}] offset:{L_KEY}")
        A(f"v_cmp_gt_u32 vcc, {(L_COEF - L_KEY - NW*1024)//16}, v0\ns_mov_b64 exec, vcc")
        A(f"ds_write_b128 v{vz+9}, v[{vz}:{vz+3}] offset:{L_KEY+NW*1024}")
        A("s_mov_b64 exec, -1")
    assert 2*NW*1024 >= CAP*4 + 128 and L_KEY + 2*NW*1024 <= L_W
    def consts():
        A(f"s_mov_b32 s{sP0}, 0x05040100\ns_mov_b32 s{sP1}, 0x07060302\ns_mov_b32 s{sRowM}, {o.get('diag_rowmask', 0x007ffe00):#x}")
        A(f"s_mov_b32 s{sH}, 0xff00ff00\ns_mov_b32 s{sH+1}, 0xff00ff00")
    def wdma(vl):
        A.c("the 40 weight fragments go straight to LDS: w, w+12, w+24 and 36+(w&3) by wave w (the last four land three times)")
        A(f"s_lshl_b32 s19, s{sWave}, 10\ns_add_u32 m0, s19, {L_W}\ns_add_u32 s19, s19, {WS_W}")
        for q in range(3):
            A(f"buffer_load_dwordx4 v{vl}, s[{SWS}:{SWS+3}], s19 offen lds")
            if q < 2: A(f"s_add_u32 m0, m0, {NW*1024}\ns_add_u32 s19, s19, {NW*1024}")
        A(f"s_and_b32 s19, s{sWave}, 3\ns_lshl_b32 s19, s19, 10\ns_add_u32 m0, s19, {L_W + 36*1024}\ns_add_u32 s19, s19, {WS_W + 36*1024}")
        A(f"buffer_load_dwordx4 v{vl}, s[{SWS}:{SWS+3}], s19 offen lds")
    sRot = 36 if o.get("rot") else None
    def rotc():
        if sRot: A(f"s_lshr_b32 s{sRot}, s{sB}, 5\ns_mul_i32 s{sRot}, s{sRot}, {N*512//8}")
    def mall_touch(start):
        lanes = -(-(N*512 - start) // (128 * NW * NWG))
        A.c("every remaining line of x is touched once, chip-wide")
        A(f"v_lshlrev_b32 v{vD+4}, 7, v{vLane}")
        A(f"s_mul_i32 s35, s{sB}, {NW}\ns_add_u32 s35, s35, s{sWave}\ns_mul_i32 s35, s35, {lanes*128}")
        if start: A(f"s_add_u32 s35, s35, {start}")
        A(f"s_mov_b32 exec_lo, {(1 << lanes) - 1}\ns_mov_b32 exec_hi, 0")
        A(f"buffer_load_dword v{vD+7}, v{vD+4}, s[{SX}:{SX+3}], s35 offen")
        A("s_mov_b64 exec, -1")
    vBase, vL12, vMkA = vD+57, vD+35, vD+34
    def round_pre():
        A(f"s_mov_b32 s34, {RSTR}\nv_mul_lo_u32 v{vBase}, v{vD+1}, s34")
        A(f"v_mul_u32_u24 v{vL12}, 12, v{vLane}\nv_lshl_add_u32 v{vMkA}, v{vLane}, 2, s{sMk}")
    nt0 = 0
    touch0 = o.get("k2_touch0")
    tpos = N*512//8 if o.get("rot") and (o.get("f_early") if fused else o.get("k1_touch", True)) else 0
    def do_touch0(va, vd):
        A.c("pull the first rows of x into this XCD's L2")
        A(f"v_lshlrev_b32 v{va}, 7, v{vLane}")
        A(f"s_lshr_b32 s34, s2, 3\ns_mul_i32 s34, s34, {NW}\ns_add_u32 s34, s34, s{sWave}")
        return touch_x(A, touch0, 34, 17, va, vd, SX, NW, sRot, tpos)
    nacc0 = o.get("nacc0", 0 if fused else 32)
    if not fused:
        A("s_load_dwordx2 s[14:15], s[0:1], 88")
        A("s_load_dwordx2 s[4:5], s[0:1], 0")
        A("s_load_dwordx2 s[12:13], s[0:1], 72")
        ids(); ids2()
        A(f"s_lshl_b32 s17, s{sB}, 10")
        if WS_OFF: A(f"s_add_u32 s17, s17, {WS_OFF}")
        A("s_waitcnt lgkmcnt(0)")
        srd(A, SWS, 14, 15, WS_USED)
        A(f"buffer_load_dword v{vOf}, v{vD+2}, s[{SWS}:{SWS+3}], s17 offen")
        if wpos == 0: wdma(7)
        srd(A, SX, 4, 5, N*512)
        srd(A, SOUT, 12, 13, N*512)
        rotc()
        if touch0:
            nt0 = do_touch0(vD+5, vD+6)
            tpos += sum(touch0[1:]) * 128 * NW * 32
        tall = tpos + (sum(o["k2_touch"][1:]) * 128 * NW * 32 if o.get("k2_touch") else 0)
        if o.get("k2_mall") == 0:
            mall_touch(tpos if o.get("k2_mall_all") else tall); nt0 += 1
        lds_init()
        A(f"s_mov_b32 exec_hi, 0")
        A(f"ds_write_b128 v7, v[{vz+4}:{vz+7}]")
        A("s_mov_b32 exec_hi, -1")
        consts(); round_pre()
        for i in range(0, nacc0, 2): A(f"v_mov_b64 v[{vC+i}:{vC+i+1}], 0")
        A(f"s_waitcnt vmcnt({(4 if wpos == 0 else 0)+nt0})")
    else:
        R = o.get("R", 32)
        aCNT, aPFX, aSTG = L_KEY, L_KEY + 4096, L_COEF
        vDst, vSrc, vEa, vRh, vBk, vRk, vRec = 38, 42, 46, 50, 62, 66, 70
        t0, t1, t2, t3 = 86, 87, 88, 94
        vL16, vCn, vL16b = 89, 90, 150
        v16, v8, v24, vOne1 = 126, 127, 128, 129
        SD, SS, SE, SR, SDBG = 64, 68, 72, 76, 40
        sAct = 46
        A(f"s_load_dwordx2 s[{SD}:{SD+1}], s[0:1], 32\ns_load_dwordx2 s[{SS}:{SS+1}], s[0:1], 24")
        A("s_load_dwordx16 s[48:63], s[0:1], 0")
        A("s_load_dwordx4 s[8:11], s[0:1], 72")
        A("s_load_dwordx2 s[14:15], s[0:1], 88")
        ids()
        def code_touch(w):
            A.c("one wave reads a share of this kernel's instructions so that later fetches find them in L2")
            A(f"s_cmp_lg_u32 s{sWave}, {w}\ns_cbranch_scc1 L_f_nocode")
            A("s_getpc_b64 s[6:7]")
            A("L_f_pc:")
            A(f"s_lshr_b32 s17, s2, 3\ns_lshl_b32 s17, s17, 9\nv_lshl_add_u32 v{t0}, v{vLane}, 7, s17")
            A(f"v_min_u32 v{t0}, L_k2_end-L_f_pc, v{t0}")
            A(f"v_mov_b32 v{t0+1}, s7\nv_add_co_u32 v{t0}, vcc, s6, v{t0}\nv_addc_co_u32 v{t0+1}, vcc, 0, v{t0+1}, vcc")
            A("s_mov_b64 exec, 15")
            A(f"global_load_dword v{t3}, v[{t0}:{t0+1}], off")
            A("s_mov_b64 exec, -1")
            A("L_f_nocode:")
        if o.get("code_touch", 1) == 1: code_touch(o.get("code_wave", 10))
        A(f"v_lshlrev_b32 v{t0}, 2, v0\nv_mov_b32 v{t1}, 0")
        A(f"ds_write_b32 v{t0}, v{t1} offset:{aCNT}")
        A(f"v_lshlrev_b32 v{v16}, 4, v0\nv_lshlrev_b32 v{v8}, 3, v0\nv_mul_u32_u24 v{v24}, 24, v0")
        A(f"v_lshlrev_b32 v{vL16}, 4, v{vLane}\nv_mov_b32 v{vOne1}, 1\nv_mov_b32 v{vL16b}, v{vL16}")
        A(f"s_movk_i32 s17, {CH//4}\nv_cmp_gt_u32 s[{sAct}:{sAct+1}], s17, v0")
        sC = 2 if o.get("f_cwg", 0) else sB
        A(f"s_mul_i32 s4, s{sC}, {CH*4}\ns_mul_i32 s5, s{sC}, {CH*2}\ns_mul_i32 s6, s{sC}, {CH*6}")
        for r_ in (SD, SS): A(f"s_mov_b32 s{r_+2}, {E*4}\ns_mov_b32 s{r_+3}, 0x00020000")
        A("s_waitcnt lgkmcnt(0)")
        if not o.get("f_split", 1): srd(A, SE, 52, 53, E*2); srd(A, SR, 50, 51, E*6)
        A(f"s_cmp_ge_u32 s{sWave}, 10\ns_cbranch_scc1 L_f_noload")
        A(f"s_mov_b64 exec, s[{sAct}:{sAct+1}]")
        lf = o.get("k1_load_flags", "nt")
        A(f"buffer_load_dwordx4 v[{vDst}:{vDst+3}], v{v16}, s[{SD}:{SD+3}], s4 offen {lf}")
        A(f"buffer_load_dwordx4 v[{vSrc}:{vSrc+3}], v{v16}, s[{SS}:{SS+3}], s4 offen {lf}")
        split = o.get("f_split", 1)
        def late_loads():
            A(f"buffer_load_dwordx2 v[{vEa}:{vEa+1}], v{v8}, s[{SE}:{SE+3}], s5 offen {lf}")
            A(f"buffer_load_dwordx4 v[{vRh}:{vRh+3}], v{v24}, s[{SR}:{SR+3}], s6 offen {lf}")
            A(f"buffer_load_dwordx2 v[{vRh+4}:{vRh+5}], v{v24}, s[{SR}:{SR+3}], s6 offen offset:16 {lf}")
        if not split: late_loads()
        A("s_mov_b64 exec, -1")
        A("L_f_noload:")
        if split: srd(A, SE, 52, 53, E*2); srd(A, SR, 50, 51, E*6)
        srd(A, SWS, 14, 15, WS_USED); srd(A, SX, 48, 49, N*512); srd(A, SOUT, 8, 9, N*512); srd(A, SDBG, 10, 11, 256)
        if o.get("code_touch", 1) == 2: code_touch(10)
        A.c("one wave of the launch picks the word that marks this launch's arrival flags")
        A(f"s_cmp_lg_u32 s{sWave}, 11\ns_cbranch_scc1 L_f_nononce\ns_cmp_lg_u32 s2, 0\ns_cbranch_scc1 L_f_nononce")
        A(f"s_memrealtime s[6:7]\nv_lshlrev_b32 v{t0}, 2, v{vLane}\ns_waitcnt lgkmcnt(0)\ns_or_b32 s6, s6, 1\nv_mov_b32 v{t1}, s6")
        A(f"buffer_store_dword v{t1}, v{t0}, s[{SDBG}:{SDBG+3}], 0 offen sc1")
        A("L_f_nononce:")
        A("s_barrier")
        nw0 = 0
        A(f"s_cmp_ge_u32 s{sWave}, 10\ns_cbranch_scc1 L_f_helper")
        A(f"s_mov_b64 exec, s[{sAct}:{sAct+1}]")
        if split: late_loads()
        A(f"s_waitcnt vmcnt({4+nw0})")
        st.mark("dst")
        for i in range(4):
            A(f"v_lshlrev_b32 v{vBk+i}, 2, v{vDst+i}\nv_and_b32 v{vBk+i}, 0x3fc, v{vBk+i}")
            A(f"ds_add_rtn_u32 v{vRk+i}, v{vBk+i}, v{vOne1} offset:{aCNT}")
        A("s_mov_b64 exec, -1")
        A("s_waitcnt lgkmcnt(0)")
        A("s_barrier")
        A(f"ds_read_b128 v[{vCn}:{vCn+3}], v{vL16} offset:{aCNT}")
        A(f"s_waitcnt vmcnt({3+nw0})")
        A.c("key = src<<9 | onehot(j)<<28 | (group*4 + source quarter)<<2 ; record i = c01, c23, key")
        A(f"s_mov_b32 s4, 0x10000000\ns_mov_b32 s5, {-(-(1 << 32) // 3072)}\ns_mov_b32 s6, {(1 << 34) // N}\ns_movk_i32 s7, -3072\ns_movk_i32 s19, {-N//8}")
        def key(i):
            d, s_, k = vDst+i, vSrc+i, vRec+2+4*i
            if o.get("rot"):
                q = [f"v_bfe_u32 v{t1}, v{d}, 5, 3", f"v_mad_i32_i24 v{t1}, v{t1}, s19, v{s_}", f"v_add_u32 v{t3}, {N}, v{t1}",
                     f"v_min_u32 v{t1}, v{t1}, v{t3}", f"v_mul_hi_u32_u24 v{t1}, s6, v{t1}"]
            else: q = [f"v_mul_hi_u32_u24 v{t1}, s6, v{s_}"]
            return [f"v_mul_hi_u32_u24 v{t0}, s5, v{d}"] + q + [
                    f"v_mad_i32_i24 v{t2}, v{t0}, s7, v{d}", f"v_lshlrev_b32_e64 v{t0}, v{t0}, s4", f"v_lshrrev_b32 v{t2}, 8, v{t2}",
                    f"v_lshl_or_b32 v{t0}, v{s_}, 9, v{t0}", f"v_lshl_or_b32 v{t1}, v{t2}, 2, v{t1}", f"v_lshl_or_b32 v{k}, v{t1}, 2, v{t0}"]
        for l in key(0) + key(1): A(l)
        A("s_waitcnt lgkmcnt(0)")
        A(f"v_add_u32 v95, v{vCn}, v{vCn+1}\nv_add_u32 v96, v95, v{vCn+2}\nv_add_u32 v97, v96, v{vCn+3}\nv_mov_b32 v98, v97")
        fill = key(2) + key(3)
        for n, s_ in enumerate(scan_steps("v_add_u32", 98)):
            A(fill[2*n]); A(fill[2*n+1]); A(s_)
        A("v_sub_u32 v98, v98, v97")
        A(f"v_add_u32 v99, v98, v{vCn}\nv_add_u32 v100, v98, v95\nv_add_u32 v101, v98, v96")
        A.c("every wave writes the same prefix table and then reads only after its own write")
        A(f"ds_write_b128 v{vL16}, v[98:101] offset:{aPFX}")
        A(f"s_mov_b64 exec, s[{sAct}:{sAct+1}]")
        for i in range(4): A(f"ds_read_b32 v{vBk+i}, v{vBk+i} offset:{aPFX}")
        for l in fill[12:]: A(l)
        A(f"s_movk_i32 s5, {aSTG}\ns_mov_b32 s4, 0xffff0000")
        early = o.get("f_keyfirst", 1)
        if early:
            for i in range(4):
                A(f"s_waitcnt lgkmcnt({3-i+i})")
                A(f"v_add_u32 v{vBk+i}, v{vBk+i}, v{vRk+i}\nv_mad_u32_u24 v{vBk+i}, v{vBk+i}, 12, s5")
                A(f"ds_write_b32 v{vBk+i}, v{vRec+2+4*i} offset:8")
        mW, mR, hA = 106, 122, 138
        def wloads():
            A.c("weights: 40 pieces of 8 rows; piece w+12q comes from w_si0 when < 16, else from w_si1")
            srd(A, SD, 60, 61, 128*128); srd(A, SS, 62, 63, 192*128); srd(A, SE, 58, 59, 640)
            A(f"s_cmp_lt_u32 s{sWave}, 4")
            A(f"s_cselect_b32 s{SR}, s60, s62\ns_cselect_b32 s{SR+1}, s61, s63")
            A(f"s_cselect_b32 s{SR+2}, s{SD+2}, s{SS+2}\ns_mov_b32 s{SR+3}, 0x00020000")
            A(f"s_cselect_b32 s19, 0, 16384\ns_sub_u32 s19, 12288, s19")
            A(f"s_lshl_b32 s17, s{sWave}, 10\ns_add_u32 s19, s19, s17")
            A(f"buffer_load_dwordx4 v[{mW}:{mW+3}], v{vL16}, s[{SD}:{SD+3}], s17 offen")
            A(f"buffer_load_dwordx4 v[{mW+4}:{mW+7}], v{vL16}, s[{SR}:{SR+3}], s19 offen")
            A(f"s_add_u32 s19, s17, {24576-16384}")
            A(f"buffer_load_dwordx4 v[{mW+8}:{mW+11}], v{vL16}, s[{SS}:{SS+3}], s19 offen")
            A(f"s_add_u32 s19, s17, {36864-16384}")
            A(f"buffer_load_dwordx4 v[{mW+12}:{mW+15}], v{vL16}, s[{SS}:{SS+3}], s19 offen")
            A(f"v_lshrrev_b32 v144, 3, v{vLane}\nv_lshlrev_b32 v145, 1, v144\ns_lshl_b32 s19, s{sWave}, 4")
            for q in range(4): A(f"buffer_load_ushort v{mR+q}, v145, s[{SE}:{SE+3}], s19 offen offset:{192*q}")
        wearly = o.get("f_wearly", 1)
        if not wearly: A("s_waitcnt vmcnt(0)")
        A("s_mov_b64 exec, -1")
        wloads()
        A(f"s_mov_b64 exec, s[{sAct}:{sAct+1}]")
        A.c("coefficients a, a*Y0, a*Y1, a*Y2 in bf16")
        if wearly: A("s_waitcnt vmcnt(8)")
        def unpack(dst, reg, hi):
            if hi: A(f"v_and_b32 v{dst}, s4, v{reg}")
            else: A(f"v_lshlrev_b32 v{dst}, 16, v{reg}")
        for i in range(4):
            unpack(t0, vEa + i//2, i & 1)
            for j in range(3):
                h = 3*i + j
                unpack(102+j, vRh + h//2, h & 1)
            for j in range(3): A(f"v_mul_f32 v{102+j}, v{t0}, v{102+j}")
            A(f"v_cvt_pk_bf16_f32 v{vRec+4*i}, v{t0}, v102\nv_cvt_pk_bf16_f32 v{vRec+1+4*i}, v103, v104")
            if not early:
                if i == 0: A("s_waitcnt lgkmcnt(0)")
                A(f"v_add_u32 v{vBk+i}, v{vBk+i}, v{vRk+i}\nv_mad_u32_u24 v{vBk+i}, v{vBk+i}, 12, s5")
                A(f"ds_write_b32 v{vBk+i}, v{vRec+2+4*i} offset:8")
            A(f"ds_write2_b32 v{vBk+i}, v{vRec+4*i}, v{vRec+1+4*i} offset0:0 offset1:1")
        A("s_mov_b64 exec, -1")
        A.c("wave 0 publishes start|len<<16 of the 256 buckets")
        A(f"s_cmp_lg_u32 s{sWave}, 0\ns_cbranch_scc1 L_f_nooff")
        for i in range(4): A(f"v_lshl_or_b32 v{98+i}, v{vCn+i}, 16, v{98+i}")
        tag = o.get("f_tag")
        if tag:
            A(f"v_add_u32 v{t0}, {L_GATE+1024}, v{vL16}\nds_write_b128 v{t0}, v[98:101]")
            A(f"v_lshrrev_b32 v{t0}, 1, v{vL16}\nv_add_u32 v{t0}, {L_GATE+1024}, v{t0}")
            A(f"ds_read_b64 v[152:153], v{t0}\nds_read_b64 v[156:157], v{t0} offset:512")
        else:
            A(f"s_lshl_b32 s4, s{sB}, 10")
            A(f"buffer_store_dwordx4 v[98:101], v{vL16}, s[{SWS}:{SWS+3}], s4 offen sc1")
        A("L_f_nooff:")
        A(f"s_mul_i32 s4, s{sC}, {RSTR}\ns_add_u32 s4, s4, {WS_REC}\ns_add_u32 s5, s4, 10240\ns_add_u32 s6, s4, 20480")
        A(f"s_movk_i32 s17, {RSTR//16 - 1280}\nv_cmp_gt_u32 s[{sAct}:{sAct+1}], s17, v0")
        A("s_setprio 3")
        A("s_waitcnt lgkmcnt(0)")
        A("s_barrier")
        st.mark("sortedA")
        for q in range(3): A(f"ds_read_b128 v[{vRh+4*q}:{vRh+4*q+3}], v{v16} offset:{aSTG + 10240*q}")
        for q in range(3):
            A(f"s_waitcnt lgkmcnt({2-q})")
            if q == 2: A(f"s_mov_b64 exec, s[{sAct}:{sAct+1}]")
            A(f"buffer_store_dwordx4 v[{vRh+4*q}:{vRh+4*q+3}], v{v16}, s[{SWS}:{SWS+3}], s{4+q} offen sc1")
        A("s_mov_b64 exec, -1")
        A("s_setprio 0")
        A("s_branch L_f_join")
        A.c("waves 10 and 11 carry no edges: they fetch the launch's mark")
        A("L_f_helper:")
        A("s_barrier")
        if st.on and "dst" not in st.skip: st.n -= 2; st.names = st.names[:-2]; st.mark("dst")
        elif st.on: st.n -= 1; st.names = st.names[:-1]
        A(f"s_and_b32 s4, s2, 63\ns_lshl_b32 s4, s4, 2\nv_mov_b32 v142, 0\ns_mov_b32 s5, 0x40000")
        A(f"buffer_load_dword v143, v142, s[{SDBG}:{SDBG+3}], s4 offen sc1")
        wloads()
        A("s_waitcnt vmcnt(8)")
        A("L_f_again:")
        A(f"v_readfirstlane_b32 s6, v143")
        A("s_cmp_lg_u32 s6, 0\ns_cbranch_scc1 L_f_got")
        A("s_sub_u32 s5, s5, 1\ns_cbranch_scc1 L_f_got")
        A(f"s_sleep 2\nbuffer_load_dword v143, v142, s[{SDBG}:{SDBG+3}], s4 offen sc1\ns_waitcnt vmcnt(0)\ns_branch L_f_again")
        A("L_f_got:")
        A(f"v_mov_b32 v142, {L_NONCE}\nds_write_b32 v142, v143")
        A("s_waitcnt lgkmcnt(0)")
        A("s_barrier")
        st.mark("sortedA")
        A("s_waitcnt vmcnt(0)")
        A("L_f_join:")
        st.mark("stiss")
        sNonce = 35
        assert tag
        A(f"v_mov_b32 v{t0}, {L_NONCE}\nds_read_b32 v{t1}, v{t0}")
        ids2(); rotc(); consts()
        A("s_waitcnt lgkmcnt(0)")
        A(f"v_readfirstlane_b32 s{sNonce}, v{t1}")
        def pre_init():
            lds_init()
            A.c("zero block, round word, flags, counters: bytes 0..511")
            A(f"s_mov_b32 exec_hi, 0")
            A(f"ds_write_b128 v7, v[{vz+4}:{vz+7}]")
            A("s_mov_b32 exec_hi, -1")
        if o.get("f_preinit", 1): pre_init()
        A.c("offset words with the launch's mark beside each: 8-byte pairs that are written and read whole")
        A(f"v_mov_b32 v46, v152\nv_mov_b32 v47, s{sNonce}\nv_mov_b32 v48, v153\nv_mov_b32 v49, s{sNonce}")
        A(f"v_mov_b32 v62, v156\nv_mov_b32 v63, s{sNonce}\nv_mov_b32 v64, v157\nv_mov_b32 v65, s{sNonce}")
        A(f"s_lshl_b32 s19, s{sC}, 11\ns_lshl_b32 s17, s{sB}, 3\nv_mov_b32 v66, 0")
        A(f"v_cmp_gt_u32 s[6:7], s{sNseg}, v{vLane}\ns_mov_b32 s5, 0x40000")
        vA = 100
        A.c("fragment w+12q = (k step (w>>2)+3q, tile w&3): two transposing reads")
        A(f"v_lshrrev_b32 v{t0}, 4, v{vLane}\nv_bfe_u32 v{t2}, v{vLane}, 2, 2\nv_lshl_add_u32 v{vA}, v{t0}, 3, v{t2}\nv_lshlrev_b32 v{vA}, 7, v{vA}")
        A(f"s_and_b32 s4, s{sWave}, 3\nv_xor_b32 v{t2}, s4, v{t2}\nv_lshl_add_u32 v{vA}, v{t2}, 5, v{vA}")
        A(f"v_and_b32 v{t2}, 3, v{vLane}\nv_lshl_add_u32 v{vA}, v{t2}, 3, v{vA}")
        A(f"s_lshr_b32 s4, s{sWave}, 2\ns_lshl_b32 s4, s4, 12\ns_add_u32 s4, s4, {L_WT}\nv_add_u32 v{vA}, s4, v{vA}")
        A(f"s_lshl_b32 s4, s{sWave}, 10\ns_add_u32 s4, s4, {L_W}\nv_add_u32 v{vA+1}, s4, v7")
        A.c("weights scaled by w_rad, row k as [tile t ^ (k&3)][16 columns 4n+t]")
        A(f"v_and_b32 v{hA}, 7, v{vLane}\nv_lshlrev_b32 v{hA}, 2, v{hA}")
        A(f"v_lshl_add_u32 v{hA}, v144, 7, v{hA}\nv_and_b32 v144, 3, v144\nv_lshl_add_u32 v{hA}, v144, 5, v{hA}")
        A(f"s_lshl_b32 s4, s{sWave}, 10\ns_add_u32 s4, s4, {L_WT}\nv_add_u32 v{hA}, s4, v{hA}")
        for t in range(1, 4): A(f"v_xor_b32 v{hA+t}, {32*t}, v{hA}")
        A("s_mov_b32 s4, 0xffff0000")
        def wpiece(q):
            A(f"v_lshlrev_b32 v{mR+q}, 16, v{mR+q}")
            for tp in (0, 2):
                for t in (tp, tp+1):
                    a = 144 + 4*(t & 1)
                    unpack(a, mW + 4*q + t//2, t & 1); unpack(a+1, mW + 4*q + 2 + t//2, t & 1)
                for a in (144, 148):
                    A(f"v_pk_mul_f32 v[{a}:{a+1}], v[{a}:{a+1}], v[{mR+q & ~1}:{(mR+q & ~1)+1}] op_sel:[0,{q & 1}] op_sel_hi:[1,{q & 1}]")
                for a in (144, 148): A(f"v_cvt_pk_bf16_f32 v{a+2+tp//2}, v{a}, v{a+1}")
                for t in (tp, tp+1): A(f"ds_write_b32 v{hA+t}, v{144+4*(t & 1)+2+tp//2} offset:{12288*q}")
        npre = o.get("f_npre", 0)
        if npre: A("s_waitcnt vmcnt(3)")
        for q in range(npre): wpiece(q)
        round_pre()
        st.mark("wdone")
        A(f"s_waitcnt vmcnt(0)")
        A("s_barrier")
        st.mark("acked")
        A.c("every record store of this workgroup has been acknowledged: publish the offsets")
        A(f"s_cmp_lg_u32 s{sWave}, 0\ns_cbranch_scc1 L_f_noflag")
        A(f"buffer_store_dwordx4 v[46:49], v7, s[{SWS}:{SWS+3}], s19 offen sc1")
        A(f"buffer_store_dwordx4 v[62:65], v7, s[{SWS}:{SWS+3}], s19 offen offset:1024 sc1")
        A("L_f_noflag:")
        if not o.get("f_preinit", 1): pre_init()
        for q in range(npre, 4):
            if q == 3: A(f"s_cmp_ge_u32 s{sWave}, 4\ns_cbranch_scc1 L_f_w3")
            wpiece(q)
        A("L_f_w3:")
        def poll_load(): A(f"buffer_load_dwordx2 v[{96 if o.get('f_pp', 0) else 66}:{97 if o.get('f_pp', 0) else 67}], v{vD+2}, s[{SWS}:{SWS+3}], s17 offen sc1")
        A("s_waitcnt lgkmcnt(0)")
        A("s_barrier")
        vW2 = mW
        for q in range(4):
            A(f"ds_read_b64_tr_b16 v[{vW2+4*q}:{vW2+4*q+1}], v{vA} offset:{12288*q}")
            A(f"ds_read_b64_tr_b16 v[{vW2+4*q+2}:{vW2+4*q+3}], v{vA} offset:{12288*q+512}")
        A.c("read the pairs of this wave's chunks until each carries the mark")
        if not o.get("f_late"):
            A("s_mov_b64 exec, s[6:7]")
            poll_load()
            A("s_mov_b64 exec, -1")
        assert not touch0
        tall = tpos
        for q in range(4):
            if q == 3: A(f"s_cmp_ge_u32 s{sWave}, 4\ns_cbranch_scc1 L_f_w4")
            A(f"s_waitcnt lgkmcnt({6-2*q})")
            A(f"ds_write_b128 v{vA+1}, v[{vW2+4*q}:{vW2+4*q+3}] offset:{12288*q}")
        A("L_f_w4:")
        if nacc0: A("s_waitcnt lgkmcnt(0)")
        for i in range(0, nacc0, 2): A(f"v_mov_b64 v[{vC+i}:{vC+i+1}], 0")
        if o.get("f_pp", 0):
            A.c("two reads stay in flight; a lane drops out once its pair carries the mark")
            P = (96, 98)
            def pl(k): A(f"buffer_load_dwordx2 v[{P[k]}:{P[k]+1}], v{vD+2}, s[{SWS}:{SWS+3}], s17 offen sc1")
            A(f"v_mov_b32 v{vOf}, 0")
            A("s_mov_b64 exec, s[6:7]")
            pl(1)
            A("L_f_poll:")
            for k in (0, 1):
                A("s_waitcnt vmcnt(1)")
                A(f"v_cmp_eq_u32 vcc, s{sNonce}, v{P[k]+1}")
                A(f"v_cndmask_b32 v{vOf}, v{vOf}, v{P[k]}, vcc")
                A("s_andn2_b64 exec, exec, vcc\ns_cbranch_scc0 L_f_seen")
                if o.get("f_sleep", 1): A(f"s_sleep {o.get('f_sleep', 1)}")
                pl(k)
            A("s_sub_u32 s5, s5, 1\ns_cbranch_scc0 L_f_poll")
            A("L_f_seen:")
            A("s_mov_b64 exec, -1")
        else:
            A("s_mov_b64 exec, s[6:7]")
            if o.get("f_late"):
                if o["f_late"] > 1: A(f"s_sleep {o['f_late']-1}")
                poll_load()
            if o.get("f_prio", 0): A("s_setprio 2")
            A("s_waitcnt vmcnt(0)")
            A("L_f_poll:")
            A(f"v_cmp_ne_u32 vcc, s{sNonce}, v67")
            A("s_and_b64 exec, exec, vcc\ns_cbranch_scc0 L_f_seen")
            A("s_sub_u32 s5, s5, 1\ns_cbranch_scc1 L_f_seen")
            if o.get("f_sleep", 1): A(f"s_sleep {o.get('f_sleep', 1)}")
            poll_load()
            A("s_waitcnt vmcnt(0)\ns_branch L_f_poll")
            A("L_f_seen:")
            A("s_mov_b64 exec, -1")
        st.mark("seen")
        if o.get("f_pp", 0): pass
        elif tag: A(f"v_mov_b32 v{vOf}, v66")
        else:
            A(f"buffer_load_dword v{vOf}, v{vD+2}, s[{SWS}:{SWS+3}], s17 offen sc1")
            A("s_waitcnt vmcnt(0)")
    st.mark("off")
    A("L_k2_round:")
    vLen, vInc, vM, vPos = vD+2, vD+3, vD+28, vD+29
    vMk = vD + 30
    vR = vT
    assert vMkA == vMk + 4
    vSave = vD + 36
    A(f"v_lshrrev_b32 v{vInc}, 16, v{vOf}")
    A(f"v_and_b32 v{vM}, 0xffff, v{vOf}")
    A(f"v_mov_b32 v{vLen}, v{vInc}")
    steps = scan_steps("v_add_u32", vInc, upto=32)
    A(steps[0])
    A(f"s_mul_i32 s17, s{sRound}, {WIN}")
    A(steps[1])
    A(f"s_movk_i32 s19, 383")
    A(steps[2])
    A(f"v_add_u32 v{vM}, v{vM}, v{vLen}")
    A(steps[3]); A(steps[4])
    A(f"v_sub_u32 v{vM}, v{vM}, v{vInc}")
    A(f"v_readlane_b32 s{sTot}, v{vInc}, 31")
    A(f"v_sub_u32 v{vInc}, v{vInc}, v{vLen}")
    A(f"v_mad_i32_i24 v{vM}, v{vM}, 12, v{vBase}")
    A(f"v_subrev_u32 v{vPos}, s17, v{vInc}")
    A(f"v_med3_i32 v{vPos}, v{vPos}, 0, s19")
    A(f"v_lshl_add_u32 v{vPos}, v{vPos}, 2, s{sMk}")
    A(f"s_mov_b32 exec_hi, 0")
    A(f"ds_max_u32 v{vPos}, v{vM}")
    A("s_mov_b32 exec_hi, -1")
    for it in range(NIT): A(f"ds_read_b32 v{vMk+it}, v{vMk+4} offset:{256*it}")
    A(f"v_mov_b32 v{vSave}, v{vOf}\nv_mov_b32 v{vSave+1}, v{vD+1}")
    A(f"s_sub_u32 s{sRem}, s{sTot}, s17\ns_min_i32 s{sRem}, s{sRem}, {WIN}")
    A(f"s_mul_i32 s17, s17, 12\ns_add_u32 s17, s17, {WS_REC}")
    A("s_waitcnt lgkmcnt(1)")
    sc = [scan_steps("v_max_u32", vMk+it) for it in range(NIT)]
    for k in range(6):
        for it in range(NIT-1): A(sc[it][k])
    def recload(it):
        A(f"buffer_load_dwordx3 v[{vR+4*it}:{vR+4*it+2}], v{vMk+it}, s[{SWS}:{SWS+3}], s17 offen offset:{768*it} {hf}")
    for it in range(NIT-1): A(f"v_readlane_b32 s{sCar[it]}, v{vMk+it}, 63")
    A(f"v_add_u32 v{vMk}, v{vMk}, v{vL12}")
    for it in range(1, NIT-1): A(f"s_max_u32 s{sCar[it]}, s{sCar[it]}, s{sCar[it-1]}")
    A.c("the last window is nearly always empty: it goes first, so the counted waits below do not depend on it")
    A(f"s_cmp_le_i32 s{sRem}, {64*(NIT-1)}\ns_cbranch_scc1 L_k2_skip4")
    A("s_waitcnt lgkmcnt(0)")
    for k in range(6): A(sc[NIT-1][k])
    A(f"v_max_u32 v{vMk+NIT-1}, s{sCar[NIT-2]}, v{vMk+NIT-1}")
    A(f"v_add_u32 v{vMk+NIT-1}, v{vMk+NIT-1}, v{vL12}")
    recload(NIT-1)
    A("L_k2_skip4:")
    recload(0)
    for it in range(1, NIT-1):
        A(f"v_max_u32 v{vMk+it}, s{sCar[it-1]}, v{vMk+it}")
        A(f"v_add_u32 v{vMk+it}, v{vMk+it}, v{vL12}")
        recload(it)
    if fused and o.get("f_prio", 0): A("s_setprio 0")
    st.mark("recissue")
    for it in range(NIT):
        if it: A(f"s_sub_u32 s19, s{sRem}, {64*it}")
        A(f"v_cmp_gt_i32 s[{sMask+2*it}:{sMask+2*it+1}], s{19 if it else sRem}, v{vLane}")
    A.c("lane constants of the main loop")
    A(f"v_and_b32 v{vOff}, 15, v{vLane}\nv_lshlrev_b32 v{vOff}, 4, v{vOff}")
    A(f"v_and_b32 v{vSh}, 3, v{vLane}\nv_add_u32 v{vSh}, 28, v{vSh}")
    if nacc0 < 64:
        A(f"s_cmp_lg_u32 s{sRound}, 0\ns_cbranch_scc1 L_k2_acc")
        for i in range(nacc0, 64, 2): A(f"v_mov_b64 v[{vC+i}:{vC+i+1}], 0")
        A("L_k2_acc:")
    vBin = vMk
    vRank = vD + 44
    vc, vs, vtq, vx, vm1, vm2 = vD+50, vD+51, vD+52, vD+53, vD+54, vD+55
    vOne = vD + 56
    A(f"v_and_b32 v{vx}, 3, v{vLane}")
    A(f"v_cmp_lt_u32 vcc, 0, v{vx}\nv_lshlrev_b32 v{vPos}, 2, v{vLane}\nv_mov_b32 v{vM}, {L_RND}\nv_cndmask_b32 v{vm1}, 0, -1, vcc")
    A(f"v_cmp_lt_u32 vcc, 1, v{vx}")
    A(f"v_lshrrev_b32 v{vKA}, 4, v{vLane}\nv_lshlrev_b32 v{vKA}, 2, v{vKA}")
    A(f"v_cndmask_b32 v{vm2}, 0, -1, vcc")
    A(f"v_and_b32 v{vK2A}, 12, v{vLane}\nv_lshl_add_u32 v{vK2A}, v{vK2A}, 2, v{vKA}")
    A(f"v_mov_b32 v7, v{vSave}\nv_mov_b32 v0, v{vSave+1}")
    A(f"v_mov_b32 v{vOne}, 4")
    A.c("lanes without a record keep a rank that puts their LDS writes out of range")
    for it in range(NIT): A(f"v_mov_b32 v{vRank+it}, 0x100000" if it == 0 else f"v_mov_b32 v{vRank+it}, v{vRank}")
    tb = o.get("k2_touchb")
    ntb = 0
    A.c("counters and pad keys of every wave are in place, every record load of the workgroup is under way")
    A("s_waitcnt lgkmcnt(0)")
    A("s_barrier")
    A.c("a wave with more records than one window raises the number of rounds")
    A(f"s_cmp_le_u32 s{sTot}, {WIN}\ns_cbranch_scc1 L_k2_one")
    A(f"v_mov_b32 v{vx}, s{sTot}")
    A("s_mov_b64 exec, 1")
    A(f"ds_max_u32 v{vM}, v{vx}")
    A("s_mov_b64 exec, -1")
    A("L_k2_one:")
    if wpos == 1:
        A(f"v_lshlrev_b32 v{vD+4}, 4, v{vLane}")
        wdma(vD+4); ntb += 4
    if tb:
        A.c("every record load of the workgroup is under way: pull rows of x into this XCD's L2 behind them")
        A(f"v_lshlrev_b32 v{vD+5}, 7, v{vLane}")
        A(f"s_lshr_b32 s34, s2, 3\ns_mul_i32 s34, s34, {NW}\ns_add_u32 s34, s34, s{sWave}")
        ntb += touch_x(A, tb, 34, 17, vD+5, vD+6, SX, NW, sRot, tpos)
        tpos += sum(tb[1:]) * 128 * NW * 32
        if o.get("k2_mall") == 2: mall_touch(tpos); ntb += 1
    for it in range(NIT):
        if it < NIT-1: A(f"s_waitcnt vmcnt({NIT-2-it+ntb})")
        else: A(f"s_cmp_le_i32 s{sRem}, {64*(NIT-1)}\ns_cbranch_scc1 L_k2_skip4a")
        if it == 0: st.mark("rec0")
        A(f"v_and_b32 v{vBin+it}, 0xfc, v{vR+4*it+2}")
        A(f"s_mov_b64 exec, s[{sMask+2*it}:{sMask+2*it+1}]")
        A(f"ds_add_rtn_u32 v{vRank+it}, v{vBin+it}, v{vOne} offset:{L_CNT}")
        A("s_mov_b64 exec, -1")
    A("L_k2_skip4a:")
    A("s_waitcnt lgkmcnt(0)")
    A("s_barrier")
    st.mark("ranked")
    A(f"ds_read_b32 v{vc}, v{vPos} offset:{L_CNT}")
    A(f"ds_read_b32 v{vM}, v{vM}")
    if wpos in (3, 4):
        A(f"s_cmp_lg_u32 s{sRound}, 0\ns_cbranch_scc1 L_k2_now")
        A(f"v_lshlrev_b32 v{vD+4}, 4, v{vLane}")
        wdma(vD+4)
        A("L_k2_now:")
    nt = 0
    touch = o.get("k2_touch")
    if touch:
        A.c("pull rows of x into this XCD's L2 while the records are being placed")
        A(f"v_lshlrev_b32 v{vD+5}, 7, v{vLane}")
        A(f"s_lshr_b32 s34, s2, 3\ns_mul_i32 s34, s34, {NW}\ns_add_u32 s34, s34, s{sWave}")
        nt = touch_x(A, touch, 34, 17, vD+5, vD+6, SX, NW, sRot, tpos)
        assert nt <= 1
    if o.get("k2_mall") == 1: mall_touch(tall)
    A(f"s_lshl_b32 s19, s{sGrp}, 2")
    A("s_waitcnt lgkmcnt(1)")
    A(f"v_and_b32_dpp v{vx}, v{vc}, v{vm1} quad_perm:[0,0,1,2] row_mask:0xf bank_mask:0xf")
    A(f"v_add_u32 v{vs}, v{vc}, v{vx}")
    A(f"v_and_b32_dpp v{vx}, v{vs}, v{vm2} quad_perm:[0,0,0,1] row_mask:0xf bank_mask:0xf")
    A(f"v_add_u32 v{vs}, v{vs}, v{vx}")
    A(f"v_mov_b32_dpp v{vtq}, v{vs} quad_perm:[3,3,3,3] row_mask:0xf bank_mask:0xf")
    A(f"v_add_u32 v{vx}, 127, v{vtq}\nv_and_b32 v{vx}, 0xffffff80, v{vx}")
    A(f"v_sub_u32 v{vs}, v{vs}, v{vc}")
    A(f"v_sub_u32 v{vs}, v{vs}, v{vx}")
    sq = scan_steps("v_add_u32", vx, first=4)
    A(f"v_mov_b32 v{vc}, v{vx}")
    A(sq[0])
    A(f"v_readlane_b32 s{sN}, v{vtq}, s19")
    for s_ in sq[1:]: A(s_)
    A(f"v_add_u32 v{vs}, v{vs}, v{vx}")
    A(f"v_sub_u32 v{vc}, v{vx}, v{vc}")
    A(f"s_cmp_le_i32 s{sRem}, {64*(NIT-1)}\ns_cbranch_scc1 L_k2_skip4c")
    A(f"ds_bpermute_b32 v{vBin+NIT-1}, v{vBin+NIT-1}, v{vs}")
    A("L_k2_skip4c:")
    for it in range(NIT-1): A(f"ds_bpermute_b32 v{vBin+it}, v{vBin+it}, v{vs}")
    A(f"v_readlane_b32 s17, v{vc}, s19")
    A(f"s_cmp_lg_u32 s{sRound}, 0\ns_cbranch_scc1 L_k2_havernd")
    A(f"s_waitcnt lgkmcnt({NIT-1})")
    A(f"v_readfirstlane_b32 s{sRnd}, v{vM}")
    A("L_k2_havernd:")
    A.c("LDS addresses of this wave's slots (counts and starts are in units of 4 bytes)")
    A(f"v_add_u32 v{vKA}, s17, v{vKA}")
    A(f"v_add_u32 v{vK2A}, s17, v{vK2A}")
    A(f"s_movk_i32 s19, {L_COEF}")
    A(f"v_lshl_add_u32 v{vCA}, v{vK2A}, 1, s19")
    A(f"s_lshr_b32 s{sN}, s{sN}, 2")
    A(f"s_add_u32 s17, s{sN}, 31\ns_lshr_b32 s17, s17, 5")
    prio = o.get("prio", [3, 2, 1])
    frac = o.get("frac")
    np_ = len(prio) if prio else 0
    for k in range(1, np_):
        t = (sT1, sT2, sT3)[k-1]
        f = int(256 * (frac[k-1] if frac else k / np_) + 0.999)
        A(f"s_mul_i32 s{t}, s17, {f}\ns_add_u32 s{t}, s{t}, 128\ns_lshr_b32 s{t}, s{t}, 8")
    for it in range(NIT):
        p = vBin + it
        if it == NIT-1: A(f"s_cmp_le_i32 s{sRem}, {64*(NIT-1)}\ns_cbranch_scc1 L_k2_skip4b")
        if it < NIT-1: A(f"s_waitcnt lgkmcnt({NIT-2-it + 2*it})")
        A(f"v_add_u32 v{p}, v{p}, v{vRank+it}")
        A(f"ds_write_b32 v{p}, v{vR+4*it+2} offset:{L_KEY}")
        A(f"v_lshlrev_b32 v{vRank+it}, 1, v{p}")
        A(f"ds_write_b64 v{vRank+it}, v[{vR+4*it}:{vR+4*it+1}] offset:{L_COEF}")
    A("L_k2_skip4b:")
    younger = (ntb - 4 if wpos == 1 else 0) + nt + (1 if o.get("k2_mall") == 1 else 0)
    A(f"s_waitcnt vmcnt({younger}) lgkmcnt(0)" if wpos in (1, 3) else "s_waitcnt lgkmcnt(0)")
    A("s_barrier")
    st.mark("sorted")
    def rd_keys():
        for q in range(4):
            A(f"ds_read2_b32 v[{vK+2*q}:{vK+2*q+1}], v{vKA} offset0:{L_KEY//4+8*q} offset1:{L_KEY//4+8*q+4}")
        A(f"ds_read2_b32 v[{vK2}:{vK2+1}], v{vK2A} offset0:{L_KEY//4} offset1:{L_KEY//4+16}")
        A(f"v_add_u32 v{vKA}, 128, v{vKA}\nv_add_u32 v{vK2A}, 128, v{vK2A}")
    def addr():
        for i in range(8): A(f"v_and_or_b32 v{vK+i}, v{vK+i}, s{sRowM}, v{vOff}")
        for u in range(2):
            A(f"v_bfe_i32 v{vK2+u}, v{vK2+u}, v{vSh}, 1")
            A(f"v_and_b32 v{vK2+u}, v{vK2+u}, v{vCA}")
        A(f"v_add_u32 v{vCA}, 256, v{vCA}")
    def rd_coef():
        A(f"ds_read_b64_tr_b16 v[{vAF}:{vAF+1}], v{vK2}")
        A(f"ds_read_b64_tr_b16 v[{vAF+2}:{vAF+3}], v{vK2+1} offset:128")
    gf = o.get("gather_flags", "")
    def load(h, i):
        d = vD + h*32 + i*4
        A(f"buffer_load_dwordx4 v[{d}:{d+3}], v{vK+i}, s[{SX}:{SX+3}], 0 offen offset:{h*256} {gf}")
    def loads(h):
        for i in range(8): load(h, i)
    def loads_part(h, tag, wait):
        for i in range(8):
            if i: A(f"s_cmp_le_i32 s{sRem}, {4*i}\ns_cbranch_scc1 L_{tag}_{i}")
            load(h, i)
        if wait:
            A(f"s_waitcnt vmcnt(8)\ns_branch L_{tag}_done")
            for i in range(1, 8):
                A(f"L_{tag}_{i}:\ns_waitcnt vmcnt({i})")
                if i < 7: A(f"s_branch L_{tag}_done")
            A(f"L_{tag}_done:")
        else:
            for i in range(1, 8): A(f"L_{tag}_{i}:")
    def comp(h, lgkm=False, filler=None):
        if o.get("diag_nocomp"):
            if lgkm: A("s_waitcnt lgkmcnt(0)")
            if filler: filler()
            return
        def mf(g):
            t = vT + (g % 4)*4
            c = vC + (h*8 + g)*4
            A(f"v_mfma_f32_16x16x32_bf16 v[{c}:{c+3}], v[{vAF}:{vAF+3}], v[{t}:{t+3}], v[{c}:{c+3}]")
        for g in range(8):
            u, par = g >> 1, g & 1
            t = vT + (g % 4)*4
            for q in range(4):
                a = vD + h*32 + (2*q)*4 + u
                b = vD + h*32 + (2*q+1)*4 + u
                A(f"v_perm_b32 v{t+q}, v{b}, v{a}, s{sP0+par}")
            if lgkm and g == 1: A("s_waitcnt lgkmcnt(0)")
            if g: mf(g-1)
        if filler: filler()
        mf(7)
    vH, vSW, vGA, vWB, vO, vFl = vK, vK+1, vK+2, vK+3, vK+4, vK+5
    vY0 = vKA
    sS, sOut = 41, 42
    assert o.get("gshift", 0) % 4 == 0
    def epi_consts():
        g, n = vK+6, vK+7
        A.c("waves 4q..4q+3 share a tile of nodes; once all four have staged their sums, wave 4q+s multiplies component s")
        A(f"s_and_b32 s{sS}, s{sWave}, 3\ns_and_b32 s40, s{sGrp}, 12")
        A(f"v_lshrrev_b32 v{g}, 4, v{vLane}\nv_and_b32 v{n}, 15, v{vLane}")
        A(f"v_bfe_u32 v{vH}, v{vLane}, 3, 1\nv_cvt_f32_u32 v{vH}, v{vH}")
        A.c("staging rows: four for each of groups 0..3, three for the others")
        A(f"s_min_u32 s17, s{sGrp}, 4\ns_mul_i32 s19, s{sGrp}, 3\ns_add_u32 s17, s17, s19")
        A(f"s_mul_i32 s17, s17, {SNODE}\ns_add_u32 s17, s17, {L_STG}\ns_movk_i32 s19, {SNODE}")
        A(f"v_lshl_add_u32 v{vSW}, v{n}, 4, s17")
        A(f"v_mad_u32_u24 v{vSW}, v{g}, s19, v{vSW}")
        A(f"s_min_u32 s17, s40, 4\ns_mul_i32 s46, s40, 3\ns_add_u32 s17, s17, s46")
        A(f"s_mul_i32 s17, s17, {SNODE}\ns_add_u32 s17, s17, {L_STG}")
        A(f"v_lshl_add_u32 v{vGA}, v{g}, 4, s17")
        A(f"v_mad_u32_u24 v{vGA}, v{n}, s19, v{vGA}")
        A(f"s_cmp_eq_u32 s40, 0\ns_cselect_b32 s19, 0, {-SNODE}")
        A(f"v_lshrrev_b32 v{vO}, 2, v{n}\nv_mad_i32_i24 v{vGA}, v{vO}, s19, v{vGA}")
        A.c("block p of component s sits in slot (k, high); one byte per s, in units of 128 bytes")
        ent = {0: [(0,0),(2,0),(3,0),(4,0)], 1: [(2,1),(0,1),(1,0),(1,1)], 2: [(0,0),(5,1),(4,1),(3,1)]}
        A(f"s_lshl_b32 s19, s{sS}, 3")
        for p in range(3):
            c = sum((2*k + h) << (8*i) for i, (k, h) in enumerate(ent[p]))
            A(f"s_lshr_b32 s17, {c:#x}, s19\ns_and_b32 s17, s17, 0xff\ns_lshl_b32 s17, s17, 7")
            A(f"v_add_u32 v{vY0+p}, s17, v{vGA}")
        A(f"s_min_u32 s17, s{sS}, 1\ns_lshl_b32 s17, s17, 14\ns_add_u32 s17, s17, {L_W}")
        A(f"v_lshl_add_u32 v{vWB}, v{vLane}, 4, s17")
        A(f"s_lshl_b32 s17, s40, 10\ns_add_u32 s17, s17, {L_GATE}")
        A(f"v_lshl_add_u32 v{vGA}, v{vLane}, 4, s17")
        A(f"s_lshl_b32 s17, s40, 1\ns_add_u32 s17, s17, {L_FLAG}\nv_mov_b32 v{vFl}, s17")
        A.c("output row = bucket + 256*(first group + g + 12r); rows past the last node fall outside the descriptor")
        A(f"v_lshlrev_b32 v{vO}, 17, v{g}\nv_lshl_add_u32 v{vO}, v{n}, 3, v{vO}")
        A(f"s_lshl_b32 s{sOut}, s40, 17\ns_lshl_b32 s17, s{sB}, 9\ns_add_u32 s{sOut}, s{sOut}, s17")
        A(f"s_lshl_b32 s17, s{sS}, 7\ns_add_u32 s{sOut}, s{sOut}, s17")
        for r in range(1, 4): A(f"s_add_u32 s{sOut+r}, s{sOut}, {r*12 << 17}")
        A(f"s_cmp_lt_u32 s{sGrp}, 4\ns_cselect_b32 s46, -1, 0xffff")
        A(f"s_add_u32 s47, s{sRound}, 1\ns_mul_i32 s47, s47, {WIN}")
    if prio: A(f"s_setprio {prio[0]}")
    rd_keys()
    A(f"s_mov_b32 s{sRem}, s{sN}\ns_mov_b32 s{sStep}, 1")
    A(f"s_cmp_ge_u32 s{sN}, 32\ns_cbranch_scc1 L_k2_full")
    A.c("fewer than 32 edges: the row registers that no load fills must not hold NaN patterns")
    A("s_waitcnt vmcnt(0) lgkmcnt(0)")
    for i in range(64): A(f"v_mov_b32 v{vD+i}, 0")
    addr()
    rd_coef()
    A(f"s_cmp_eq_u32 s{sN}, 0\ns_cbranch_scc1 L_k2_last")
    loads_part(0, "p0", False)
    loads_part(1, "p1", False)
    A("s_branch L_k2_last")
    A("L_k2_full:")
    A("s_waitcnt lgkmcnt(0)")
    addr()
    rd_coef()
    loads(0); loads(1)
    rd_keys()
    A(f"s_sub_u32 s{sRem}, s{sRem}, 32")
    A(f"s_cmp_lt_i32 s{sRem}, 32\ns_cbranch_scc1 L_k2_tail")
    A(".p2align 3")
    A("L_k2_loop:")
    if np_ > 1:
        for k in range(1, np_):
            t = (sT1, sT2, sT3)[k-1]
            A(f"s_cmp_lg_u32 s{sStep}, s{t}\ns_cbranch_scc1 L_k2_pr{k}\ns_setprio {prio[k]}\nL_k2_pr{k}:")
        A(f"s_add_u32 s{sStep}, s{sStep}, 1")
    A("s_waitcnt vmcnt(8)")
    if wpos == 4:
        A(f"s_cmp_lg_u32 s{sSaid}, 0\ns_cbranch_scc1 L_k2_said1")
        A(f"v_mov_b32 v{vT}, {L_FLAG+32}\nv_mov_b32 v{vT+1}, 1")
        A(f"s_mov_b64 exec, 1\nds_add_u32 v{vT}, v{vT+1}\ns_mov_b64 exec, -1\ns_mov_b32 s{sSaid}, 1")
        A("L_k2_said1:")
    comp(0, True, addr)
    loads(0)
    A("s_waitcnt vmcnt(8)")
    comp(1, False, lambda: load(1, 0))
    for i in range(1, 8): load(1, i)
    rd_coef()
    rd_keys()
    A(f"s_sub_u32 s{sRem}, s{sRem}, 32")
    A(f"s_cmp_ge_i32 s{sRem}, 32\ns_cbranch_scc1 L_k2_loop")
    A("L_k2_tail:")
    if prio: A(f"s_setprio {prio[-1]}")
    A(f"s_cmp_le_i32 s{sRem}, 0\ns_cbranch_scc1 L_k2_last")
    A("s_waitcnt vmcnt(8)")
    comp(0, True, addr)
    loads_part(0, "t0", True)
    comp(1)
    loads_part(1, "t1", False)
    rd_coef()
    A("L_k2_last:")
    A("s_waitcnt lgkmcnt(0)")
    epi_consts()
    A("s_waitcnt vmcnt(0)")
    if wpos == 4:
        A.c("this wave's share of the weights has landed; they are read once all twelve waves have said so")
        A(f"v_mov_b32 v{vK+6}, {L_FLAG+32}\nv_mov_b32 v{vK+7}, 1")
        A(f"s_cmp_lg_u32 s{sSaid}, 0\ns_cbranch_scc1 L_k2_said")
        A(f"s_mov_b64 exec, 1\nds_add_u32 v{vK+6}, v{vK+7}\ns_mov_b64 exec, -1\ns_mov_b32 s{sSaid}, 1")
        A("L_k2_said:")
        A(f"ds_read_b32 v{vK+7}, v{vK+6}")
    comp(0)
    if wpos == 4:
        A("L_k2_wait0:")
        A("s_waitcnt lgkmcnt(0)")
        A(f"v_readfirstlane_b32 s17, v{vK+7}")
        A(f"s_cmp_ge_u32 s17, {NW}\ns_cbranch_scc1 L_k2_go0")
        A(f"s_cmp_lt_u32 s47, s{sRnd}\ns_cbranch_scc1 L_k2_go0")
        A(f"s_sleep 1\nds_read_b32 v{vK+7}, v{vK+6}\ns_branch L_k2_wait0")
        A("L_k2_go0:")
    vPk = vT + 4
    wreg = [vD + 4*n for n in range(16)] + [vC + 40 + 4*n for n in range(6)] + [vAF, vT + 12]
    jobs = [(kk, t) for kk in range(6) for t in range(4)]
    def rdw(n):
        A(f"ds_read_b128 v[{wreg[n]}:{wreg[n]+3}], v{vWB} offset:{n*1024}")
    for n in range(8): rdw(n)
    comp(1)
    eprio = o.get("eprio", 0)
    if prio: A(f"s_setprio {eprio}")
    st.mark("loopend")
    A(f"s_add_u32 s{sRound}, s{sRound}, 1")
    A(f"s_mul_i32 s17, s{sRound}, {WIN}")
    A(f"s_cmp_ge_u32 s17, s{sRnd}\ns_cbranch_scc1 L_k2_epi")
    A.c("rare: a wave found more records than one window holds; sort and gather the next window")
    A("s_waitcnt vmcnt(0) lgkmcnt(0)")
    A("s_barrier")
    A(f"v_mov_b32 v{vOf}, v7\nv_mov_b32 v{vD+1}, v0")
    A(f"s_lshl_b32 s17, s{sWave}, 6\nv_add_u32 v0, s17, v{vLane}")
    A(f"v_lshlrev_b32 v7, 4, v{vLane}")
    lds_init(); round_pre()
    A(f"s_mov_b32 exec_lo, 0xffff\ns_mov_b32 exec_hi, 0")
    A(f"ds_write_b128 v7, v[{vz+4}:{vz+7}] offset:{L_CNT}")
    A("s_mov_b64 exec, -1")
    A("s_waitcnt lgkmcnt(0)")
    A("s_barrier")
    A("s_branch L_k2_round")
    A("L_k2_epi:")
    if o.get("diag_noepi"):
        if st.on: st.mark("issued")
        st.flush(14, sWave, vT, 48)
        A("s_endpgm")
        st.on = False
    U = lambda jj, a: vC + jj*4 + a
    V = lambda jj, a: vC + (8+jj)*4 + a
    ror = "row_ror:8 row_mask:0xf bank_mask:0xf"
    srcs = [lambda jj: U(jj,0), lambda jj: V(jj,0), lambda jj: U(jj,1), lambda jj: U(jj,2), lambda jj: U(jj,3), lambda jj: V(jj,2)]
    npk = [0]
    def pack(k):
        r = vPk + 4*(npk[0] % 2); npk[0] += 1
        for q in range(4): A(f"v_cvt_pk_bf16_f32 v{r+q}, v{srcs[k](2*q)}, v{srcs[k](2*q+1)}")
        A(f"ds_write_b128 v{vSW}, v[{r}:{r+3}] offset:{k*SPITCH}")
    A.c("groups with three nodes own three staging rows: their fourth lane group does not write")
    A("s_mov_b32 exec_hi, s46")
    pack(0); pack(1)
    for jj in range(8):
        t0, t1 = vT + 2*(jj & 1), vT + 1 + 2*(jj & 1)
        A(f"v_add_f32_dpp v{t0}, v{V(jj,2)}, v{V(jj,3)} {ror}")
        A(f"v_sub_f32_dpp v{t1}, v{V(jj,1)}, v{U(jj,2)} {ror}")
        A(f"v_subrev_f32_dpp v{V(jj,2)}, v{V(jj,3)}, v{V(jj,2)} {ror}")
        A(f"v_fma_f32 v{U(jj,1)}, v{t0}, v{vH}, v{U(jj,1)}")
        A(f"v_fma_f32 v{U(jj,3)}, -v{V(jj,1)}, v{vH}, v{U(jj,3)}")
        A(f"v_cndmask_b32 v{U(jj,2)}, v{U(jj,2)}, v{t1}, s[{sH}:{sH+1}]")
    for k in (2, 3, 4, 5): pack(k)
    vS = vC
    vY = vC + 24
    vG = vD
    vF1, vF2 = vT, vT + 1
    A(f"v_mov_b32 v{vF1}, 1")
    A.c("LDS serves a wave's requests in order: the count goes up after the six writes")
    A("s_mov_b64 exec, 1")
    A(f"ds_add_u32 v{vFl}, v{vF1}")
    A("s_mov_b64 exec, -1")
    st.mark("staged")
    for n in range(8, 24): rdw(n)
    A(f"s_mov_b32 s19, 0xbfb8aa3b")
    A("L_k2_wait1:")
    A(f"ds_read_b32 v{vF2}, v{vFl}")
    for kk in range(6): A(f"ds_read_b128 v[{vS+4*kk}:{vS+4*kk+3}], v{vY0+kk//2} offset:{64*(kk & 1)}")
    A("s_waitcnt lgkmcnt(6)")
    A(f"v_readfirstlane_b32 s17, v{vF2}")
    A("s_cmp_ge_u32 s17, 4\ns_cbranch_scc1 L_k2_go1")
    A("s_waitcnt lgkmcnt(0)\ns_sleep 1\ns_branch L_k2_wait1")
    A("L_k2_go1:")
    of = o.get("out_flags", "sc1")
    nfin = [0]
    def finish():
        of2 = o.get("out_flags_early")
        for r in range(4):
            A(f"v_cvt_pk_bf16_f32 v{vD+16+2*r}, v{vY+r}, v{vY+4+r}\nv_cvt_pk_bf16_f32 v{vD+17+2*r}, v{vY+8+r}, v{vY+12+r}")
            if of2 is None: A(f"buffer_store_dwordx2 v[{vD+16+2*r}:{vD+17+2*r}], v{vO}, s[{SOUT}:{SOUT+3}], s{sOut+r} offen {of}")
        if of2 is not None:
            k = nfin[0]; nfin[0] += 1
            A(f"s_cmp_ge_u32 s{sWave}, 8\ns_cbranch_scc1 L_k2_fa{k}")
            for r in range(4): A(f"buffer_store_dwordx2 v[{vD+16+2*r}:{vD+17+2*r}], v{vO}, s[{SOUT}:{SOUT+3}], s{sOut+r} offen {of2}")
            A(f"s_branch L_k2_fb{k}\nL_k2_fa{k}:")
            for r in range(4): A(f"buffer_store_dwordx2 v[{vD+16+2*r}:{vD+17+2*r}], v{vO}, s[{SOUT}:{SOUT+3}], s{sOut+r} offen {of}")
            A(f"L_k2_fb{k}:")
    def mm(kk, t):
        r, acc = wreg[4*kk + t], vY + 4*t
        cin = "0" if kk == 0 else f"v[{acc}:{acc+3}]"
        A(f"v_mfma_f32_16x16x32_bf16 v[{acc}:{acc+3}], v[{vS+4*kk}:{vS+4*kk+3}], v[{r}:{r+3}], {cin}")
    A(f"s_cmp_eq_u32 s{sS}, 0\ns_cbranch_scc1 L_k2_x")
    for kk in range(6):
        A(f"s_waitcnt lgkmcnt({5-kk})")
        for t in range(4): mm(kk, t)
    A.c("vector outputs: the gates of this node tile")
    A("L_k2_wait2:")
    A(f"ds_read_b32 v{vF2}, v{vFl} offset:4")
    for t in range(4): A(f"ds_read_b128 v[{vG+4*t}:{vG+4*t+3}], v{vGA} offset:{1024*t}")
    A("s_waitcnt lgkmcnt(4)")
    A(f"v_readfirstlane_b32 s17, v{vF2}")
    A("s_cmp_lg_u32 s17, 0\ns_cbranch_scc1 L_k2_go2")
    A("s_waitcnt lgkmcnt(0)\ns_branch L_k2_wait2")
    A("L_k2_go2:")
    for t in range(4):
        A(f"s_waitcnt lgkmcnt({3-t})")
        for r in (0, 2): A(f"v_pk_mul_f32 v[{vY+4*t+r}:{vY+4*t+r+1}], v[{vG+4*t+r}:{vG+4*t+r+1}], v[{vY+4*t+r}:{vY+4*t+r+1}]")
    finish()
    A("s_branch L_k2_fin")
    A("L_k2_x:")
    A.c("scalar output and the gates, tile by tile behind the matrix instructions")
    vG = vC + 40
    def sig(t):
        return ([f"v_mul_f32 v{vG+4*t+r}, s19, v{vY+4*t+r}" for r in range(4)] + [f"v_exp_f32 v{vG+4*t+r}, v{vG+4*t+r}" for r in range(4)]
                + [f"v_add_f32 v{vG+4*t+r}, 1.0, v{vG+4*t+r}" for r in range(4)] + [f"v_rcp_f32 v{vG+4*t+r}, v{vG+4*t+r}" for r in range(4)]
                + ["s_nop 0", f"ds_write_b128 v{vGA}, v[{vG+4*t}:{vG+4*t+3}] offset:{1024*t}"])
    A("s_waitcnt lgkmcnt(0)")
    for kk in range(4): mm(kk, 0)
    for kk in range(4): mm(kk, 1)
    pend = sig(0)
    for t in (2, 3):
        for kk in range(4):
            mm(kk, t)
            if t == 3 or kk >= 2:
                for _ in range(3): A(pend.pop(0))
    for l in pend + sig(1) + sig(2) + sig(3): A(l)
    A("s_mov_b64 exec, 1")
    A(f"ds_write_b32 v{vFl}, v{vF1} offset:4")
    A("s_mov_b64 exec, -1")
    finish()
    A("L_k2_fin:")
    if st.on:
        st.mark("issued")
        A("s_waitcnt vmcnt(0)")
    st.flush(14, sWave, vT, 48)
    A("L_k2_end:")
    A("s_endpgm")
    return A.finish(o.get("verbose")), L_END, NV, 102 if o.get("stamps") or o.get("diag_jitter") else 80 if fused else 76, st.names

def gen_agg(name, want, encode=None, nws=(10, 12)):
    A = Asm()
    A(f".globl {name}\n.p2align 8\n.type {name},@function\n{name}:")
    A("s_cmp_ge_u32 s2, 1\ns_cbranch_scc1 L_agg_end")
    A("s_load_dwordx4 s[4:7], s[0:1], 80")
    A("v_lshlrev_b32 v1, 2, v0\nv_mov_b32 v2, 0\nds_write_b32 v1, v2")
    A("v_lshlrev_b32 v3, 10, v0")
    A("s_waitcnt lgkmcnt(0)\ns_barrier")
    srd(A, 8, 6, 7, 0x10000000); srd(A, 12, 4, 5, 256)
    for n, (kid, idx, how) in enumerate(want):
        A(f"s_mov_b32 s16, {WS_STAMP + kid*(1 << 20) + 4*idx}")
        for w in range(nws[kid]): A(f"buffer_load_dword v{10+w}, v3, s[8:11], s16 offen offset:{64*w}")
        A("s_waitcnt vmcnt(0)")
        for w in range(nws[kid]):
            if how == "min": A(f"v_not_b32 v{10+w}, v{10+w}")
            A(f"ds_max_u32 v2, v{10+w} offset:{4*n}")
    A("s_waitcnt lgkmcnt(0)\ns_barrier")
    A("ds_read_b32 v4, v1\nds_read_b32 v5, v2\ns_waitcnt lgkmcnt(0)")
    A("v_not_b32 v5, v5")
    mins = sum(1 << n for n, w in enumerate(want) if w[2] == "min")
    A(f"s_mov_b32 s20, {mins}\ns_mov_b32 s21, 0\nv_not_b32 v6, v4\nv_cndmask_b32 v4, v4, v6, s[20:21]")
    A("v_sub_u32 v4, v4, v5")
    if encode is not None:
        A("v_readfirstlane_b32 s23, v0\ns_cmp_lg_u32 s23, 0\ns_cbranch_scc1 L_agg_end")
        A(f"s_nop 1\nv_readlane_b32 s22, v4, {len(want)-1}")
        A(f"s_min_u32 s22, s22, 10000\ns_mul_i32 s22, s22, {encode}")
        A("s_memrealtime s[24:25]\ns_waitcnt lgkmcnt(0)")
        A("L_agg_spin:\ns_memrealtime s[26:27]\ns_waitcnt lgkmcnt(0)\ns_sub_u32 s26, s26, s24\ns_cmp_lt_u32 s26, s22\ns_cbranch_scc1 L_agg_spin")
    A(f"s_mov_b32 exec_lo, {(1 << len(want)) - 1}\ns_mov_b32 exec_hi, 0")
    A("s_cmp_lg_u32 0, 0")
    A("v_cmp_gt_u32 vcc, 16, v0\ns_and_b64 exec, exec, vcc\ns_cbranch_execz L_agg_end")
    A("buffer_store_dword v4, v1, s[12:15], 0 offen")
    A("L_agg_end:\ns_endpgm")
    return A.finish()

HEADER = """; Equivariant tensor-product message passing, N=10000 nodes, E=640000 edges, C=64.
; Launch 1 sorts every chunk of 2500 edges by bucket (dst & 255) into d_ws.
; Kernarg: x 0, rhat 8, e_attr 16, src 24, dst 32, w_rad 40, w_si0 48, w_si1 56, cg_eps 64, out 72, debug 80, ws 88
"""
HEADER_F = """; Equivariant tensor-product message passing, N=10000 nodes, E=640000 edges, C=64.
;  1. every workgroup sorts its chunk of 2500 edges by bucket (dst & 255) and writes records and offsets through to d_ws;
; Kernarg: x 0, rhat 8, e_attr 16, src 24, dst 32, w_rad 40, w_si0 48, w_si1 56, cg_eps 64, out 72, debug 80, ws 88
"""
DEFAULTS = {"out_flags": "nt", "prio": [2, 1], "k2_touch0": None, "k2_touchb": ("l2", 14), "gshift": 4, "frac": [0.35], "rot": 1, "k1_touch": False, "fused": 1, "f_tag": 1, "f_sleep": 2, "f_late": 1}
def build(o=None):
    o = dict(DEFAULTS, **(o or {}))
    n1, n2 = "tp_sort_kernel", "tp_gather_kernel"
    if o.get("fused"):
        n = "gather_scatter__tensor_product_equiv_equiformer__graph_kernel"
        t2, lds2, v2, s2, names2 = gen_k2(n, o)
        if o.get("agg"):
            want = [(1, names2.index(nm), h) for nm, h in o["agg"]]
            txt = HEADER_F + f"; @launch kernel={n} grid=({NWG},1,1) block=({NW*64},1,1) lds={lds2}\n"
            txt += "; @launch kernel=tp_agg_kernel grid=(1,1,1) block=(256,1,1) lds=1024\n"
            txt += '.amdgcn_target "amdgcn-amd-amdhsa--gfx950"\n.text\n' + t2 + gen_agg("tp_agg_kernel", want, o.get("encode"))
            txt += '.section .rodata,"a"\n' + kd(n, v2, s2) + kd("tp_agg_kernel", 32, 32)
            return txt, None
        txt = HEADER_F + f"; @launch grid=({NWG},1,1) block=({NW*64},1,1) lds={lds2}\n"
        txt += '.amdgcn_target "amdgcn-amd-amdhsa--gfx950"\n.text\n' + t2 + '.section .rodata,"a"\n' + kd(n, v2, s2)
        return txt, [(n, lds2, v2, names2, NW)]
    o["k2name"] = n2
    t1, lds1, v1, s1, names1 = gen_k1(n1, o)
    t2, lds2, v2, s2, names2 = gen_k2(n2, o)
    txt = HEADER
    empty = "; @launch kernel=tp_empty_kernel grid=(1,1,1) block=(64,1,1) lds=0\n"
    txt += empty * o.get("empty_pre", 0)
    txt += f"; @launch kernel={n1} grid=({NWG},1,1) block=(704,1,1) lds={lds1}\n" * o.get("k1_times", 1)
    txt += f"; @launch kernel={n2} grid=({NWG},1,1) block=({NW*64},1,1) lds={lds2}\n" * o.get("k2_times", 1)
    txt += empty * o.get("empty_post", 0)
    if o.get("agg"): txt += "; @launch kernel=tp_agg_kernel grid=(1,1,1) block=(256,1,1) lds=1024\n"
    txt += '.amdgcn_target "amdgcn-amd-amdhsa--gfx950"\n.text\n'
    txt += t1 + t2
    if o.get("agg"):
        nm = [names1, names2]
        want = [(k, nm[k].index(n), h) for k, n, h in o["agg"]]
        txt += gen_agg("tp_agg_kernel", want, o.get("encode"))
    em = o.get("empty_pre") or o.get("empty_post")
    if em: txt += ".globl tp_empty_kernel\n.p2align 8\n.type tp_empty_kernel,@function\ntp_empty_kernel:\n    s_endpgm\n"
    txt += '.section .rodata,"a"\n' + kd(n1, v1, s1) + (".p2align 6\nL_kd2:\n" if o.get("kd_touch") else "") + kd(n2, v2, s2)
    if em: txt += kd("tp_empty_kernel", 8, 16)
    if o.get("agg"): txt += kd("tp_agg_kernel", 32, 32)
    return txt, [(n1, lds1, v1, names1, 11), (n2, lds2, v2, names2, NW)]

if __name__ == "__main__":
    out = sys.argv[1] if len(sys.argv) > 1 else "gather_scatter__tensor_product_equiv_equiformer__graph.s"
    txt, info = build({"verbose": True})
    open(out, "w").write(txt)
    print(info, len(txt))
```

```python
import sys
from asmlib import Asm, kd

N, E = 10000, 640000
NWG = 256
CH = E // NWG
RSTR = 30080
WS_OFF = 0
WS_W = 524288
WS_REC = WS_W + 40960
WS_FLAG = WS_REC + NWG * RSTR
WS_USED = WS_FLAG + 64 * 1024
WS_STAMP = 16 << 20
PADKEY = 0x0FFFFFFF

def srd(A, s, lo, hi, size):
    A(f"s_mov_b32 s{s}, s{lo}\ns_mov_b32 s{s+1}, s{hi}")
    A(f"s_mov_b32 s{s+2}, {size}\ns_mov_b32 s{s+3}, 0x00020000")

def scan_steps(op, v, upto=64, first=1):
    out = []
    for sh in (1, 2, 4, 8):
        if sh >= first:
            out.append(f"{op}_dpp v{v}, v{v}, v{v} row_shr:{sh} row_mask:0xf bank_mask:0xf bound_ctrl:0")
    if upto >= 32: out.append(f"{op}_dpp v{v}, v{v}, v{v} row_bcast:15 row_mask:0xa bank_mask:0xf")
    if upto >= 64: out.append(f"{op}_dpp v{v}, v{v}, v{v} row_bcast:31 row_mask:0xc bank_mask:0xf")
    return out

class Stamps:
    def __init__(self, A, on, base, kid):
        self.A, self.on, self.base, self.n, self.kid = A, on, base, 0, kid
        self.names = []
        self.skip = set()
        self.jitter = None
        self.clk = set()
        self.nj = 0
    def mark(self, name):
        if self.jitter and name != "start":
            k = self.nj; self.nj += 1
            self.A(f"s_mov_b32 s101, scc_save" if False else "s_cselect_b32 s101, 1, 0")
            self.A("s_waitcnt lgkmcnt(0)\ns_memtime s[98:99]\ns_waitcnt lgkmcnt(0)")
            self.A(f"s_lshr_b32 s98, s98, 3\ns_and_b32 s99, s98, {self.jitter}\ns_cmp_lg_u32 s99, 0\ns_cbranch_scc1 L_jit{k}")
            self.A(f"s_lshr_b32 s98, s98, 4\ns_and_b32 s98, s98, 15")
            self.A(f"L_jl{k}:\ns_sleep 8\ns_sub_u32 s98, s98, 1\ns_cbranch_scc0 L_jl{k}")
            self.A(f"L_jit{k}:\ns_cmp_lg_u32 s101, 0")
        if self.on and name not in self.skip:
            r = self.base + 2 * self.n
            self.A(f"s_memrealtime s[{r}:{r+1}]"); self.n += 1; self.names.append(name)
            if name in self.clk:
                self.A(f"s_memtime s[{r+2}:{r+3}]"); self.n += 1; self.names.append("c_" + name)
    def flush(self, ws_lo, wave_s, v0, tmp_s):
        if not self.on: return
        A = self.A
        self.mark("end")
        if self.on == "dbg":
            A(f"s_load_dwordx2 s[{tmp_s+4}:{tmp_s+5}], s[0:1], 80")
            A("s_waitcnt lgkmcnt(0)")
            A("s_mov_b64 exec, 1")
            srd(A, tmp_s, tmp_s+4, tmp_s+5, 256)
            A(f"v_mov_b32 v{v0}, 0")
            A(f"s_not_b32 s{tmp_s+4}, s{self.base}")
            A(f"v_mov_b32 v{v0+1}, s{tmp_s+4}")
            A(f"buffer_atomic_umax v{v0+1}, v{v0}, s[{tmp_s}:{tmp_s+3}], 0 offen")
            for i in range(self.n):
                A(f"v_mov_b32 v{v0+2+i}, s{self.base + 2*i}")
                A(f"buffer_atomic_umax v{v0+2+i}, v{v0}, s[{tmp_s}:{tmp_s+3}], 0 offen offset:{4*i+4}")
            return
        A("s_waitcnt lgkmcnt(0)")
        A("s_mov_b64 exec, 1")
        srd(A, tmp_s, ws_lo, ws_lo + 1, 0x10000000)
        A(f"s_lshl_b32 s{tmp_s+4}, s2, 4\ns_add_u32 s{tmp_s+4}, s{tmp_s+4}, s{wave_s}\ns_lshl_b32 s{tmp_s+4}, s{tmp_s+4}, 6")
        A(f"s_add_u32 s{tmp_s+4}, s{tmp_s+4}, {WS_STAMP + self.kid * (1 << 20)}")
        A(f"v_mov_b32 v{v0}, 0")
        for i in range(self.n):
            A(f"v_mov_b32 v{v0+1}, s{self.base + 2*i}")
            A(f"buffer_store_dword v{v0+1}, v{v0}, s[{tmp_s}:{tmp_s+3}], s{tmp_s+4} offen offset:{4*i}")

def touch_x(A, spec, s_rank, s_tmp, v_addr, v_dst, srd_x, nw=10, s_rot=None, pos0=0):
    kind, lanes_list = spec[0], spec[1:]
    pos = pos0
    for n, lanes in enumerate(lanes_list):
        A(f"s_mul_i32 s{s_tmp}, s{s_rank}, {lanes*128}")
        if pos: A(f"s_add_u32 s{s_tmp}, s{s_tmp}, {pos}")
        if s_rot is not None:
            A(f"s_add_u32 s{s_tmp}, s{s_tmp}, s{s_rot}\ns_sub_u32 s{s_rot+1}, s{s_tmp}, {N*512}\ns_min_u32 s{s_tmp}, s{s_tmp}, s{s_rot+1}")
        m = (1 << lanes) - 1
        if lanes < 64: A(f"s_mov_b32 exec_lo, {m & 0xffffffff}\ns_mov_b32 exec_hi, {m >> 32}")
        A(f"buffer_load_dword v{v_dst+n}, v{v_addr}, s[{srd_x}:{srd_x+3}], s{s_tmp} offen")
        if lanes < 64: A("s_mov_b64 exec, -1")
        pos += lanes * 128 * nw * (256 if kind == "mall" else 32)
    return len(lanes_list)

def gen_k1(name, o):
    A = Asm()
    CNT, PFX, STG = 0, 1024, 2048
    lds = STG + 30720
    st = Stamps(A, o.get("stamps"), 64, 0)
    A(f".globl {name}\n.p2align 8\n.type {name},@function\n{name}:")
    A(f"s_cmp_ge_u32 s2, {NWG}\ns_cbranch_scc1 L_k1_end")
    st.mark("start")
    A("s_load_dwordx4 s[4:7], s[0:1], 0")
    A("s_load_dwordx4 s[8:11], s[0:1], 16")
    A("s_load_dwordx2 s[12:13], s[0:1], 32")
    A("s_load_dwordx2 s[14:15], s[0:1], 88")
    A.c("chunk id: workgroups that share an XCD under round-robin dispatch get neighbouring chunks")
    A("s_and_b32 s16, s2, 7\ns_lshl_b32 s16, s16, 5\ns_lshr_b32 s17, s2, 3\ns_add_u32 s16, s16, s17")
    A("v_lshrrev_b32 v1, 6, v0")
    A("v_lshlrev_b32 v2, 2, v0")
    A("v_readfirstlane_b32 s3, v1")
    A("v_and_b32 v7, 63, v0")
    A("s_cmp_eq_u32 s3, 10\ns_cbranch_scc1 L_k1_helper")
    A("v_mov_b32 v3, 0")
    A(f"ds_write_b32 v2, v3 offset:{CNT}")
    A("v_lshlrev_b32 v4, 4, v0")
    A("v_lshlrev_b32 v5, 3, v0")
    A("v_mul_u32_u24 v6, 24, v0")
    A(f"s_movk_i32 s17, {CH//4}\nv_cmp_gt_u32 s[18:19], s17, v0")
    A(f"s_mul_i32 s40, s16, {CH*4}\ns_mul_i32 s41, s16, {CH*2}\ns_mul_i32 s42, s16, {CH*6}")
    A("s_waitcnt lgkmcnt(0)")
    srd(A, 20, 12, 13, E*4)
    srd(A, 24, 10, 11, E*4)
    srd(A, 28, 8, 9, E*2)
    srd(A, 32, 6, 7, E*6)
    A("s_mov_b64 exec, s[18:19]")
    lf = o.get("k1_load_flags", "nt")
    A(f"buffer_load_dwordx4 v[8:11], v4, s[20:23], s40 offen {lf}")
    A(f"buffer_load_dwordx4 v[12:15], v4, s[24:27], s40 offen {lf}")
    A(f"buffer_load_dwordx2 v[16:17], v5, s[28:31], s41 offen {lf}")
    A(f"buffer_load_dwordx4 v[20:23], v6, s[32:35], s42 offen {lf}")
    A(f"buffer_load_dwordx2 v[24:25], v6, s[32:35], s42 offen offset:16 {lf}")
    srd(A, 44, 14, 15, WS_USED)
    A("v_mov_b32 v3, 1")
    A("s_barrier")
    A(f"s_waitcnt vmcnt(4)")
    st.mark("dst")
    for i in range(4):
        A(f"v_lshlrev_b32 v{32+i}, 2, v{8+i}")
        A(f"v_and_b32 v{32+i}, 0x3fc, v{32+i}")
        A(f"ds_add_rtn_u32 v{36+i}, v{32+i}, v3 offset:{CNT}")
    A("s_mov_b64 exec, -1")
    A("v_lshlrev_b32 v59, 4, v7")
    A("s_waitcnt lgkmcnt(0)")
    A("s_barrier")
    st.mark("ranked")
    A(f"ds_read_b128 v[60:63], v59 offset:{CNT}")
    A(f"s_waitcnt vmcnt(3)")
    A.c("key = src<<9 | onehot(j)<<28 | (wave*4 + source quarter)<<2 ; record i = v[40+4i : 42+4i] = c01, c23, key")
    A(f"s_mov_b32 s48, 0x10000000\ns_mov_b32 s53, {-(-(1 << 32) // 3072)}\ns_mov_b32 s54, {(1 << 34) // N}\ns_movk_i32 s55, -3072\ns_movk_i32 s56, {-N//8}")
    def key(i):
        d, s, k = 8+i, 12+i, 42+4*i
        if o.get("rot"):
            q = [f"v_bfe_u32 v57, v{d}, 5, 3", f"v_mad_i32_i24 v57, v57, s56, v{s}", f"v_add_u32 v64, {N}, v57",
                 f"v_min_u32 v57, v57, v64", f"v_mul_hi_u32_u24 v57, s54, v57"]
        else: q = [f"v_mul_hi_u32_u24 v57, s54, v{s}"]
        return [f"v_mul_hi_u32_u24 v56, s53, v{d}"] + q + [
                f"v_mad_i32_i24 v58, v56, s55, v{d}",
                f"v_lshlrev_b32_e64 v56, v56, s48",
                f"v_lshrrev_b32 v58, 8, v58",
                f"v_lshl_or_b32 v56, v{s}, 9, v56",
                f"v_lshl_or_b32 v57, v58, 2, v57",
                f"v_lshl_or_b32 v{k}, v57, 2, v56"]
    for l in key(0) + key(1): A(l)
    A("s_waitcnt lgkmcnt(0)")
    A("v_add_u32 v65, v60, v61\nv_add_u32 v66, v65, v62\nv_add_u32 v67, v66, v63")
    A("v_mov_b32 v68, v67")
    fill = key(2) + key(3)
    for n, s_ in enumerate(scan_steps("v_add_u32", 68)):
        A(fill[2*n]); A(fill[2*n+1]); A(s_)
    A("v_sub_u32 v68, v68, v67")
    A("v_add_u32 v69, v68, v60\nv_add_u32 v70, v68, v65\nv_add_u32 v71, v68, v66")
    A.c("every wave writes the same prefix table and then reads only after its own write")
    A(f"ds_write_b128 v59, v[68:71] offset:{PFX}")
    A("s_mov_b64 exec, s[18:19]")
    for i in range(4): A(f"ds_read_b32 v{32+i}, v{32+i} offset:{PFX}")
    for l in fill[12:]: A(l)
    A(f"s_movk_i32 s53, {STG}")
    A.c("coefficients a, a*Y0, a*Y1, a*Y2 in bf16")
    A(f"s_waitcnt vmcnt(0)")
    st.mark("alldata")
    A("s_mov_b32 s49, 0xffff0000")
    def unpack(dst, reg, hi):
        if hi: A(f"v_and_b32 v{dst}, s49, v{reg}")
        else: A(f"v_lshlrev_b32 v{dst}, 16, v{reg}")
    for i in range(4):
        unpack(56, 16 + i//2, i & 1)
        for j in range(3):
            h = 3*i + j
            unpack(72+j, 20 + h//2, h & 1)
        for j in range(3): A(f"v_mul_f32 v{72+j}, v56, v{72+j}")
        A(f"v_cvt_pk_bf16_f32 v{40+4*i}, v56, v72")
        A(f"v_cvt_pk_bf16_f32 v{41+4*i}, v73, v74")
        if i == 0: A("s_waitcnt lgkmcnt(0)")
        A(f"v_add_u32 v{32+i}, v{32+i}, v{36+i}")
        A(f"v_mad_u32_u24 v{32+i}, v{32+i}, 12, s53")
        A(f"ds_write_b32 v{32+i}, v{42+4*i} offset:8")
        A(f"ds_write2_b32 v{32+i}, v{40+4*i}, v{41+4*i} offset0:0 offset1:1")
    A("s_mov_b64 exec, -1")
    A.c("waves 0..3 publish start|len<<16 of bucket 4*lane+wave")
    A("s_cmp_ge_u32 s3, 4\ns_cbranch_scc1 L_k1_nooff")
    A("v_mov_b32 v72, v68\nv_mov_b32 v73, v60")
    for w in (1, 2, 3):
        A(f"s_cmp_lg_u32 s3, {w}\ns_cbranch_scc1 L_k1_o{w}")
        A(f"v_mov_b32 v72, v{68+w}\nv_mov_b32 v73, v{60+w}")
        A(f"L_k1_o{w}:")
    A("v_lshl_or_b32 v72, v73, 16, v72")
    A("v_lshlrev_b32 v73, 12, v7")
    A("s_lshl_b32 s50, s3, 10\ns_lshl_b32 s51, s16, 2\ns_add_u32 s50, s50, s51")
    if WS_OFF: A(f"s_add_u32 s50, s50, {WS_OFF}")
    sf = o.get("k1_store_flags", "")
    A(f"buffer_store_dword v72, v73, s[44:47], s50 offen {sf}")
    A("L_k1_nooff:")
    A(f"s_mul_i32 s50, s16, {RSTR}\ns_add_u32 s50, s50, {WS_REC}")
    A.c("the copy covers whole 128-byte lines: a partly written last line is slow to read back")
    A(f"s_movk_i32 s17, {RSTR//16 - 1280}\nv_cmp_gt_u32 s[18:19], s17, v0")
    A("s_add_u32 s51, s50, 10240\ns_add_u32 s52, s50, 20480")
    A("s_waitcnt lgkmcnt(0)")
    A("s_barrier")
    st.mark("sorted")
    if o.get("diag_nostore"): A("s_mov_b32 s46, 0")
    for q in range(3): A(f"ds_read_b128 v[{8+4*q}:{11+4*q}], v4 offset:{STG + 10240*q}")
    A("s_waitcnt lgkmcnt(2)")
    A(f"buffer_store_dwordx4 v[8:11], v4, s[44:47], s50 offen {sf}")
    A("s_waitcnt lgkmcnt(1)")
    A(f"buffer_store_dwordx4 v[12:15], v4, s[44:47], s51 offen {sf}")
    A("s_waitcnt lgkmcnt(0)")
    A("s_mov_b64 exec, s[18:19]")
    A(f"buffer_store_dwordx4 v[16:19], v4, s[44:47], s52 offen {sf}")
    if o.get("k1_wb"):
        A("s_mov_b64 exec, -1")
        A("s_cmp_lg_u32 s3, 9\ns_cbranch_scc1 L_k1_nowb")
        A("s_waitcnt vmcnt(0)")
        A("buffer_wbl2 sc1")
        A("L_k1_nowb:")
    if st.on:
        st.mark("issued")
        A("s_waitcnt vmcnt(0)")
    st.flush(14, 3, 20, 52)
    A("s_endpgm")
    A("L_k1_helper:")
    A("s_load_dwordx4 s[52:55], s[0:1], 40")
    A("s_load_dwordx2 s[56:57], s[0:1], 56")
    A("v_lshlrev_b32 v26, 7, v7")
    A(f"s_mul_i32 s43, s16, {N*512//NWG}\ns_and_b32 s43, s43, 0xffffff80")
    A("s_lshr_b32 s40, s2, 2\ns_and_b32 s41, s2, 3")
    A.c("fragment (k step, tile t): lane (n, g) holds rows 32*step + 8g .. +7 of column 4n + t")
    A("v_lshrrev_b32 v8, 4, v7\nv_and_b32 v9, 15, v7")
    A("v_lshlrev_b32 v11, 10, v8\nv_lshl_add_u32 v11, v9, 3, v11")
    A("v_lshlrev_b32 v8, 4, v8")
    A("s_lshl_b32 s42, s40, 12\ns_lshl_b32 s41, s41, 1\ns_add_u32 s42, s42, s41")
    A("s_lshl_b32 s41, s40, 6")
    A("s_waitcnt lgkmcnt(0)")
    srd(A, 36, 4, 5, N*512)
    srd(A, 44, 14, 15, WS_USED)
    srd(A, 24, 52, 53, 640)
    A("s_cmp_lt_u32 s40, 4")
    A("s_cselect_b32 s20, s54, s56\ns_cselect_b32 s21, s55, s57")
    A(f"s_mov_b32 s22, {192*128}\ns_cselect_b32 s22, {128*128}, s22\ns_mov_b32 s23, 0x00020000")
    A("s_cselect_b32 s17, 0, 16384\ns_sub_u32 s42, s42, s17")
    touch = o.get("k1_touch", True)
    tb = o.get("k1_touch_after", 1)
    def helper_touch():
        if touch:
            A.c("touch x once so that the gather of the second launch finds it on chip")
            A("buffer_load_dword v28, v26, s[36:39], s43 offen")
            A("s_add_u32 s43, s43, 8192")
            A("buffer_load_dword v29, v26, s[36:39], s43 offen")
            A("s_add_u32 s43, s43, 8192\ns_mov_b32 exec_hi, 0")
            A("buffer_load_dword v30, v26, s[36:39], s43 offen")
            A("s_mov_b32 exec_hi, -1")
    if o.get("code_touch"):
        A.c("read the second kernel's instructions once per XCD so that its first fetches find them in L2")
        A("s_getpc_b64 s[28:29]")
        A("L_k1_pc:")
        A(f"s_add_u32 s28, s28, {o['k2name']}-L_k1_pc\ns_addc_u32 s29, s29, 0")
        A("s_lshr_b32 s30, s2, 3\ns_lshl_b32 s30, s30, 9")
        A(f"v_add_u32 v32, s30, v26\nv_min_u32 v32, L_k2_end-{o['k2name']}, v32")
        A("v_mov_b32 v33, s29\nv_add_co_u32 v32, vcc, s28, v32\nv_addc_co_u32 v33, vcc, 0, v33, vcc")
        A("s_mov_b64 exec, 15")
        A("global_load_dword v31, v[32:33], off")
        if o.get("kd_touch"):
            A("s_getpc_b64 s[28:29]")
            A(f"s_add_u32 s28, s28, L_kd2@rel32@lo+4\ns_addc_u32 s29, s29, L_kd2@rel32@hi+12")
            A("v_mov_b32 v32, s28\nv_mov_b32 v33, s29")
            A("s_mov_b64 exec, 1")
            A("global_load_dword v34, v[32:33], off")
        A("s_mov_b64 exec, -1")
    for b in range(3):
        if b == tb: helper_touch()
        if b == 1:
            A("s_cmp_ge_u32 s2, 40\ns_cbranch_scc1 L_k1_now")
            A("buffer_load_dwordx4 v[12:15], v8, s[24:27], s41 offen")
            for i in range(8): A(f"buffer_load_ushort v{16+i}, v11, s[20:23], s42 offen offset:{128*i}")
            A("L_k1_now:")
        A("s_barrier")
    if tb == 3: helper_touch()
    A("s_cmp_ge_u32 s2, 40\ns_cbranch_scc1 L_k1_end")
    A("s_mov_b32 s49, 0xffff0000")
    A("s_waitcnt vmcnt(0)" if tb != 3 or not touch else "s_waitcnt vmcnt(3)")
    for i in range(8):
        unpack(24, 12 + i//2, i & 1)
        A(f"v_lshlrev_b32 v{16+i}, 16, v{16+i}\nv_mul_f32 v{16+i}, v24, v{16+i}")
    for q in range(4): A(f"v_cvt_pk_bf16_f32 v{12+q}, v{16+2*q}, v{17+2*q}")
    A(f"v_lshlrev_b32 v8, 4, v7\ns_lshl_b32 s41, s2, 10\ns_add_u32 s41, s41, {WS_W}")
    A("buffer_store_dwordx4 v[12:15], v8, s[44:47], s41 offen")
    A("L_k1_end:")
    A("s_endpgm")
    return A.finish(o.get("verbose")), lds, 80, 96 if st.on else 58, st.names

NW = 12
NIT = 5
WIN = 288
CAP = NW * WIN + NW * 32
L_ZERO, L_RND, L_CNT, L_KEY = 0, 192, 256, 512
L_COEF = L_KEY + CAP*4 + 128
L_W = L_COEF + CAP*8 + 256
L_STG = L_W + 40960
SPITCH = 256
SNODE = 6*SPITCH + 32
L_GATE = L_STG + 40*SNODE
L_END = L_GATE + 3*4096
L_FLAG = 208
assert L_END <= 163840, L_END
MKW = 1536
L_WT = L_STG + 40*SNODE - 40960
L_NONCE = L_GATE
assert L_WT >= L_STG + NW*MKW

def gen_k2(name, o):
    A = Asm()
    fused = o.get("fused")
    st = Stamps(A, o.get("stamps"), 80 if fused else 76, 1)
    if fused: st.skip = set(o.get("skip", ["recissue", "staged", "issued", "rec0", "wok", "wdone", "stiss"]))
    vLane, vOff, vKA, vK2A, vCA, vSh = 1, 2, 3, 4, 5, 6
    vK2 = 8
    vAF = 10
    vK = 14
    vT = 22
    vD = 38
    vC = 102
    NV = 166
    sWave, sB = 3, 16
    SX, SWS, SOUT = 20, 24, 28
    sH = 32
    sMask = 48
    sTot, sRnd, sRound, sN, sRem, sStep, sT1, sT2, sT3 = 58, 59, 60, 61, 62, 63, 64, 65, 66
    sP0, sP1, sRowM = 67, 68, 69
    sSeg0, sNseg, sMk = 70, 71, 18
    sCar = [72, 73, 74, 75]
    sGrp, sSaid = 38, 39
    A(f".globl {name}\n.p2align 8\n.type {name},@function\n{name}:")
    A(f"s_cmp_ge_u32 s2, {NWG}\ns_cbranch_scc1 L_k2_end")
    if o.get("diag_perm"): A(f"s_mul_i32 s2, s2, {o['diag_perm']}\ns_add_u32 s2, s2, 77\ns_and_b32 s2, s2, 255")
    st.jitter = o.get("diag_jitter")
    st.clk = set(o.get("clk", []))
    st.mark("start")
    vOf = vD
    vz = vD + 40
    wpos = o.get("wpos", 0) if not fused else -1
    hf = o.get("f_hf", "sc1") if fused else ""
    def ids():
        if o.get("bid") == 1: A(f"s_mov_b32 s{sB}, s2")
        else: A(f"s_and_b32 s{sB}, s2, 7\ns_lshl_b32 s{sB}, s{sB}, 5\ns_lshr_b32 s17, s2, 3\ns_add_u32 s{sB}, s{sB}, s17")
        A("v_lshrrev_b32 v7, 6, v0")
        A(f"v_and_b32 v{vLane}, 63, v0")
        A(f"v_readfirstlane_b32 s{sWave}, v7")
    def ids2():
        A(f"s_mov_b32 s{sRound}, 0\ns_mov_b32 s{sSaid}, 0")
        if o.get("gshift"):
            A(f"s_add_u32 s{sGrp}, s{sWave}, {o['gshift']}\ns_sub_u32 s17, s{sGrp}, {NW}\ns_min_u32 s{sGrp}, s{sGrp}, s17")
        else: A(f"s_mov_b32 s{sGrp}, s{sWave}")
        A.c("this wave reads chunks seg0 .. seg0+nseg-1 of the bucket, seg0 = floor(wave*64/3)")
        A(f"s_mul_i32 s{sSeg0}, s{sWave}, {64*21846}\ns_lshr_b32 s{sSeg0}, s{sSeg0}, 16")
        A(f"s_add_u32 s17, s{sWave}, 1\ns_mul_i32 s17, s17, {64*21846}\ns_lshr_b32 s17, s17, 16")
        A(f"s_sub_u32 s{sNseg}, s17, s{sSeg0}")
        A(f"v_add_u32 v{vD+1}, s{sSeg0}, v{vLane}")
        A(f"v_lshlrev_b32 v{vD+2}, {(11 if o.get('f_tag') else 10) if fused else 2}, v{vD+1}")
        A(f"v_cmp_gt_u32 vcc, s{sNseg}, v{vLane}")
        A(f"v_bfrev_b32 v{vD+3}, -2")
        A(f"v_lshlrev_b32 v7, 4, v{vLane}")
        A(f"v_cndmask_b32 v{vD+2}, v{vD+3}, v{vD+2}, vcc")
        A.c("private marker area of this wave (inside the staging area of the epilogue)")
        A(f"s_mul_i32 s{sMk}, s{sWave}, {MKW}\ns_add_u32 s{sMk}, s{sMk}, {L_STG}")
    def marker_init():
        for i in range(4): A(f"v_mov_b32 v{vz+4+i}, 0")
        A(f"v_add_u32 v{vz+8}, s{sMk}, v7")
        A(f"ds_write_b128 v{vz+8}, v[{vz+4}:{vz+7}]")
        A("s_mov_b32 exec_hi, 0")
        A(f"ds_write_b128 v{vz+8}, v[{vz+4}:{vz+7}] offset:1024")
        A("s_mov_b32 exec_hi, -1")
    def key_init():
        A(f"v_lshlrev_b32 v{vz+9}, 4, v0")
        for i in range(4): A(f"v_mov_b32 v{vz+i}, {PADKEY:#x}" if i == 0 else f"v_mov_b32 v{vz+i}, v{vz}")
        A(f"ds_write_b128 v{vz+9}, v[{vz}:{vz+3}] offset:{L_KEY}")
        A(f"v_cmp_gt_u32 vcc, {(L_COEF - L_KEY - NW*1024)//16}, v0\ns_mov_b64 exec, vcc")
        A(f"ds_write_b128 v{vz+9}, v[{vz}:{vz+3}] offset:{L_KEY+NW*1024}")
        A("s_mov_b64 exec, -1")
    def zero_init():
        A.c("zero block, round word, flags, counters: bytes 0..511")
        A(f"s_mov_b32 exec_hi, 0")
        A(f"ds_write_b128 v7, v[{vz+4}:{vz+7}]")
        A("s_mov_b32 exec_hi, -1")
    def lds_init():
        marker_init(); key_init()
    assert 2*NW*1024 >= CAP*4 + 128 and L_KEY + 2*NW*1024 <= L_W
    def consts():
        A(f"s_mov_b32 s{sP0}, 0x05040100\ns_mov_b32 s{sP1}, 0x07060302\ns_mov_b32 s{sRowM}, {o.get('diag_rowmask', 0x007ffe00):#x}")
        A(f"s_mov_b32 s{sH}, 0xff00ff00\ns_mov_b32 s{sH+1}, 0xff00ff00")
    def wdma(vl):
        A.c("the 40 weight fragments go straight to LDS: w, w+12, w+24 and 36+(w&3) by wave w (the last four land three times)")
        A(f"s_lshl_b32 s19, s{sWave}, 10\ns_add_u32 m0, s19, {L_W}\ns_add_u32 s19, s19, {WS_W}")
        for q in range(3):
            A(f"buffer_load_dwordx4 v{vl}, s[{SWS}:{SWS+3}], s19 offen lds")
            if q < 2: A(f"s_add_u32 m0, m0, {NW*1024}\ns_add_u32 s19, s19, {NW*1024}")
        A(f"s_and_b32 s19, s{sWave}, 3\ns_lshl_b32 s19, s19, 10\ns_add_u32 m0, s19, {L_W + 36*1024}\ns_add_u32 s19, s19, {WS_W + 36*1024}")
        A(f"buffer_load_dwordx4 v{vl}, s[{SWS}:{SWS+3}], s19 offen lds")
    sRot = 36 if o.get("rot") else None
    def rotc():
        if sRot: A(f"s_and_b32 s{sRot}, s2, 7\ns_mul_i32 s{sRot}, s{sRot}, {N*512//8}")
    def mall_touch(start):
        lanes = -(-(N*512 - start) // (128 * NW * NWG))
        A.c("every remaining line of x is touched once, chip-wide")
        A(f"v_lshlrev_b32 v{vD+4}, 7, v{vLane}")
        A(f"s_mul_i32 s35, s{sB}, {NW}\ns_add_u32 s35, s35, s{sWave}\ns_mul_i32 s35, s35, {lanes*128}")
        if start: A(f"s_add_u32 s35, s35, {start}")
        A(f"s_mov_b32 exec_lo, {(1 << lanes) - 1}\ns_mov_b32 exec_hi, 0")
        A(f"buffer_load_dword v{vD+7}, v{vD+4}, s[{SX}:{SX+3}], s35 offen")
        A("s_mov_b64 exec, -1")
    vBase, vL12, vMkA = vD+57, vD+35, vD+34
    def coop_pre():
        A(f"s_lshr_b32 s9, s2, 3\ns_sub_u32 s9, s9, s{sSeg0}\ns_and_b32 s9, s9, 31")
        A(f"s_add_u32 s10, s9, s{sSeg0}\ns_mul_i32 s10, s10, {RSTR}\ns_and_b32 s11, s2, 7\ns_mul_i32 s11, s11, 3750")
        A(f"s_add_u32 s10, s10, s11\ns_add_u32 s10, s10, {WS_REC - 256}\nv_lshlrev_b32 v{vD+58}, 7, v{vLane}")
    def round_pre():
        A(f"s_mov_b32 s34, {RSTR}\nv_mul_lo_u32 v{vBase}, v{vD+1}, s34")
        A(f"v_mul_u32_u24 v{vL12}, 12, v{vLane}\nv_lshl_add_u32 v{vMkA}, v{vLane}, 2, s{sMk}")
        if o.get("f_eo"): A(f"v_lshlrev_b32 v{vD+58}, 2, v{vD+1}")
    nt0 = 0
    touch0 = o.get("k2_touch0")
    tpos = N*512//8 if o.get("rot") and (o.get("f_early") if fused else o.get("k1_touch", True)) else 0
    def do_touch0(va, vd):
        A.c("pull the first rows of x into this XCD's L2")
        A(f"v_lshlrev_b32 v{va}, 7, v{vLane}")
        A(f"s_lshr_b32 s34, s2, 3\ns_mul_i32 s34, s34, {NW}\ns_add_u32 s34, s34, s{sWave}")
        return touch_x(A, touch0, 34, 17, va, vd, SX, NW, sRot, tpos)
    nacc0 = o.get("nacc0", 0 if fused else 32)
    if not fused:
        A("s_load_dwordx2 s[14:15], s[0:1], 88")
        A("s_load_dwordx2 s[4:5], s[0:1], 0")
        A("s_load_dwordx2 s[12:13], s[0:1], 72")
        ids(); ids2()
        A(f"s_lshl_b32 s17, s{sB}, 10")
        if WS_OFF: A(f"s_add_u32 s17, s17, {WS_OFF}")
        A("s_waitcnt lgkmcnt(0)")
        srd(A, SWS, 14, 15, WS_USED)
        A(f"buffer_load_dword v{vOf}, v{vD+2}, s[{SWS}:{SWS+3}], s17 offen")
        if wpos == 0: wdma(7)
        srd(A, SX, 4, 5, N*512)
        srd(A, SOUT, 12, 13, N*512)
        rotc()
        if touch0:
            nt0 = do_touch0(vD+5, vD+6)
            tpos += sum(touch0[1:]) * 128 * NW * 32
        tall = tpos + (sum(o["k2_touch"][1:]) * 128 * NW * 32 if o.get("k2_touch") else 0)
        if o.get("k2_mall") == 0:
            mall_touch(tpos if o.get("k2_mall_all") else tall); nt0 += 1
        lds_init()
        A(f"s_mov_b32 exec_hi, 0")
        A(f"ds_write_b128 v7, v[{vz+4}:{vz+7}]")
        A("s_mov_b32 exec_hi, -1")
        consts(); round_pre()
        for i in range(0, nacc0, 2): A(f"v_mov_b64 v[{vC+i}:{vC+i+1}], 0")
        A(f"s_waitcnt vmcnt({(4 if wpos == 0 else 0)+nt0})")
    else:
        R = o.get("R", 32)
        aCNT, aPFX, aSTG = L_KEY, L_KEY + 4096, L_COEF
        vDst, vSrc, vEa, vRh, vBk, vRk, vRec = 38, 42, 46, 50, 62, 66, 70
        t0, t1, t2, t3 = 86, 87, 88, 94
        vL16, vCn, vL16b = 89, 90, 150
        v16, v8, v24, vOne1 = 126, 127, 128, 129
        SD, SS, SE, SR, SDBG = 64, 68, 72, 76, 40
        sAct = 46
        A.c("pointers go straight into the first two words of their descriptors")
        for r_, off in ((SD, 32), (SS, 24), (SE, 16), (SR, 8), (SDBG, 80)): A(f"s_load_dwordx2 s[{r_}:{r_+1}], s[0:1], {off}")
        ids()
        def code_touch(w):
            A.c("one wave reads a share of this kernel's instructions so that later fetches find them in L2")
            A(f"s_cmp_lg_u32 s{sWave}, {w}\ns_cbranch_scc1 L_f_nocode")
            A("s_getpc_b64 s[6:7]")
            A("L_f_pc:")
            A(f"s_lshr_b32 s17, s2, 3\ns_lshl_b32 s17, s17, 9\nv_lshl_add_u32 v{t0}, v{vLane}, 7, s17")
            A(f"v_min_u32 v{t0}, L_k2_end-L_f_pc, v{t0}")
            A(f"v_mov_b32 v{t0+1}, s7\nv_add_co_u32 v{t0}, vcc, s6, v{t0}\nv_addc_co_u32 v{t0+1}, vcc, 0, v{t0+1}, vcc")
            A("s_mov_b64 exec, 15")
            A(f"global_load_dword v{t3}, v[{t0}:{t0+1}], off")
            A("s_mov_b64 exec, -1")
            A("L_f_nocode:")
        if o.get("code_touch", 1) == 1: code_touch(o.get("code_wave", 10))
        A(f"v_lshlrev_b32 v{t0}, 2, v0\nv_mov_b32 v{t1}, 0")
        A(f"ds_write_b32 v{t0}, v{t1} offset:{aCNT}")
        A(f"v_lshlrev_b32 v{v16}, 4, v0\nv_lshlrev_b32 v{v8}, 3, v0\nv_mul_u32_u24 v{v24}, 24, v0")
        A(f"v_lshlrev_b32 v{vL16}, 4, v{vLane}\nv_mov_b32 v{vOne1}, 1\nv_mov_b32 v{vL16b}, v{vL16}")
        A(f"s_movk_i32 s17, {CH//4}\nv_cmp_gt_u32 s[{sAct}:{sAct+1}], s17, v0")
        sC = 2 if o.get("f_cwg", 0) else sB
        A(f"s_mul_i32 s4, s{sC}, {CH*4}\ns_mul_i32 s5, s{sC}, {CH*2}\ns_mul_i32 s6, s{sC}, {CH*6}")
        for r_, sz in ((SD, E*4), (SS, E*4), (SE, E*2), (SR, E*6), (SDBG, 256), (SWS, WS_USED), (SX, N*512), (SOUT, N*512)):
            A(f"s_mov_b32 s{r_+2}, {sz}\ns_mov_b32 s{r_+3}, 0x00020000")
        A("s_waitcnt lgkmcnt(0)")
        A(f"s_cmp_ge_u32 s{sWave}, 10\ns_cbranch_scc1 L_f_noload")
        A(f"s_mov_b64 exec, s[{sAct}:{sAct+1}]")
        lf = o.get("k1_load_flags", "nt")
        A(f"buffer_load_dwordx4 v[{vDst}:{vDst+3}], v{v16}, s[{SD}:{SD+3}], s4 offen {lf}")
        A(f"buffer_load_dwordx4 v[{vSrc}:{vSrc+3}], v{v16}, s[{SS}:{SS+3}], s4 offen {lf}")
        split = o.get("f_split", 1)
        def late_loads():
            A(f"buffer_load_dwordx2 v[{vEa}:{vEa+1}], v{v8}, s[{SE}:{SE+3}], s5 offen {lf}")
            A(f"buffer_load_dwordx4 v[{vRh}:{vRh+3}], v{v24}, s[{SR}:{SR+3}], s6 offen {lf}")
            A(f"buffer_load_dwordx2 v[{vRh+4}:{vRh+5}], v{v24}, s[{SR}:{SR+3}], s6 offen offset:16 {lf}")
        if not split: late_loads()
        A("s_mov_b64 exec, -1")
        A("L_f_noload:")
        A.c("needed later; the next wait on LDS covers them")
        for r_, off in ((SWS, 88), (SX, 0), (SOUT, 72), (62, 56)): A(f"s_load_dwordx2 s[{r_}:{r_+1}], s[0:1], {off}")
        A("s_load_dwordx4 s[56:59], s[0:1], 40")
        if st.on: A("s_load_dwordx2 s[14:15], s[0:1], 88")
        if o.get("code_touch", 1) == 2: code_touch(10)
        A.c("one wave of the launch picks the word that marks this launch's arrival flags")
        A(f"s_cmp_lg_u32 s{sWave}, 11\ns_cbranch_scc1 L_f_nononce\ns_cmp_lg_u32 s2, 0\ns_cbranch_scc1 L_f_nononce")
        A(f"s_memrealtime s[6:7]\nv_lshlrev_b32 v{t0}, 2, v{vLane}\ns_waitcnt lgkmcnt(0)\ns_or_b32 s6, s6, 1\nv_mov_b32 v{t1}, s6")
        A(f"buffer_store_dword v{t1}, v{t0}, s[{SDBG}:{SDBG+3}], 0 offen sc1")
        A("L_f_nononce:")
        tp = [0]
        def ftouch(lanes, nwaves=NW, w0=0):
            A.c("pull rows of x into this XCD's L2")
            A(f"s_lshr_b32 s34, s2, 3\ns_mul_i32 s34, s34, {nwaves}\ns_add_u32 s34, s34, s{sWave}")
            if w0: A(f"s_sub_u32 s34, s34, {w0}")
            A(f"s_lshr_b32 s36, s{sB}, 5\ns_mul_i32 s36, s36, {N*512//8}")
            A(f"v_lshlrev_b32 v161, 7, v{vLane}")
            for l in lanes:
                touch_x(A, ("l2", l), 34, 44, 161, 160, SX, nwaves, 36, tp[0])
                tp[0] += l * 128 * nwaves * 32
        if o.get("f_t0"):
            A(f"s_cmp_lt_u32 s{sWave}, 10\ns_cbranch_scc1 L_f_not0\ns_waitcnt lgkmcnt(0)")
            ftouch(o["f_t0"], 2, 10)
            A("L_f_not0:")
        A("s_barrier")
        nw0 = 0
        A(f"s_cmp_ge_u32 s{sWave}, 10\ns_cbranch_scc1 L_f_helper")
        A(f"s_mov_b64 exec, s[{sAct}:{sAct+1}]")
        if split: late_loads()
        A(f"s_waitcnt vmcnt({4+nw0})")
        st.mark("dst")
        for i in range(4):
            if o.get("bid") == 2:
                A(f"v_and_b32 v{vBk+i}, 7, v{vDst+i}\nv_bfe_u32 v{t0}, v{vDst+i}, 3, 5\nv_lshlrev_b32 v{t0}, 2, v{t0}\nv_lshl_or_b32 v{vBk+i}, v{vBk+i}, 7, v{t0}")
            else: A(f"v_lshlrev_b32 v{vBk+i}, 2, v{vDst+i}\nv_and_b32 v{vBk+i}, 0x3fc, v{vBk+i}")
            A(f"ds_add_rtn_u32 v{vRk+i}, v{vBk+i}, v{vOne1} offset:{aCNT}")
        A("s_mov_b64 exec, -1")
        A("s_waitcnt lgkmcnt(0)")
        A("s_barrier")
        A(f"ds_read_b128 v[{vCn}:{vCn+3}], v{vL16} offset:{aCNT}")
        A(f"s_waitcnt vmcnt({3+nw0})")
        A.c("key = src<<9 | onehot(j)<<28 | (group*4 + source quarter)<<2 ; record i = c01, c23, key")
        A(f"s_mov_b32 s4, 0x10000000\ns_mov_b32 s5, {-(-(1 << 32) // 3072)}\ns_mov_b32 s6, {(1 << 34) // N}\ns_movk_i32 s7, -3072\ns_mov_b32 s19, {-(-(1 << 35) // N)}")
        def key(i):
            d, s_, k = vDst+i, vSrc+i, vRec+2+4*i
            if o.get("rot"):
                q = [f"v_mul_hi_u32_u24 v{t1}, s19, v{s_}", f"v_lshrrev_b32 v{t3}, 5, v{d}", f"v_sub_u32 v{t1}, v{t1}, v{t3}",
                     f"v_bfe_u32 v{t1}, v{t1}, 1, 2"]
                if o.get("bid"): q = [q[0], f"v_sub_u32 v{t1}, v{t1}, v{d}", q[3]]
            else: q = [f"v_mul_hi_u32_u24 v{t1}, s6, v{s_}"]
            return [f"v_mul_hi_u32_u24 v{t0}, s5, v{d}"] + q + [
                    f"v_mad_i32_i24 v{t2}, v{t0}, s7, v{d}", f"v_lshlrev_b32_e64 v{t0}, v{t0}, s4", f"v_lshrrev_b32 v{t2}, 8, v{t2}",
                    f"v_lshl_or_b32 v{t0}, v{s_}, 9, v{t0}", f"v_lshl_or_b32 v{t1}, v{t2}, 2, v{t1}", f"v_lshl_or_b32 v{k}, v{t1}, 2, v{t0}"]
        for l in key(0) + key(1): A(l)
        A("s_waitcnt lgkmcnt(0)")
        A(f"v_add_u32 v95, v{vCn}, v{vCn+1}\nv_add_u32 v96, v95, v{vCn+2}\nv_add_u32 v97, v96, v{vCn+3}\nv_mov_b32 v98, v97")
        fill = key(2) + key(3)
        for n, s_ in enumerate(scan_steps("v_add_u32", 98)):
            A(fill[2*n]); A(fill[2*n+1]); A(s_)
        A("v_sub_u32 v98, v98, v97")
        A(f"v_add_u32 v99, v98, v{vCn}\nv_add_u32 v100, v98, v95\nv_add_u32 v101, v98, v96")
        A.c("every wave writes the same prefix table and then reads only after its own write")
        A(f"ds_write_b128 v{vL16}, v[98:101] offset:{aPFX}")
        A(f"s_mov_b64 exec, s[{sAct}:{sAct+1}]")
        for i in range(4): A(f"ds_read_b32 v{vBk+i}, v{vBk+i} offset:{aPFX}")
        for l in fill[12:]: A(l)
        A(f"s_movk_i32 s5, {aSTG}\ns_mov_b32 s4, 0xffff0000")
        early = o.get("f_keyfirst", 1)
        if early:
            for i in range(4):
                A(f"s_waitcnt lgkmcnt({3-i+i})")
                A(f"v_add_u32 v{vBk+i}, v{vBk+i}, v{vRk+i}\nv_mad_u32_u24 v{vBk+i}, v{vBk+i}, 12, s5")
                A(f"ds_write_b32 v{vBk+i}, v{vRec+2+4*i} offset:8")
        mW, mR, hA = 106, 122, 138
        def wloads():
            if o.get("diag_now"):
                A(f"v_lshrrev_b32 v144, 3, v{vLane}")
                for q in range(8): A(f"buffer_load_ushort v{mR}, v144, s[{SDBG}:{SDBG+3}], 0 offen")
                return
            A.c("weights: 40 pieces of 8 rows; piece w+12q comes from w_si0 when < 16, else from w_si1")
            srd(A, SD, 58, 59, 128*128); srd(A, SS, 62, 63, 192*128); srd(A, SE, 56, 57, 640)
            A(f"s_cmp_lt_u32 s{sWave}, 4")
            A(f"s_cselect_b32 s{SR}, s58, s62\ns_cselect_b32 s{SR+1}, s59, s63")
            A(f"s_cselect_b32 s{SR+2}, s{SD+2}, s{SS+2}\ns_mov_b32 s{SR+3}, 0x00020000")
            A(f"s_cselect_b32 s19, 0, 16384\ns_sub_u32 s19, 12288, s19")
            A(f"s_lshl_b32 s17, s{sWave}, 10\ns_add_u32 s19, s19, s17")
            A(f"buffer_load_dwordx4 v[{mW}:{mW+3}], v{vL16}, s[{SD}:{SD+3}], s17 offen")
            A(f"buffer_load_dwordx4 v[{mW+4}:{mW+7}], v{vL16}, s[{SR}:{SR+3}], s19 offen")
            A(f"s_add_u32 s19, s17, {24576-16384}")
            A(f"buffer_load_dwordx4 v[{mW+8}:{mW+11}], v{vL16}, s[{SS}:{SS+3}], s19 offen")
            A(f"s_add_u32 s19, s17, {36864-16384}")
            A(f"buffer_load_dwordx4 v[{mW+12}:{mW+15}], v{vL16}, s[{SS}:{SS+3}], s19 offen")
            A(f"v_lshrrev_b32 v144, 3, v{vLane}\nv_lshlrev_b32 v145, 1, v144\ns_lshl_b32 s19, s{sWave}, 4")
            for q in range(4): A(f"buffer_load_ushort v{mR+q}, v145, s[{SE}:{SE+3}], s19 offen offset:{192*q}")
        wearly = o.get("f_wearly", 1)
        if not wearly: A("s_waitcnt vmcnt(0)")
        A("s_mov_b64 exec, -1")
        wloads()
        A(f"s_mov_b64 exec, s[{sAct}:{sAct+1}]")
        A.c("coefficients a, a*Y0, a*Y1, a*Y2 in bf16")
        if wearly: A("s_waitcnt vmcnt(8)")
        def unpack(dst, reg, hi):
            if hi: A(f"v_and_b32 v{dst}, s4, v{reg}")
            else: A(f"v_lshlrev_b32 v{dst}, 16, v{reg}")
        for i in range(4):
            unpack(t0, vEa + i//2, i & 1)
            for j in range(3):
                h = 3*i + j
                unpack(102+j, vRh + h//2, h & 1)
            for j in range(3): A(f"v_mul_f32 v{102+j}, v{t0}, v{102+j}")
            A(f"v_cvt_pk_bf16_f32 v{vRec+4*i}, v{t0}, v102\nv_cvt_pk_bf16_f32 v{vRec+1+4*i}, v103, v104")
            if not early:
                if i == 0: A("s_waitcnt lgkmcnt(0)")
                A(f"v_add_u32 v{vBk+i}, v{vBk+i}, v{vRk+i}\nv_mad_u32_u24 v{vBk+i}, v{vBk+i}, 12, s5")
                A(f"ds_write_b32 v{vBk+i}, v{vRec+2+4*i} offset:8")
            A(f"ds_write2_b32 v{vBk+i}, v{vRec+4*i}, v{vRec+1+4*i} offset0:0 offset1:1")
        A("s_mov_b64 exec, -1")
        A.c("wave 0 publishes start|len<<16 of the 256 buckets")
        if o.get("f_eo") == 2: A("s_branch L_f_nooff")
        A(f"s_cmp_lg_u32 s{sWave}, 0\ns_cbranch_scc1 L_f_nooff")
        for i in range(4): A(f"v_lshl_or_b32 v{98+i}, v{vCn+i}, 16, v{98+i}")
        tag = o.get("f_tag")
        if tag:
            A(f"v_add_u32 v{t0}, {L_GATE+1024}, v{vL16}\nds_write_b128 v{t0}, v[98:101]")
            A(f"v_lshrrev_b32 v{t0}, 1, v{vL16}\nv_add_u32 v{t0}, {L_GATE+1024}, v{t0}")
            A(f"ds_read_b64 v[152:153], v{t0}\nds_read_b64 v[156:157], v{t0} offset:512")
        else:
            A(f"s_lshl_b32 s4, s{sB}, 10")
            A(f"buffer_store_dwordx4 v[98:101], v{vL16}, s[{SWS}:{SWS+3}], s4 offen sc1")
        A("L_f_nooff:")
        A(f"s_mul_i32 s4, s{sC}, {RSTR}\ns_add_u32 s4, s4, {WS_REC}\ns_add_u32 s5, s4, 10240\ns_add_u32 s6, s4, 20480")
        A(f"s_movk_i32 s17, {RSTR//16 - 1280}\nv_cmp_gt_u32 s[{sAct}:{sAct+1}], s17, v0")
        A("s_setprio 3")
        A("s_waitcnt lgkmcnt(0)")
        A("s_barrier")
        st.mark("sortedA")
        for q in range(3): A(f"ds_read_b128 v[{vRh+4*q}:{vRh+4*q+3}], v{v16} offset:{aSTG + 10240*q}")
        for q in range(3):
            A(f"s_waitcnt lgkmcnt({2-q})")
            if q == 2: A(f"s_mov_b64 exec, s[{sAct}:{sAct+1}]")
            A(f"buffer_store_dwordx4 v[{vRh+4*q}:{vRh+4*q+3}], v{v16}, s[{SWS}:{SWS+3}], s{4+q} offen {o.get('f_sf', 'sc1')}")
        A("s_mov_b64 exec, -1")
        A("s_setprio 0")
        A("s_branch L_f_join")
        A.c("waves 10 and 11 carry no edges: they fetch the launch's mark")
        A("L_f_helper:")
        A("s_waitcnt lgkmcnt(0)")
        A("s_barrier")
        if st.on and "dst" not in st.skip: st.n -= 2; st.names = st.names[:-2]; st.mark("dst")
        elif st.on: st.n -= 1; st.names = st.names[:-1]
        A(f"s_and_b32 s4, s2, 63\ns_lshl_b32 s4, s4, 2\nv_mov_b32 v142, 0\ns_mov_b32 s5, 0x40000")
        A(f"buffer_load_dword v143, v142, s[{SDBG}:{SDBG+3}], s4 offen sc1")
        if o.get("f_eo") == 2: A(f"ds_read_b128 v[{vCn}:{vCn+3}], v{vL16} offset:{aCNT}")
        wloads()
        if o.get("f_eo") == 2:
            A("s_waitcnt lgkmcnt(0)")
            A(f"v_add_u32 v95, v{vCn}, v{vCn+1}\nv_add_u32 v96, v95, v{vCn+2}\nv_add_u32 v97, v96, v{vCn+3}\nv_mov_b32 v98, v97")
            for s_ in scan_steps("v_add_u32", 98): A(s_)
            A("v_sub_u32 v98, v98, v97")
            A(f"v_add_u32 v99, v98, v{vCn}\nv_add_u32 v100, v98, v95\nv_add_u32 v101, v98, v96")
        A("s_waitcnt vmcnt(8)")
        A("L_f_again:")
        A(f"v_readfirstlane_b32 s6, v143")
        A("s_cmp_lg_u32 s6, 0\ns_cbranch_scc1 L_f_got")
        A("s_sub_u32 s5, s5, 1\ns_cbranch_scc1 L_f_got")
        A(f"s_sleep 2\nbuffer_load_dword v143, v142, s[{SDBG}:{SDBG+3}], s4 offen sc1\ns_waitcnt vmcnt(0)\ns_branch L_f_again")
        A("L_f_got:")
        A(f"v_mov_b32 v142, {L_NONCE}\nds_write_b32 v142, v143")
        if o.get("f_eo") == 2:
            A(f"s_cmp_lg_u32 s{sWave}, 11\ns_cbranch_scc1 L_f_hoff")
            A.c("offset words with the launch's mark beside each: 8-byte pairs that are written and read whole")
            A(f"s_waitcnt lgkmcnt(0)")
            for i in range(4): A(f"v_lshl_or_b32 v{98+i}, v{vCn+i}, 16, v{98+i}")
            A(f"v_add_u32 v{t0}, {L_GATE+1024}, v{vL16}\nds_write_b128 v{t0}, v[98:101]")
            A(f"v_lshrrev_b32 v{t0}, 1, v{vL16}\nv_add_u32 v{t0}, {L_GATE+1024}, v{t0}")
            A(f"ds_read_b64 v[152:153], v{t0}\nds_read_b64 v[156:157], v{t0} offset:512")
            A(f"v_mov_b32 v47, v143\nv_mov_b32 v49, v143\nv_mov_b32 v63, v143\nv_mov_b32 v65, v143\ns_lshl_b32 s19, s{sC}, 11")
            A("s_waitcnt lgkmcnt(0)")
            A(f"v_mov_b32 v46, v152\nv_mov_b32 v48, v153\nv_mov_b32 v62, v156\nv_mov_b32 v64, v157")
            A(f"buffer_store_dwordx4 v[46:49], v{vL16}, s[{SWS}:{SWS+3}], s19 offen sc1")
            A(f"buffer_store_dwordx4 v[62:65], v{vL16}, s[{SWS}:{SWS+3}], s19 offen offset:1024 sc1")
            A("L_f_hoff:")
        A("s_waitcnt lgkmcnt(0)")
        A("s_barrier")
        st.mark("sortedA")
        A("s_waitcnt vmcnt(2)" if o.get("f_eo") == 2 else "s_waitcnt vmcnt(0)")
        if o.get("f_eo") == 2: A(f"s_cmp_eq_u32 s{sWave}, 11\ns_cbranch_scc1 L_f_join\ns_waitcnt vmcnt(0)")
        if o.get("f_eo"):
            A("L_f_join:")
            st.mark("stiss")
            sNonce = 35
            A(f"v_mov_b32 v{t0}, {L_NONCE}\nds_read_b32 v{t1}, v{t0}")
            A(f"v_lshlrev_b32 v7, 4, v{vLane}\ns_lshl_b32 s19, s{sC}, 11")
            A("s_waitcnt lgkmcnt(0)")
            A(f"v_readfirstlane_b32 s{sNonce}, v{t1}")
            A.c("offset words with the launch's mark beside each: 8-byte pairs that are written and read whole")
            if o["f_eo"] == 2: A("s_branch L_f_nooff2")
            A(f"s_cmp_lg_u32 s{sWave}, 0\ns_cbranch_scc1 L_f_nooff2")
            A(f"v_mov_b32 v46, v152\nv_mov_b32 v47, v{t1}\nv_mov_b32 v48, v153\nv_mov_b32 v49, v{t1}")
            A(f"v_mov_b32 v62, v156\nv_mov_b32 v63, v{t1}\nv_mov_b32 v64, v157\nv_mov_b32 v65, v{t1}")
            A(f"buffer_store_dwordx4 v[46:49], v7, s[{SWS}:{SWS+3}], s19 offen sc1")
            A(f"buffer_store_dwordx4 v[62:65], v7, s[{SWS}:{SWS+3}], s19 offen offset:1024 sc1")
            A("s_waitcnt vmcnt(5)")
            A("L_f_nooff2:")
            ids2(); rotc(); consts()
            A.c("weights scaled by w_rad, row k as [tile t ^ (k&3)][16 columns 4n+t]")
            A(f"v_and_b32 v{hA}, 7, v{vLane}\nv_lshlrev_b32 v{hA}, 2, v{hA}")
            A(f"v_lshl_add_u32 v{hA}, v144, 7, v{hA}\nv_and_b32 v144, 3, v144\nv_lshl_add_u32 v{hA}, v144, 5, v{hA}")
            A(f"s_lshl_b32 s4, s{sWave}, 10\ns_add_u32 s4, s4, {L_WT}\nv_add_u32 v{hA}, s4, v{hA}")
            for t in range(1, 4): A(f"v_xor_b32 v{hA+t}, {32*t}, v{hA}")
            A("s_mov_b32 s4, 0xffff0000")
            if o["f_eo"] == 2: A("s_waitcnt vmcnt(3)")
            else: A(f"s_cmp_eq_u32 s{sWave}, 0\ns_cbranch_scc1 L_f_wok\ns_waitcnt vmcnt(3)\nL_f_wok:")
            for q in range(4):
                if q == 3: A(f"s_cmp_ge_u32 s{sWave}, 4\ns_cbranch_scc1 L_f_w3")
                A(f"v_lshlrev_b32 v{mR+q}, 16, v{mR+q}")
                for tq in (0, 2):
                    for t in (tq, tq+1):
                        a = 144 + 4*(t & 1)
                        unpack(a, mW + 4*q + t//2, t & 1); unpack(a+1, mW + 4*q + 2 + t//2, t & 1)
                    for a in (144, 148):
                        A(f"v_pk_mul_f32 v[{a}:{a+1}], v[{a}:{a+1}], v[{mR+q & ~1}:{(mR+q & ~1)+1}] op_sel:[0,{q & 1}] op_sel_hi:[1,{q & 1}]")
                    for a in (144, 148): A(f"v_cvt_pk_bf16_f32 v{a+2+tq//2}, v{a}, v{a+1}")
                    for t in (tq, tq+1): A(f"ds_write_b32 v{hA+t}, v{144+4*(t & 1)+2+tq//2} offset:{12288*q}")
            A("L_f_w3:")
            marker_init()
            vA = 100
            A.c("fragment w+12q = (k step (w>>2)+3q, tile w&3): two transposing reads")
            A(f"v_lshrrev_b32 v{t0}, 4, v{vLane}\nv_bfe_u32 v{t2}, v{vLane}, 2, 2\nv_lshl_add_u32 v{vA}, v{t0}, 3, v{t2}\nv_lshlrev_b32 v{vA}, 7, v{vA}")
            A(f"s_and_b32 s4, s{sWave}, 3\nv_xor_b32 v{t2}, s4, v{t2}\nv_lshl_add_u32 v{vA}, v{t2}, 5, v{vA}")
            A(f"v_and_b32 v{t2}, 3, v{vLane}\nv_lshl_add_u32 v{vA}, v{t2}, 3, v{vA}")
            A(f"s_lshr_b32 s4, s{sWave}, 2\ns_lshl_b32 s4, s4, 12\ns_add_u32 s4, s4, {L_WT}\nv_add_u32 v{vA}, s4, v{vA}")
            A(f"s_lshl_b32 s4, s{sWave}, 10\ns_add_u32 s4, s4, {L_W}\nv_add_u32 v{vA+1}, s4, v7")
            A(f"s_lshl_b32 s17, s{sB}, 3\nv_mov_b32 v66, 0\nv_cmp_gt_u32 s[6:7], s{sNseg}, v{vLane}\ns_mov_b32 s5, 0x40000")
            A(f"s_and_b32 s8, s2, {R-1}\ns_lshl_b32 s8, s8, 10\ns_add_u32 s8, s8, {WS_FLAG}")
            A(f"s_lshl_b32 s19, s{sC}, 2\ns_add_u32 s19, s19, {WS_FLAG}\nv_lshlrev_b32 v{t0}, 10, v{vLane}\nv_mov_b32 v{t2}, s{sNonce}")
            round_pre()
            st.mark("wdone")
            A(f"s_waitcnt vmcnt(0) lgkmcnt(0)")
            A("s_barrier")
            st.mark("acked")
            A.c(f"every record store of this workgroup has been acknowledged: raise its flag in all {R} copies")
            A(f"s_cmp_lg_u32 s{sWave}, 0\ns_cbranch_scc1 L_f_noflag")
            if R < 64: A(f"s_mov_b32 exec_lo, {(1 << R) - 1 & 0xffffffff}\ns_mov_b32 exec_hi, 0")
            A(f"buffer_store_dword v{t2}, v{t0}, s[{SWS}:{SWS+3}], s19 offen sc1")
            A("L_f_noflag:")
            tpos = tall = 0
            A.c("read the pairs of this wave's chunks until each carries the mark")
            def poll_load(): A(f"buffer_load_dwordx2 v[66:67], v{vD+2}, s[{SWS}:{SWS+3}], s17 offen sc1")
            A("s_mov_b64 exec, s[6:7]")
            poll_load()
            A("s_mov_b64 exec, -1")
            vW2 = mW
            for q in range(4):
                A(f"ds_read_b64_tr_b16 v[{vW2+4*q}:{vW2+4*q+1}], v{vA} offset:{12288*q}")
                A(f"ds_read_b64_tr_b16 v[{vW2+4*q+2}:{vW2+4*q+3}], v{vA} offset:{12288*q+512}")
            for q in range(4):
                if q == 3: A(f"s_cmp_ge_u32 s{sWave}, 4\ns_cbranch_scc1 L_f_w4")
                A(f"s_waitcnt lgkmcnt({6-2*q})")
                A(f"ds_write_b128 v{vA+1}, v[{vW2+4*q}:{vW2+4*q+3}] offset:{12288*q}")
            A("L_f_w4:")
            if o.get("eo_init", 0) == 0: key_init(); zero_init()
            A("s_mov_b64 exec, s[6:7]")
            A("s_waitcnt vmcnt(0)")
            A("L_f_poll:")
            A(f"v_cmp_ne_u32 vcc, s{sNonce}, v67")
            A("s_and_b64 exec, exec, vcc\ns_cbranch_scc0 L_f_seen")
            A("s_sub_u32 s5, s5, 1\ns_cbranch_scc1 L_f_giveup")
            A(f"s_sleep {o.get('f_sleep', 1)}")
            poll_load()
            A("s_waitcnt vmcnt(0)\ns_branch L_f_poll")
            A("L_f_giveup:\ns_mov_b64 s[6:7], 0")
            A("L_f_seen:")
            A("s_mov_b64 exec, -1")
            A(f"v_mov_b32 v{vOf}, v66")
        else:
            A("L_f_join:")
            ntA = 0
            if o.get("f_tA"): ftouch([o["f_tA"]]); ntA = 1
            st.mark("stiss")
            sNonce = 35
            assert tag
            A(f"v_mov_b32 v{t0}, {L_NONCE}\nds_read_b32 v{t1}, v{t0}")
            ids2(); rotc(); consts()
            A("s_waitcnt lgkmcnt(0)")
            A(f"v_readfirstlane_b32 s{sNonce}, v{t1}")
            def pre_init():
                lds_init()
                A.c("zero block, round word, flags, counters: bytes 0..511")
                A(f"s_mov_b32 exec_hi, 0")
                A(f"ds_write_b128 v7, v[{vz+4}:{vz+7}]")
                A("s_mov_b32 exec_hi, -1")
            if o.get("f_preinit", 1): pre_init()
            A.c("offset words with the launch's mark beside each: 8-byte pairs that are written and read whole")
            A(f"v_mov_b32 v46, v152\nv_mov_b32 v47, s{sNonce}\nv_mov_b32 v48, v153\nv_mov_b32 v49, s{sNonce}")
            A(f"v_mov_b32 v62, v156\nv_mov_b32 v63, s{sNonce}\nv_mov_b32 v64, v157\nv_mov_b32 v65, s{sNonce}")
            A(f"s_lshl_b32 s19, s{sC}, 11\ns_lshl_b32 s17, s{sB}, 3\nv_mov_b32 v66, 0")
            A(f"v_cmp_gt_u32 s[6:7], s{sNseg}, v{vLane}\ns_mov_b32 s5, 0x40000")
            vA = 100
            A.c("fragment w+12q = (k step (w>>2)+3q, tile w&3): two transposing reads")
            A(f"v_lshrrev_b32 v{t0}, 4, v{vLane}\nv_bfe_u32 v{t2}, v{vLane}, 2, 2\nv_lshl_add_u32 v{vA}, v{t0}, 3, v{t2}\nv_lshlrev_b32 v{vA}, 7, v{vA}")
            A(f"s_and_b32 s4, s{sWave}, 3\nv_xor_b32 v{t2}, s4, v{t2}\nv_lshl_add_u32 v{vA}, v{t2}, 5, v{vA}")
            A(f"v_and_b32 v{t2}, 3, v{vLane}\nv_lshl_add_u32 v{vA}, v{t2}, 3, v{vA}")
            A(f"s_lshr_b32 s4, s{sWave}, 2\ns_lshl_b32 s4, s4, 12\ns_add_u32 s4, s4, {L_WT}\nv_add_u32 v{vA}, s4, v{vA}")
            A(f"s_lshl_b32 s4, s{sWave}, 10\ns_add_u32 s4, s4, {L_W}\nv_add_u32 v{vA+1}, s4, v7")
            A.c("weights scaled by w_rad, row k as [tile t ^ (k&3)][16 columns 4n+t]")
            A(f"v_and_b32 v{hA}, 7, v{vLane}\nv_lshlrev_b32 v{hA}, 2, v{hA}")
            A(f"v_lshl_add_u32 v{hA}, v144, 7, v{hA}\nv_and_b32 v144, 3, v144\nv_lshl_add_u32 v{hA}, v144, 5, v{hA}")
            A(f"s_lshl_b32 s4, s{sWave}, 10\ns_add_u32 s4, s4, {L_WT}\nv_add_u32 v{hA}, s4, v{hA}")
            for t in range(1, 4): A(f"v_xor_b32 v{hA+t}, {32*t}, v{hA}")
            A("s_mov_b32 s4, 0xffff0000")
            def wpiece(q):
                A(f"v_lshlrev_b32 v{mR+q}, 16, v{mR+q}")
                for tp in (0, 2):
                    for t in (tp, tp+1):
                        a = 144 + 4*(t & 1)
                        unpack(a, mW + 4*q + t//2, t & 1); unpack(a+1, mW + 4*q + 2 + t//2, t & 1)
                    for a in (144, 148):
                        A(f"v_pk_mul_f32 v[{a}:{a+1}], v[{a}:{a+1}], v[{mR+q & ~1}:{(mR+q & ~1)+1}] op_sel:[0,{q & 1}] op_sel_hi:[1,{q & 1}]")
                    for a in (144, 148): A(f"v_cvt_pk_bf16_f32 v{a+2+tp//2}, v{a}, v{a+1}")
                    for t in (tp, tp+1): A(f"ds_write_b32 v{hA+t}, v{144+4*(t & 1)+2+tp//2} offset:{12288*q}")
            npre = o.get("f_npre", 0)
            if npre: A("s_waitcnt vmcnt(3)")
            for q in range(npre): wpiece(q)
            round_pre()
            if o.get("coop"): coop_pre()
            st.mark("wdone")
            A(f"s_waitcnt vmcnt({ntA})")
            A("s_barrier")
            st.mark("acked")
            A.c("every record store of this workgroup has been acknowledged: publish the offsets")
            A(f"s_cmp_lg_u32 s{sWave}, 0\ns_cbranch_scc1 L_f_noflag")
            A(f"buffer_store_dwordx4 v[46:49], v7, s[{SWS}:{SWS+3}], s19 offen sc1")
            A(f"buffer_store_dwordx4 v[62:65], v7, s[{SWS}:{SWS+3}], s19 offen offset:1024 sc1")
            A("L_f_noflag:")
            if o.get("f_tB"): ftouch([o["f_tB"]])
            tpos = tp[0]
            if not o.get("f_preinit", 1): pre_init()
            for q in range(npre, 4):
                if q == 3: A(f"s_cmp_ge_u32 s{sWave}, 4\ns_cbranch_scc1 L_f_w3")
                wpiece(q)
            A("L_f_w3:")
            def poll_load(): A(f"buffer_load_dwordx2 v[{96 if o.get('f_pp', 0) else 66}:{97 if o.get('f_pp', 0) else 67}], v{vD+2}, s[{SWS}:{SWS+3}], s17 offen sc1")
            A("s_waitcnt lgkmcnt(0)")
            A("s_barrier")
            vW2 = mW
            for q in range(4):
                A(f"ds_read_b64_tr_b16 v[{vW2+4*q}:{vW2+4*q+1}], v{vA} offset:{12288*q}")
                A(f"ds_read_b64_tr_b16 v[{vW2+4*q+2}:{vW2+4*q+3}], v{vA} offset:{12288*q+512}")
            A.c("read the pairs of this wave's chunks until each carries the mark")
            if not o.get("f_late"):
                A("s_mov_b64 exec, s[6:7]")
                poll_load()
                A("s_mov_b64 exec, -1")
            assert not touch0
            tall = tpos
            for q in range(4):
                if q == 3: A(f"s_cmp_ge_u32 s{sWave}, 4\ns_cbranch_scc1 L_f_w4")
                A(f"s_waitcnt lgkmcnt({6-2*q})")
                A(f"ds_write_b128 v{vA+1}, v[{vW2+4*q}:{vW2+4*q+3}] offset:{12288*q}")
            A("L_f_w4:")
            if nacc0: A("s_waitcnt lgkmcnt(0)")
            for i in range(0, nacc0, 2): A(f"v_mov_b64 v[{vC+i}:{vC+i+1}], 0")
            if o.get("f_pp", 0):
                A.c("two reads stay in flight; a lane drops out once its pair carries the mark")
                P = (96, 98)
                def pl(k): A(f"buffer_load_dwordx2 v[{P[k]}:{P[k]+1}], v{vD+2}, s[{SWS}:{SWS+3}], s17 offen sc1")
                A(f"v_mov_b32 v{vOf}, 0")
                A("s_mov_b64 exec, s[6:7]")
                pl(1)
                A("L_f_poll:")
                for k in (0, 1):
                    A("s_waitcnt vmcnt(1)")
                    A(f"v_cmp_eq_u32 vcc, s{sNonce}, v{P[k]+1}")
                    A(f"v_cndmask_b32 v{vOf}, v{vOf}, v{P[k]}, vcc")
                    A("s_andn2_b64 exec, exec, vcc\ns_cbranch_scc0 L_f_seen")
                    if o.get("f_sleep", 1): A(f"s_sleep {o.get('f_sleep', 1)}")
                    pl(k)
                A("s_sub_u32 s5, s5, 1\ns_cbranch_scc0 L_f_poll")
                A("L_f_seen:")
                A("s_mov_b64 exec, -1")
            else:
                A("s_mov_b64 exec, s[6:7]")
                if o.get("f_late"):
                    if o["f_late"] > 1: A(f"s_sleep {o['f_late']-1}")
                    poll_load()
                if o.get("f_prio", 0): A("s_setprio 2")
                A("s_waitcnt vmcnt(0)")
                A("L_f_poll:")
                A(f"v_cmp_ne_u32 vcc, s{sNonce}, v67")
                A("s_and_b64 exec, exec, vcc\ns_cbranch_scc0 L_f_seen")
                A("s_sub_u32 s5, s5, 1\ns_cbranch_scc1 L_f_seen")
                if o.get("f_sleep", 1): A(f"s_sleep {o.get('f_sleep', 1)}")
                poll_load()
                A("s_waitcnt vmcnt(0)\ns_branch L_f_poll")
                A("L_f_seen:")
                A("s_mov_b64 exec, -1")
            st.mark("seen")
            if o.get("coop"):
                A(f"s_cmp_ge_u32 s9, s{sNseg}\ns_cbranch_scc1 L_f_nocoop")
                A("s_mov_b32 exec_hi, 3")
                A(f"buffer_load_dword v{vD+59}, v{vD+58}, s[{SWS}:{SWS+3}], s10 offen {o['coop']}")
                A("s_mov_b32 exec_hi, -1")
                A("L_f_nocoop:")
            if o.get("f_pp", 0): pass
            elif tag: A(f"v_mov_b32 v{vOf}, v66")
            else:
                A(f"buffer_load_dword v{vOf}, v{vD+2}, s[{SWS}:{SWS+3}], s17 offen sc1")
                A("s_waitcnt vmcnt(0)")
    st.mark("off")
    A("L_k2_round:")
    vLen, vInc, vM, vPos = vD+2, vD+3, vD+28, vD+29
    vMk = vD + 30
    vR = vT
    assert vMkA == vMk + 4
    vSave = vD + 36
    A(f"v_lshrrev_b32 v{vInc}, 16, v{vOf}")
    A(f"v_and_b32 v{vM}, 0xffff, v{vOf}")
    A(f"v_mov_b32 v{vLen}, v{vInc}")
    steps = scan_steps("v_add_u32", vInc, upto=32)
    if fused and o.get("rectouch"):
        A.c("start the first and the last line of every segment on their way before the addresses per record are known")
        A(f"v_mad_u32_u24 v{vD+58}, v{vM}, 12, v{vBase}\ns_mov_b32 s19, {WS_REC}")
        A(f"v_mad_u32_u24 v{vD+59}, v{vLen}, 12, v{vD+58}")
        A("s_mov_b64 exec, s[6:7]")
        A(f"buffer_load_dword v{vD+60}, v{vD+58}, s[{SWS}:{SWS+3}], s19 offen sc1")
        if o["rectouch"] > 1:
            A(f"s_sub_u32 s19, s19, 4")
            A(f"buffer_load_dword v{vD+61}, v{vD+59}, s[{SWS}:{SWS+3}], s19 offen sc1")
        A("s_mov_b64 exec, -1")
    A(steps[0])
    A(f"s_mul_i32 s17, s{sRound}, {WIN}")
    A(steps[1])
    A(f"s_movk_i32 s19, 383")
    A(steps[2])
    A(f"v_add_u32 v{vM}, v{vM}, v{vLen}")
    A(steps[3]); A(steps[4])
    A(f"v_sub_u32 v{vM}, v{vM}, v{vInc}")
    A(f"v_readlane_b32 s{sTot}, v{vInc}, 31")
    A(f"v_sub_u32 v{vInc}, v{vInc}, v{vLen}")
    A(f"v_mad_i32_i24 v{vM}, v{vM}, 12, v{vBase}")
    A(f"v_subrev_u32 v{vPos}, s17, v{vInc}")
    A(f"v_med3_i32 v{vPos}, v{vPos}, 0, s19")
    A(f"v_lshl_add_u32 v{vPos}, v{vPos}, 2, s{sMk}")
    if fused and o.get("mkmask", 1):
        A("s_mov_b64 exec, s[6:7]")
        A(f"ds_max_u32 v{vPos}, v{vM}")
        A("s_mov_b64 exec, -1")
    else:
        A(f"s_mov_b32 exec_hi, 0")
        A(f"ds_max_u32 v{vPos}, v{vM}")
        A("s_mov_b32 exec_hi, -1")
    for it in range(NIT): A(f"ds_read_b32 v{vMk+it}, v{vMk+4} offset:{256*it}")
    A(f"v_mov_b32 v{vSave}, v{vOf}\nv_mov_b32 v{vSave+1}, v{vD+1}")
    A(f"s_sub_u32 s{sRem}, s{sTot}, s17\ns_min_i32 s{sRem}, s{sRem}, {WIN}")
    A(f"s_mul_i32 s17, s17, 12\ns_add_u32 s17, s17, {WS_REC}")
    eo = fused and o.get("f_eo")
    def flag_load(): A(f"buffer_load_dword v{vD+59}, v{vD+58}, s[{SWS}:{SWS+3}], s8 offen sc1")
    if eo and o.get("eo_pos", 0) == 0:
        A("s_mov_b64 exec, s[6:7]"); flag_load(); A("s_mov_b64 exec, -1")
    A("s_waitcnt lgkmcnt(1)")
    sc = [scan_steps("v_max_u32", vMk+it) for it in range(NIT)]
    for k in range(6):
        for it in range(NIT-1): A(sc[it][k])
    def recload(it):
        A(f"buffer_load_dwordx3 v[{vR+4*it}:{vR+4*it+2}], v{vMk+it}, s[{SWS}:{SWS+3}], s17 offen offset:{768*it} {hf}")
    for it in range(NIT-1): A(f"v_readlane_b32 s{sCar[it]}, v{vMk+it}, 63")
    A(f"v_add_u32 v{vMk}, v{vMk}, v{vL12}")
    for it in range(1, NIT-1): A(f"s_max_u32 s{sCar[it]}, s{sCar[it]}, s{sCar[it-1]}")
    if eo:
        for it in range(1, NIT-1):
            A(f"v_max_u32 v{vMk+it}, s{sCar[it-1]}, v{vMk+it}")
            A(f"v_add_u32 v{vMk+it}, v{vMk+it}, v{vL12}")
        A.c("the records may be read once the flags of this wave's chunks are up")
        A("s_mov_b64 exec, s[6:7]")
        if o.get("eo_pos", 0) == 1: flag_load()
        A("L_f_poll2:")
        A("s_waitcnt vmcnt(0)")
        A(f"v_cmp_ne_u32 vcc, s35, v{vD+59}")
        A("s_and_b64 exec, exec, vcc\ns_cbranch_scc0 L_f_seen2")
        A("s_sub_u32 s5, s5, 1\ns_cbranch_scc1 L_f_giveup2")
        A(f"s_sleep {o.get('f_sleep', 1)}")
        flag_load()
        A("s_branch L_f_poll2")
        A("L_f_giveup2:\ns_mov_b64 s[6:7], 0")
        A("L_f_seen2:")
        A("s_mov_b64 exec, -1")
        st.mark("seen")
    A.c("the last window is nearly always empty: it goes first, so the counted waits below do not depend on it")
    A(f"s_cmp_le_i32 s{sRem}, {64*(NIT-1)}\ns_cbranch_scc1 L_k2_skip4")
    A("s_waitcnt lgkmcnt(0)")
    for k in range(6): A(sc[NIT-1][k])
    A(f"v_max_u32 v{vMk+NIT-1}, s{sCar[NIT-2]}, v{vMk+NIT-1}")
    A(f"v_add_u32 v{vMk+NIT-1}, v{vMk+NIT-1}, v{vL12}")
    recload(NIT-1)
    A("L_k2_skip4:")
    recload(0)
    for it in range(1, NIT-1):
        if not eo:
            A(f"v_max_u32 v{vMk+it}, s{sCar[it-1]}, v{vMk+it}")
            A(f"v_add_u32 v{vMk+it}, v{vMk+it}, v{vL12}")
        if it == NIT-2 and o.get("mask3"):
            A(f"s_sub_u32 s19, s{sRem}, {64*it}\ns_max_i32 s19, s19, 1\nv_cmp_gt_i32 vcc, s19, v{vLane}\ns_mov_b64 exec, vcc")
        recload(it)
        if it == NIT-2 and o.get("mask3"): A("s_mov_b64 exec, -1")
    if fused and o.get("f_prio", 0): A("s_setprio 0")
    st.mark("recissue")
    for it in range(NIT):
        if it: A(f"s_sub_u32 s19, s{sRem}, {64*it}")
        A(f"v_cmp_gt_i32 s[{sMask+2*it}:{sMask+2*it+1}], s{19 if it else sRem}, v{vLane}")
    A.c("lane constants of the main loop")
    A(f"v_and_b32 v{vOff}, 15, v{vLane}\nv_lshlrev_b32 v{vOff}, 4, v{vOff}")
    A(f"v_and_b32 v{vSh}, 3, v{vLane}\nv_add_u32 v{vSh}, 28, v{vSh}")
    if nacc0 < 64:
        A(f"s_cmp_lg_u32 s{sRound}, 0\ns_cbranch_scc1 L_k2_acc")
        for i in range(nacc0, 64, 2): A(f"v_mov_b64 v[{vC+i}:{vC+i+1}], 0")
        A("L_k2_acc:")
    vBin = vMk
    vRank = vD + 44
    vc, vs, vtq, vx, vm1, vm2 = vD+50, vD+51, vD+52, vD+53, vD+54, vD+55
    vOne = vD + 56
    A(f"v_and_b32 v{vx}, 3, v{vLane}")
    A(f"v_cmp_lt_u32 vcc, 0, v{vx}\nv_lshlrev_b32 v{vPos}, 2, v{vLane}\nv_mov_b32 v{vM}, {L_RND}\nv_cndmask_b32 v{vm1}, 0, -1, vcc")
    A(f"v_cmp_lt_u32 vcc, 1, v{vx}")
    A(f"v_lshrrev_b32 v{vKA}, 4, v{vLane}\nv_lshlrev_b32 v{vKA}, 2, v{vKA}")
    A(f"v_cndmask_b32 v{vm2}, 0, -1, vcc")
    A(f"v_and_b32 v{vK2A}, 12, v{vLane}\nv_lshl_add_u32 v{vK2A}, v{vK2A}, 2, v{vKA}")
    A(f"v_mov_b32 v7, v{vSave}\nv_mov_b32 v0, v{vSave+1}")
    A(f"v_mov_b32 v{vOne}, 4")
    A.c("lanes without a record keep a rank that puts their LDS writes out of range")
    for it in range(NIT): A(f"v_mov_b32 v{vRank+it}, 0x100000" if it == 0 else f"v_mov_b32 v{vRank+it}, v{vRank}")
    tb = o.get("k2_touchb")
    ntb = 0
    nobar = fused and o.get("nobar", 0)
    if not nobar:
        A.c("counters and pad keys of every wave are in place, every record load of the workgroup is under way")
        A("s_waitcnt lgkmcnt(0)")
        A("s_barrier")
    A.c("a wave with more records than one window raises the number of rounds")
    A(f"s_cmp_le_u32 s{sTot}, {WIN}\ns_cbranch_scc1 L_k2_one")
    A(f"v_mov_b32 v{vx}, s{sTot}")
    A("s_mov_b64 exec, 1")
    A(f"ds_max_u32 v{vM}, v{vx}")
    A("s_mov_b64 exec, -1")
    A("L_k2_one:")
    if wpos == 1:
        A(f"v_lshlrev_b32 v{vD+4}, 4, v{vLane}")
        wdma(vD+4); ntb += 4
    def touch_b():
        nonlocal ntb, tpos
        A.c("pull the first rows of x into this XCD's L2 behind the record loads")
        A(f"v_lshlrev_b32 v{vD+5}, 7, v{vLane}")
        A(f"s_lshr_b32 s34, s2, 3\ns_mul_i32 s34, s34, {NW}\ns_add_u32 s34, s34, s{sWave}")
        ntb += touch_x(A, tb, 34, 17, vD+5, vD+6, SX, NW, sRot, tpos)
        tpos += sum(tb[1:]) * 128 * NW * 32
        if o.get("k2_mall") == 2: mall_touch(tpos); ntb += 1
    if tb and not nobar: touch_b()
    late_touch = []
    if tb and nobar:
        n0 = len(A.L); keep = ntb
        touch_b(); ntb = keep
        lines = [l.replace("s17", "s44") for l in A.L[n0:]]; del A.L[n0:]
        k = next(i for i, l in enumerate(lines) if "exec" in l)
        A.L += lines[:k]; late_touch = lines[k:]
    for it in range(NIT):
        if it < NIT-1: A(f"s_waitcnt vmcnt({NIT-2-it+ntb})")
        else: A(f"s_cmp_le_i32 s{sRem}, {64*(NIT-1)}\ns_cbranch_scc1 L_k2_skip4a")
        if it == 0: st.mark("rec0")
        A(f"v_and_b32 v{vBin+it}, 0xfc, v{vR+4*it+2}")
        A(f"s_mov_b64 exec, s[{sMask+2*it}:{sMask+2*it+1}]")
        A(f"ds_add_rtn_u32 v{vRank+it}, v{vBin+it}, v{vOne} offset:{L_CNT}")
        A("s_mov_b64 exec, -1")
    A("L_k2_skip4a:")
    A.L += late_touch
    A("s_waitcnt lgkmcnt(0)")
    A("s_barrier")
    st.mark("ranked")
    A(f"ds_read_b32 v{vc}, v{vPos} offset:{L_CNT}")
    A(f"ds_read_b32 v{vM}, v{vM}")
    if wpos in (3, 4):
        A(f"s_cmp_lg_u32 s{sRound}, 0\ns_cbranch_scc1 L_k2_now")
        A(f"v_lshlrev_b32 v{vD+4}, 4, v{vLane}")
        wdma(vD+4)
        A("L_k2_now:")
    nt = 0
    touch = o.get("k2_touch")
    if touch:
        A.c("pull rows of x into this XCD's L2 while the records are being placed")
        A(f"v_lshlrev_b32 v{vD+5}, 7, v{vLane}")
        A(f"s_lshr_b32 s34, s2, 3\ns_mul_i32 s34, s34, {NW}\ns_add_u32 s34, s34, s{sWave}")
        nt = touch_x(A, touch, 34, 17, vD+5, vD+6, SX, NW, sRot, tpos)
        assert nt <= 1
    if o.get("k2_mall") == 1: mall_touch(tall)
    A(f"s_lshl_b32 s19, s{sGrp}, 2")
    A("s_waitcnt lgkmcnt(1)")
    A(f"v_and_b32_dpp v{vx}, v{vc}, v{vm1} quad_perm:[0,0,1,2] row_mask:0xf bank_mask:0xf")
    A(f"v_add_u32 v{vs}, v{vc}, v{vx}")
    A(f"v_and_b32_dpp v{vx}, v{vs}, v{vm2} quad_perm:[0,0,0,1] row_mask:0xf bank_mask:0xf")
    A(f"v_add_u32 v{vs}, v{vs}, v{vx}")
    A(f"v_mov_b32_dpp v{vtq}, v{vs} quad_perm:[3,3,3,3] row_mask:0xf bank_mask:0xf")
    A(f"v_add_u32 v{vx}, 127, v{vtq}\nv_and_b32 v{vx}, 0xffffff80, v{vx}")
    A(f"v_sub_u32 v{vs}, v{vs}, v{vc}")
    A(f"v_sub_u32 v{vs}, v{vs}, v{vx}")
    sq = scan_steps("v_add_u32", vx, first=4)
    A(f"v_mov_b32 v{vc}, v{vx}")
    A(sq[0])
    A(f"v_readlane_b32 s{sN}, v{vtq}, s19")
    for s_ in sq[1:]: A(s_)
    A(f"v_add_u32 v{vs}, v{vs}, v{vx}")
    A(f"v_sub_u32 v{vc}, v{vx}, v{vc}")
    A(f"s_cmp_le_i32 s{sRem}, {64*(NIT-1)}\ns_cbranch_scc1 L_k2_skip4c")
    A(f"ds_bpermute_b32 v{vBin+NIT-1}, v{vBin+NIT-1}, v{vs}")
    A("L_k2_skip4c:")
    for it in range(NIT-1): A(f"ds_bpermute_b32 v{vBin+it}, v{vBin+it}, v{vs}")
    A(f"v_readlane_b32 s17, v{vc}, s19")
    A(f"s_cmp_lg_u32 s{sRound}, 0\ns_cbranch_scc1 L_k2_havernd")
    A(f"s_waitcnt lgkmcnt({NIT-1})")
    A(f"v_readfirstlane_b32 s{sRnd}, v{vM}")
    A("L_k2_havernd:")
    A.c("LDS addresses of this wave's slots (counts and starts are in units of 4 bytes)")
    A(f"v_add_u32 v{vKA}, s17, v{vKA}")
    A(f"v_add_u32 v{vK2A}, s17, v{vK2A}")
    A(f"s_movk_i32 s19, {L_COEF}")
    A(f"v_lshl_add_u32 v{vCA}, v{vK2A}, 1, s19")
    A(f"s_lshr_b32 s{sN}, s{sN}, 2")
    A(f"s_add_u32 s17, s{sN}, 31\ns_lshr_b32 s17, s17, 5")
    prio = o.get("prio", [3, 2, 1])
    frac = o.get("frac")
    np_ = len(prio) if prio else 0
    for k in range(1, np_):
        t = (sT1, sT2, sT3)[k-1]
        f = int(256 * (frac[k-1] if frac else k / np_) + 0.999)
        A(f"s_mul_i32 s{t}, s17, {f}\ns_add_u32 s{t}, s{t}, 128\ns_lshr_b32 s{t}, s{t}, 8")
    for it in range(NIT):
        p = vBin + it
        if it == NIT-1: A(f"s_cmp_le_i32 s{sRem}, {64*(NIT-1)}\ns_cbranch_scc1 L_k2_skip4b")
        if it < NIT-1: A(f"s_waitcnt lgkmcnt({NIT-2-it + 2*it})")
        A(f"v_add_u32 v{p}, v{p}, v{vRank+it}")
        A(f"ds_write_b32 v{p}, v{vR+4*it+2} offset:{L_KEY}")
        A(f"v_lshlrev_b32 v{vRank+it}, 1, v{p}")
        A(f"ds_write_b64 v{vRank+it}, v[{vR+4*it}:{vR+4*it+1}] offset:{L_COEF}")
    A("L_k2_skip4b:")
    younger = (ntb - 4 if wpos == 1 else 0) + nt + (1 if o.get("k2_mall") == 1 else 0)
    A(f"s_waitcnt vmcnt({younger}) lgkmcnt(0)" if wpos in (1, 3) else "s_waitcnt lgkmcnt(0)")
    A("s_barrier")
    st.mark("sorted")
    def rd_keys():
        for q in range(4):
            A(f"ds_read2_b32 v[{vK+2*q}:{vK+2*q+1}], v{vKA} offset0:{L_KEY//4+8*q} offset1:{L_KEY//4+8*q+4}")
        A(f"ds_read2_b32 v[{vK2}:{vK2+1}], v{vK2A} offset0:{L_KEY//4} offset1:{L_KEY//4+16}")
        A(f"v_add_u32 v{vKA}, 128, v{vKA}\nv_add_u32 v{vK2A}, 128, v{vK2A}")
    def addr():
        for i in range(8): A(f"v_and_or_b32 v{vK+i}, v{vK+i}, s{sRowM}, v{vOff}")
        for u in range(2):
            A(f"v_bfe_i32 v{vK2+u}, v{vK2+u}, v{vSh}, 1")
            A(f"v_and_b32 v{vK2+u}, v{vK2+u}, v{vCA}")
        A(f"v_add_u32 v{vCA}, 256, v{vCA}")
    def rd_coef():
        A(f"ds_read_b64_tr_b16 v[{vAF}:{vAF+1}], v{vK2}")
        A(f"ds_read_b64_tr_b16 v[{vAF+2}:{vAF+3}], v{vK2+1} offset:128")
    gf = o.get("gather_flags", "")
    def load(h, i):
        d = vD + h*32 + i*4
        A(f"buffer_load_dwordx4 v[{d}:{d+3}], v{vK+i}, s[{SX}:{SX+3}], 0 offen offset:{h*256} {gf}")
    def loads(h):
        for i in range(8): load(h, i)
    def loads_part(h, tag, wait):
        for i in range(8):
            if i: A(f"s_cmp_le_i32 s{sRem}, {4*i}\ns_cbranch_scc1 L_{tag}_{i}")
            load(h, i)
        if wait:
            A(f"s_waitcnt vmcnt(8)\ns_branch L_{tag}_done")
            for i in range(1, 8):
                A(f"L_{tag}_{i}:\ns_waitcnt vmcnt({i})")
                if i < 7: A(f"s_branch L_{tag}_done")
            A(f"L_{tag}_done:")
        else:
            for i in range(1, 8): A(f"L_{tag}_{i}:")
    def comp(h, lgkm=False, filler=None):
        if o.get("diag_nocomp"):
            if lgkm: A("s_waitcnt lgkmcnt(0)")
            if filler: filler()
            return
        def mf(g):
            t = vT + (g % 4)*4
            c = vC + (h*8 + g)*4
            A(f"v_mfma_f32_16x16x32_bf16 v[{c}:{c+3}], v[{vAF}:{vAF+3}], v[{t}:{t+3}], v[{c}:{c+3}]")
        for g in range(8):
            u, par = g >> 1, g & 1
            t = vT + (g % 4)*4
            for q in range(4):
                a = vD + h*32 + (2*q)*4 + u
                b = vD + h*32 + (2*q+1)*4 + u
                A(f"v_perm_b32 v{t+q}, v{b}, v{a}, s{sP0+par}")
            if lgkm and g == 1: A("s_waitcnt lgkmcnt(0)")
            if g: mf(g-1)
        if filler: filler()
        mf(7)
    vH, vSW, vGA, vWB, vO, vFl = vK, vK+1, vK+2, vK+3, vK+4, vK+5
    vY0 = vKA
    sS, sOut = 41, 42
    assert o.get("gshift", 0) % 4 == 0
    def epi_consts():
        g, n = vK+6, vK+7
        A.c("waves 4q..4q+3 share a tile of nodes; once all four have staged their sums, wave 4q+s multiplies component s")
        A(f"s_and_b32 s{sS}, s{sWave}, 3\ns_and_b32 s40, s{sGrp}, 12")
        A(f"v_lshrrev_b32 v{g}, 4, v{vLane}\nv_and_b32 v{n}, 15, v{vLane}")
        A(f"v_bfe_u32 v{vH}, v{vLane}, 3, 1\nv_cvt_f32_u32 v{vH}, v{vH}")
        A.c("staging rows: four for each of groups 0..3, three for the others")
        A(f"s_min_u32 s17, s{sGrp}, 4\ns_mul_i32 s19, s{sGrp}, 3\ns_add_u32 s17, s17, s19")
        A(f"s_mul_i32 s17, s17, {SNODE}\ns_add_u32 s17, s17, {L_STG}\ns_movk_i32 s19, {SNODE}")
        A(f"v_lshl_add_u32 v{vSW}, v{n}, 4, s17")
        A(f"v_mad_u32_u24 v{vSW}, v{g}, s19, v{vSW}")
        A(f"s_min_u32 s17, s40, 4\ns_mul_i32 s46, s40, 3\ns_add_u32 s17, s17, s46")
        A(f"s_mul_i32 s17, s17, {SNODE}\ns_add_u32 s17, s17, {L_STG}")
        A(f"v_lshl_add_u32 v{vGA}, v{g}, 4, s17")
        A(f"v_mad_u32_u24 v{vGA}, v{n}, s19, v{vGA}")
        A(f"s_cmp_eq_u32 s40, 0\ns_cselect_b32 s19, 0, {-SNODE}")
        A(f"v_lshrrev_b32 v{vO}, 2, v{n}\nv_mad_i32_i24 v{vGA}, v{vO}, s19, v{vGA}")
        A.c("block p of component s sits in slot (k, high); one byte per s, in units of 128 bytes")
        ent = {0: [(0,0),(2,0),(3,0),(4,0)], 1: [(2,1),(0,1),(1,0),(1,1)], 2: [(0,0),(5,1),(4,1),(3,1)]}
        A(f"s_lshl_b32 s19, s{sS}, 3")
        for p in range(3):
            c = sum((2*k + h) << (8*i) for i, (k, h) in enumerate(ent[p]))
            A(f"s_lshr_b32 s17, {c:#x}, s19\ns_and_b32 s17, s17, 0xff\ns_lshl_b32 s17, s17, 7")
            A(f"v_add_u32 v{vY0+p}, s17, v{vGA}")
        A(f"s_min_u32 s17, s{sS}, 1\ns_lshl_b32 s17, s17, 14\ns_add_u32 s17, s17, {L_W}")
        A(f"v_lshl_add_u32 v{vWB}, v{vLane}, 4, s17")
        A(f"s_lshl_b32 s17, s40, 10\ns_add_u32 s17, s17, {L_GATE}")
        A(f"v_lshl_add_u32 v{vGA}, v{vLane}, 4, s17")
        A(f"s_lshl_b32 s17, s40, 1\ns_add_u32 s17, s17, {L_FLAG}\nv_mov_b32 v{vFl}, s17")
        A.c("output row = bucket + 256*(first group + g + 12r); rows past the last node fall outside the descriptor")
        A(f"v_lshlrev_b32 v{vO}, 17, v{g}\nv_lshl_add_u32 v{vO}, v{n}, 3, v{vO}")
        A(f"s_lshl_b32 s{sOut}, s40, 17\ns_lshl_b32 s17, s{2 if o.get('bid') == 2 else sB}, 9\ns_add_u32 s{sOut}, s{sOut}, s17")
        A(f"s_lshl_b32 s17, s{sS}, 7\ns_add_u32 s{sOut}, s{sOut}, s17")
        for r in range(1, 4): A(f"s_add_u32 s{sOut+r}, s{sOut}, {r*12 << 17}")
        A(f"s_cmp_lt_u32 s{sGrp}, 4\ns_cselect_b32 s46, -1, 0xffff")
        A(f"s_add_u32 s47, s{sRound}, 1\ns_mul_i32 s47, s47, {WIN}")
    if prio: A(f"s_setprio {prio[0]}")
    rd_keys()
    A(f"s_mov_b32 s{sRem}, s{sN}\ns_mov_b32 s{sStep}, 1")
    A(f"s_cmp_ge_u32 s{sN}, 32\ns_cbranch_scc1 L_k2_full")
    A.c("fewer than 32 edges: the row registers that no load fills must not hold NaN patterns")
    A("s_waitcnt vmcnt(0) lgkmcnt(0)")
    for i in range(64): A(f"v_mov_b32 v{vD+i}, 0")
    addr()
    rd_coef()
    A(f"s_cmp_eq_u32 s{sN}, 0\ns_cbranch_scc1 L_k2_last")
    loads_part(0, "p0", False)
    loads_part(1, "p1", False)
    A("s_branch L_k2_last")
    A("L_k2_full:")
    A("s_waitcnt lgkmcnt(0)")
    addr()
    rd_coef()
    loads(0); loads(1)
    rd_keys()
    A(f"s_sub_u32 s{sRem}, s{sRem}, 32")
    A(f"s_cmp_lt_i32 s{sRem}, 32\ns_cbranch_scc1 L_k2_tail")
    A(".p2align 3")
    A("L_k2_loop:")
    if np_ > 1:
        for k in range(1, np_):
            t = (sT1, sT2, sT3)[k-1]
            A(f"s_cmp_lg_u32 s{sStep}, s{t}\ns_cbranch_scc1 L_k2_pr{k}\ns_setprio {prio[k]}\nL_k2_pr{k}:")
        A(f"s_add_u32 s{sStep}, s{sStep}, 1")
    A("s_waitcnt vmcnt(8)")
    if wpos == 4:
        A(f"s_cmp_lg_u32 s{sSaid}, 0\ns_cbranch_scc1 L_k2_said1")
        A(f"v_mov_b32 v{vT}, {L_FLAG+32}\nv_mov_b32 v{vT+1}, 1")
        A(f"s_mov_b64 exec, 1\nds_add_u32 v{vT}, v{vT+1}\ns_mov_b64 exec, -1\ns_mov_b32 s{sSaid}, 1")
        A("L_k2_said1:")
    comp(0, True, addr)
    loads(0)
    A("s_waitcnt vmcnt(8)")
    comp(1, False, lambda: load(1, 0))
    for i in range(1, 8): load(1, i)
    rd_coef()
    rd_keys()
    A(f"s_sub_u32 s{sRem}, s{sRem}, 32")
    A(f"s_cmp_ge_i32 s{sRem}, 32\ns_cbranch_scc1 L_k2_loop")
    A("L_k2_tail:")
    if prio: A(f"s_setprio {prio[-1]}")
    A(f"s_cmp_le_i32 s{sRem}, 0\ns_cbranch_scc1 L_k2_last")
    A("s_waitcnt vmcnt(8)")
    comp(0, True, addr)
    loads_part(0, "t0", True)
    comp(1)
    loads_part(1, "t1", False)
    rd_coef()
    A("L_k2_last:")
    A("s_waitcnt lgkmcnt(0)")
    epi_consts()
    if o.get("lastsplit", 1):
        A.c("both halves of the last step have the same number of loads: wait for the first half only")
        A(f"s_add_u32 s17, s{sN}, 31\ns_and_b32 s17, s17, 31")
        for i in range(1, 8): A(f"s_cmp_lt_u32 s17, {4*i}\ns_cbranch_scc1 L_lw{i}")
        A("s_waitcnt vmcnt(8)\ns_branch L_lw0")
        for i in range(1, 8):
            A(f"L_lw{i}:\ns_waitcnt vmcnt({i})")
            if i < 7: A("s_branch L_lw0")
        A("L_lw0:")
    else: A("s_waitcnt vmcnt(0)")
    if wpos == 4:
        A.c("this wave's share of the weights has landed; they are read once all twelve waves have said so")
        A(f"v_mov_b32 v{vK+6}, {L_FLAG+32}\nv_mov_b32 v{vK+7}, 1")
        A(f"s_cmp_lg_u32 s{sSaid}, 0\ns_cbranch_scc1 L_k2_said")
        A(f"s_mov_b64 exec, 1\nds_add_u32 v{vK+6}, v{vK+7}\ns_mov_b64 exec, -1\ns_mov_b32 s{sSaid}, 1")
        A("L_k2_said:")
        A(f"ds_read_b32 v{vK+7}, v{vK+6}")
    comp(0)
    if wpos == 4:
        A("L_k2_wait0:")
        A("s_waitcnt lgkmcnt(0)")
        A(f"v_readfirstlane_b32 s17, v{vK+7}")
        A(f"s_cmp_ge_u32 s17, {NW}\ns_cbranch_scc1 L_k2_go0")
        A(f"s_cmp_lt_u32 s47, s{sRnd}\ns_cbranch_scc1 L_k2_go0")
        A(f"s_sleep 1\nds_read_b32 v{vK+7}, v{vK+6}\ns_branch L_k2_wait0")
        A("L_k2_go0:")
    vPk = vT + 4
    wreg = [vD + 4*n for n in range(16)] + [vC + 40 + 4*n for n in range(6)] + [vAF, vT + 12]
    jobs = [(kk, t) for kk in range(6) for t in range(4)]
    def rdw(n):
        A(f"ds_read_b128 v[{wreg[n]}:{wreg[n]+3}], v{vWB} offset:{n*1024}")
    for n in range(8): rdw(n)
    if o.get("lastsplit", 1): A("s_waitcnt vmcnt(0)")
    comp(1)
    eprio = o.get("eprio", 0)
    if prio: A(f"s_setprio {eprio}")
    st.mark("loopend")
    A(f"s_add_u32 s{sRound}, s{sRound}, 1")
    A(f"s_mul_i32 s17, s{sRound}, {WIN}")
    A(f"s_cmp_ge_u32 s17, s{sRnd}\ns_cbranch_scc1 L_k2_epi")
    A.c("rare: a wave found more records than one window holds; sort and gather the next window")
    A("s_waitcnt vmcnt(0) lgkmcnt(0)")
    A("s_barrier")
    A(f"v_mov_b32 v{vOf}, v7\nv_mov_b32 v{vD+1}, v0")
    A(f"s_lshl_b32 s17, s{sWave}, 6\nv_add_u32 v0, s17, v{vLane}")
    A(f"v_lshlrev_b32 v7, 4, v{vLane}")
    lds_init(); round_pre()
    A(f"s_mov_b32 exec_lo, 0xffff\ns_mov_b32 exec_hi, 0")
    A(f"ds_write_b128 v7, v[{vz+4}:{vz+7}] offset:{L_CNT}")
    A("s_mov_b64 exec, -1")
    A("s_waitcnt lgkmcnt(0)")
    A("s_barrier")
    A("s_branch L_k2_round")
    A("L_k2_epi:")
    if o.get("diag_noepi"):
        if st.on: st.mark("issued")
        st.flush(14, sWave, vT, 48)
        A("s_endpgm")
        st.on = False
    U = lambda jj, a: vC + jj*4 + a
    V = lambda jj, a: vC + (8+jj)*4 + a
    ror = "row_ror:8 row_mask:0xf bank_mask:0xf"
    srcs = [lambda jj: U(jj,0), lambda jj: V(jj,0), lambda jj: U(jj,1), lambda jj: U(jj,2), lambda jj: U(jj,3), lambda jj: V(jj,2)]
    npk = [0]
    def pack(k):
        r = vPk + 4*(npk[0] % 2); npk[0] += 1
        for q in range(4): A(f"v_cvt_pk_bf16_f32 v{r+q}, v{srcs[k](2*q)}, v{srcs[k](2*q+1)}")
        A(f"ds_write_b128 v{vSW}, v[{r}:{r+3}] offset:{k*SPITCH}")
    A.c("groups with three nodes own three staging rows: their fourth lane group does not write")
    A("s_mov_b32 exec_hi, s46")
    pack(0); pack(1)
    for jj in range(8):
        t0, t1 = vT + 2*(jj & 1), vT + 1 + 2*(jj & 1)
        A(f"v_add_f32_dpp v{t0}, v{V(jj,2)}, v{V(jj,3)} {ror}")
        A(f"v_sub_f32_dpp v{t1}, v{V(jj,1)}, v{U(jj,2)} {ror}")
        A(f"v_subrev_f32_dpp v{V(jj,2)}, v{V(jj,3)}, v{V(jj,2)} {ror}")
        A(f"v_fma_f32 v{U(jj,1)}, v{t0}, v{vH}, v{U(jj,1)}")
        A(f"v_fma_f32 v{U(jj,3)}, -v{V(jj,1)}, v{vH}, v{U(jj,3)}")
        A(f"v_cndmask_b32 v{U(jj,2)}, v{U(jj,2)}, v{t1}, s[{sH}:{sH+1}]")
    for k in (2, 3, 4, 5): pack(k)
    vS = vC
    vY = vC + 24
    vG = vD
    vF1, vF2 = vT, vT + 1
    A(f"v_mov_b32 v{vF1}, 1")
    A.c("LDS serves a wave's requests in order: the count goes up after the six writes")
    A("s_mov_b64 exec, 1")
    A(f"ds_add_u32 v{vFl}, v{vF1}")
    A("s_mov_b64 exec, -1")
    st.mark("staged")
    for n in range(8, 24): rdw(n)
    A(f"s_mov_b32 s19, 0xbfb8aa3b")
    A("L_k2_wait1:")
    A(f"ds_read_b32 v{vF2}, v{vFl}")
    for kk in range(6): A(f"ds_read_b128 v[{vS+4*kk}:{vS+4*kk+3}], v{vY0+kk//2} offset:{64*(kk & 1)}")
    A("s_waitcnt lgkmcnt(6)")
    A(f"v_readfirstlane_b32 s17, v{vF2}")
    A("s_cmp_ge_u32 s17, 4\ns_cbranch_scc1 L_k2_go1")
    if o.get("spin_light", 1):
        A("L_k2_spin1:")
        A(f"s_sleep 1\nds_read_b32 v{vF2}, v{vFl}\ns_waitcnt lgkmcnt(0)\nv_readfirstlane_b32 s17, v{vF2}")
        A("s_cmp_ge_u32 s17, 4\ns_cbranch_scc0 L_k2_spin1\ns_branch L_k2_wait1")
    else: A("s_waitcnt lgkmcnt(0)\ns_sleep 1\ns_branch L_k2_wait1")
    A("L_k2_go1:")
    of = o.get("out_flags", "sc1")
    nfin = [0]
    def finish():
        of2 = o.get("out_flags_early")
        for r in range(4):
            A(f"v_cvt_pk_bf16_f32 v{vD+16+2*r}, v{vY+r}, v{vY+4+r}\nv_cvt_pk_bf16_f32 v{vD+17+2*r}, v{vY+8+r}, v{vY+12+r}")
            if of2 is None: A(f"buffer_store_dwordx2 v[{vD+16+2*r}:{vD+17+2*r}], v{vO}, s[{SOUT}:{SOUT+3}], s{sOut+r} offen {of}")
        if of2 is not None:
            k = nfin[0]; nfin[0] += 1
            A(f"s_cmp_ge_u32 s{sWave}, 8\ns_cbranch_scc1 L_k2_fa{k}")
            for r in range(4): A(f"buffer_store_dwordx2 v[{vD+16+2*r}:{vD+17+2*r}], v{vO}, s[{SOUT}:{SOUT+3}], s{sOut+r} offen {of2}")
            A(f"s_branch L_k2_fb{k}\nL_k2_fa{k}:")
            for r in range(4): A(f"buffer_store_dwordx2 v[{vD+16+2*r}:{vD+17+2*r}], v{vO}, s[{SOUT}:{SOUT+3}], s{sOut+r} offen {of}")
            A(f"L_k2_fb{k}:")
    def mm(kk, t):
        r, acc = wreg[4*kk + t], vY + 4*t
        cin = "0" if kk == 0 else f"v[{acc}:{acc+3}]"
        A(f"v_mfma_f32_16x16x32_bf16 v[{acc}:{acc+3}], v[{vS+4*kk}:{vS+4*kk+3}], v[{r}:{r+3}], {cin}")
    A(f"s_cmp_eq_u32 s{sS}, 0\ns_cbranch_scc1 L_k2_x")
    for kk in range(6):
        A(f"s_waitcnt lgkmcnt({5-kk})")
        for t in range(4): mm(kk, t)
    A.c("vector outputs: the gates of this node tile")
    A("L_k2_wait2:")
    A(f"ds_read_b32 v{vF2}, v{vFl} offset:4")
    for t in range(4): A(f"ds_read_b128 v[{vG+4*t}:{vG+4*t+3}], v{vGA} offset:{1024*t}")
    A("s_waitcnt lgkmcnt(4)")
    A(f"v_readfirstlane_b32 s17, v{vF2}")
    A("s_cmp_lg_u32 s17, 0\ns_cbranch_scc1 L_k2_go2")
    if o.get("spin_light", 1):
        A("L_k2_spin2:")
        A(f"s_sleep 1\nds_read_b32 v{vF2}, v{vFl} offset:4\ns_waitcnt lgkmcnt(0)\nv_readfirstlane_b32 s17, v{vF2}")
        A("s_cmp_lg_u32 s17, 0\ns_cbranch_scc0 L_k2_spin2\ns_branch L_k2_wait2")
    else: A("s_waitcnt lgkmcnt(0)\ns_branch L_k2_wait2")
    A("L_k2_go2:")
    for t in range(4):
        A(f"s_waitcnt lgkmcnt({3-t})")
        for r in (0, 2): A(f"v_pk_mul_f32 v[{vY+4*t+r}:{vY+4*t+r+1}], v[{vG+4*t+r}:{vG+4*t+r+1}], v[{vY+4*t+r}:{vY+4*t+r+1}]")
    finish()
    A("s_branch L_k2_fin")
    A("L_k2_x:")
    A.c("scalar output and the gates, tile by tile behind the matrix instructions")
    vG = vC + 40
    def sig(t):
        return ([f"v_mul_f32 v{vG+4*t+r}, s19, v{vY+4*t+r}" for r in range(4)] + [f"v_exp_f32 v{vG+4*t+r}, v{vG+4*t+r}" for r in range(4)]
                + [f"v_add_f32 v{vG+4*t+r}, 1.0, v{vG+4*t+r}" for r in range(4)] + [f"v_rcp_f32 v{vG+4*t+r}, v{vG+4*t+r}" for r in range(4)]
                + ["s_nop 0", f"ds_write_b128 v{vGA}, v[{vG+4*t}:{vG+4*t+3}] offset:{1024*t}"])
    A("s_waitcnt lgkmcnt(0)")
    for kk in range(4): mm(kk, 0)
    for kk in range(4): mm(kk, 1)
    pend = sig(0)
    for t in (2, 3):
        for kk in range(4):
            mm(kk, t)
            if t == 3 or kk >= 2:
                for _ in range(3): A(pend.pop(0))
    for l in pend + sig(1) + sig(2) + sig(3): A(l)
    A("s_mov_b64 exec, 1")
    A(f"ds_write_b32 v{vFl}, v{vF1} offset:4")
    A("s_mov_b64 exec, -1")
    finish()
    A("L_k2_fin:")
    if st.on:
        st.mark("issued")
        A("s_waitcnt vmcnt(0)")
    st.flush(14, sWave, vT, 48)
    A("L_k2_end:")
    A("s_endpgm")
    return A.finish(o.get("verbose")), L_END, NV, 102 if o.get("stamps") or o.get("diag_jitter") else 80 if fused else 76, st.names

def gen_agg(name, want, encode=None, nws=(10, 12)):
    A = Asm()
    A(f".globl {name}\n.p2align 8\n.type {name},@function\n{name}:")
    A("s_cmp_ge_u32 s2, 1\ns_cbranch_scc1 L_agg_end")
    A("s_load_dwordx4 s[4:7], s[0:1], 80")
    A("v_lshlrev_b32 v1, 2, v0\nv_mov_b32 v2, 0\nds_write_b32 v1, v2")
    A("v_lshlrev_b32 v3, 10, v0")
    A("s_waitcnt lgkmcnt(0)\ns_barrier")
    srd(A, 8, 6, 7, 0x10000000); srd(A, 12, 4, 5, 256)
    for n, (kid, idx, how) in enumerate(want):
        A(f"s_mov_b32 s16, {WS_STAMP + kid*(1 << 20) + 4*idx}")
        for w in range(nws[kid]): A(f"buffer_load_dword v{10+w}, v3, s[8:11], s16 offen offset:{64*w}")
        A("s_waitcnt vmcnt(0)")
        for w in range(nws[kid]):
            if how == "min": A(f"v_not_b32 v{10+w}, v{10+w}")
            A(f"ds_max_u32 v2, v{10+w} offset:{4*n}")
    A("s_waitcnt lgkmcnt(0)\ns_barrier")
    A("ds_read_b32 v4, v1\nds_read_b32 v5, v2\ns_waitcnt lgkmcnt(0)")
    A("v_not_b32 v5, v5")
    mins = sum(1 << n for n, w in enumerate(want) if w[2] == "min")
    A(f"s_mov_b32 s20, {mins}\ns_mov_b32 s21, 0\nv_not_b32 v6, v4\nv_cndmask_b32 v4, v4, v6, s[20:21]")
    A("v_sub_u32 v4, v4, v5")
    if encode is not None:
        A("v_readfirstlane_b32 s23, v0\ns_cmp_lg_u32 s23, 0\ns_cbranch_scc1 L_agg_end")
        A(f"s_nop 1\nv_readlane_b32 s22, v4, {len(want)-1}")
        A(f"s_min_u32 s22, s22, 10000\ns_mul_i32 s22, s22, {encode}")
        A("s_memrealtime s[24:25]\ns_waitcnt lgkmcnt(0)")
        A("L_agg_spin:\ns_memrealtime s[26:27]\ns_waitcnt lgkmcnt(0)\ns_sub_u32 s26, s26, s24\ns_cmp_lt_u32 s26, s22\ns_cbranch_scc1 L_agg_spin")
    A(f"s_mov_b32 exec_lo, {(1 << len(want)) - 1}\ns_mov_b32 exec_hi, 0")
    A("s_cmp_lg_u32 0, 0")
    A("v_cmp_gt_u32 vcc, 16, v0\ns_and_b64 exec, exec, vcc\ns_cbranch_execz L_agg_end")
    A("buffer_store_dword v4, v1, s[12:15], 0 offen")
    A("L_agg_end:\ns_endpgm")
    return A.finish()

HEADER = """; Equivariant tensor-product message passing, N=10000 nodes, E=640000 edges, C=64.
; Launch 1 sorts every chunk of 2500 edges by bucket (dst & 255) into d_ws.
; Kernarg: x 0, rhat 8, e_attr 16, src 24, dst 32, w_rad 40, w_si0 48, w_si1 56, cg_eps 64, out 72, debug 80, ws 88
"""
HEADER_F = """; Equivariant tensor-product message passing, N=10000 nodes, E=640000 edges, C=64.
;  1. every workgroup sorts its chunk of 2500 edges by bucket (dst & 255 = workgroup) and writes the records through to d_ws;
; Kernarg: x 0, rhat 8, e_attr 16, src 24, dst 32, w_rad 40, w_si0 48, w_si1 56, cg_eps 64, out 72, debug 80, ws 88
"""
DEFAULTS = {"out_flags": "nt", "prio": [2, 1], "k2_touch0": None, "k2_touchb": ("l2", 14), "gshift": 4, "frac": [0.35], "rot": 1, "k1_touch": False, "fused": 1, "f_tag": 1, "f_sleep": 2, "f_late": 1, "bid": 2}
def build(o=None):
    o = dict(DEFAULTS, **(o or {}))
    n1, n2 = "tp_sort_kernel", "tp_gather_kernel"
    if o.get("fused"):
        n = "gather_scatter__tensor_product_equiv_equiformer__graph_kernel"
        t2, lds2, v2, s2, names2 = gen_k2(n, o)
        if o.get("agg"):
            want = [(1, names2.index(nm), h) for nm, h in o["agg"]]
            txt = HEADER_F + f"; @launch kernel={n} grid=({NWG},1,1) block=({NW*64},1,1) lds={lds2}\n"
            txt += "; @launch kernel=tp_agg_kernel grid=(1,1,1) block=(256,1,1) lds=1024\n"
            txt += '.amdgcn_target "amdgcn-amd-amdhsa--gfx950"\n.text\n' + t2 + gen_agg("tp_agg_kernel", want, o.get("encode"))
            txt += '.section .rodata,"a"\n' + kd(n, v2, s2) + kd("tp_agg_kernel", 32, 32)
            return txt, None
        txt = HEADER_F + f"; @launch grid=({NWG},1,1) block=({NW*64},1,1) lds={lds2}\n"
        txt += '.amdgcn_target "amdgcn-amd-amdhsa--gfx950"\n.text\n' + t2 + '.section .rodata,"a"\n' + kd(n, v2, s2)
        return txt, [(n, lds2, v2, names2, NW)]
    o["k2name"] = n2
    t1, lds1, v1, s1, names1 = gen_k1(n1, o)
    t2, lds2, v2, s2, names2 = gen_k2(n2, o)
    txt = HEADER
    empty = "; @launch kernel=tp_empty_kernel grid=(1,1,1) block=(64,1,1) lds=0\n"
    txt += empty * o.get("empty_pre", 0)
    txt += f"; @launch kernel={n1} grid=({NWG},1,1) block=(704,1,1) lds={lds1}\n" * o.get("k1_times", 1)
    txt += f"; @launch kernel={n2} grid=({NWG},1,1) block=({NW*64},1,1) lds={lds2}\n" * o.get("k2_times", 1)
    txt += empty * o.get("empty_post", 0)
    if o.get("agg"): txt += "; @launch kernel=tp_agg_kernel grid=(1,1,1) block=(256,1,1) lds=1024\n"
    txt += '.amdgcn_target "amdgcn-amd-amdhsa--gfx950"\n.text\n'
    txt += t1 + t2
    if o.get("agg"):
        nm = [names1, names2]
        want = [(k, nm[k].index(n), h) for k, n, h in o["agg"]]
        txt += gen_agg("tp_agg_kernel", want, o.get("encode"))
    em = o.get("empty_pre") or o.get("empty_post")
    if em: txt += ".globl tp_empty_kernel\n.p2align 8\n.type tp_empty_kernel,@function\ntp_empty_kernel:\n    s_endpgm\n"
    txt += '.section .rodata,"a"\n' + kd(n1, v1, s1) + (".p2align 6\nL_kd2:\n" if o.get("kd_touch") else "") + kd(n2, v2, s2)
    if em: txt += kd("tp_empty_kernel", 8, 16)
    if o.get("agg"): txt += kd("tp_agg_kernel", 32, 32)
    return txt, [(n1, lds1, v1, names1, 11), (n2, lds2, v2, names2, NW)]

if __name__ == "__main__":
    out = sys.argv[1] if len(sys.argv) > 1 else "gather_scatter__tensor_product_equiv_equiformer__graph.s"
    txt, info = build({"verbose": True})
    open(out, "w").write(txt)
    print(info, len(txt))
```

```python
import sys
from asmlib import Asm, kd

N, E = 10000, 640000
NWG = 256
CH = E // NWG
RUSE = 30080
RSTR = 30208
WS_OFF = 0
WS_W = 524288
WS_REC = WS_W + 40960
WS_FLAG = WS_REC + NWG * RSTR
WS_USED = WS_FLAG + 64 * 1024
WS_STAMP = 16 << 20
PADKEY = 0x0FFFFFFF

def srd(A, s, lo, hi, size):
    A(f"s_mov_b32 s{s}, s{lo}\ns_mov_b32 s{s+1}, s{hi}")
    A(f"s_mov_b32 s{s+2}, {size}\ns_mov_b32 s{s+3}, 0x00020000")

def scan_steps(op, v, upto=64, first=1):
    out = []
    for sh in (1, 2, 4, 8):
        if sh >= first:
            out.append(f"{op}_dpp v{v}, v{v}, v{v} row_shr:{sh} row_mask:0xf bank_mask:0xf bound_ctrl:0")
    if upto >= 32: out.append(f"{op}_dpp v{v}, v{v}, v{v} row_bcast:15 row_mask:0xa bank_mask:0xf")
    if upto >= 64: out.append(f"{op}_dpp v{v}, v{v}, v{v} row_bcast:31 row_mask:0xc bank_mask:0xf")
    return out

class Stamps:
    def __init__(self, A, on, base, kid):
        self.A, self.on, self.base, self.n, self.kid = A, on, base, 0, kid
        self.names = []
        self.skip = set()
        self.jitter = None
        self.clk = set()
        self.nj = 0
    def mark(self, name):
        if self.jitter and name != "start":
            k = self.nj; self.nj += 1
            self.A(f"s_mov_b32 s101, scc_save" if False else "s_cselect_b32 s101, 1, 0")
            self.A("s_waitcnt lgkmcnt(0)\ns_memtime s[98:99]\ns_waitcnt lgkmcnt(0)")
            self.A(f"s_lshr_b32 s98, s98, 3\ns_and_b32 s99, s98, {self.jitter}\ns_cmp_lg_u32 s99, 0\ns_cbranch_scc1 L_jit{k}")
            self.A(f"s_lshr_b32 s98, s98, 4\ns_and_b32 s98, s98, 15")
            self.A(f"L_jl{k}:\ns_sleep 8\ns_sub_u32 s98, s98, 1\ns_cbranch_scc0 L_jl{k}")
            self.A(f"L_jit{k}:\ns_cmp_lg_u32 s101, 0")
        if self.on and name not in self.skip:
            r = self.base + 2 * self.n
            self.A(f"s_memrealtime s[{r}:{r+1}]"); self.n += 1; self.names.append(name)
            if name in self.clk:
                self.A(f"s_memtime s[{r+2}:{r+3}]"); self.n += 1; self.names.append("c_" + name)
    def flush(self, ws_lo, wave_s, v0, tmp_s):
        if not self.on: return
        A = self.A
        self.mark("end")
        if self.on == "dbg":
            A(f"s_load_dwordx2 s[{tmp_s+4}:{tmp_s+5}], s[0:1], 80")
            A("s_waitcnt lgkmcnt(0)")
            A("s_mov_b64 exec, 1")
            srd(A, tmp_s, tmp_s+4, tmp_s+5, 256)
            A(f"v_mov_b32 v{v0}, 0")
            A(f"s_not_b32 s{tmp_s+4}, s{self.base}")
            A(f"v_mov_b32 v{v0+1}, s{tmp_s+4}")
            A(f"buffer_atomic_umax v{v0+1}, v{v0}, s[{tmp_s}:{tmp_s+3}], 0 offen")
            for i in range(self.n):
                A(f"v_mov_b32 v{v0+2+i}, s{self.base + 2*i}")
                A(f"buffer_atomic_umax v{v0+2+i}, v{v0}, s[{tmp_s}:{tmp_s+3}], 0 offen offset:{4*i+4}")
            return
        A("s_waitcnt lgkmcnt(0)")
        A("s_mov_b64 exec, 1")
        srd(A, tmp_s, ws_lo, ws_lo + 1, 0x10000000)
        A(f"s_lshl_b32 s{tmp_s+4}, s2, 4\ns_add_u32 s{tmp_s+4}, s{tmp_s+4}, s{wave_s}\ns_lshl_b32 s{tmp_s+4}, s{tmp_s+4}, 6")
        A(f"s_add_u32 s{tmp_s+4}, s{tmp_s+4}, {WS_STAMP + self.kid * (1 << 20)}")
        A(f"v_mov_b32 v{v0}, 0")
        for i in range(self.n):
            A(f"v_mov_b32 v{v0+1}, s{self.base + 2*i}")
            A(f"buffer_store_dword v{v0+1}, v{v0}, s[{tmp_s}:{tmp_s+3}], s{tmp_s+4} offen offset:{4*i}")

def touch_x(A, spec, s_rank, s_tmp, v_addr, v_dst, srd_x, nw=10, s_rot=None, pos0=0):
    kind, lanes_list = spec[0], spec[1:]
    pos = pos0
    for n, lanes in enumerate(lanes_list):
        A(f"s_mul_i32 s{s_tmp}, s{s_rank}, {lanes*128}")
        if pos: A(f"s_add_u32 s{s_tmp}, s{s_tmp}, {pos}")
        if s_rot is not None:
            A(f"s_add_u32 s{s_tmp}, s{s_tmp}, s{s_rot}\ns_sub_u32 s{s_rot+1}, s{s_tmp}, {N*512}\ns_min_u32 s{s_tmp}, s{s_tmp}, s{s_rot+1}")
        m = (1 << lanes) - 1
        if lanes < 64: A(f"s_mov_b32 exec_lo, {m & 0xffffffff}\ns_mov_b32 exec_hi, {m >> 32}")
        A(f"buffer_load_dword v{v_dst+n}, v{v_addr}, s[{srd_x}:{srd_x+3}], s{s_tmp} offen")
        if lanes < 64: A("s_mov_b64 exec, -1")
        pos += lanes * 128 * nw * (256 if kind == "mall" else 32)
    return len(lanes_list)

def gen_k1(name, o):
    A = Asm()
    CNT, PFX, STG = 0, 1024, 2048
    lds = STG + 30720
    st = Stamps(A, o.get("stamps"), 64, 0)
    A(f".globl {name}\n.p2align 8\n.type {name},@function\n{name}:")
    A(f"s_cmp_ge_u32 s2, {NWG}\ns_cbranch_scc1 L_k1_end")
    st.mark("start")
    A("s_load_dwordx4 s[4:7], s[0:1], 0")
    A("s_load_dwordx4 s[8:11], s[0:1], 16")
    A("s_load_dwordx2 s[12:13], s[0:1], 32")
    A("s_load_dwordx2 s[14:15], s[0:1], 88")
    A.c("chunk id: workgroups that share an XCD under round-robin dispatch get neighbouring chunks")
    A("s_and_b32 s16, s2, 7\ns_lshl_b32 s16, s16, 5\ns_lshr_b32 s17, s2, 3\ns_add_u32 s16, s16, s17")
    A("v_lshrrev_b32 v1, 6, v0")
    A("v_lshlrev_b32 v2, 2, v0")
    A("v_readfirstlane_b32 s3, v1")
    A("v_and_b32 v7, 63, v0")
    A("s_cmp_eq_u32 s3, 10\ns_cbranch_scc1 L_k1_helper")
    A("v_mov_b32 v3, 0")
    A(f"ds_write_b32 v2, v3 offset:{CNT}")
    A("v_lshlrev_b32 v4, 4, v0")
    A("v_lshlrev_b32 v5, 3, v0")
    A("v_mul_u32_u24 v6, 24, v0")
    A(f"s_movk_i32 s17, {CH//4}\nv_cmp_gt_u32 s[18:19], s17, v0")
    A(f"s_mul_i32 s40, s16, {CH*4}\ns_mul_i32 s41, s16, {CH*2}\ns_mul_i32 s42, s16, {CH*6}")
    A("s_waitcnt lgkmcnt(0)")
    srd(A, 20, 12, 13, E*4)
    srd(A, 24, 10, 11, E*4)
    srd(A, 28, 8, 9, E*2)
    srd(A, 32, 6, 7, E*6)
    A("s_mov_b64 exec, s[18:19]")
    lf = o.get("k1_load_flags", "nt")
    A(f"buffer_load_dwordx4 v[8:11], v4, s[20:23], s40 offen {lf}")
    A(f"buffer_load_dwordx4 v[12:15], v4, s[24:27], s40 offen {lf}")
    A(f"buffer_load_dwordx2 v[16:17], v5, s[28:31], s41 offen {lf}")
    A(f"buffer_load_dwordx4 v[20:23], v6, s[32:35], s42 offen {lf}")
    A(f"buffer_load_dwordx2 v[24:25], v6, s[32:35], s42 offen offset:16 {lf}")
    srd(A, 44, 14, 15, WS_USED)
    A("v_mov_b32 v3, 1")
    A("s_barrier")
    A(f"s_waitcnt vmcnt(4)")
    st.mark("dst")
    for i in range(4):
        A(f"v_lshlrev_b32 v{32+i}, 2, v{8+i}")
        A(f"v_and_b32 v{32+i}, 0x3fc, v{32+i}")
        A(f"ds_add_rtn_u32 v{36+i}, v{32+i}, v3 offset:{CNT}")
    A("s_mov_b64 exec, -1")
    A("v_lshlrev_b32 v59, 4, v7")
    A("s_waitcnt lgkmcnt(0)")
    A("s_barrier")
    st.mark("ranked")
    A(f"ds_read_b128 v[60:63], v59 offset:{CNT}")
    A(f"s_waitcnt vmcnt(3)")
    A.c("key = src<<9 | onehot(j)<<28 | (wave*4 + source quarter)<<2 ; record i = v[40+4i : 42+4i] = c01, c23, key")
    A(f"s_mov_b32 s48, 0x10000000\ns_mov_b32 s53, {-(-(1 << 32) // 3072)}\ns_mov_b32 s54, {(1 << 34) // N}\ns_movk_i32 s55, -3072\ns_movk_i32 s56, {-N//8}")
    def key(i):
        d, s, k = 8+i, 12+i, 42+4*i
        if o.get("rot"):
            q = [f"v_bfe_u32 v57, v{d}, 5, 3", f"v_mad_i32_i24 v57, v57, s56, v{s}", f"v_add_u32 v64, {N}, v57",
                 f"v_min_u32 v57, v57, v64", f"v_mul_hi_u32_u24 v57, s54, v57"]
        else: q = [f"v_mul_hi_u32_u24 v57, s54, v{s}"]
        return [f"v_mul_hi_u32_u24 v56, s53, v{d}"] + q + [
                f"v_mad_i32_i24 v58, v56, s55, v{d}",
                f"v_lshlrev_b32_e64 v56, v56, s48",
                f"v_lshrrev_b32 v58, 8, v58",
                f"v_lshl_or_b32 v56, v{s}, 9, v56",
                f"v_lshl_or_b32 v57, v58, 2, v57",
                f"v_lshl_or_b32 v{k}, v57, 2, v56"]
    for l in key(0) + key(1): A(l)
    A("s_waitcnt lgkmcnt(0)")
    A("v_add_u32 v65, v60, v61\nv_add_u32 v66, v65, v62\nv_add_u32 v67, v66, v63")
    A("v_mov_b32 v68, v67")
    fill = key(2) + key(3)
    for n, s_ in enumerate(scan_steps("v_add_u32", 68)):
        A(fill[2*n]); A(fill[2*n+1]); A(s_)
    A("v_sub_u32 v68, v68, v67")
    A("v_add_u32 v69, v68, v60\nv_add_u32 v70, v68, v65\nv_add_u32 v71, v68, v66")
    A.c("every wave writes the same prefix table and then reads only after its own write")
    A(f"ds_write_b128 v59, v[68:71] offset:{PFX}")
    A("s_mov_b64 exec, s[18:19]")
    for i in range(4): A(f"ds_read_b32 v{32+i}, v{32+i} offset:{PFX}")
    for l in fill[12:]: A(l)
    A(f"s_movk_i32 s53, {STG}")
    A.c("coefficients a, a*Y0, a*Y1, a*Y2 in bf16")
    A(f"s_waitcnt vmcnt(0)")
    st.mark("alldata")
    A("s_mov_b32 s49, 0xffff0000")
    def unpack(dst, reg, hi):
        if hi: A(f"v_and_b32 v{dst}, s49, v{reg}")
        else: A(f"v_lshlrev_b32 v{dst}, 16, v{reg}")
    for i in range(4):
        unpack(56, 16 + i//2, i & 1)
        for j in range(3):
            h = 3*i + j
            unpack(72+j, 20 + h//2, h & 1)
        for j in range(3): A(f"v_mul_f32 v{72+j}, v56, v{72+j}")
        A(f"v_cvt_pk_bf16_f32 v{40+4*i}, v56, v72")
        A(f"v_cvt_pk_bf16_f32 v{41+4*i}, v73, v74")
        if i == 0: A("s_waitcnt lgkmcnt(0)")
        A(f"v_add_u32 v{32+i}, v{32+i}, v{36+i}")
        A(f"v_mad_u32_u24 v{32+i}, v{32+i}, 12, s53")
        A(f"ds_write_b32 v{32+i}, v{42+4*i} offset:8")
        A(f"ds_write2_b32 v{32+i}, v{40+4*i}, v{41+4*i} offset0:0 offset1:1")
    A("s_mov_b64 exec, -1")
    A.c("waves 0..3 publish start|len<<16 of bucket 4*lane+wave")
    A("s_cmp_ge_u32 s3, 4\ns_cbranch_scc1 L_k1_nooff")
    A("v_mov_b32 v72, v68\nv_mov_b32 v73, v60")
    for w in (1, 2, 3):
        A(f"s_cmp_lg_u32 s3, {w}\ns_cbranch_scc1 L_k1_o{w}")
        A(f"v_mov_b32 v72, v{68+w}\nv_mov_b32 v73, v{60+w}")
        A(f"L_k1_o{w}:")
    A("v_lshl_or_b32 v72, v73, 16, v72")
    A("v_lshlrev_b32 v73, 12, v7")
    A("s_lshl_b32 s50, s3, 10\ns_lshl_b32 s51, s16, 2\ns_add_u32 s50, s50, s51")
    if WS_OFF: A(f"s_add_u32 s50, s50, {WS_OFF}")
    sf = o.get("k1_store_flags", "")
    A(f"buffer_store_dword v72, v73, s[44:47], s50 offen {sf}")
    A("L_k1_nooff:")
    A(f"s_mul_i32 s50, s16, {RSTR}\ns_add_u32 s50, s50, {WS_REC}")
    A.c("the copy covers whole 128-byte lines: a partly written last line is slow to read back")
    A(f"s_movk_i32 s17, {RUSE//16 - 1280}\nv_cmp_gt_u32 s[18:19], s17, v0")
    A("s_add_u32 s51, s50, 10240\ns_add_u32 s52, s50, 20480")
    A("s_waitcnt lgkmcnt(0)")
    A("s_barrier")
    st.mark("sorted")
    if o.get("diag_nostore"): A("s_mov_b32 s46, 0")
    for q in range(3): A(f"ds_read_b128 v[{8+4*q}:{11+4*q}], v4 offset:{STG + 10240*q}")
    A("s_waitcnt lgkmcnt(2)")
    A(f"buffer_store_dwordx4 v[8:11], v4, s[44:47], s50 offen {sf}")
    A("s_waitcnt lgkmcnt(1)")
    A(f"buffer_store_dwordx4 v[12:15], v4, s[44:47], s51 offen {sf}")
    A("s_waitcnt lgkmcnt(0)")
    A("s_mov_b64 exec, s[18:19]")
    A(f"buffer_store_dwordx4 v[16:19], v4, s[44:47], s52 offen {sf}")
    if o.get("k1_wb"):
        A("s_mov_b64 exec, -1")
        A("s_cmp_lg_u32 s3, 9\ns_cbranch_scc1 L_k1_nowb")
        A("s_waitcnt vmcnt(0)")
        A("buffer_wbl2 sc1")
        A("L_k1_nowb:")
    if st.on:
        st.mark("issued")
        A("s_waitcnt vmcnt(0)")
    st.flush(14, 3, 20, 52)
    A("s_endpgm")
    A("L_k1_helper:")
    A("s_load_dwordx4 s[52:55], s[0:1], 40")
    A("s_load_dwordx2 s[56:57], s[0:1], 56")
    A("v_lshlrev_b32 v26, 7, v7")
    A(f"s_mul_i32 s43, s16, {N*512//NWG}\ns_and_b32 s43, s43, 0xffffff80")
    A("s_lshr_b32 s40, s2, 2\ns_and_b32 s41, s2, 3")
    A.c("fragment (k step, tile t): lane (n, g) holds rows 32*step + 8g .. +7 of column 4n + t")
    A("v_lshrrev_b32 v8, 4, v7\nv_and_b32 v9, 15, v7")
    A("v_lshlrev_b32 v11, 10, v8\nv_lshl_add_u32 v11, v9, 3, v11")
    A("v_lshlrev_b32 v8, 4, v8")
    A("s_lshl_b32 s42, s40, 12\ns_lshl_b32 s41, s41, 1\ns_add_u32 s42, s42, s41")
    A("s_lshl_b32 s41, s40, 6")
    A("s_waitcnt lgkmcnt(0)")
    srd(A, 36, 4, 5, N*512)
    srd(A, 44, 14, 15, WS_USED)
    srd(A, 24, 52, 53, 640)
    A("s_cmp_lt_u32 s40, 4")
    A("s_cselect_b32 s20, s54, s56\ns_cselect_b32 s21, s55, s57")
    A(f"s_mov_b32 s22, {192*128}\ns_cselect_b32 s22, {128*128}, s22\ns_mov_b32 s23, 0x00020000")
    A("s_cselect_b32 s17, 0, 16384\ns_sub_u32 s42, s42, s17")
    touch = o.get("k1_touch", True)
    tb = o.get("k1_touch_after", 1)
    def helper_touch():
        if touch:
            A.c("touch x once so that the gather of the second launch finds it on chip")
            A("buffer_load_dword v28, v26, s[36:39], s43 offen")
            A("s_add_u32 s43, s43, 8192")
            A("buffer_load_dword v29, v26, s[36:39], s43 offen")
            A("s_add_u32 s43, s43, 8192\ns_mov_b32 exec_hi, 0")
            A("buffer_load_dword v30, v26, s[36:39], s43 offen")
            A("s_mov_b32 exec_hi, -1")
    if o.get("code_touch"):
        A.c("read the second kernel's instructions once per XCD so that its first fetches find them in L2")
        A("s_getpc_b64 s[28:29]")
        A("L_k1_pc:")
        A(f"s_add_u32 s28, s28, {o['k2name']}-L_k1_pc\ns_addc_u32 s29, s29, 0")
        A("s_lshr_b32 s30, s2, 3\ns_lshl_b32 s30, s30, 9")
        A(f"v_add_u32 v32, s30, v26\nv_min_u32 v32, L_k2_end-{o['k2name']}, v32")
        A("v_mov_b32 v33, s29\nv_add_co_u32 v32, vcc, s28, v32\nv_addc_co_u32 v33, vcc, 0, v33, vcc")
        A("s_mov_b64 exec, 15")
        A("global_load_dword v31, v[32:33], off")
        if o.get("kd_touch"):
            A("s_getpc_b64 s[28:29]")
            A(f"s_add_u32 s28, s28, L_kd2@rel32@lo+4\ns_addc_u32 s29, s29, L_kd2@rel32@hi+12")
            A("v_mov_b32 v32, s28\nv_mov_b32 v33, s29")
            A("s_mov_b64 exec, 1")
            A("global_load_dword v34, v[32:33], off")
        A("s_mov_b64 exec, -1")
    for b in range(3):
        if b == tb: helper_touch()
        if b == 1:
            A("s_cmp_ge_u32 s2, 40\ns_cbranch_scc1 L_k1_now")
            A("buffer_load_dwordx4 v[12:15], v8, s[24:27], s41 offen")
            for i in range(8): A(f"buffer_load_ushort v{16+i}, v11, s[20:23], s42 offen offset:{128*i}")
            A("L_k1_now:")
        A("s_barrier")
    if tb == 3: helper_touch()
    A("s_cmp_ge_u32 s2, 40\ns_cbranch_scc1 L_k1_end")
    A("s_mov_b32 s49, 0xffff0000")
    A("s_waitcnt vmcnt(0)" if tb != 3 or not touch else "s_waitcnt vmcnt(3)")
    for i in range(8):
        unpack(24, 12 + i//2, i & 1)
        A(f"v_lshlrev_b32 v{16+i}, 16, v{16+i}\nv_mul_f32 v{16+i}, v24, v{16+i}")
    for q in range(4): A(f"v_cvt_pk_bf16_f32 v{12+q}, v{16+2*q}, v{17+2*q}")
    A(f"v_lshlrev_b32 v8, 4, v7\ns_lshl_b32 s41, s2, 10\ns_add_u32 s41, s41, {WS_W}")
    A("buffer_store_dwordx4 v[12:15], v8, s[44:47], s41 offen")
    A("L_k1_end:")
    A("s_endpgm")
    return A.finish(o.get("verbose")), lds, 80, 96 if st.on else 58, st.names

NW = 12
NIT = 5
WIN = 288
CAP = NW * WIN + NW * 32
L_ZERO, L_RND, L_CNT, L_KEY = 0, 192, 256, 512
L_COEF = L_KEY + CAP*4 + 128
L_W = L_COEF + CAP*8 + 256
L_STG = L_W + 40960
SPITCH = 256
SNODE = 6*SPITCH + 32
L_GATE = L_STG + 40*SNODE
L_END = L_GATE + 3*4096
L_FLAG = 208
assert L_END <= 163840, L_END
MKW = 1536
L_WT = L_STG + 40*SNODE - 40960
L_NONCE = L_GATE
assert L_WT >= L_STG + NW*MKW

def gen_k2(name, o):
    A = Asm()
    fused = o.get("fused")
    st = Stamps(A, o.get("stamps"), 80 if fused else 76, 1)
    if fused: st.skip = set(o.get("skip", ["recissue", "staged", "issued", "rec0", "wok", "wdone", "stiss"]))
    vLane, vOff, vKA, vK2A, vCA, vSh = 1, 2, 3, 4, 5, 6
    vK2 = 8
    vAF = 10
    vK = 14
    vT = 22
    vD = 38
    vC = 102
    NV = 166
    sWave, sB = 3, 16
    SX, SWS, SOUT = 20, 24, 28
    sH = 32
    sMask = 48
    sTot, sRnd, sRound, sN, sRem, sStep, sT1, sT2, sT3 = 58, 59, 60, 61, 62, 63, 64, 65, 66
    sP0, sP1, sRowM = 67, 68, 69
    sSeg0, sNseg, sMk = 70, 71, 18
    sCar = [72, 73, 74, 75]
    sGrp, sSaid = 38, 39
    A(f".globl {name}\n.p2align 8\n.type {name},@function\n{name}:")
    A(f"s_cmp_ge_u32 s2, {NWG}\ns_cbranch_scc1 L_k2_end")
    if o.get("diag_perm"): A(f"s_mul_i32 s2, s2, {o['diag_perm']}\ns_add_u32 s2, s2, 77\ns_and_b32 s2, s2, 255")
    st.jitter = o.get("diag_jitter")
    st.clk = set(o.get("clk", []))
    st.mark("start")
    vOf = vD
    vz = vD + 40
    wpos = o.get("wpos", 0) if not fused else -1
    hf = o.get("f_hf", "sc1") if fused else ""
    def ids():
        if o.get("bid") == 1: A(f"s_mov_b32 s{sB}, s2")
        else: A(f"s_and_b32 s{sB}, s2, 7\ns_lshl_b32 s{sB}, s{sB}, 5\ns_lshr_b32 s17, s2, 3\ns_add_u32 s{sB}, s{sB}, s17")
        A("v_lshrrev_b32 v7, 6, v0")
        A(f"v_and_b32 v{vLane}, 63, v0")
        A(f"v_readfirstlane_b32 s{sWave}, v7")
    def ids2():
        A(f"s_mov_b32 s{sRound}, 0")
        if wpos == 4: A(f"s_mov_b32 s{sSaid}, 0")
        if o.get("gshift"):
            A(f"s_add_u32 s{sGrp}, s{sWave}, {o['gshift']}\ns_sub_u32 s17, s{sGrp}, {NW}\ns_min_u32 s{sGrp}, s{sGrp}, s17")
        else: A(f"s_mov_b32 s{sGrp}, s{sWave}")
        A.c("this wave reads chunks seg0 .. seg0+nseg-1 of the bucket, seg0 = floor(wave*64/3)")
        A(f"s_mul_i32 s{sSeg0}, s{sWave}, {64*21846}\ns_lshr_b32 s{sSeg0}, s{sSeg0}, 16")
        A(f"s_add_u32 s17, s{sWave}, 1\ns_mul_i32 s17, s17, {64*21846}\ns_lshr_b32 s17, s17, 16")
        A(f"s_sub_u32 s{sNseg}, s17, s{sSeg0}")
        A(f"v_add_u32 v{vD+1}, s{sSeg0}, v{vLane}")
        A(f"v_lshlrev_b32 v{vD+2}, {(11 if o.get('f_tag') else 10) if fused else 2}, v{vD+1}")
        A(f"v_cmp_gt_u32 vcc, s{sNseg}, v{vLane}")
        A(f"v_bfrev_b32 v{vD+3}, -2")
        A(f"v_lshlrev_b32 v7, 4, v{vLane}")
        A(f"v_cndmask_b32 v{vD+2}, v{vD+3}, v{vD+2}, vcc")
        A.c("private marker area of this wave (inside the staging area of the epilogue)")
        A(f"s_mul_i32 s{sMk}, s{sWave}, {MKW}\ns_add_u32 s{sMk}, s{sMk}, {L_STG}")
    def marker_init():
        for i in range(4): A(f"v_mov_b32 v{vz+4+i}, 0")
        A(f"v_add_u32 v{vz+8}, s{sMk}, v7")
        A(f"ds_write_b128 v{vz+8}, v[{vz+4}:{vz+7}]")
        A("s_mov_b32 exec_hi, 0")
        A(f"ds_write_b128 v{vz+8}, v[{vz+4}:{vz+7}] offset:1024")
        A("s_mov_b32 exec_hi, -1")
    def key_init():
        A(f"v_lshlrev_b32 v{vz+9}, 4, v0")
        for i in range(4): A(f"v_mov_b32 v{vz+i}, {PADKEY:#x}" if i == 0 else f"v_mov_b32 v{vz+i}, v{vz}")
        A(f"ds_write_b128 v{vz+9}, v[{vz}:{vz+3}] offset:{L_KEY}")
        A(f"v_cmp_gt_u32 vcc, {(L_COEF - L_KEY - NW*1024)//16}, v0\ns_mov_b64 exec, vcc")
        A(f"ds_write_b128 v{vz+9}, v[{vz}:{vz+3}] offset:{L_KEY+NW*1024}")
        A("s_mov_b64 exec, -1")
    def zero_init():
        A.c("zero block, round word, flags, counters: bytes 0..511")
        A(f"s_mov_b32 exec_hi, 0")
        A(f"ds_write_b128 v7, v[{vz+4}:{vz+7}]")
        A("s_mov_b32 exec_hi, -1")
    def lds_init():
        marker_init(); key_init()
    assert 2*NW*1024 >= CAP*4 + 128 and L_KEY + 2*NW*1024 <= L_W
    def consts():
        A(f"s_mov_b32 s{sP0}, 0x05040100\ns_mov_b32 s{sP1}, 0x07060302\ns_mov_b32 s{sRowM}, {o.get('diag_rowmask', 0x007ffe00):#x}")
        A(f"s_mov_b32 s{sH}, 0xff00ff00\ns_mov_b32 s{sH+1}, 0xff00ff00")
    def wdma(vl):
        A.c("the 40 weight fragments go straight to LDS: w, w+12, w+24 and 36+(w&3) by wave w (the last four land three times)")
        A(f"s_lshl_b32 s19, s{sWave}, 10\ns_add_u32 m0, s19, {L_W}\ns_add_u32 s19, s19, {WS_W}")
        for q in range(3):
            A(f"buffer_load_dwordx4 v{vl}, s[{SWS}:{SWS+3}], s19 offen lds")
            if q < 2: A(f"s_add_u32 m0, m0, {NW*1024}\ns_add_u32 s19, s19, {NW*1024}")
        A(f"s_and_b32 s19, s{sWave}, 3\ns_lshl_b32 s19, s19, 10\ns_add_u32 m0, s19, {L_W + 36*1024}\ns_add_u32 s19, s19, {WS_W + 36*1024}")
        A(f"buffer_load_dwordx4 v{vl}, s[{SWS}:{SWS+3}], s19 offen lds")
    sRot = 36 if o.get("rot") else None
    def rotc():
        if sRot: A(f"s_and_b32 s{sRot}, s2, 7\ns_mul_i32 s{sRot}, s{sRot}, {N*512//8}")
    def mall_touch(start):
        lanes = -(-(N*512 - start) // (128 * NW * NWG))
        A.c("every remaining line of x is touched once, chip-wide")
        A(f"v_lshlrev_b32 v{vD+4}, 7, v{vLane}")
        A(f"s_mul_i32 s35, s{sB}, {NW}\ns_add_u32 s35, s35, s{sWave}\ns_mul_i32 s35, s35, {lanes*128}")
        if start: A(f"s_add_u32 s35, s35, {start}")
        A(f"s_mov_b32 exec_lo, {(1 << lanes) - 1}\ns_mov_b32 exec_hi, 0")
        A(f"buffer_load_dword v{vD+7}, v{vD+4}, s[{SX}:{SX+3}], s35 offen")
        A("s_mov_b64 exec, -1")
    vBase, vL12, vMkA = vD+57, vD+35, vD+34
    def coop_pre():
        A(f"s_lshr_b32 s9, s2, 3\ns_sub_u32 s9, s9, s{sSeg0}\ns_and_b32 s9, s9, 31")
        A(f"s_add_u32 s10, s9, s{sSeg0}\ns_mul_i32 s10, s10, {RSTR}\ns_and_b32 s11, s2, 7\ns_mul_i32 s11, s11, 3750")
        A(f"s_add_u32 s10, s10, s11\ns_add_u32 s10, s10, {WS_REC - 256}\nv_lshlrev_b32 v{vD+58}, 7, v{vLane}")
    def round_pre():
        A(f"s_mov_b32 s34, {RSTR}\nv_mul_lo_u32 v{vBase}, v{vD+1}, s34")
        A(f"v_mul_u32_u24 v{vL12}, 12, v{vLane}\nv_lshl_add_u32 v{vMkA}, v{vLane}, 2, s{sMk}")
        if o.get("f_eo"): A(f"v_lshlrev_b32 v{vD+58}, 2, v{vD+1}")
    nt0 = 0
    touch0 = o.get("k2_touch0")
    tpos = N*512//8 if o.get("rot") and (o.get("f_early") if fused else o.get("k1_touch", True)) else 0
    def do_touch0(va, vd):
        A.c("pull the first rows of x into this XCD's L2")
        A(f"v_lshlrev_b32 v{va}, 7, v{vLane}")
        A(f"s_lshr_b32 s34, s2, 3\ns_mul_i32 s34, s34, {NW}\ns_add_u32 s34, s34, s{sWave}")
        return touch_x(A, touch0, 34, 17, va, vd, SX, NW, sRot, tpos)
    nacc0 = o.get("nacc0", 0 if fused else 32)
    if not fused:
        A("s_load_dwordx2 s[14:15], s[0:1], 88")
        A("s_load_dwordx2 s[4:5], s[0:1], 0")
        A("s_load_dwordx2 s[12:13], s[0:1], 72")
        ids(); ids2()
        A(f"s_lshl_b32 s17, s{sB}, 10")
        if WS_OFF: A(f"s_add_u32 s17, s17, {WS_OFF}")
        A("s_waitcnt lgkmcnt(0)")
        srd(A, SWS, 14, 15, WS_USED)
        A(f"buffer_load_dword v{vOf}, v{vD+2}, s[{SWS}:{SWS+3}], s17 offen")
        if wpos == 0: wdma(7)
        srd(A, SX, 4, 5, N*512)
        srd(A, SOUT, 12, 13, N*512)
        rotc()
        if touch0:
            nt0 = do_touch0(vD+5, vD+6)
            tpos += sum(touch0[1:]) * 128 * NW * 32
        tall = tpos + (sum(o["k2_touch"][1:]) * 128 * NW * 32 if o.get("k2_touch") else 0)
        if o.get("k2_mall") == 0:
            mall_touch(tpos if o.get("k2_mall_all") else tall); nt0 += 1
        lds_init()
        A(f"s_mov_b32 exec_hi, 0")
        A(f"ds_write_b128 v7, v[{vz+4}:{vz+7}]")
        A("s_mov_b32 exec_hi, -1")
        consts(); round_pre()
        for i in range(0, nacc0, 2): A(f"v_mov_b64 v[{vC+i}:{vC+i+1}], 0")
        A(f"s_waitcnt vmcnt({(4 if wpos == 0 else 0)+nt0})")
    else:
        R = o.get("R", 32)
        aCNT, aPFX, aSTG = L_KEY, L_KEY + 4096, L_COEF
        vDst, vSrc, vEa, vRh, vBk, vRk, vRec = 38, 42, 46, 50, 62, 66, 70
        t0, t1, t2, t3 = 86, 87, 88, 94
        vL16, vCn, vL16b = 89, 90, 150
        v16, v8, v24, vOne1 = 126, 127, 128, 129
        SD, SS, SE, SR, SDBG = 64, 68, 72, 76, 40
        sAct = 46
        A.c("pointers go straight into the first two words of their descriptors")
        for r_, off in ((SD, 32), (SS, 24), (SE, 16), (SR, 8), (SDBG, 80), (SWS, 88), (SX, 0)): A(f"s_load_dwordx2 s[{r_}:{r_+1}], s[0:1], {off}")
        ids()
        def code_touch(w):
            A.c("one wave reads a share of this kernel's instructions so that later fetches find them in L2")
            A(f"s_cmp_lg_u32 s{sWave}, {w}\ns_cbranch_scc1 L_f_nocode")
            A("s_getpc_b64 s[6:7]")
            A("L_f_pc:")
            A(f"s_lshr_b32 s17, s2, 3\ns_lshl_b32 s17, s17, 9\nv_lshl_add_u32 v{t0}, v{vLane}, 7, s17")
            A(f"v_min_u32 v{t0}, L_k2_end-L_f_pc, v{t0}")
            A(f"v_mov_b32 v{t0+1}, s7\nv_add_co_u32 v{t0}, vcc, s6, v{t0}\nv_addc_co_u32 v{t0+1}, vcc, 0, v{t0+1}, vcc")
            A("s_mov_b64 exec, 15")
            A(f"global_load_dword v{t3}, v[{t0}:{t0+1}], off")
            A("s_mov_b64 exec, -1")
            A("L_f_nocode:")
        if o.get("code_touch", 1) == 1: code_touch(o.get("code_wave", 10))
        A(f"v_lshlrev_b32 v{t0}, 2, v0\nv_mov_b32 v{t1}, 0")
        A(f"ds_write_b32 v{t0}, v{t1} offset:{aCNT}")
        A(f"v_lshlrev_b32 v{v16}, 4, v0\nv_lshlrev_b32 v{v8}, 3, v0\nv_mul_u32_u24 v{v24}, 24, v0")
        A(f"v_lshlrev_b32 v{vL16}, 4, v{vLane}\nv_mov_b32 v{vOne1}, 1")
        A(f"s_movk_i32 s17, {CH//4}\nv_cmp_gt_u32 s[{sAct}:{sAct+1}], s17, v0")
        sC = 2 if o.get("f_cwg", 0) else sB
        A(f"s_mul_i32 s4, s{sC}, {CH*4}\ns_mul_i32 s5, s{sC}, {CH*2}\ns_mul_i32 s6, s{sC}, {CH*6}")
        for r_, sz in ((SD, E*4), (SS, E*4), (SE, E*2), (SR, E*6), (SDBG, 256), (SWS, WS_USED), (SX, N*512), (SOUT, N*512)):
            A(f"s_mov_b32 s{r_+2}, {sz}\ns_mov_b32 s{r_+3}, 0x00020000")
        A("s_waitcnt lgkmcnt(0)")
        A(f"s_cmp_ge_u32 s{sWave}, 10\ns_cbranch_scc1 L_f_noload")
        A(f"s_mov_b64 exec, s[{sAct}:{sAct+1}]")
        lf = o.get("k1_load_flags", "nt")
        A(f"buffer_load_dwordx4 v[{vDst}:{vDst+3}], v{v16}, s[{SD}:{SD+3}], s4 offen {lf}")
        A(f"buffer_load_dwordx4 v[{vSrc}:{vSrc+3}], v{v16}, s[{SS}:{SS+3}], s4 offen {lf}")
        split = o.get("f_split", 1)
        def late_loads():
            A(f"buffer_load_dwordx2 v[{vEa}:{vEa+1}], v{v8}, s[{SE}:{SE+3}], s5 offen {lf}")
            A(f"buffer_load_dwordx4 v[{vRh}:{vRh+3}], v{v24}, s[{SR}:{SR+3}], s6 offen {lf}")
            A(f"buffer_load_dwordx2 v[{vRh+4}:{vRh+5}], v{v24}, s[{SR}:{SR+3}], s6 offen offset:16 {lf}")
        if not split: late_loads()
        A("s_mov_b64 exec, -1")
        A("L_f_noload:")
        if o.get("pretouch"):
            A.c("one read per megabyte of x and of the workspace (lines nobody writes), so that the address translations are at hand later")
            A(f"s_cmp_lg_u32 s{sWave}, 10\ns_cbranch_scc1 L_f_nopre")
            A(f"v_lshlrev_b32 v146, 20, v{vLane}\ns_mov_b32 s17, {32*RSTR}\nv_mul_lo_u32 v148, v{vLane}, s17\ns_mov_b32 s17, {WS_REC - 128}")
            A("s_mov_b64 exec, 0x1ff")
            A(f"buffer_load_dword v147, v148, s[{SWS}:{SWS+3}], s17 offen")
            A("s_mov_b64 exec, 0x1f")
            A(f"buffer_load_dword v147, v146, s[{SX}:{SX+3}], 0 offen")
            A("s_mov_b64 exec, -1")
            A("L_f_nopre:")
        A.c("needed later; the next wait on LDS covers them")
        for r_, off in ((SOUT, 72), (62, 56)): A(f"s_load_dwordx2 s[{r_}:{r_+1}], s[0:1], {off}")
        A("s_load_dwordx4 s[56:59], s[0:1], 40")
        if st.on: A("s_load_dwordx2 s[14:15], s[0:1], 88")
        if o.get("code_touch", 1) == 2: code_touch(10)
        A.c("one wave of the launch picks the word that marks this launch's published offsets")
        A(f"s_cmp_lg_u32 s{sWave}, 11\ns_cbranch_scc1 L_f_nononce\ns_cmp_lg_u32 s2, 0\ns_cbranch_scc1 L_f_nononce")
        A(f"s_memrealtime s[6:7]\nv_lshlrev_b32 v{t0}, 2, v{vLane}\ns_waitcnt lgkmcnt(0)\ns_or_b32 s6, s6, 1\nv_mov_b32 v{t1}, s6")
        A(f"buffer_store_dword v{t1}, v{t0}, s[{SDBG}:{SDBG+3}], 0 offen sc1")
        A("L_f_nononce:")
        tp = [0]
        def ftouch(lanes, nwaves=NW, w0=0):
            A.c("pull rows of x into this XCD's L2")
            A(f"s_lshr_b32 s34, s2, 3\ns_mul_i32 s34, s34, {nwaves}\ns_add_u32 s34, s34, s{sWave}")
            if w0: A(f"s_sub_u32 s34, s34, {w0}")
            A(f"s_lshr_b32 s36, s{sB}, 5\ns_mul_i32 s36, s36, {N*512//8}")
            A(f"v_lshlrev_b32 v161, 7, v{vLane}")
            for l in lanes:
                touch_x(A, ("l2", l), 34, 44, 161, 160, SX, nwaves, 36, tp[0])
                tp[0] += l * 128 * nwaves * 32
        if o.get("f_t0"):
            A(f"s_cmp_lt_u32 s{sWave}, 10\ns_cbranch_scc1 L_f_not0\ns_waitcnt lgkmcnt(0)")
            ftouch(o["f_t0"], 2, 10)
            A("L_f_not0:")
        A("s_barrier")
        nw0 = 0
        A(f"s_cmp_ge_u32 s{sWave}, 10\ns_cbranch_scc1 L_f_helper")
        A(f"s_mov_b64 exec, s[{sAct}:{sAct+1}]")
        if split: late_loads()
        A(f"s_waitcnt vmcnt({4+nw0})")
        st.mark("dst")
        for i in range(4):
            if o.get("bid") == 2:
                A(f"v_and_b32 v{vBk+i}, 7, v{vDst+i}\nv_bfe_u32 v{t0}, v{vDst+i}, 3, 5\nv_lshlrev_b32 v{t0}, 2, v{t0}\nv_lshl_or_b32 v{vBk+i}, v{vBk+i}, 7, v{t0}")
            else: A(f"v_lshlrev_b32 v{vBk+i}, 2, v{vDst+i}\nv_and_b32 v{vBk+i}, 0x3fc, v{vBk+i}")
            A(f"ds_add_rtn_u32 v{vRk+i}, v{vBk+i}, v{vOne1} offset:{aCNT}")
        A("s_mov_b64 exec, -1")
        A("s_waitcnt lgkmcnt(0)")
        A("s_barrier")
        A(f"ds_read_b128 v[{vCn}:{vCn+3}], v{vL16} offset:{aCNT}")
        A(f"s_waitcnt vmcnt({3+nw0})")
        A.c("key = src<<9 | onehot(j)<<28 | (group*4 + source quarter)<<2 ; record i = c01, c23, key")
        A(f"s_mov_b32 s4, 0x10000000\ns_mov_b32 s5, {-(-(1 << 32) // 3072)}\ns_movk_i32 s7, -3072")
        A(f"s_mov_b32 s19, {-(-(1 << 35) // N)}" if o.get("rot") else f"s_mov_b32 s6, {(1 << 34) // N}")
        def key(i):
            d, s_, k = vDst+i, vSrc+i, vRec+2+4*i
            if o.get("rot"):
                q = [f"v_mul_hi_u32_u24 v{t1}, s19, v{s_}", f"v_lshrrev_b32 v{t3}, 5, v{d}", f"v_sub_u32 v{t1}, v{t1}, v{t3}",
                     f"v_bfe_u32 v{t1}, v{t1}, 1, 2"]
                if o.get("bid"): q = [q[0], f"v_sub_u32 v{t1}, v{t1}, v{d}", q[3]]
            else: q = [f"v_mul_hi_u32_u24 v{t1}, s6, v{s_}"]
            return [f"v_mul_hi_u32_u24 v{t0}, s5, v{d}"] + q + [
                    f"v_mad_i32_i24 v{t2}, v{t0}, s7, v{d}", f"v_lshlrev_b32_e64 v{t0}, v{t0}, s4", f"v_lshrrev_b32 v{t2}, 8, v{t2}",
                    f"v_lshl_or_b32 v{t0}, v{s_}, 9, v{t0}", f"v_lshl_or_b32 v{t1}, v{t2}, 2, v{t1}", f"v_lshl_or_b32 v{k}, v{t1}, 2, v{t0}"]
        for l in key(0) + key(1): A(l)
        A("s_waitcnt lgkmcnt(0)")
        A(f"v_add_u32 v95, v{vCn}, v{vCn+1}\nv_add_u32 v96, v95, v{vCn+2}\nv_add_u32 v97, v96, v{vCn+3}\nv_mov_b32 v98, v97")
        fill = key(2) + key(3)
        for n, s_ in enumerate(scan_steps("v_add_u32", 98)):
            A(fill[2*n]); A(fill[2*n+1]); A(s_)
        A("v_sub_u32 v98, v98, v97")
        A(f"v_add_u32 v99, v98, v{vCn}\nv_add_u32 v100, v98, v95\nv_add_u32 v101, v98, v96")
        A.c("every wave writes the same prefix table and then reads only after its own write")
        A(f"ds_write_b128 v{vL16}, v[98:101] offset:{aPFX}")
        A(f"s_mov_b64 exec, s[{sAct}:{sAct+1}]")
        for i in range(4): A(f"ds_read_b32 v{vBk+i}, v{vBk+i} offset:{aPFX}")
        for l in fill[12:]: A(l)
        A(f"s_movk_i32 s5, {aSTG}\ns_mov_b32 s4, 0xffff0000")
        early = o.get("f_keyfirst", 1)
        if early:
            for i in range(4):
                A(f"s_waitcnt lgkmcnt({3-i+i})")
                A(f"v_add_u32 v{vBk+i}, v{vBk+i}, v{vRk+i}\nv_mad_u32_u24 v{vBk+i}, v{vBk+i}, 12, s5")
                A(f"ds_write_b32 v{vBk+i}, v{vRec+2+4*i} offset:8")
        mW, mR, hA = 106, 122, 138
        def wloads():
            if o.get("diag_now"):
                A(f"v_lshrrev_b32 v144, 3, v{vLane}")
                for q in range(8): A(f"buffer_load_ushort v{mR}, v144, s[{SDBG}:{SDBG+3}], 0 offen")
                return
            A.c("weights: 40 pieces of 8 rows; piece w+12q comes from w_si0 when < 16, else from w_si1")
            srd(A, SD, 58, 59, 128*128); srd(A, SS, 62, 63, 192*128); srd(A, SE, 56, 57, 640)
            A(f"s_cmp_lt_u32 s{sWave}, 4")
            A(f"s_cselect_b32 s{SR}, s58, s62\ns_cselect_b32 s{SR+1}, s59, s63")
            A(f"s_cselect_b32 s{SR+2}, s{SD+2}, s{SS+2}\ns_mov_b32 s{SR+3}, 0x00020000")
            A(f"s_cselect_b32 s19, 0, 16384\ns_sub_u32 s19, 12288, s19")
            A(f"s_lshl_b32 s17, s{sWave}, 10\ns_add_u32 s19, s19, s17")
            A(f"buffer_load_dwordx4 v[{mW}:{mW+3}], v{vL16}, s[{SD}:{SD+3}], s17 offen")
            A(f"buffer_load_dwordx4 v[{mW+4}:{mW+7}], v{vL16}, s[{SR}:{SR+3}], s19 offen")
            A(f"s_add_u32 s19, s17, {24576-16384}")
            A(f"buffer_load_dwordx4 v[{mW+8}:{mW+11}], v{vL16}, s[{SS}:{SS+3}], s19 offen")
            A(f"s_add_u32 s19, s17, {36864-16384}")
            A(f"buffer_load_dwordx4 v[{mW+12}:{mW+15}], v{vL16}, s[{SS}:{SS+3}], s19 offen")
            A(f"v_lshrrev_b32 v144, 3, v{vLane}\nv_lshlrev_b32 v145, 1, v144\ns_lshl_b32 s19, s{sWave}, 4")
            for q in range(4): A(f"buffer_load_ushort v{mR+q}, v145, s[{SE}:{SE+3}], s19 offen offset:{192*q}")
        wearly = o.get("f_wearly", 1)
        if not wearly: A("s_waitcnt vmcnt(0)")
        A("s_mov_b64 exec, -1")
        wloads()
        A(f"s_mov_b64 exec, s[{sAct}:{sAct+1}]")
        A.c("coefficients a, a*Y0, a*Y1, a*Y2 in bf16")
        if wearly: A("s_waitcnt vmcnt(8)")
        def unpack(dst, reg, hi):
            if hi: A(f"v_and_b32 v{dst}, s4, v{reg}")
            else: A(f"v_lshlrev_b32 v{dst}, 16, v{reg}")
        for i in range(4):
            unpack(t0, vEa + i//2, i & 1)
            for j in range(3):
                h = 3*i + j
                unpack(102+j, vRh + h//2, h & 1)
            for j in range(3): A(f"v_mul_f32 v{102+j}, v{t0}, v{102+j}")
            A(f"v_cvt_pk_bf16_f32 v{vRec+4*i}, v{t0}, v102\nv_cvt_pk_bf16_f32 v{vRec+1+4*i}, v103, v104")
            if not early:
                if i == 0: A("s_waitcnt lgkmcnt(0)")
                A(f"v_add_u32 v{vBk+i}, v{vBk+i}, v{vRk+i}\nv_mad_u32_u24 v{vBk+i}, v{vBk+i}, 12, s5")
                A(f"ds_write_b32 v{vBk+i}, v{vRec+2+4*i} offset:8")
            A(f"ds_write2_b32 v{vBk+i}, v{vRec+4*i}, v{vRec+1+4*i} offset0:0 offset1:1")
        A("s_mov_b64 exec, -1")
        A.c("wave 0 prepares start|len<<16 of the 256 buckets, two per lane and store")
        if o.get("f_eo") == 2: A("s_branch L_f_nooff")
        A(f"s_cmp_lg_u32 s{sWave}, 0\ns_cbranch_scc1 L_f_nooff")
        for i in range(4): A(f"v_lshl_or_b32 v{98+i}, v{vCn+i}, 16, v{98+i}")
        tag = o.get("f_tag")
        if tag:
            A(f"v_add_u32 v{t0}, {L_GATE+1024}, v{vL16}\nds_write_b128 v{t0}, v[98:101]")
            A(f"v_lshrrev_b32 v{t0}, 1, v{vL16}\nv_add_u32 v{t0}, {L_GATE+1024}, v{t0}")
            A(f"ds_read_b64 v[152:153], v{t0}\nds_read_b64 v[156:157], v{t0} offset:512")
        else:
            A(f"s_lshl_b32 s4, s{sB}, 10")
            A(f"buffer_store_dwordx4 v[98:101], v{vL16}, s[{SWS}:{SWS+3}], s4 offen sc1")
        A("L_f_nooff:")
        A(f"s_mul_i32 s4, s{sC}, {RSTR}\ns_add_u32 s4, s4, {WS_REC}\ns_add_u32 s5, s4, 10240\ns_add_u32 s6, s4, 20480")
        A(f"s_movk_i32 s17, {RUSE//16 - 1280}\nv_cmp_gt_u32 s[{sAct}:{sAct+1}], s17, v0")
        A("s_setprio 3")
        A("s_waitcnt lgkmcnt(0)")
        A("s_barrier")
        st.mark("sortedA")
        for q in range(3): A(f"ds_read_b128 v[{vRh+4*q}:{vRh+4*q+3}], v{v16} offset:{aSTG + 10240*q}")
        for q in range(3):
            A(f"s_waitcnt lgkmcnt({2-q})")
            if q == 2: A(f"s_mov_b64 exec, s[{sAct}:{sAct+1}]")
            A(f"buffer_store_dwordx4 v[{vRh+4*q}:{vRh+4*q+3}], v{v16}, s[{SWS}:{SWS+3}], s{4+q} offen {o.get('f_sf', 'sc1')}")
        A("s_mov_b64 exec, -1")
        A("s_setprio 0")
        A("s_branch L_f_join")
        A.c("waves 10 and 11 carry no edges: they fetch the launch's mark")
        A("L_f_helper:")
        A("s_waitcnt lgkmcnt(0)")
        A("s_barrier")
        if st.on and "dst" not in st.skip: st.n -= 2; st.names = st.names[:-2]; st.mark("dst")
        elif st.on: st.n -= 1; st.names = st.names[:-1]
        A(f"s_and_b32 s4, s2, 63\ns_lshl_b32 s4, s4, 2\nv_mov_b32 v142, 0\ns_mov_b32 s5, 0x40000")
        A(f"buffer_load_dword v143, v142, s[{SDBG}:{SDBG+3}], s4 offen sc1")
        if o.get("f_eo") == 2: A(f"ds_read_b128 v[{vCn}:{vCn+3}], v{vL16} offset:{aCNT}")
        wloads()
        if o.get("f_eo") == 2:
            A("s_waitcnt lgkmcnt(0)")
            A(f"v_add_u32 v95, v{vCn}, v{vCn+1}\nv_add_u32 v96, v95, v{vCn+2}\nv_add_u32 v97, v96, v{vCn+3}\nv_mov_b32 v98, v97")
            for s_ in scan_steps("v_add_u32", 98): A(s_)
            A("v_sub_u32 v98, v98, v97")
            A(f"v_add_u32 v99, v98, v{vCn}\nv_add_u32 v100, v98, v95\nv_add_u32 v101, v98, v96")
        A("s_waitcnt vmcnt(8)")
        A("L_f_again:")
        A(f"v_readfirstlane_b32 s6, v143")
        A("s_cmp_lg_u32 s6, 0\ns_cbranch_scc1 L_f_got")
        A("s_sub_u32 s5, s5, 1\ns_cbranch_scc1 L_f_got")
        A(f"s_sleep 2\nbuffer_load_dword v143, v142, s[{SDBG}:{SDBG+3}], s4 offen sc1\ns_waitcnt vmcnt(0)\ns_branch L_f_again")
        A("L_f_got:")
        A(f"v_mov_b32 v142, {L_NONCE}\nds_write_b32 v142, v143")
        if o.get("f_eo") == 2:
            A(f"s_cmp_lg_u32 s{sWave}, 11\ns_cbranch_scc1 L_f_hoff")
            A.c("offset words with the launch's mark beside each: 8-byte pairs that are written and read whole")
            A(f"s_waitcnt lgkmcnt(0)")
            for i in range(4): A(f"v_lshl_or_b32 v{98+i}, v{vCn+i}, 16, v{98+i}")
            A(f"v_add_u32 v{t0}, {L_GATE+1024}, v{vL16}\nds_write_b128 v{t0}, v[98:101]")
            A(f"v_lshrrev_b32 v{t0}, 1, v{vL16}\nv_add_u32 v{t0}, {L_GATE+1024}, v{t0}")
            A(f"ds_read_b64 v[152:153], v{t0}\nds_read_b64 v[156:157], v{t0} offset:512")
            A(f"v_mov_b32 v47, v143\nv_mov_b32 v49, v143\nv_mov_b32 v63, v143\nv_mov_b32 v65, v143\ns_lshl_b32 s19, s{sC}, 11")
            A("s_waitcnt lgkmcnt(0)")
            A(f"v_mov_b32 v46, v152\nv_mov_b32 v48, v153\nv_mov_b32 v62, v156\nv_mov_b32 v64, v157")
            A(f"buffer_store_dwordx4 v[46:49], v{vL16}, s[{SWS}:{SWS+3}], s19 offen sc1")
            A(f"buffer_store_dwordx4 v[62:65], v{vL16}, s[{SWS}:{SWS+3}], s19 offen offset:1024 sc1")
            A("L_f_hoff:")
        A("s_waitcnt lgkmcnt(0)")
        A("s_barrier")
        st.mark("sortedA")
        A("s_waitcnt vmcnt(2)" if o.get("f_eo") == 2 else "s_waitcnt vmcnt(0)")
        if o.get("f_eo") == 2: A(f"s_cmp_eq_u32 s{sWave}, 11\ns_cbranch_scc1 L_f_join\ns_waitcnt vmcnt(0)")
        if o.get("f_eo"):
            A("L_f_join:")
            st.mark("stiss")
            sNonce = 35
            A(f"v_mov_b32 v{t0}, {L_NONCE}\nds_read_b32 v{t1}, v{t0}")
            A(f"v_lshlrev_b32 v7, 4, v{vLane}\ns_lshl_b32 s19, s{sC}, 11")
            A("s_waitcnt lgkmcnt(0)")
            A(f"v_readfirstlane_b32 s{sNonce}, v{t1}")
            A.c("offset words with the launch's mark beside each: 8-byte pairs that are written and read whole")
            if o["f_eo"] == 2: A("s_branch L_f_nooff2")
            A(f"s_cmp_lg_u32 s{sWave}, 0\ns_cbranch_scc1 L_f_nooff2")
            A(f"v_mov_b32 v46, v152\nv_mov_b32 v47, v{t1}\nv_mov_b32 v48, v153\nv_mov_b32 v49, v{t1}")
            A(f"v_mov_b32 v62, v156\nv_mov_b32 v63, v{t1}\nv_mov_b32 v64, v157\nv_mov_b32 v65, v{t1}")
            A(f"buffer_store_dwordx4 v[46:49], v7, s[{SWS}:{SWS+3}], s19 offen sc1")
            A(f"buffer_store_dwordx4 v[62:65], v7, s[{SWS}:{SWS+3}], s19 offen offset:1024 sc1")
            A("s_waitcnt vmcnt(5)")
            A("L_f_nooff2:")
            ids2(); rotc(); consts()
            A.c("weights scaled by w_rad, row k as [tile t ^ (k&3)][16 columns 4n+t]")
            A(f"v_and_b32 v{hA}, 7, v{vLane}\nv_lshlrev_b32 v{hA}, 2, v{hA}")
            A(f"v_lshl_add_u32 v{hA}, v144, 7, v{hA}\nv_and_b32 v144, 3, v144\nv_lshl_add_u32 v{hA}, v144, 5, v{hA}")
            A(f"s_lshl_b32 s4, s{sWave}, 10\ns_add_u32 s4, s4, {L_WT}\nv_add_u32 v{hA}, s4, v{hA}")
            for t in range(1, 4): A(f"v_xor_b32 v{hA+t}, {32*t}, v{hA}")
            A("s_mov_b32 s4, 0xffff0000")
            if o["f_eo"] == 2: A("s_waitcnt vmcnt(3)")
            else: A(f"s_cmp_eq_u32 s{sWave}, 0\ns_cbranch_scc1 L_f_wok\ns_waitcnt vmcnt(3)\nL_f_wok:")
            for q in range(4):
                if q == 3: A(f"s_cmp_ge_u32 s{sWave}, 4\ns_cbranch_scc1 L_f_w3")
                A(f"v_lshlrev_b32 v{mR+q}, 16, v{mR+q}")
                for tq in (0, 2):
                    for t in (tq, tq+1):
                        a = 144 + 4*(t & 1)
                        unpack(a, mW + 4*q + t//2, t & 1); unpack(a+1, mW + 4*q + 2 + t//2, t & 1)
                    for a in (144, 148):
                        A(f"v_pk_mul_f32 v[{a}:{a+1}], v[{a}:{a+1}], v[{mR+q & ~1}:{(mR+q & ~1)+1}] op_sel:[0,{q & 1}] op_sel_hi:[1,{q & 1}]")
                    for a in (144, 148): A(f"v_cvt_pk_bf16_f32 v{a+2+tq//2}, v{a}, v{a+1}")
                    for t in (tq, tq+1): A(f"ds_write_b32 v{hA+t}, v{144+4*(t & 1)+2+tq//2} offset:{12288*q}")
            A("L_f_w3:")
            marker_init()
            vA = 100
            A.c("fragment w+12q = (k step (w>>2)+3q, tile w&3): two transposing reads")
            A(f"v_lshrrev_b32 v{t0}, 4, v{vLane}\nv_bfe_u32 v{t2}, v{vLane}, 2, 2\nv_lshl_add_u32 v{vA}, v{t0}, 3, v{t2}\nv_lshlrev_b32 v{vA}, 7, v{vA}")
            A(f"s_and_b32 s4, s{sWave}, 3\nv_xor_b32 v{t2}, s4, v{t2}\nv_lshl_add_u32 v{vA}, v{t2}, 5, v{vA}")
            A(f"v_and_b32 v{t2}, 3, v{vLane}\nv_lshl_add_u32 v{vA}, v{t2}, 3, v{vA}")
            A(f"s_lshr_b32 s4, s{sWave}, 2\ns_lshl_b32 s4, s4, 12\ns_add_u32 s4, s4, {L_WT}\nv_add_u32 v{vA}, s4, v{vA}")
            A(f"s_lshl_b32 s4, s{sWave}, 10\ns_add_u32 s4, s4, {L_W}\nv_add_u32 v{vA+1}, s4, v7")
            A(f"s_lshl_b32 s17, s{sB}, 3\nv_mov_b32 v66, 0\nv_cmp_gt_u32 s[6:7], s{sNseg}, v{vLane}\ns_mov_b32 s5, 0x40000")
            A(f"s_and_b32 s8, s2, {R-1}\ns_lshl_b32 s8, s8, 10\ns_add_u32 s8, s8, {WS_FLAG}")
            A(f"s_lshl_b32 s19, s{sC}, 2\ns_add_u32 s19, s19, {WS_FLAG}\nv_lshlrev_b32 v{t0}, 10, v{vLane}\nv_mov_b32 v{t2}, s{sNonce}")
            round_pre()
            st.mark("wdone")
            A(f"s_waitcnt vmcnt(0) lgkmcnt(0)")
            A("s_barrier")
            st.mark("acked")
            A.c(f"every record store of this workgroup has been acknowledged: raise its flag in all {R} copies")
            A(f"s_cmp_lg_u32 s{sWave}, 0\ns_cbranch_scc1 L_f_noflag")
            if R < 64: A(f"s_mov_b32 exec_lo, {(1 << R) - 1 & 0xffffffff}\ns_mov_b32 exec_hi, 0")
            A(f"buffer_store_dword v{t2}, v{t0}, s[{SWS}:{SWS+3}], s19 offen sc1")
            A("L_f_noflag:")
            tpos = tall = 0
            A.c("read the pairs of this wave's chunks until each carries the mark")
            def poll_load(): A(f"buffer_load_dwordx2 v[66:67], v{vD+2}, s[{SWS}:{SWS+3}], s17 offen sc1")
            A("s_mov_b64 exec, s[6:7]")
            poll_load()
            A("s_mov_b64 exec, -1")
            vW2 = mW
            for q in range(4):
                A(f"ds_read_b64_tr_b16 v[{vW2+4*q}:{vW2+4*q+1}], v{vA} offset:{12288*q}")
                A(f"ds_read_b64_tr_b16 v[{vW2+4*q+2}:{vW2+4*q+3}], v{vA} offset:{12288*q+512}")
            for q in range(4):
                if q == 3: A(f"s_cmp_ge_u32 s{sWave}, 4\ns_cbranch_scc1 L_f_w4")
                A(f"s_waitcnt lgkmcnt({6-2*q})")
                A(f"ds_write_b128 v{vA+1}, v[{vW2+4*q}:{vW2+4*q+3}] offset:{12288*q}")
            A("L_f_w4:")
            if o.get("eo_init", 0) == 0: key_init(); zero_init()
            A("s_mov_b64 exec, s[6:7]")
            A("s_waitcnt vmcnt(0)")
            A("L_f_poll:")
            A(f"v_cmp_ne_u32 vcc, s{sNonce}, v67")
            A("s_and_b64 exec, exec, vcc\ns_cbranch_scc0 L_f_seen")
            A("s_sub_u32 s5, s5, 1\ns_cbranch_scc1 L_f_giveup")
            A(f"s_sleep {o.get('f_sleep', 1)}")
            poll_load()
            A("s_waitcnt vmcnt(0)\ns_branch L_f_poll")
            A("L_f_giveup:\ns_mov_b64 s[6:7], 0")
            A("L_f_seen:")
            A("s_mov_b64 exec, -1")
            A(f"v_mov_b32 v{vOf}, v66")
        else:
            A("L_f_join:")
            ntA = 0
            if o.get("f_tA"): ftouch([o["f_tA"]]); ntA = 1
            st.mark("stiss")
            sNonce = 35
            assert tag
            A(f"v_mov_b32 v{t0}, {L_NONCE}\nds_read_b32 v{t1}, v{t0}")
            ids2(); rotc(); consts()
            A("s_waitcnt lgkmcnt(0)")
            A(f"v_readfirstlane_b32 s{sNonce}, v{t1}")
            def pre_init():
                lds_init()
                A.c("zero block, round word, flags, counters: bytes 0..511")
                A(f"s_mov_b32 exec_hi, 0")
                A(f"ds_write_b128 v7, v[{vz+4}:{vz+7}]")
                A("s_mov_b32 exec_hi, -1")
            if o.get("f_preinit", 1): pre_init()
            A.c("offset words with the launch's mark beside each: 8-byte pairs that are written and read whole")
            A(f"v_mov_b32 v46, v152\nv_mov_b32 v47, s{sNonce}\nv_mov_b32 v48, v153\nv_mov_b32 v49, s{sNonce}")
            A(f"v_mov_b32 v62, v156\nv_mov_b32 v63, s{sNonce}\nv_mov_b32 v64, v157\nv_mov_b32 v65, s{sNonce}")
            A(f"s_lshl_b32 s19, s{sC}, 11\ns_lshl_b32 s17, s{sB}, 3\nv_mov_b32 v66, 0")
            A(f"v_cmp_gt_u32 s[6:7], s{sNseg}, v{vLane}\ns_mov_b32 s5, 0x40000")
            vA = 100
            A.c("fragment w+12q = (k step (w>>2)+3q, tile w&3): two transposing reads")
            A(f"v_lshrrev_b32 v{t0}, 4, v{vLane}\nv_bfe_u32 v{t2}, v{vLane}, 2, 2\nv_lshl_add_u32 v{vA}, v{t0}, 3, v{t2}\nv_lshlrev_b32 v{vA}, 7, v{vA}")
            A(f"s_and_b32 s4, s{sWave}, 3\nv_xor_b32 v{t2}, s4, v{t2}\nv_lshl_add_u32 v{vA}, v{t2}, 5, v{vA}")
            A(f"v_and_b32 v{t2}, 3, v{vLane}\nv_lshl_add_u32 v{vA}, v{t2}, 3, v{vA}")
            A(f"s_lshr_b32 s4, s{sWave}, 2\ns_lshl_b32 s4, s4, 12\ns_add_u32 s4, s4, {L_WT}\nv_add_u32 v{vA}, s4, v{vA}")
            A(f"s_lshl_b32 s4, s{sWave}, 10\ns_add_u32 s4, s4, {L_W}\nv_add_u32 v{vA+1}, s4, v7")
            A.c("weights scaled by w_rad, row k as [tile t ^ (k&3)][16 columns 4n+t]")
            A(f"v_and_b32 v{hA}, 7, v{vLane}\nv_lshlrev_b32 v{hA}, 2, v{hA}")
            A(f"v_lshl_add_u32 v{hA}, v144, 7, v{hA}\nv_and_b32 v144, 3, v144\nv_lshl_add_u32 v{hA}, v144, 5, v{hA}")
            A(f"s_lshl_b32 s4, s{sWave}, 10\ns_add_u32 s4, s4, {L_WT}\nv_add_u32 v{hA}, s4, v{hA}")
            for t in range(1, 4): A(f"v_xor_b32 v{hA+t}, {32*t}, v{hA}")
            A("s_mov_b32 s4, 0xffff0000")
            def wpiece(q):
                A(f"v_lshlrev_b32 v{mR+q}, 16, v{mR+q}")
                for tp in (0, 2):
                    for t in (tp, tp+1):
                        a = 144 + 4*(t & 1)
                        unpack(a, mW + 4*q + t//2, t & 1); unpack(a+1, mW + 4*q + 2 + t//2, t & 1)
                    for a in (144, 148):
                        A(f"v_pk_mul_f32 v[{a}:{a+1}], v[{a}:{a+1}], v[{mR+q & ~1}:{(mR+q & ~1)+1}] op_sel:[0,{q & 1}] op_sel_hi:[1,{q & 1}]")
                    for a in (144, 148): A(f"v_cvt_pk_bf16_f32 v{a+2+tp//2}, v{a}, v{a+1}")
                    for t in (tp, tp+1): A(f"ds_write_b32 v{hA+t}, v{144+4*(t & 1)+2+tp//2} offset:{12288*q}")
            npre = o.get("f_npre", 0)
            if npre: A("s_waitcnt vmcnt(3)")
            for q in range(npre): wpiece(q)
            round_pre()
            if o.get("coop"): coop_pre()
            st.mark("wdone")
            A(f"s_waitcnt vmcnt({ntA})")
            A("s_barrier")
            st.mark("acked")
            A.c("every record store of this workgroup has been acknowledged: publish the offsets")
            A(f"s_cmp_lg_u32 s{sWave}, 0\ns_cbranch_scc1 L_f_noflag")
            A(f"buffer_store_dwordx4 v[46:49], v7, s[{SWS}:{SWS+3}], s19 offen sc1")
            A(f"buffer_store_dwordx4 v[62:65], v7, s[{SWS}:{SWS+3}], s19 offen offset:1024 sc1")
            A("L_f_noflag:")
            if o.get("f_tB"): ftouch([o["f_tB"]])
            tpos = tp[0]
            if not o.get("f_preinit", 1): pre_init()
            for q in range(npre, 4):
                if q == 3: A(f"s_cmp_ge_u32 s{sWave}, 4\ns_cbranch_scc1 L_f_w3")
                wpiece(q)
            A("L_f_w3:")
            def poll_load(): A(f"buffer_load_dwordx2 v[{96 if o.get('f_pp', 0) else 66}:{97 if o.get('f_pp', 0) else 67}], v{vD+2}, s[{SWS}:{SWS+3}], s17 offen sc1")
            A("s_waitcnt lgkmcnt(0)")
            A("s_barrier")
            vW2 = mW
            for q in range(4):
                A(f"ds_read_b64_tr_b16 v[{vW2+4*q}:{vW2+4*q+1}], v{vA} offset:{12288*q}")
                A(f"ds_read_b64_tr_b16 v[{vW2+4*q+2}:{vW2+4*q+3}], v{vA} offset:{12288*q+512}")
            A.c("read the pairs of this wave's chunks until each carries the mark")
            if not o.get("f_late"):
                A("s_mov_b64 exec, s[6:7]")
                poll_load()
                A("s_mov_b64 exec, -1")
            assert not touch0
            tall = tpos
            for q in range(4):
                if q == 3: A(f"s_cmp_ge_u32 s{sWave}, 4\ns_cbranch_scc1 L_f_w4")
                A(f"s_waitcnt lgkmcnt({6-2*q})")
                A(f"ds_write_b128 v{vA+1}, v[{vW2+4*q}:{vW2+4*q+3}] offset:{12288*q}")
            A("L_f_w4:")
            if nacc0: A("s_waitcnt lgkmcnt(0)")
            for i in range(0, nacc0, 2): A(f"v_mov_b64 v[{vC+i}:{vC+i+1}], 0")
            if o.get("f_pp", 0):
                A.c("two reads stay in flight; a lane drops out once its pair carries the mark")
                P = (96, 98)
                def pl(k): A(f"buffer_load_dwordx2 v[{P[k]}:{P[k]+1}], v{vD+2}, s[{SWS}:{SWS+3}], s17 offen sc1")
                A(f"v_mov_b32 v{vOf}, 0")
                A("s_mov_b64 exec, s[6:7]")
                pl(1)
                A("L_f_poll:")
                for k in (0, 1):
                    A("s_waitcnt vmcnt(1)")
                    A(f"v_cmp_eq_u32 vcc, s{sNonce}, v{P[k]+1}")
                    A(f"v_cndmask_b32 v{vOf}, v{vOf}, v{P[k]}, vcc")
                    A("s_andn2_b64 exec, exec, vcc\ns_cbranch_scc0 L_f_seen")
                    if o.get("f_sleep", 1): A(f"s_sleep {o.get('f_sleep', 1)}")
                    pl(k)
                A("s_sub_u32 s5, s5, 1\ns_cbranch_scc0 L_f_poll")
                A("L_f_seen:")
                A("s_mov_b64 exec, -1")
            else:
                A("s_mov_b64 exec, s[6:7]")
                if o.get("f_late"):
                    if o["f_late"] > 1: A(f"s_sleep {o['f_late']-1}")
                    poll_load()
                if o.get("f_prio", 0): A("s_setprio 2")
                A("s_waitcnt vmcnt(0)")
                A("L_f_poll:")
                A(f"v_cmp_ne_u32 vcc, s{sNonce}, v67")
                A("s_and_b64 exec, exec, vcc\ns_cbranch_scc0 L_f_seen")
                A("s_sub_u32 s5, s5, 1\ns_cbranch_scc1 L_f_seen")
                if o.get("f_sleep", 1): A(f"s_sleep {o.get('f_sleep', 1)}")
                poll_load()
                A("s_waitcnt vmcnt(0)\ns_branch L_f_poll")
                A("L_f_seen:")
                A("s_mov_b64 exec, -1")
            st.mark("seen")
            if o.get("coop"):
                A(f"s_cmp_ge_u32 s9, s{sNseg}\ns_cbranch_scc1 L_f_nocoop")
                A("s_mov_b32 exec_hi, 3")
                A(f"buffer_load_dword v{vD+59}, v{vD+58}, s[{SWS}:{SWS+3}], s10 offen {o['coop']}")
                A("s_mov_b32 exec_hi, -1")
                A("L_f_nocoop:")
            if o.get("f_pp", 0): pass
            elif tag: A(f"v_mov_b32 v{vOf}, v66")
            else:
                A(f"buffer_load_dword v{vOf}, v{vD+2}, s[{SWS}:{SWS+3}], s17 offen sc1")
                A("s_waitcnt vmcnt(0)")
    st.mark("off")
    A("L_k2_round:")
    vLen, vInc, vM, vPos = vD+2, vD+3, vD+28, vD+29
    vMk = vD + 30
    vR = vT
    assert vMkA == vMk + 4
    vSave = vD + 36
    A(f"v_lshrrev_b32 v{vInc}, 16, v{vOf}")
    A(f"v_and_b32 v{vM}, 0xffff, v{vOf}")
    A(f"v_mov_b32 v{vLen}, v{vInc}")
    steps = scan_steps("v_add_u32", vInc, upto=32)
    if fused and o.get("rectouch"):
        A.c("start the first and the last line of every segment on their way before the addresses per record are known")
        A(f"v_mad_u32_u24 v{vD+58}, v{vM}, 12, v{vBase}\ns_mov_b32 s19, {WS_REC}")
        A(f"v_mad_u32_u24 v{vD+59}, v{vLen}, 12, v{vD+58}")
        A("s_mov_b64 exec, s[6:7]")
        A(f"buffer_load_dword v{vD+60}, v{vD+58}, s[{SWS}:{SWS+3}], s19 offen sc1")
        if o["rectouch"] > 1:
            A(f"s_sub_u32 s19, s19, 4")
            A(f"buffer_load_dword v{vD+61}, v{vD+59}, s[{SWS}:{SWS+3}], s19 offen sc1")
        A("s_mov_b64 exec, -1")
    A(steps[0])
    A(f"s_mul_i32 s17, s{sRound}, {WIN}")
    A(steps[1])
    A(f"s_movk_i32 s19, 383")
    A(steps[2])
    A(f"v_add_u32 v{vM}, v{vM}, v{vLen}")
    A(steps[3]); A(steps[4])
    A(f"v_sub_u32 v{vM}, v{vM}, v{vInc}")
    A(f"v_readlane_b32 s{sTot}, v{vInc}, 31")
    A(f"v_sub_u32 v{vInc}, v{vInc}, v{vLen}")
    A(f"v_mad_i32_i24 v{vM}, v{vM}, 12, v{vBase}")
    A(f"v_subrev_u32 v{vPos}, s17, v{vInc}")
    A(f"v_med3_i32 v{vPos}, v{vPos}, 0, s19")
    A(f"v_lshl_add_u32 v{vPos}, v{vPos}, 2, s{sMk}")
    if fused and o.get("mkmask", 1):
        A("s_mov_b64 exec, s[6:7]")
        A(f"ds_max_u32 v{vPos}, v{vM}")
        A("s_mov_b64 exec, -1")
    else:
        A(f"s_mov_b32 exec_hi, 0")
        A(f"ds_max_u32 v{vPos}, v{vM}")
        A("s_mov_b32 exec_hi, -1")
    for it in range(NIT): A(f"ds_read_b32 v{vMk+it}, v{vMk+4} offset:{256*it}")
    A(f"v_mov_b32 v{vSave}, v{vOf}\nv_mov_b32 v{vSave+1}, v{vD+1}")
    A(f"s_sub_u32 s{sRem}, s{sTot}, s17\ns_min_i32 s{sRem}, s{sRem}, {WIN}")
    A(f"s_mul_i32 s17, s17, 12\ns_add_u32 s17, s17, {WS_REC}")
    eo = fused and o.get("f_eo")
    def flag_load(): A(f"buffer_load_dword v{vD+59}, v{vD+58}, s[{SWS}:{SWS+3}], s8 offen sc1")
    if eo and o.get("eo_pos", 0) == 0:
        A("s_mov_b64 exec, s[6:7]"); flag_load(); A("s_mov_b64 exec, -1")
    A("s_waitcnt lgkmcnt(1)")
    sc = [scan_steps("v_max_u32", vMk+it) for it in range(NIT)]
    for k in range(6):
        for it in range(NIT-1): A(sc[it][k])
    def recload(it):
        A(f"buffer_load_dwordx3 v[{vR+4*it}:{vR+4*it+2}], v{vMk+it}, s[{SWS}:{SWS+3}], s17 offen offset:{768*it} {hf}")
    for it in range(NIT-1): A(f"v_readlane_b32 s{sCar[it]}, v{vMk+it}, 63")
    A(f"v_add_u32 v{vMk}, v{vMk}, v{vL12}")
    for it in range(1, NIT-1): A(f"s_max_u32 s{sCar[it]}, s{sCar[it]}, s{sCar[it-1]}")
    if eo:
        for it in range(1, NIT-1):
            A(f"v_max_u32 v{vMk+it}, s{sCar[it-1]}, v{vMk+it}")
            A(f"v_add_u32 v{vMk+it}, v{vMk+it}, v{vL12}")
        A.c("the records may be read once the flags of this wave's chunks are up")
        A("s_mov_b64 exec, s[6:7]")
        if o.get("eo_pos", 0) == 1: flag_load()
        A("L_f_poll2:")
        A("s_waitcnt vmcnt(0)")
        A(f"v_cmp_ne_u32 vcc, s35, v{vD+59}")
        A("s_and_b64 exec, exec, vcc\ns_cbranch_scc0 L_f_seen2")
        A("s_sub_u32 s5, s5, 1\ns_cbranch_scc1 L_f_giveup2")
        A(f"s_sleep {o.get('f_sleep', 1)}")
        flag_load()
        A("s_branch L_f_poll2")
        A("L_f_giveup2:\ns_mov_b64 s[6:7], 0")
        A("L_f_seen2:")
        A("s_mov_b64 exec, -1")
        st.mark("seen")
    A.c("the last window is nearly always empty: it goes first, so the counted waits below do not depend on it")
    A(f"s_cmp_le_i32 s{sRem}, {64*(NIT-1)}\ns_cbranch_scc1 L_k2_skip4")
    A("s_waitcnt lgkmcnt(0)")
    for k in range(6): A(sc[NIT-1][k])
    A(f"v_max_u32 v{vMk+NIT-1}, s{sCar[NIT-2]}, v{vMk+NIT-1}")
    A(f"v_add_u32 v{vMk+NIT-1}, v{vMk+NIT-1}, v{vL12}")
    recload(NIT-1)
    A("L_k2_skip4:")
    recload(0)
    for it in range(1, NIT-1):
        if not eo:
            A(f"v_max_u32 v{vMk+it}, s{sCar[it-1]}, v{vMk+it}")
            A(f"v_add_u32 v{vMk+it}, v{vMk+it}, v{vL12}")
        if it == NIT-2 and o.get("mask3"):
            A(f"s_sub_u32 s19, s{sRem}, {64*it}\ns_max_i32 s19, s19, 1\nv_cmp_gt_i32 vcc, s19, v{vLane}\ns_mov_b64 exec, vcc")
        recload(it)
        if it == NIT-2 and o.get("mask3"): A("s_mov_b64 exec, -1")
    if fused and o.get("f_prio", 0): A("s_setprio 0")
    st.mark("recissue")
    for it in range(NIT):
        if it: A(f"s_sub_u32 s19, s{sRem}, {64*it}")
        A(f"v_cmp_gt_i32 s[{sMask+2*it}:{sMask+2*it+1}], s{19 if it else sRem}, v{vLane}")
    A.c("lane constants of the main loop")
    A(f"v_and_b32 v{vOff}, 15, v{vLane}\nv_lshlrev_b32 v{vOff}, 4, v{vOff}")
    A(f"v_and_b32 v{vSh}, 3, v{vLane}\nv_add_u32 v{vSh}, 28, v{vSh}")
    if nacc0 < 64:
        A(f"s_cmp_lg_u32 s{sRound}, 0\ns_cbranch_scc1 L_k2_acc")
        for i in range(nacc0, 64, 2): A(f"v_mov_b64 v[{vC+i}:{vC+i+1}], 0")
        A("L_k2_acc:")
    vBin = vMk
    vRank = vD + 44
    vc, vs, vtq, vx, vm1, vm2 = vD+50, vD+51, vD+52, vD+53, vD+54, vD+55
    vOne = vD + 56
    A(f"v_and_b32 v{vx}, 3, v{vLane}")
    A(f"v_cmp_lt_u32 vcc, 0, v{vx}\nv_lshlrev_b32 v{vPos}, 2, v{vLane}\nv_mov_b32 v{vM}, {L_RND}\nv_cndmask_b32 v{vm1}, 0, -1, vcc")
    A(f"v_cmp_lt_u32 vcc, 1, v{vx}")
    A(f"v_lshrrev_b32 v{vKA}, 4, v{vLane}\nv_lshlrev_b32 v{vKA}, 2, v{vKA}")
    A(f"v_cndmask_b32 v{vm2}, 0, -1, vcc")
    A(f"v_and_b32 v{vK2A}, 12, v{vLane}\nv_lshl_add_u32 v{vK2A}, v{vK2A}, 2, v{vKA}")
    A(f"v_mov_b32 v7, v{vSave}\nv_mov_b32 v0, v{vSave+1}")
    A(f"v_mov_b32 v{vOne}, 4")
    A.c("lanes without a record keep a rank that puts their LDS writes out of range")
    for it in range(NIT): A(f"v_mov_b32 v{vRank+it}, 0x100000" if it == 0 else f"v_mov_b32 v{vRank+it}, v{vRank}")
    tb = o.get("k2_touchb")
    ntb = 0
    nobar = fused and o.get("nobar", 0)
    if not nobar:
        A.c("counters and pad keys of every wave are in place, every record load of the workgroup is under way")
        A("s_waitcnt lgkmcnt(0)")
        A("s_barrier")
    A.c("a wave with more records than one window raises the number of rounds")
    A(f"s_cmp_le_u32 s{sTot}, {WIN}\ns_cbranch_scc1 L_k2_one")
    A(f"v_mov_b32 v{vx}, s{sTot}")
    A("s_mov_b64 exec, 1")
    A(f"ds_max_u32 v{vM}, v{vx}")
    A("s_mov_b64 exec, -1")
    A("L_k2_one:")
    if wpos == 1:
        A(f"v_lshlrev_b32 v{vD+4}, 4, v{vLane}")
        wdma(vD+4); ntb += 4
    def touch_b():
        nonlocal ntb, tpos
        A.c("pull the first rows of x into this XCD's L2 behind the record loads")
        A(f"v_lshlrev_b32 v{vD+5}, 7, v{vLane}")
        A(f"s_lshr_b32 s34, s2, 3\ns_mul_i32 s34, s34, {NW}\ns_add_u32 s34, s34, s{sWave}")
        ntb += touch_x(A, tb, 34, 17, vD+5, vD+6, SX, NW, sRot, tpos)
        tpos += sum(tb[1:]) * 128 * NW * 32
        if o.get("k2_mall") == 2: mall_touch(tpos); ntb += 1
    if tb and not nobar: touch_b()
    late_touch = []
    if tb and nobar:
        n0 = len(A.L); keep = ntb
        touch_b(); ntb = keep
        lines = [l.replace("s17", "s44") for l in A.L[n0:]]; del A.L[n0:]
        k = next(i for i, l in enumerate(lines) if "exec" in l)
        A.L += lines[:k]; late_touch = lines[k:]
    for it in range(NIT):
        if it < NIT-1: A(f"s_waitcnt vmcnt({NIT-2-it+ntb})")
        else: A(f"s_cmp_le_i32 s{sRem}, {64*(NIT-1)}\ns_cbranch_scc1 L_k2_skip4a")
        if it == 0: st.mark("rec0")
        A(f"v_and_b32 v{vBin+it}, 0xfc, v{vR+4*it+2}")
        A(f"s_mov_b64 exec, s[{sMask+2*it}:{sMask+2*it+1}]")
        A(f"ds_add_rtn_u32 v{vRank+it}, v{vBin+it}, v{vOne} offset:{L_CNT}")
        A("s_mov_b64 exec, -1")
    A("L_k2_skip4a:")
    A.L += late_touch
    A("s_waitcnt lgkmcnt(0)")
    A("s_barrier")
    st.mark("ranked")
    A(f"ds_read_b32 v{vc}, v{vPos} offset:{L_CNT}")
    A(f"ds_read_b32 v{vM}, v{vM}")
    if wpos in (3, 4):
        A(f"s_cmp_lg_u32 s{sRound}, 0\ns_cbranch_scc1 L_k2_now")
        A(f"v_lshlrev_b32 v{vD+4}, 4, v{vLane}")
        wdma(vD+4)
        A("L_k2_now:")
    nt = 0
    touch = o.get("k2_touch")
    if touch:
        A.c("pull rows of x into this XCD's L2 while the records are being placed")
        A(f"v_lshlrev_b32 v{vD+5}, 7, v{vLane}")
        A(f"s_lshr_b32 s34, s2, 3\ns_mul_i32 s34, s34, {NW}\ns_add_u32 s34, s34, s{sWave}")
        nt = touch_x(A, touch, 34, 17, vD+5, vD+6, SX, NW, sRot, tpos)
        assert nt <= 1
    if o.get("k2_mall") == 1: mall_touch(tall)
    A(f"s_lshl_b32 s19, s{sGrp}, 2")
    A("s_waitcnt lgkmcnt(1)")
    A(f"v_and_b32_dpp v{vx}, v{vc}, v{vm1} quad_perm:[0,0,1,2] row_mask:0xf bank_mask:0xf")
    A(f"v_add_u32 v{vs}, v{vc}, v{vx}")
    A(f"v_and_b32_dpp v{vx}, v{vs}, v{vm2} quad_perm:[0,0,0,1] row_mask:0xf bank_mask:0xf")
    A(f"v_add_u32 v{vs}, v{vs}, v{vx}")
    A(f"v_mov_b32_dpp v{vtq}, v{vs} quad_perm:[3,3,3,3] row_mask:0xf bank_mask:0xf")
    A(f"v_add_u32 v{vx}, 127, v{vtq}\nv_and_b32 v{vx}, 0xffffff80, v{vx}")
    A(f"v_sub_u32 v{vs}, v{vs}, v{vc}")
    A(f"v_sub_u32 v{vs}, v{vs}, v{vx}")
    sq = scan_steps("v_add_u32", vx, first=4)
    A(f"v_mov_b32 v{vc}, v{vx}")
    A(sq[0])
    A(f"v_readlane_b32 s{sN}, v{vtq}, s19")
    for s_ in sq[1:]: A(s_)
    A(f"v_add_u32 v{vs}, v{vs}, v{vx}")
    A(f"v_sub_u32 v{vc}, v{vx}, v{vc}")
    A(f"s_cmp_le_i32 s{sRem}, {64*(NIT-1)}\ns_cbranch_scc1 L_k2_skip4c")
    A(f"ds_bpermute_b32 v{vBin+NIT-1}, v{vBin+NIT-1}, v{vs}")
    A("L_k2_skip4c:")
    for it in range(NIT-1): A(f"ds_bpermute_b32 v{vBin+it}, v{vBin+it}, v{vs}")
    A(f"v_readlane_b32 s17, v{vc}, s19")
    A(f"s_cmp_lg_u32 s{sRound}, 0\ns_cbranch_scc1 L_k2_havernd")
    A(f"s_waitcnt lgkmcnt({NIT-1})")
    A(f"v_readfirstlane_b32 s{sRnd}, v{vM}")
    A("L_k2_havernd:")
    A.c("LDS addresses of this wave's slots (counts and starts are in units of 4 bytes)")
    A(f"v_add_u32 v{vKA}, s17, v{vKA}")
    A(f"v_add_u32 v{vK2A}, s17, v{vK2A}")
    A(f"s_movk_i32 s19, {L_COEF}")
    A(f"v_lshl_add_u32 v{vCA}, v{vK2A}, 1, s19")
    A(f"s_lshr_b32 s{sN}, s{sN}, 2")
    A(f"s_add_u32 s17, s{sN}, 31\ns_lshr_b32 s17, s17, 5")
    prio = o.get("prio", [3, 2, 1])
    frac = o.get("frac")
    np_ = len(prio) if prio else 0
    for k in range(1, np_):
        t = (sT1, sT2, sT3)[k-1]
        f = int(256 * (frac[k-1] if frac else k / np_) + 0.999)
        A(f"s_mul_i32 s{t}, s17, {f}\ns_add_u32 s{t}, s{t}, 128\ns_lshr_b32 s{t}, s{t}, 8")
    for it in range(NIT):
        p = vBin + it
        if it == NIT-1: A(f"s_cmp_le_i32 s{sRem}, {64*(NIT-1)}\ns_cbranch_scc1 L_k2_skip4b")
        if it < NIT-1: A(f"s_waitcnt lgkmcnt({NIT-2-it + 2*it})")
        A(f"v_add_u32 v{p}, v{p}, v{vRank+it}")
        A(f"ds_write_b32 v{p}, v{vR+4*it+2} offset:{L_KEY}")
        A(f"v_lshlrev_b32 v{vRank+it}, 1, v{p}")
        A(f"ds_write_b64 v{vRank+it}, v[{vR+4*it}:{vR+4*it+1}] offset:{L_COEF}")
    A("L_k2_skip4b:")
    younger = (ntb - 4 if wpos == 1 else 0) + nt + (1 if o.get("k2_mall") == 1 else 0)
    A(f"s_waitcnt vmcnt({younger}) lgkmcnt(0)" if wpos in (1, 3) else "s_waitcnt lgkmcnt(0)")
    A("s_barrier")
    st.mark("sorted")
    def rd_keys():
        for q in range(4):
            A(f"ds_read2_b32 v[{vK+2*q}:{vK+2*q+1}], v{vKA} offset0:{L_KEY//4+8*q} offset1:{L_KEY//4+8*q+4}")
        A(f"ds_read2_b32 v[{vK2}:{vK2+1}], v{vK2A} offset0:{L_KEY//4} offset1:{L_KEY//4+16}")
        A(f"v_add_u32 v{vKA}, 128, v{vKA}\nv_add_u32 v{vK2A}, 128, v{vK2A}")
    def addr():
        for i in range(8): A(f"v_and_or_b32 v{vK+i}, v{vK+i}, s{sRowM}, v{vOff}")
        for u in range(2):
            A(f"v_bfe_i32 v{vK2+u}, v{vK2+u}, v{vSh}, 1")
            A(f"v_and_b32 v{vK2+u}, v{vK2+u}, v{vCA}")
        A(f"v_add_u32 v{vCA}, 256, v{vCA}")
    def rd_coef():
        A(f"ds_read_b64_tr_b16 v[{vAF}:{vAF+1}], v{vK2}")
        A(f"ds_read_b64_tr_b16 v[{vAF+2}:{vAF+3}], v{vK2+1} offset:128")
    gf = o.get("gather_flags", "")
    def load(h, i):
        d = vD + h*32 + i*4
        A(f"buffer_load_dwordx4 v[{d}:{d+3}], v{vK+i}, s[{SX}:{SX+3}], 0 offen offset:{h*256} {gf}")
    def loads(h):
        for i in range(8): load(h, i)
    def loads_part(h, tag, wait):
        for i in range(8):
            if i: A(f"s_cmp_le_i32 s{sRem}, {4*i}\ns_cbranch_scc1 L_{tag}_{i}")
            load(h, i)
        if wait:
            A(f"s_waitcnt vmcnt(8)\ns_branch L_{tag}_done")
            for i in range(1, 8):
                A(f"L_{tag}_{i}:\ns_waitcnt vmcnt({i})")
                if i < 7: A(f"s_branch L_{tag}_done")
            A(f"L_{tag}_done:")
        else:
            for i in range(1, 8): A(f"L_{tag}_{i}:")
    def comp(h, lgkm=False, filler=None, filler0=None):
        if o.get("diag_nocomp"):
            if lgkm: A("s_waitcnt lgkmcnt(0)")
            if filler0: filler0()
            if filler: filler()
            return
        def mf(g):
            t = vT + (g % 4)*4
            c = vC + (h*8 + g)*4
            A(f"v_mfma_f32_16x16x32_bf16 v[{c}:{c+3}], v[{vAF}:{vAF+3}], v[{t}:{t+3}], v[{c}:{c+3}]")
        for g in range(8):
            u, par = g >> 1, g & 1
            t = vT + (g % 4)*4
            for q in range(4):
                a = vD + h*32 + (2*q)*4 + u
                b = vD + h*32 + (2*q+1)*4 + u
                A(f"v_perm_b32 v{t+q}, v{b}, v{a}, s{sP0+par}")
            if lgkm and g == 1: A("s_waitcnt lgkmcnt(0)")
            if g == 7 and filler0: filler0()
            if g: mf(g-1)
        if filler: filler()
        mf(7)
    vH, vSW, vGA, vWB, vO, vFl = vK, vK+1, vK+2, vK+3, vK+4, vK+5
    vY0 = vKA
    sS, sOut = 41, 42
    assert o.get("gshift", 0) % 4 == 0
    def epi_consts():
        g, n = vK+6, vK+7
        A.c("waves 4q..4q+3 share a tile of nodes; once all four have staged their sums, wave 4q+s multiplies component s")
        A(f"s_and_b32 s{sS}, s{sWave}, 3\ns_and_b32 s40, s{sGrp}, 12")
        A(f"v_lshrrev_b32 v{g}, 4, v{vLane}\nv_and_b32 v{n}, 15, v{vLane}")
        A(f"v_bfe_u32 v{vH}, v{vLane}, 3, 1\nv_cvt_f32_u32 v{vH}, v{vH}")
        A.c("staging rows: four for each of groups 0..3, three for the others")
        A(f"s_min_u32 s17, s{sGrp}, 4\ns_mul_i32 s19, s{sGrp}, 3\ns_add_u32 s17, s17, s19")
        A(f"s_mul_i32 s17, s17, {SNODE}\ns_add_u32 s17, s17, {L_STG}\ns_movk_i32 s19, {SNODE}")
        A(f"v_lshl_add_u32 v{vSW}, v{n}, 4, s17")
        A(f"v_mad_u32_u24 v{vSW}, v{g}, s19, v{vSW}")
        A(f"s_min_u32 s17, s40, 4\ns_mul_i32 s46, s40, 3\ns_add_u32 s17, s17, s46")
        A(f"s_mul_i32 s17, s17, {SNODE}\ns_add_u32 s17, s17, {L_STG}")
        A(f"v_lshl_add_u32 v{vGA}, v{g}, 4, s17")
        A(f"v_mad_u32_u24 v{vGA}, v{n}, s19, v{vGA}")
        A(f"s_cmp_eq_u32 s40, 0\ns_cselect_b32 s19, 0, {-SNODE}")
        A(f"v_lshrrev_b32 v{vO}, 2, v{n}\nv_mad_i32_i24 v{vGA}, v{vO}, s19, v{vGA}")
        A.c("block p of component s sits in slot (k, high); one byte per s, in units of 128 bytes")
        ent = {0: [(0,0),(2,0),(3,0),(4,0)], 1: [(2,1),(0,1),(1,0),(1,1)], 2: [(0,0),(5,1),(4,1),(3,1)]}
        A(f"s_lshl_b32 s19, s{sS}, 3")
        for p in range(3):
            c = sum((2*k + h) << (8*i) for i, (k, h) in enumerate(ent[p]))
            A(f"s_lshr_b32 s17, {c:#x}, s19\ns_and_b32 s17, s17, 0xff\ns_lshl_b32 s17, s17, 7")
            A(f"v_add_u32 v{vY0+p}, s17, v{vGA}")
        A(f"s_min_u32 s17, s{sS}, 1\ns_lshl_b32 s17, s17, 14\ns_add_u32 s17, s17, {L_W}")
        A(f"v_lshl_add_u32 v{vWB}, v{vLane}, 4, s17")
        A(f"s_lshl_b32 s17, s40, 10\ns_add_u32 s17, s17, {L_GATE}")
        A(f"v_lshl_add_u32 v{vGA}, v{vLane}, 4, s17")
        A(f"s_lshl_b32 s17, s40, 1\ns_add_u32 s17, s17, {L_FLAG}\nv_mov_b32 v{vFl}, s17")
        A.c("output row = bucket + 256*(first group + g + 12r); rows past the last node fall outside the descriptor")
        A(f"v_lshlrev_b32 v{vO}, 17, v{g}\nv_lshl_add_u32 v{vO}, v{n}, 3, v{vO}")
        A(f"s_lshl_b32 s{sOut}, s40, 17\ns_lshl_b32 s17, s{2 if o.get('bid') == 2 else sB}, 9\ns_add_u32 s{sOut}, s{sOut}, s17")
        A(f"s_lshl_b32 s17, s{sS}, 7\ns_add_u32 s{sOut}, s{sOut}, s17")
        for r in range(1, 4): A(f"s_add_u32 s{sOut+r}, s{sOut}, {r*12 << 17}")
        A(f"s_cmp_lt_u32 s{sGrp}, 4\ns_cselect_b32 s46, -1, 0xffff")
        if wpos == 4: A(f"s_add_u32 s47, s{sRound}, 1\ns_mul_i32 s47, s47, {WIN}")
    if prio: A(f"s_setprio {prio[0]}")
    rd_keys()
    A(f"s_mov_b32 s{sRem}, s{sN}\ns_mov_b32 s{sStep}, 1")
    A(f"s_cmp_ge_u32 s{sN}, 32\ns_cbranch_scc1 L_k2_full")
    A.c("fewer than 32 edges: the row registers that no load fills must not hold NaN patterns")
    A("s_waitcnt vmcnt(0) lgkmcnt(0)")
    for i in range(64): A(f"v_mov_b32 v{vD+i}, 0")
    addr()
    rd_coef()
    A(f"s_cmp_eq_u32 s{sN}, 0\ns_cbranch_scc1 L_k2_last")
    loads_part(0, "p0", False)
    loads_part(1, "p1", False)
    A("s_branch L_k2_last")
    A("L_k2_full:")
    A("s_waitcnt lgkmcnt(0)")
    addr()
    rd_coef()
    loads(0); loads(1)
    rd_keys()
    A(f"s_sub_u32 s{sRem}, s{sRem}, 32")
    A(f"s_cmp_lt_i32 s{sRem}, 32\ns_cbranch_scc1 L_k2_tail")
    A(".p2align 3")
    A("L_k2_loop:")
    if np_ > 1:
        for k in range(1, np_):
            t = (sT1, sT2, sT3)[k-1]
            A(f"s_cmp_lg_u32 s{sStep}, s{t}\ns_cbranch_scc1 L_k2_pr{k}\ns_setprio {prio[k]}\nL_k2_pr{k}:")
        A(f"s_add_u32 s{sStep}, s{sStep}, 1")
    assert wpos != 4
    if o.get("addr_early", 1):
        A("s_waitcnt lgkmcnt(0)")
        addr()
        for h in range(2):
            A("s_waitcnt vmcnt(8)")
            comp(h, False, lambda: load(h, 1), lambda: load(h, 0))
            for i in range(2, 8): load(h, i)
    else:
        A("s_waitcnt vmcnt(8)")
        comp(0, True, addr)
        loads(0)
        A("s_waitcnt vmcnt(8)")
        comp(1, False, lambda: load(1, 0))
        for i in range(1, 8): load(1, i)
    rd_coef()
    rd_keys()
    A(f"s_sub_u32 s{sRem}, s{sRem}, 32")
    A(f"s_cmp_ge_i32 s{sRem}, 32\ns_cbranch_scc1 L_k2_loop")
    A("L_k2_tail:")
    if prio: A(f"s_setprio {prio[-1]}")
    A(f"s_cmp_le_i32 s{sRem}, 0\ns_cbranch_scc1 L_k2_last")
    if o.get("addr_early", 1):
        A("s_waitcnt lgkmcnt(0)")
        addr()
        A("s_waitcnt vmcnt(8)")
        comp(0)
    else:
        A("s_waitcnt vmcnt(8)")
        comp(0, True, addr)
    loads_part(0, "t0", True)
    comp(1)
    loads_part(1, "t1", False)
    rd_coef()
    A("L_k2_last:")
    A("s_waitcnt lgkmcnt(0)")
    epi_consts()
    if o.get("lastsplit", 1):
        A.c("both halves of the last step have the same number of loads: wait for the first half only")
        A(f"s_add_u32 s17, s{sN}, 31\ns_and_b32 s17, s17, 31")
        for i in range(1, 8): A(f"s_cmp_lt_u32 s17, {4*i}\ns_cbranch_scc1 L_lw{i}")
        A("s_waitcnt vmcnt(8)\ns_branch L_lw0")
        for i in range(1, 8):
            A(f"L_lw{i}:\ns_waitcnt vmcnt({i})")
            if i < 7: A("s_branch L_lw0")
        A("L_lw0:")
    else: A("s_waitcnt vmcnt(0)")
    if wpos == 4:
        A.c("this wave's share of the weights has landed; they are read once all twelve waves have said so")
        A(f"v_mov_b32 v{vK+6}, {L_FLAG+32}\nv_mov_b32 v{vK+7}, 1")
        A(f"s_cmp_lg_u32 s{sSaid}, 0\ns_cbranch_scc1 L_k2_said")
        A(f"s_mov_b64 exec, 1\nds_add_u32 v{vK+6}, v{vK+7}\ns_mov_b64 exec, -1\ns_mov_b32 s{sSaid}, 1")
        A("L_k2_said:")
        A(f"ds_read_b32 v{vK+7}, v{vK+6}")
    comp(0)
    if wpos == 4:
        A("L_k2_wait0:")
        A("s_waitcnt lgkmcnt(0)")
        A(f"v_readfirstlane_b32 s17, v{vK+7}")
        A(f"s_cmp_ge_u32 s17, {NW}\ns_cbranch_scc1 L_k2_go0")
        A(f"s_cmp_lt_u32 s47, s{sRnd}\ns_cbranch_scc1 L_k2_go0")
        A(f"s_sleep 1\nds_read_b32 v{vK+7}, v{vK+6}\ns_branch L_k2_wait0")
        A("L_k2_go0:")
    vPk = vT + 4
    wreg = [vD + 4*n for n in range(16)] + [vC + 40 + 4*n for n in range(6)] + [vAF, vT + 12]
    jobs = [(kk, t) for kk in range(6) for t in range(4)]
    def rdw(n):
        A(f"ds_read_b128 v[{wreg[n]}:{wreg[n]+3}], v{vWB} offset:{n*1024}")
    for n in range(8): rdw(n)
    if o.get("lastsplit", 1): A("s_waitcnt vmcnt(0)")
    comp(1)
    eprio = o.get("eprio", 0)
    if prio: A(f"s_setprio {eprio}")
    st.mark("loopend")
    A(f"s_add_u32 s{sRound}, s{sRound}, 1")
    A(f"s_mul_i32 s17, s{sRound}, {WIN}")
    A(f"s_cmp_ge_u32 s17, s{sRnd}\ns_cbranch_scc1 L_k2_epi")
    A.c("rare: a wave found more records than one window holds; sort and gather the next window")
    A("s_waitcnt vmcnt(0) lgkmcnt(0)")
    A("s_barrier")
    A(f"v_mov_b32 v{vOf}, v7\nv_mov_b32 v{vD+1}, v0")
    A(f"s_lshl_b32 s17, s{sWave}, 6\nv_add_u32 v0, s17, v{vLane}")
    A(f"v_lshlrev_b32 v7, 4, v{vLane}")
    lds_init(); round_pre()
    A(f"s_mov_b32 exec_lo, 0xffff\ns_mov_b32 exec_hi, 0")
    A(f"ds_write_b128 v7, v[{vz+4}:{vz+7}] offset:{L_CNT}")
    A("s_mov_b64 exec, -1")
    A("s_waitcnt lgkmcnt(0)")
    A("s_barrier")
    A("s_branch L_k2_round")
    A("L_k2_epi:")
    if o.get("diag_noepi"):
        if st.on: st.mark("issued")
        st.flush(14, sWave, vT, 48)
        A("s_endpgm")
        st.on = False
    U = lambda jj, a: vC + jj*4 + a
    V = lambda jj, a: vC + (8+jj)*4 + a
    ror = "row_ror:8 row_mask:0xf bank_mask:0xf"
    srcs = [lambda jj: U(jj,0), lambda jj: V(jj,0), lambda jj: U(jj,1), lambda jj: U(jj,2), lambda jj: U(jj,3), lambda jj: V(jj,2)]
    npk = [0]
    def pack(k):
        r = vPk + 4*(npk[0] % 2); npk[0] += 1
        for q in range(4): A(f"v_cvt_pk_bf16_f32 v{r+q}, v{srcs[k](2*q)}, v{srcs[k](2*q+1)}")
        A(f"ds_write_b128 v{vSW}, v[{r}:{r+3}] offset:{k*SPITCH}")
    wre = o.get("wre", 1)
    if wre:
        for n in range(8, 16): rdw(n)
    A.c("groups with three nodes own three staging rows: their fourth lane group does not write")
    A("s_mov_b32 exec_hi, s46")
    pack(0); pack(1)
    for jj in range(8):
        t0, t1 = vT + 2*(jj & 1), vT + 1 + 2*(jj & 1)
        A(f"v_add_f32_dpp v{t0}, v{V(jj,2)}, v{V(jj,3)} {ror}")
        A(f"v_sub_f32_dpp v{t1}, v{V(jj,1)}, v{U(jj,2)} {ror}")
        A(f"v_subrev_f32_dpp v{V(jj,2)}, v{V(jj,3)}, v{V(jj,2)} {ror}")
        A(f"v_fma_f32 v{U(jj,1)}, v{t0}, v{vH}, v{U(jj,1)}")
        A(f"v_fma_f32 v{U(jj,3)}, -v{V(jj,1)}, v{vH}, v{U(jj,3)}")
        A(f"v_cndmask_b32 v{U(jj,2)}, v{U(jj,2)}, v{t1}, s[{sH}:{sH+1}]")
    for k in (2, 3, 4, 5): pack(k)
    vS = vC
    vY = vC + 24
    vG = vD
    vF1, vF2 = vT, vT + 1
    A(f"v_mov_b32 v{vF1}, 1")
    A.c("LDS serves a wave's requests in order: the count goes up after the six writes")
    A("s_mov_b64 exec, 1")
    A(f"ds_add_u32 v{vFl}, v{vF1}")
    A("s_mov_b64 exec, -1")
    st.mark("staged")
    if not wre:
        for n in range(8, 24): rdw(n)
    A(f"s_mov_b32 s19, 0xbfb8aa3b\ns_mov_b32 s18, s19")
    A("L_k2_wait1:")
    A(f"ds_read_b32 v{vF2}, v{vFl}")
    for kk in range(6): A(f"ds_read_b128 v[{vS+4*kk}:{vS+4*kk+3}], v{vY0+kk//2} offset:{64*(kk & 1)}")
    A("s_waitcnt lgkmcnt(6)")
    A(f"v_readfirstlane_b32 s17, v{vF2}")
    A("s_cmp_ge_u32 s17, 4\ns_cbranch_scc1 L_k2_go1")
    if o.get("spin_light", 1):
        if o.get("tight", 1):
            A.c("the last four waves have the CU to themselves and ask again at once")
            A(f"s_waitcnt lgkmcnt(0)\ns_cmp_ge_u32 s{sWave}, 8\ns_cbranch_scc1 L_k2_wait1")
        A("L_k2_spin1:")
        A(f"s_sleep 1\nds_read_b32 v{vF2}, v{vFl}\ns_waitcnt lgkmcnt(0)\nv_readfirstlane_b32 s17, v{vF2}")
        A("s_cmp_ge_u32 s17, 4\ns_cbranch_scc0 L_k2_spin1\ns_branch L_k2_wait1")
    else: A("s_waitcnt lgkmcnt(0)\ns_sleep 1\ns_branch L_k2_wait1")
    A("L_k2_go1:")
    if o.get("estamps"): st.mark("go1")
    of = o.get("out_flags", "sc1")
    nfin = [0]
    def finish():
        of2 = o.get("out_flags_early")
        for r in range(4):
            A(f"v_cvt_pk_bf16_f32 v{vD+16+2*r}, v{vY+r}, v{vY+4+r}\nv_cvt_pk_bf16_f32 v{vD+17+2*r}, v{vY+8+r}, v{vY+12+r}")
            if of2 is None: A(f"buffer_store_dwordx2 v[{vD+16+2*r}:{vD+17+2*r}], v{vO}, s[{SOUT}:{SOUT+3}], s{sOut+r} offen {of}")
        if of2 is not None:
            k = nfin[0]; nfin[0] += 1
            A(f"s_cmp_ge_u32 s{sWave}, 8\ns_cbranch_scc1 L_k2_fa{k}")
            for r in range(4): A(f"buffer_store_dwordx2 v[{vD+16+2*r}:{vD+17+2*r}], v{vO}, s[{SOUT}:{SOUT+3}], s{sOut+r} offen {of2}")
            A(f"s_branch L_k2_fb{k}\nL_k2_fa{k}:")
            for r in range(4): A(f"buffer_store_dwordx2 v[{vD+16+2*r}:{vD+17+2*r}], v{vO}, s[{SOUT}:{SOUT+3}], s{sOut+r} offen {of}")
            A(f"L_k2_fb{k}:")
    def mm(kk, t):
        r, acc = wreg[4*kk + t], vY + 4*t
        cin = "0" if kk == 0 else f"v[{acc}:{acc+3}]"
        A(f"v_mfma_f32_16x16x32_bf16 v[{acc}:{acc+3}], v[{vS+4*kk}:{vS+4*kk+3}], v[{r}:{r+3}], {cin}")
    A(f"s_cmp_eq_u32 s{sS}, 0\ns_cbranch_scc1 L_k2_x")
    if wre:
        for n in range(16, 24): rdw(n)
    for kk in range(6):
        A(f"s_waitcnt lgkmcnt({(13-kk if kk < 4 else 4 if kk == 4 else 0) if wre else 5-kk})")
        for t in range(4): mm(kk, t)
    if o.get("estamps"): st.mark("mm")
    A.c("vector outputs: the gates of this node tile")
    A("L_k2_wait2:")
    A(f"ds_read_b32 v{vF2}, v{vFl} offset:4")
    for t in range(4): A(f"ds_read_b128 v[{vG+4*t}:{vG+4*t+3}], v{vGA} offset:{1024*t}")
    A("s_waitcnt lgkmcnt(4)")
    A(f"v_readfirstlane_b32 s17, v{vF2}")
    A("s_cmp_lg_u32 s17, 0\ns_cbranch_scc1 L_k2_go2")
    if o.get("spin_light", 1):
        if o.get("tight", 1): A(f"s_waitcnt lgkmcnt(0)\ns_cmp_ge_u32 s{sWave}, 8\ns_cbranch_scc1 L_k2_wait2")
        A("L_k2_spin2:")
        A(f"s_sleep 1\nds_read_b32 v{vF2}, v{vFl} offset:4\ns_waitcnt lgkmcnt(0)\nv_readfirstlane_b32 s17, v{vF2}")
        A("s_cmp_lg_u32 s17, 0\ns_cbranch_scc0 L_k2_spin2\ns_branch L_k2_wait2")
    else: A("s_waitcnt lgkmcnt(0)\ns_branch L_k2_wait2")
    A("L_k2_go2:")
    if o.get("estamps"): st.mark("go2")
    for t in range(4):
        A(f"s_waitcnt lgkmcnt({3-t})")
        for r in (0, 2): A(f"v_pk_mul_f32 v[{vY+4*t+r}:{vY+4*t+r+1}], v[{vG+4*t+r}:{vG+4*t+r+1}], v[{vY+4*t+r}:{vY+4*t+r+1}]")
    finish()
    A("s_branch L_k2_fin")
    A("L_k2_x:")
    A.c("scalar output and the gates, tile by tile behind the matrix instructions")
    vG = vC + 40
    def sig(t):
        if o.get("pksig", 1):
            g, y = vG + 4*t, vY + 4*t
            return ([f"v_pk_mul_f32 v[{g+r}:{g+r+1}], v[{y+r}:{y+r+1}], s[18:19]" for r in (0, 2)]
                    + [f"v_exp_f32 v{g+r}, v{g+r}" for r in range(4)]
                    + [f"v_pk_add_f32 v[{g+r}:{g+r+1}], v[{g+r}:{g+r+1}], 1.0 op_sel_hi:[1,0]" for r in (0, 2)]
                    + [f"v_rcp_f32 v{g+r}, v{g+r}" for r in range(4)]
                    + ["s_nop 0", f"ds_write_b128 v{vGA}, v[{g}:{g+3}] offset:{1024*t}"])
        return ([f"v_mul_f32 v{vG+4*t+r}, s19, v{vY+4*t+r}" for r in range(4)] + [f"v_exp_f32 v{vG+4*t+r}, v{vG+4*t+r}" for r in range(4)]
                + [f"v_add_f32 v{vG+4*t+r}, 1.0, v{vG+4*t+r}" for r in range(4)] + [f"v_rcp_f32 v{vG+4*t+r}, v{vG+4*t+r}" for r in range(4)]
                + ["s_nop 0", f"ds_write_b128 v{vGA}, v[{vG+4*t}:{vG+4*t+3}] offset:{1024*t}"])
    if o.get("estamps"): st.n -= 2; st.names = st.names[:-2]
    A("s_waitcnt lgkmcnt(0)")
    for kk in range(4): mm(kk, 0)
    for kk in range(4): mm(kk, 1)
    pend = sig(0) + sig(1)
    for t in (2, 3):
        for kk in range(4):
            mm(kk, t)
            if t == 3 or kk >= 2:
                for _ in range(2): A(pend.pop(0))
    if o.get("estamps"): st.mark("mm")
    for l in pend + sig(2) + sig(3): A(l)
    if o.get("estamps"): st.mark("go2")
    A("s_mov_b64 exec, 1")
    A(f"ds_write_b32 v{vFl}, v{vF1} offset:4")
    A("s_mov_b64 exec, -1")
    finish()
    A("L_k2_fin:")
    if st.on:
        st.mark("issued")
        A("s_waitcnt vmcnt(0)")
    st.flush(14, sWave, vT, 48)
    A("L_k2_end:")
    A("s_endpgm")
    return A.finish(o.get("verbose")), L_END, NV, 102 if o.get("stamps") or o.get("diag_jitter") else 80 if fused else 76, st.names

def gen_agg(name, want, encode=None, nws=(10, 12)):
    A = Asm()
    A(f".globl {name}\n.p2align 8\n.type {name},@function\n{name}:")
    A("s_cmp_ge_u32 s2, 1\ns_cbranch_scc1 L_agg_end")
    A("s_load_dwordx4 s[4:7], s[0:1], 80")
    A("v_lshlrev_b32 v1, 2, v0\nv_mov_b32 v2, 0\nds_write_b32 v1, v2")
    A("v_lshlrev_b32 v3, 10, v0")
    A("s_waitcnt lgkmcnt(0)\ns_barrier")
    srd(A, 8, 6, 7, 0x10000000); srd(A, 12, 4, 5, 256)
    for n, (kid, idx, how) in enumerate(want):
        A(f"s_mov_b32 s16, {WS_STAMP + kid*(1 << 20) + 4*idx}")
        for w in range(nws[kid]): A(f"buffer_load_dword v{10+w}, v3, s[8:11], s16 offen offset:{64*w}")
        A("s_waitcnt vmcnt(0)")
        for w in range(nws[kid]):
            if how == "min": A(f"v_not_b32 v{10+w}, v{10+w}")
            A(f"ds_max_u32 v2, v{10+w} offset:{4*n}")
    A("s_waitcnt lgkmcnt(0)\ns_barrier")
    A("ds_read_b32 v4, v1\nds_read_b32 v5, v2\ns_waitcnt lgkmcnt(0)")
    A("v_not_b32 v5, v5")
    mins = sum(1 << n for n, w in enumerate(want) if w[2] == "min")
    A(f"s_mov_b32 s20, {mins}\ns_mov_b32 s21, 0\nv_not_b32 v6, v4\nv_cndmask_b32 v4, v4, v6, s[20:21]")
    A("v_sub_u32 v4, v4, v5")
    if encode is not None:
        A("v_readfirstlane_b32 s23, v0\ns_cmp_lg_u32 s23, 0\ns_cbranch_scc1 L_agg_end")
        A(f"s_nop 1\nv_readlane_b32 s22, v4, {len(want)-1}")
        A(f"s_min_u32 s22, s22, 10000\ns_mul_i32 s22, s22, {encode}")
        A("s_memrealtime s[24:25]\ns_waitcnt lgkmcnt(0)")
        A("L_agg_spin:\ns_memrealtime s[26:27]\ns_waitcnt lgkmcnt(0)\ns_sub_u32 s26, s26, s24\ns_cmp_lt_u32 s26, s22\ns_cbranch_scc1 L_agg_spin")
    A(f"s_mov_b32 exec_lo, {(1 << len(want)) - 1}\ns_mov_b32 exec_hi, 0")
    A("s_cmp_lg_u32 0, 0")
    A("v_cmp_gt_u32 vcc, 16, v0\ns_and_b64 exec, exec, vcc\ns_cbranch_execz L_agg_end")
    A("buffer_store_dword v4, v1, s[12:15], 0 offen")
    A("L_agg_end:\ns_endpgm")
    return A.finish()

HEADER = """; Equivariant tensor-product message passing, N=10000 nodes, E=640000 edges, C=64.
; Launch 1 sorts every chunk of 2500 edges by bucket (dst & 255) into d_ws.
; Kernarg: x 0, rhat 8, e_attr 16, src 24, dst 32, w_rad 40, w_si0 48, w_si1 56, cg_eps 64, out 72, debug 80, ws 88
"""
HEADER_F = """; Equivariant tensor-product message passing, N=10000 nodes, E=640000 edges, C=64.
;  1. every workgroup sorts its chunk of 2500 edges by bucket (dst & 255 = workgroup) and writes the records through to d_ws;
; Kernarg: x 0, rhat 8, e_attr 16, src 24, dst 32, w_rad 40, w_si0 48, w_si1 56, cg_eps 64, out 72, debug 80, ws 88
"""
DEFAULTS = {"out_flags": "nt", "prio": [2, 1], "k2_touch0": None, "k2_touchb": ("l2", 14), "gshift": 4, "frac": [0.35], "rot": 1, "k1_touch": False, "fused": 1, "f_tag": 1, "f_sleep": 2, "f_late": 1, "bid": 2}
def build(o=None):
    o = dict(DEFAULTS, **(o or {}))
    n1, n2 = "tp_sort_kernel", "tp_gather_kernel"
    if o.get("fused"):
        n = "gather_scatter__tensor_product_equiv_equiformer__graph_kernel"
        t2, lds2, v2, s2, names2 = gen_k2(n, o)
        if o.get("agg"):
            want = [(1, names2.index(nm), h) for nm, h in o["agg"]]
            txt = HEADER_F + f"; @launch kernel={n} grid=({NWG},1,1) block=({NW*64},1,1) lds={lds2}\n"
            txt += "; @launch kernel=tp_agg_kernel grid=(1,1,1) block=(256,1,1) lds=1024\n"
            txt += '.amdgcn_target "amdgcn-amd-amdhsa--gfx950"\n.text\n' + t2 + gen_agg("tp_agg_kernel", want, o.get("encode"))
            txt += '.section .rodata,"a"\n' + kd(n, v2, s2) + kd("tp_agg_kernel", 32, 32)
            return txt, None
        txt = HEADER_F + f"; @launch grid=({NWG},1,1) block=({NW*64},1,1) lds={lds2}\n"
        txt += '.amdgcn_target "amdgcn-amd-amdhsa--gfx950"\n.text\n' + t2 + '.section .rodata,"a"\n' + kd(n, v2, s2)
        return txt, [(n, lds2, v2, names2, NW)]
    o["k2name"] = n2
    t1, lds1, v1, s1, names1 = gen_k1(n1, o)
    t2, lds2, v2, s2, names2 = gen_k2(n2, o)
    txt = HEADER
    empty = "; @launch kernel=tp_empty_kernel grid=(1,1,1) block=(64,1,1) lds=0\n"
    txt += empty * o.get("empty_pre", 0)
    txt += f"; @launch kernel={n1} grid=({NWG},1,1) block=(704,1,1) lds={lds1}\n" * o.get("k1_times", 1)
    txt += f"; @launch kernel={n2} grid=({NWG},1,1) block=({NW*64},1,1) lds={lds2}\n" * o.get("k2_times", 1)
    txt += empty * o.get("empty_post", 0)
    if o.get("agg"): txt += "; @launch kernel=tp_agg_kernel grid=(1,1,1) block=(256,1,1) lds=1024\n"
    txt += '.amdgcn_target "amdgcn-amd-amdhsa--gfx950"\n.text\n'
    txt += t1 + t2
    if o.get("agg"):
        nm = [names1, names2]
        want = [(k, nm[k].index(n), h) for k, n, h in o["agg"]]
        txt += gen_agg("tp_agg_kernel", want, o.get("encode"))
    em = o.get("empty_pre") or o.get("empty_post")
    if em: txt += ".globl tp_empty_kernel\n.p2align 8\n.type tp_empty_kernel,@function\ntp_empty_kernel:\n    s_endpgm\n"
    txt += '.section .rodata,"a"\n' + kd(n1, v1, s1) + (".p2align 6\nL_kd2:\n" if o.get("kd_touch") else "") + kd(n2, v2, s2)
    if em: txt += kd("tp_empty_kernel", 8, 16)
    if o.get("agg"): txt += kd("tp_agg_kernel", 32, 32)
    return txt, [(n1, lds1, v1, names1, 11), (n2, lds2, v2, names2, NW)]

if __name__ == "__main__":
    out = sys.argv[1] if len(sys.argv) > 1 else "gather_scatter__tensor_product_equiv_equiformer__graph.s"
    txt, info = build({"verbose": True})
    open(out, "w").write(txt)
    print(info, len(txt))
```

```python
import sys
from asmlib import Asm, kd

N, E = 10000, 640000
NWG = 256
CH = E // NWG
RUSE = 30080
RSTR = 30208
WS_OFF = 0
WS_W = 524288
WS_REC = WS_W + 40960
WS_FLAG = WS_REC + NWG * RSTR
WS_USED = WS_FLAG + 64 * 1024
WS_STAMP = 16 << 20
PADKEY = 0x0FFFFFFF

def srd(A, s, lo, hi, size):
    A(f"s_mov_b32 s{s}, s{lo}\ns_mov_b32 s{s+1}, s{hi}")
    A(f"s_mov_b32 s{s+2}, {size}\ns_mov_b32 s{s+3}, 0x00020000")

def scan_steps(op, v, upto=64, first=1):
    out = []
    for sh in (1, 2, 4, 8):
        if sh >= first:
            out.append(f"{op}_dpp v{v}, v{v}, v{v} row_shr:{sh} row_mask:0xf bank_mask:0xf bound_ctrl:0")
    if upto >= 32: out.append(f"{op}_dpp v{v}, v{v}, v{v} row_bcast:15 row_mask:0xa bank_mask:0xf")
    if upto >= 64: out.append(f"{op}_dpp v{v}, v{v}, v{v} row_bcast:31 row_mask:0xc bank_mask:0xf")
    return out

class Stamps:
    def __init__(self, A, on, base, kid):
        self.A, self.on, self.base, self.n, self.kid = A, on, base, 0, kid
        self.names = []
        self.skip = set()
        self.jitter = None
        self.clk = set()
        self.dt = False
        self.nj = 0
    def mark(self, name):
        if self.jitter and name != "start":
            k = self.nj; self.nj += 1
            self.A(f"s_mov_b32 s101, scc_save" if False else "s_cselect_b32 s101, 1, 0")
            self.A("s_waitcnt lgkmcnt(0)\ns_memtime s[98:99]\ns_waitcnt lgkmcnt(0)")
            self.A(f"s_lshr_b32 s98, s98, 3\ns_and_b32 s99, s98, {self.jitter}\ns_cmp_lg_u32 s99, 0\ns_cbranch_scc1 L_jit{k}")
            self.A(f"s_lshr_b32 s98, s98, 4\ns_and_b32 s98, s98, 15")
            self.A(f"L_jl{k}:\ns_sleep 8\ns_sub_u32 s98, s98, 1\ns_cbranch_scc0 L_jl{k}")
            self.A(f"L_jit{k}:\ns_cmp_lg_u32 s101, 0")
        if self.on and name not in self.skip:
            r = self.base + 2 * self.n
            self.A(f"s_memrealtime s[{r}:{r+1}]"); self.n += 1; self.names.append(name)
            if name in self.clk:
                self.A(f"s_memtime s[{r+2}:{r+3}]"); self.n += 1; self.names.append("c_" + name)
    def flush(self, ws_lo, wave_s, v0, tmp_s):
        if not self.on: return
        A = self.A
        self.mark("end")
        if "c_loopend" in self.names:
            A("s_waitcnt lgkmcnt(0)")
            r = lambda n: self.base + 2*self.names.index(n)
            A(f"s_sub_u32 s{r('c_loopend')}, s{r('c_loopend')}, s{r('c_sorted')}\ns_mov_b32 s{r('c_sorted')}, 0")
            if self.dt: A(f"s_sub_u32 s{r('loopend')}, s{r('loopend')}, s{r('sorted')}")
        if self.on == "dbg":
            A(f"s_load_dwordx2 s[{tmp_s+4}:{tmp_s+5}], s[0:1], 80")
            A("s_waitcnt lgkmcnt(0)")
            A("s_mov_b64 exec, 1")
            srd(A, tmp_s, tmp_s+4, tmp_s+5, 256)
            A(f"v_mov_b32 v{v0}, 0")
            A(f"s_not_b32 s{tmp_s+4}, s{self.base}")
            A(f"v_mov_b32 v{v0+1}, s{tmp_s+4}")
            A(f"buffer_atomic_umax v{v0+1}, v{v0}, s[{tmp_s}:{tmp_s+3}], 0 offen")
            for i in range(self.n):
                A(f"v_mov_b32 v{v0+2+i}, s{self.base + 2*i}")
                A(f"buffer_atomic_umax v{v0+2+i}, v{v0}, s[{tmp_s}:{tmp_s+3}], 0 offen offset:{4*i+4}")
            return
        A("s_waitcnt lgkmcnt(0)")
        A("s_mov_b64 exec, 1")
        srd(A, tmp_s, ws_lo, ws_lo + 1, 0x10000000)
        A(f"s_lshl_b32 s{tmp_s+4}, s2, 4\ns_add_u32 s{tmp_s+4}, s{tmp_s+4}, s{wave_s}\ns_lshl_b32 s{tmp_s+4}, s{tmp_s+4}, 6")
        A(f"s_add_u32 s{tmp_s+4}, s{tmp_s+4}, {WS_STAMP + self.kid * (1 << 20)}")
        A(f"v_mov_b32 v{v0}, 0")
        for i in range(self.n):
            A(f"v_mov_b32 v{v0+1}, s{self.base + 2*i}")
            A(f"buffer_store_dword v{v0+1}, v{v0}, s[{tmp_s}:{tmp_s+3}], s{tmp_s+4} offen offset:{4*i}")

def touch_x(A, spec, s_rank, s_tmp, v_addr, v_dst, srd_x, nw=10, s_rot=None, pos0=0):
    kind, lanes_list = spec[0], spec[1:]
    pos = pos0
    for n, lanes in enumerate(lanes_list):
        A(f"s_mul_i32 s{s_tmp}, s{s_rank}, {lanes*128}")
        if pos: A(f"s_add_u32 s{s_tmp}, s{s_tmp}, {pos}")
        if s_rot is not None:
            A(f"s_add_u32 s{s_tmp}, s{s_tmp}, s{s_rot}\ns_sub_u32 s{s_rot+1}, s{s_tmp}, {N*512}\ns_min_u32 s{s_tmp}, s{s_tmp}, s{s_rot+1}")
        m = (1 << lanes) - 1
        if lanes < 64: A(f"s_mov_b32 exec_lo, {m & 0xffffffff}\ns_mov_b32 exec_hi, {m >> 32}")
        A(f"buffer_load_dword v{v_dst+n}, v{v_addr}, s[{srd_x}:{srd_x+3}], s{s_tmp} offen")
        if lanes < 64: A("s_mov_b64 exec, -1")
        pos += lanes * 128 * nw * (256 if kind == "mall" else 32)
    return len(lanes_list)

def gen_k1(name, o):
    A = Asm()
    CNT, PFX, STG = 0, 1024, 2048
    lds = STG + 30720
    st = Stamps(A, o.get("stamps"), 64, 0)
    A(f".globl {name}\n.p2align 8\n.type {name},@function\n{name}:")
    A(f"s_cmp_ge_u32 s2, {NWG}\ns_cbranch_scc1 L_k1_end")
    st.mark("start")
    A("s_load_dwordx4 s[4:7], s[0:1], 0")
    A("s_load_dwordx4 s[8:11], s[0:1], 16")
    A("s_load_dwordx2 s[12:13], s[0:1], 32")
    A("s_load_dwordx2 s[14:15], s[0:1], 88")
    A.c("chunk id: workgroups that share an XCD under round-robin dispatch get neighbouring chunks")
    A("s_and_b32 s16, s2, 7\ns_lshl_b32 s16, s16, 5\ns_lshr_b32 s17, s2, 3\ns_add_u32 s16, s16, s17")
    A("v_lshrrev_b32 v1, 6, v0")
    A("v_lshlrev_b32 v2, 2, v0")
    A("v_readfirstlane_b32 s3, v1")
    A("v_and_b32 v7, 63, v0")
    A("s_cmp_eq_u32 s3, 10\ns_cbranch_scc1 L_k1_helper")
    A("v_mov_b32 v3, 0")
    A(f"ds_write_b32 v2, v3 offset:{CNT}")
    A("v_lshlrev_b32 v4, 4, v0")
    A("v_lshlrev_b32 v5, 3, v0")
    A("v_mul_u32_u24 v6, 24, v0")
    A(f"s_movk_i32 s17, {CH//4}\nv_cmp_gt_u32 s[18:19], s17, v0")
    A(f"s_mul_i32 s40, s16, {CH*4}\ns_mul_i32 s41, s16, {CH*2}\ns_mul_i32 s42, s16, {CH*6}")
    A("s_waitcnt lgkmcnt(0)")
    srd(A, 20, 12, 13, E*4)
    srd(A, 24, 10, 11, E*4)
    srd(A, 28, 8, 9, E*2)
    srd(A, 32, 6, 7, E*6)
    A("s_mov_b64 exec, s[18:19]")
    lf = o.get("k1_load_flags", "nt")
    A(f"buffer_load_dwordx4 v[8:11], v4, s[20:23], s40 offen {lf}")
    A(f"buffer_load_dwordx4 v[12:15], v4, s[24:27], s40 offen {lf}")
    A(f"buffer_load_dwordx2 v[16:17], v5, s[28:31], s41 offen {lf}")
    A(f"buffer_load_dwordx4 v[20:23], v6, s[32:35], s42 offen {lf}")
    A(f"buffer_load_dwordx2 v[24:25], v6, s[32:35], s42 offen offset:16 {lf}")
    srd(A, 44, 14, 15, WS_USED)
    A("v_mov_b32 v3, 1")
    A("s_barrier")
    A(f"s_waitcnt vmcnt(4)")
    st.mark("dst")
    for i in range(4):
        A(f"v_lshlrev_b32 v{32+i}, 2, v{8+i}")
        A(f"v_and_b32 v{32+i}, 0x3fc, v{32+i}")
        A(f"ds_add_rtn_u32 v{36+i}, v{32+i}, v3 offset:{CNT}")
    A("s_mov_b64 exec, -1")
    A("v_lshlrev_b32 v59, 4, v7")
    A("s_waitcnt lgkmcnt(0)")
    A("s_barrier")
    st.mark("ranked")
    A(f"ds_read_b128 v[60:63], v59 offset:{CNT}")
    A(f"s_waitcnt vmcnt(3)")
    A.c("key = src<<9 | onehot(j)<<28 | (wave*4 + source quarter)<<2 ; record i = v[40+4i : 42+4i] = c01, c23, key")
    A(f"s_mov_b32 s48, 0x10000000\ns_mov_b32 s53, {-(-(1 << 32) // 3072)}\ns_mov_b32 s54, {(1 << 34) // N}\ns_movk_i32 s55, -3072\ns_movk_i32 s56, {-N//8}")
    def key(i):
        d, s, k = 8+i, 12+i, 42+4*i
        if o.get("rot"):
            q = [f"v_bfe_u32 v57, v{d}, 5, 3", f"v_mad_i32_i24 v57, v57, s56, v{s}", f"v_add_u32 v64, {N}, v57",
                 f"v_min_u32 v57, v57, v64", f"v_mul_hi_u32_u24 v57, s54, v57"]
        else: q = [f"v_mul_hi_u32_u24 v57, s54, v{s}"]
        return [f"v_mul_hi_u32_u24 v56, s53, v{d}"] + q + [
                f"v_mad_i32_i24 v58, v56, s55, v{d}",
                f"v_lshlrev_b32_e64 v56, v56, s48",
                f"v_lshrrev_b32 v58, 8, v58",
                f"v_lshl_or_b32 v56, v{s}, 9, v56",
                f"v_lshl_or_b32 v57, v58, 2, v57",
                f"v_lshl_or_b32 v{k}, v57, 2, v56"]
    for l in key(0) + key(1): A(l)
    A("s_waitcnt lgkmcnt(0)")
    A("v_add_u32 v65, v60, v61\nv_add_u32 v66, v65, v62\nv_add_u32 v67, v66, v63")
    A("v_mov_b32 v68, v67")
    fill = key(2) + key(3)
    for n, s_ in enumerate(scan_steps("v_add_u32", 68)):
        A(fill[2*n]); A(fill[2*n+1]); A(s_)
    A("v_sub_u32 v68, v68, v67")
    A("v_add_u32 v69, v68, v60\nv_add_u32 v70, v68, v65\nv_add_u32 v71, v68, v66")
    A.c("every wave writes the same prefix table and then reads only after its own write")
    A(f"ds_write_b128 v59, v[68:71] offset:{PFX}")
    A("s_mov_b64 exec, s[18:19]")
    for i in range(4): A(f"ds_read_b32 v{32+i}, v{32+i} offset:{PFX}")
    for l in fill[12:]: A(l)
    A(f"s_movk_i32 s53, {STG}")
    A.c("coefficients a, a*Y0, a*Y1, a*Y2 in bf16")
    A(f"s_waitcnt vmcnt(0)")
    st.mark("alldata")
    A("s_mov_b32 s49, 0xffff0000")
    def unpack(dst, reg, hi):
        if hi: A(f"v_and_b32 v{dst}, s49, v{reg}")
        else: A(f"v_lshlrev_b32 v{dst}, 16, v{reg}")
    for i in range(4):
        unpack(56, 16 + i//2, i & 1)
        for j in range(3):
            h = 3*i + j
            unpack(72+j, 20 + h//2, h & 1)
        for j in range(3): A(f"v_mul_f32 v{72+j}, v56, v{72+j}")
        A(f"v_cvt_pk_bf16_f32 v{40+4*i}, v56, v72")
        A(f"v_cvt_pk_bf16_f32 v{41+4*i}, v73, v74")
        if i == 0: A("s_waitcnt lgkmcnt(0)")
        A(f"v_add_u32 v{32+i}, v{32+i}, v{36+i}")
        A(f"v_mad_u32_u24 v{32+i}, v{32+i}, 12, s53")
        A(f"ds_write_b32 v{32+i}, v{42+4*i} offset:8")
        A(f"ds_write2_b32 v{32+i}, v{40+4*i}, v{41+4*i} offset0:0 offset1:1")
    A("s_mov_b64 exec, -1")
    A.c("waves 0..3 publish start|len<<16 of bucket 4*lane+wave")
    A("s_cmp_ge_u32 s3, 4\ns_cbranch_scc1 L_k1_nooff")
    A("v_mov_b32 v72, v68\nv_mov_b32 v73, v60")
    for w in (1, 2, 3):
        A(f"s_cmp_lg_u32 s3, {w}\ns_cbranch_scc1 L_k1_o{w}")
        A(f"v_mov_b32 v72, v{68+w}\nv_mov_b32 v73, v{60+w}")
        A(f"L_k1_o{w}:")
    A("v_lshl_or_b32 v72, v73, 16, v72")
    A("v_lshlrev_b32 v73, 12, v7")
    A("s_lshl_b32 s50, s3, 10\ns_lshl_b32 s51, s16, 2\ns_add_u32 s50, s50, s51")
    if WS_OFF: A(f"s_add_u32 s50, s50, {WS_OFF}")
    sf = o.get("k1_store_flags", "")
    A(f"buffer_store_dword v72, v73, s[44:47], s50 offen {sf}")
    A("L_k1_nooff:")
    A(f"s_mul_i32 s50, s16, {RSTR}\ns_add_u32 s50, s50, {WS_REC}")
    A.c("the copy covers whole 128-byte lines: a partly written last line is slow to read back")
    A(f"s_movk_i32 s17, {RUSE//16 - 1280}\nv_cmp_gt_u32 s[18:19], s17, v0")
    A("s_add_u32 s51, s50, 10240\ns_add_u32 s52, s50, 20480")
    A("s_waitcnt lgkmcnt(0)")
    A("s_barrier")
    st.mark("sorted")
    if o.get("diag_nostore"): A("s_mov_b32 s46, 0")
    for q in range(3): A(f"ds_read_b128 v[{8+4*q}:{11+4*q}], v4 offset:{STG + 10240*q}")
    A("s_waitcnt lgkmcnt(2)")
    A(f"buffer_store_dwordx4 v[8:11], v4, s[44:47], s50 offen {sf}")
    A("s_waitcnt lgkmcnt(1)")
    A(f"buffer_store_dwordx4 v[12:15], v4, s[44:47], s51 offen {sf}")
    A("s_waitcnt lgkmcnt(0)")
    A("s_mov_b64 exec, s[18:19]")
    A(f"buffer_store_dwordx4 v[16:19], v4, s[44:47], s52 offen {sf}")
    if o.get("k1_wb"):
        A("s_mov_b64 exec, -1")
        A("s_cmp_lg_u32 s3, 9\ns_cbranch_scc1 L_k1_nowb")
        A("s_waitcnt vmcnt(0)")
        A("buffer_wbl2 sc1")
        A("L_k1_nowb:")
    if st.on:
        st.mark("issued")
        A("s_waitcnt vmcnt(0)")
    st.flush(14, 3, 20, 52)
    A("s_endpgm")
    A("L_k1_helper:")
    A("s_load_dwordx4 s[52:55], s[0:1], 40")
    A("s_load_dwordx2 s[56:57], s[0:1], 56")
    A("v_lshlrev_b32 v26, 7, v7")
    A(f"s_mul_i32 s43, s16, {N*512//NWG}\ns_and_b32 s43, s43, 0xffffff80")
    A("s_lshr_b32 s40, s2, 2\ns_and_b32 s41, s2, 3")
    A.c("fragment (k step, tile t): lane (n, g) holds rows 32*step + 8g .. +7 of column 4n + t")
    A("v_lshrrev_b32 v8, 4, v7\nv_and_b32 v9, 15, v7")
    A("v_lshlrev_b32 v11, 10, v8\nv_lshl_add_u32 v11, v9, 3, v11")
    A("v_lshlrev_b32 v8, 4, v8")
    A("s_lshl_b32 s42, s40, 12\ns_lshl_b32 s41, s41, 1\ns_add_u32 s42, s42, s41")
    A("s_lshl_b32 s41, s40, 6")
    A("s_waitcnt lgkmcnt(0)")
    srd(A, 36, 4, 5, N*512)
    srd(A, 44, 14, 15, WS_USED)
    srd(A, 24, 52, 53, 640)
    A("s_cmp_lt_u32 s40, 4")
    A("s_cselect_b32 s20, s54, s56\ns_cselect_b32 s21, s55, s57")
    A(f"s_mov_b32 s22, {192*128}\ns_cselect_b32 s22, {128*128}, s22\ns_mov_b32 s23, 0x00020000")
    A("s_cselect_b32 s17, 0, 16384\ns_sub_u32 s42, s42, s17")
    touch = o.get("k1_touch", True)
    tb = o.get("k1_touch_after", 1)
    def helper_touch():
        if touch:
            A.c("touch x once so that the gather of the second launch finds it on chip")
            A("buffer_load_dword v28, v26, s[36:39], s43 offen")
            A("s_add_u32 s43, s43, 8192")
            A("buffer_load_dword v29, v26, s[36:39], s43 offen")
            A("s_add_u32 s43, s43, 8192\ns_mov_b32 exec_hi, 0")
            A("buffer_load_dword v30, v26, s[36:39], s43 offen")
            A("s_mov_b32 exec_hi, -1")
    if o.get("code_touch"):
        A.c("read the second kernel's instructions once per XCD so that its first fetches find them in L2")
        A("s_getpc_b64 s[28:29]")
        A("L_k1_pc:")
        A(f"s_add_u32 s28, s28, {o['k2name']}-L_k1_pc\ns_addc_u32 s29, s29, 0")
        A("s_lshr_b32 s30, s2, 3\ns_lshl_b32 s30, s30, 9")
        A(f"v_add_u32 v32, s30, v26\nv_min_u32 v32, L_k2_end-{o['k2name']}, v32")
        A("v_mov_b32 v33, s29\nv_add_co_u32 v32, vcc, s28, v32\nv_addc_co_u32 v33, vcc, 0, v33, vcc")
        A("s_mov_b64 exec, 15")
        A("global_load_dword v31, v[32:33], off")
        if o.get("kd_touch"):
            A("s_getpc_b64 s[28:29]")
            A(f"s_add_u32 s28, s28, L_kd2@rel32@lo+4\ns_addc_u32 s29, s29, L_kd2@rel32@hi+12")
            A("v_mov_b32 v32, s28\nv_mov_b32 v33, s29")
            A("s_mov_b64 exec, 1")
            A("global_load_dword v34, v[32:33], off")
        A("s_mov_b64 exec, -1")
    for b in range(3):
        if b == tb: helper_touch()
        if b == 1:
            A("s_cmp_ge_u32 s2, 40\ns_cbranch_scc1 L_k1_now")
            A("buffer_load_dwordx4 v[12:15], v8, s[24:27], s41 offen")
            for i in range(8): A(f"buffer_load_ushort v{16+i}, v11, s[20:23], s42 offen offset:{128*i}")
            A("L_k1_now:")
        A("s_barrier")
    if tb == 3: helper_touch()
    A("s_cmp_ge_u32 s2, 40\ns_cbranch_scc1 L_k1_end")
    A("s_mov_b32 s49, 0xffff0000")
    A("s_waitcnt vmcnt(0)" if tb != 3 or not touch else "s_waitcnt vmcnt(3)")
    for i in range(8):
        unpack(24, 12 + i//2, i & 1)
        A(f"v_lshlrev_b32 v{16+i}, 16, v{16+i}\nv_mul_f32 v{16+i}, v24, v{16+i}")
    for q in range(4): A(f"v_cvt_pk_bf16_f32 v{12+q}, v{16+2*q}, v{17+2*q}")
    A(f"v_lshlrev_b32 v8, 4, v7\ns_lshl_b32 s41, s2, 10\ns_add_u32 s41, s41, {WS_W}")
    A("buffer_store_dwordx4 v[12:15], v8, s[44:47], s41 offen")
    A("L_k1_end:")
    A("s_endpgm")
    return A.finish(o.get("verbose")), lds, 80, 96 if st.on else 58, st.names

NW = 12
NIT = 5
WIN = 288
CAP = NW * WIN + NW * 32
L_ZERO, L_RND, L_CNT, L_KEY = 0, 192, 256, 512
L_COEF = L_KEY + CAP*4 + 128
L_W = L_COEF + CAP*8 + 256
L_STG = L_W + 40960
SPITCH = 256
SNODE = 6*SPITCH + 32
L_GATE = L_STG + 40*SNODE
L_END = L_GATE + 3*4096
L_FLAG = 208
assert L_END <= 163840, L_END
MKW = 1536
L_WT = L_STG + 40*SNODE - 40960
L_NONCE = L_GATE
assert L_WT >= L_STG + NW*MKW

def gen_k2(name, o):
    A = Asm()
    fused = o.get("fused")
    st = Stamps(A, o.get("stamps"), 80 if fused else 76, 1)
    if fused: st.skip = set(o.get("skip", ["recissue", "staged", "issued", "rec0", "wok", "wdone", "stiss"]))
    vLane, vOff, vKA, vK2A, vCA, vSh = 1, 2, 3, 4, 5, 6
    vK2 = 8
    vAF = 10
    vK = 14
    vT = 22
    vD = 38
    vC = 102
    NV = 166
    sWave, sB = 3, 16
    SX, SWS, SOUT = 20, 24, 28
    sH = 32
    sMask = 48
    sTot, sRnd, sRound, sN, sRem, sStep, sT1, sT2, sT3 = 58, 59, 60, 61, 62, 63, 64, 65, 66
    sP0, sP1, sRowM = 67, 68, 69
    sSeg0, sNseg, sMk = 70, 71, 18
    sCar = [72, 73, 74, 75]
    sGrp, sSaid = 38, 39
    A(f".globl {name}\n.p2align 8\n.type {name},@function\n{name}:")
    A(f"s_cmp_ge_u32 s2, {NWG}\ns_cbranch_scc1 L_k2_end")
    if o.get("diag_perm"): A(f"s_mul_i32 s2, s2, {o['diag_perm']}\ns_add_u32 s2, s2, 77\ns_and_b32 s2, s2, 255")
    st.jitter = o.get("diag_jitter")
    st.clk = set(o.get("clk", [])); st.dt = o.get("dt")
    st.mark("start")
    vOf = vD
    vz = vD + 40
    wpos = o.get("wpos", 0) if not fused else -1
    hf = o.get("f_hf", "sc1") if fused else ""
    def ids():
        if o.get("bid") == 1: A(f"s_mov_b32 s{sB}, s2")
        else: A(f"s_and_b32 s{sB}, s2, 7\ns_lshl_b32 s{sB}, s{sB}, 5\ns_lshr_b32 s17, s2, 3\ns_add_u32 s{sB}, s{sB}, s17")
        A("v_lshrrev_b32 v7, 6, v0")
        A(f"v_and_b32 v{vLane}, 63, v0")
        A(f"v_readfirstlane_b32 s{sWave}, v7")
    def ids2():
        A(f"s_mov_b32 s{sRound}, 0")
        if wpos == 4: A(f"s_mov_b32 s{sSaid}, 0")
        if o.get("gshift"):
            A(f"s_add_u32 s{sGrp}, s{sWave}, {o['gshift']}\ns_sub_u32 s17, s{sGrp}, {NW}\ns_min_u32 s{sGrp}, s{sGrp}, s17")
        else: A(f"s_mov_b32 s{sGrp}, s{sWave}")
        A.c("this wave reads chunks seg0 .. seg0+nseg-1 of the bucket, seg0 = floor(wave*64/3)")
        A(f"s_mul_i32 s{sSeg0}, s{sWave}, {64*21846}\ns_lshr_b32 s{sSeg0}, s{sSeg0}, 16")
        A(f"s_add_u32 s17, s{sWave}, 1\ns_mul_i32 s17, s17, {64*21846}\ns_lshr_b32 s17, s17, 16")
        A(f"s_sub_u32 s{sNseg}, s17, s{sSeg0}")
        A(f"v_add_u32 v{vD+1}, s{sSeg0}, v{vLane}")
        A(f"v_lshlrev_b32 v{vD+2}, {(11 if o.get('f_tag') else 10) if fused else 2}, v{vD+1}")
        A(f"v_cmp_gt_u32 vcc, s{sNseg}, v{vLane}")
        A(f"v_bfrev_b32 v{vD+3}, -2")
        A(f"v_lshlrev_b32 v7, 4, v{vLane}")
        A(f"v_cndmask_b32 v{vD+2}, v{vD+3}, v{vD+2}, vcc")
        A.c("private marker area of this wave (inside the staging area of the epilogue)")
        A(f"s_mul_i32 s{sMk}, s{sWave}, {MKW}\ns_add_u32 s{sMk}, s{sMk}, {L_STG}")
    def marker_init():
        for i in range(4): A(f"v_mov_b32 v{vz+4+i}, 0")
        A(f"v_add_u32 v{vz+8}, s{sMk}, v7")
        A(f"ds_write_b128 v{vz+8}, v[{vz+4}:{vz+7}]")
        A("s_mov_b32 exec_hi, 0")
        A(f"ds_write_b128 v{vz+8}, v[{vz+4}:{vz+7}] offset:1024")
        A("s_mov_b32 exec_hi, -1")
    def key_init():
        A(f"v_lshlrev_b32 v{vz+9}, 4, v0")
        for i in range(4): A(f"v_mov_b32 v{vz+i}, {PADKEY:#x}" if i == 0 else f"v_mov_b32 v{vz+i}, v{vz}")
        A(f"ds_write_b128 v{vz+9}, v[{vz}:{vz+3}] offset:{L_KEY}")
        A(f"v_cmp_gt_u32 vcc, {(L_COEF - L_KEY - NW*1024)//16}, v0\ns_mov_b64 exec, vcc")
        A(f"ds_write_b128 v{vz+9}, v[{vz}:{vz+3}] offset:{L_KEY+NW*1024}")
        A("s_mov_b64 exec, -1")
    def zero_init():
        A.c("zero block, round word, flags, counters: bytes 0..511")
        A(f"s_mov_b32 exec_hi, 0")
        A(f"ds_write_b128 v7, v[{vz+4}:{vz+7}]")
        A("s_mov_b32 exec_hi, -1")
    def lds_init():
        marker_init(); key_init()
    assert 2*NW*1024 >= CAP*4 + 128 and L_KEY + 2*NW*1024 <= L_W
    def consts():
        A(f"s_mov_b32 s{sP0}, 0x05040100\ns_mov_b32 s{sP1}, 0x07060302\ns_mov_b32 s{sRowM}, {o.get('diag_rowmask', 0x007ffe00):#x}")
        A(f"s_mov_b32 s{sH}, 0xff00ff00\ns_mov_b32 s{sH+1}, 0xff00ff00")
    def wdma(vl):
        A.c("the 40 weight fragments go straight to LDS: w, w+12, w+24 and 36+(w&3) by wave w (the last four land three times)")
        A(f"s_lshl_b32 s19, s{sWave}, 10\ns_add_u32 m0, s19, {L_W}\ns_add_u32 s19, s19, {WS_W}")
        for q in range(3):
            A(f"buffer_load_dwordx4 v{vl}, s[{SWS}:{SWS+3}], s19 offen lds")
            if q < 2: A(f"s_add_u32 m0, m0, {NW*1024}\ns_add_u32 s19, s19, {NW*1024}")
        A(f"s_and_b32 s19, s{sWave}, 3\ns_lshl_b32 s19, s19, 10\ns_add_u32 m0, s19, {L_W + 36*1024}\ns_add_u32 s19, s19, {WS_W + 36*1024}")
        A(f"buffer_load_dwordx4 v{vl}, s[{SWS}:{SWS+3}], s19 offen lds")
    sRot = 36 if o.get("rot") else None
    def rotc():
        if sRot: A(f"s_and_b32 s{sRot}, s2, 7\ns_mul_i32 s{sRot}, s{sRot}, {N*512//8}")
    def mall_touch(start):
        lanes = -(-(N*512 - start) // (128 * NW * NWG))
        A.c("every remaining line of x is touched once, chip-wide")
        A(f"v_lshlrev_b32 v{vD+4}, 7, v{vLane}")
        A(f"s_mul_i32 s35, s{sB}, {NW}\ns_add_u32 s35, s35, s{sWave}\ns_mul_i32 s35, s35, {lanes*128}")
        if start: A(f"s_add_u32 s35, s35, {start}")
        A(f"s_mov_b32 exec_lo, {(1 << lanes) - 1}\ns_mov_b32 exec_hi, 0")
        A(f"buffer_load_dword v{vD+7}, v{vD+4}, s[{SX}:{SX+3}], s35 offen")
        A("s_mov_b64 exec, -1")
    vBase, vL12, vMkA = vD+57, vD+35, vD+34
    def coop_pre():
        A(f"s_lshr_b32 s9, s2, 3\ns_sub_u32 s9, s9, s{sSeg0}\ns_and_b32 s9, s9, 31")
        A(f"s_add_u32 s10, s9, s{sSeg0}\ns_mul_i32 s10, s10, {RSTR}\ns_and_b32 s11, s2, 7\ns_mul_i32 s11, s11, 3750")
        A(f"s_add_u32 s10, s10, s11\ns_add_u32 s10, s10, {WS_REC - 256}\nv_lshlrev_b32 v{vD+58}, 7, v{vLane}")
    def round_pre():
        A(f"s_mov_b32 s34, {RSTR}\nv_mul_lo_u32 v{vBase}, v{vD+1}, s34")
        A(f"v_mul_u32_u24 v{vL12}, 12, v{vLane}\nv_lshl_add_u32 v{vMkA}, v{vLane}, 2, s{sMk}")
        if o.get("f_eo"): A(f"v_lshlrev_b32 v{vD+58}, 2, v{vD+1}")
    nt0 = 0
    touch0 = o.get("k2_touch0")
    tpos = N*512//8 if o.get("rot") and (o.get("f_early") if fused else o.get("k1_touch", True)) else 0
    def do_touch0(va, vd):
        A.c("pull the first rows of x into this XCD's L2")
        A(f"v_lshlrev_b32 v{va}, 7, v{vLane}")
        A(f"s_lshr_b32 s34, s2, 3\ns_mul_i32 s34, s34, {NW}\ns_add_u32 s34, s34, s{sWave}")
        return touch_x(A, touch0, 34, 17, va, vd, SX, NW, sRot, tpos)
    nacc0 = o.get("nacc0", 0 if fused else 32)
    if not fused:
        A("s_load_dwordx2 s[14:15], s[0:1], 88")
        A("s_load_dwordx2 s[4:5], s[0:1], 0")
        A("s_load_dwordx2 s[12:13], s[0:1], 72")
        ids(); ids2()
        A(f"s_lshl_b32 s17, s{sB}, 10")
        if WS_OFF: A(f"s_add_u32 s17, s17, {WS_OFF}")
        A("s_waitcnt lgkmcnt(0)")
        srd(A, SWS, 14, 15, WS_USED)
        A(f"buffer_load_dword v{vOf}, v{vD+2}, s[{SWS}:{SWS+3}], s17 offen")
        if wpos == 0: wdma(7)
        srd(A, SX, 4, 5, N*512)
        srd(A, SOUT, 12, 13, N*512)
        rotc()
        if touch0:
            nt0 = do_touch0(vD+5, vD+6)
            tpos += sum(touch0[1:]) * 128 * NW * 32
        tall = tpos + (sum(o["k2_touch"][1:]) * 128 * NW * 32 if o.get("k2_touch") else 0)
        if o.get("k2_mall") == 0:
            mall_touch(tpos if o.get("k2_mall_all") else tall); nt0 += 1
        lds_init()
        A(f"s_mov_b32 exec_hi, 0")
        A(f"ds_write_b128 v7, v[{vz+4}:{vz+7}]")
        A("s_mov_b32 exec_hi, -1")
        consts(); round_pre()
        for i in range(0, nacc0, 2): A(f"v_mov_b64 v[{vC+i}:{vC+i+1}], 0")
        A(f"s_waitcnt vmcnt({(4 if wpos == 0 else 0)+nt0})")
    else:
        R = o.get("R", 32)
        aCNT, aPFX, aSTG = L_KEY, L_KEY + 4096, L_COEF
        vDst, vSrc, vEa, vRh, vBk, vRk, vRec = 38, 42, 46, 50, 62, 66, 70
        t0, t1, t2, t3 = 86, 87, 88, 94
        vL16, vCn, vL16b = 89, 90, 150
        v16, v8, v24, vOne1 = 126, 127, 128, 129
        SD, SS, SE, SR, SDBG = 64, 68, 72, 76, 40
        sAct = 46
        A.c("pointers go straight into the first two words of their descriptors")
        for r_, off in ((SD, 32), (SS, 24), (SE, 16), (SR, 8), (SDBG, 80), (SWS, 88), (SX, 0)): A(f"s_load_dwordx2 s[{r_}:{r_+1}], s[0:1], {off}")
        ids()
        def code_touch(w):
            A.c("one wave reads a share of this kernel's instructions so that later fetches find them in L2")
            A(f"s_cmp_lg_u32 s{sWave}, {w}\ns_cbranch_scc1 L_f_nocode")
            A("s_getpc_b64 s[6:7]")
            A("L_f_pc:")
            A(f"s_lshr_b32 s17, s2, 3\ns_lshl_b32 s17, s17, 9\nv_lshl_add_u32 v{t0}, v{vLane}, 7, s17")
            A(f"v_min_u32 v{t0}, L_k2_end-L_f_pc, v{t0}")
            A(f"v_mov_b32 v{t0+1}, s7\nv_add_co_u32 v{t0}, vcc, s6, v{t0}\nv_addc_co_u32 v{t0+1}, vcc, 0, v{t0+1}, vcc")
            A("s_mov_b64 exec, 15")
            A(f"global_load_dword v{t3}, v[{t0}:{t0+1}], off")
            A("s_mov_b64 exec, -1")
            A("L_f_nocode:")
        if o.get("code_touch", 1) == 1: code_touch(o.get("code_wave", 10))
        A(f"v_lshlrev_b32 v{t0}, 2, v0\nv_mov_b32 v{t1}, 0")
        A(f"ds_write_b32 v{t0}, v{t1} offset:{aCNT}")
        A(f"v_lshlrev_b32 v{v16}, 4, v0\nv_lshlrev_b32 v{v8}, 3, v0\nv_mul_u32_u24 v{v24}, 24, v0")
        A(f"v_lshlrev_b32 v{vL16}, 4, v{vLane}\nv_mov_b32 v{vOne1}, 1")
        A(f"s_movk_i32 s17, {CH//4}\nv_cmp_gt_u32 s[{sAct}:{sAct+1}], s17, v0")
        sC = 2 if o.get("f_cwg", 0) else sB
        A(f"s_mul_i32 s4, s{sC}, {CH*4}\ns_mul_i32 s5, s{sC}, {CH*2}\ns_mul_i32 s6, s{sC}, {CH*6}")
        for r_, sz in ((SD, E*4), (SS, E*4), (SE, E*2), (SR, E*6), (SDBG, 256), (SWS, WS_USED), (SX, N*512), (SOUT, N*512)):
            A(f"s_mov_b32 s{r_+2}, {sz}\ns_mov_b32 s{r_+3}, 0x00020000")
        A("s_waitcnt lgkmcnt(0)")
        A(f"s_cmp_ge_u32 s{sWave}, 10\ns_cbranch_scc1 L_f_noload")
        A(f"s_mov_b64 exec, s[{sAct}:{sAct+1}]")
        lf = o.get("k1_load_flags", "nt")
        A(f"buffer_load_dwordx4 v[{vDst}:{vDst+3}], v{v16}, s[{SD}:{SD+3}], s4 offen {lf}")
        A(f"buffer_load_dwordx4 v[{vSrc}:{vSrc+3}], v{v16}, s[{SS}:{SS+3}], s4 offen {lf}")
        split = o.get("f_split", 1)
        def late_loads():
            A(f"buffer_load_dwordx2 v[{vEa}:{vEa+1}], v{v8}, s[{SE}:{SE+3}], s5 offen {lf}")
            A(f"buffer_load_dwordx4 v[{vRh}:{vRh+3}], v{v24}, s[{SR}:{SR+3}], s6 offen {lf}")
            A(f"buffer_load_dwordx2 v[{vRh+4}:{vRh+5}], v{v24}, s[{SR}:{SR+3}], s6 offen offset:16 {lf}")
        if not split: late_loads()
        A("s_mov_b64 exec, -1")
        A("L_f_noload:")
        if o.get("pretouch"):
            A.c("one read per megabyte of x and of the workspace (lines nobody writes), so that the address translations are at hand later")
            A(f"s_cmp_lg_u32 s{sWave}, 10\ns_cbranch_scc1 L_f_nopre")
            A(f"v_lshlrev_b32 v146, 20, v{vLane}\ns_mov_b32 s17, {32*RSTR}\nv_mul_lo_u32 v148, v{vLane}, s17\ns_mov_b32 s17, {WS_REC - 128}")
            A("s_mov_b64 exec, 0x1ff")
            A(f"buffer_load_dword v147, v148, s[{SWS}:{SWS+3}], s17 offen")
            A("s_mov_b64 exec, 0x1f")
            A(f"buffer_load_dword v147, v146, s[{SX}:{SX+3}], 0 offen")
            A("s_mov_b64 exec, -1")
            A("L_f_nopre:")
        A.c("needed later; the next wait on LDS covers them")
        for r_, off in ((SOUT, 72), (62, 56)): A(f"s_load_dwordx2 s[{r_}:{r_+1}], s[0:1], {off}")
        A("s_load_dwordx4 s[56:59], s[0:1], 40")
        if st.on: A("s_load_dwordx2 s[14:15], s[0:1], 88")
        if o.get("code_touch", 1) == 2: code_touch(10)
        A.c("one wave of the launch picks the word that marks this launch's published offsets")
        A(f"s_cmp_lg_u32 s{sWave}, 11\ns_cbranch_scc1 L_f_nononce\ns_cmp_lg_u32 s2, 0\ns_cbranch_scc1 L_f_nononce")
        A(f"s_memrealtime s[6:7]\nv_lshlrev_b32 v{t0}, 2, v{vLane}\ns_waitcnt lgkmcnt(0)\ns_or_b32 s6, s6, 1\nv_mov_b32 v{t1}, s6")
        A(f"buffer_store_dword v{t1}, v{t0}, s[{SDBG}:{SDBG+3}], 0 offen sc1")
        A("L_f_nononce:")
        tp = [0]
        def ftouch(lanes, nwaves=NW, w0=0):
            A.c("pull rows of x into this XCD's L2")
            A(f"s_lshr_b32 s34, s2, 3\ns_mul_i32 s34, s34, {nwaves}\ns_add_u32 s34, s34, s{sWave}")
            if w0: A(f"s_sub_u32 s34, s34, {w0}")
            A(f"s_lshr_b32 s36, s{sB}, 5\ns_mul_i32 s36, s36, {N*512//8}")
            A(f"v_lshlrev_b32 v161, 7, v{vLane}")
            for l in lanes:
                touch_x(A, ("l2", l), 34, 44, 161, 160, SX, nwaves, 36, tp[0])
                tp[0] += l * 128 * nwaves * 32
        if o.get("f_t0"):
            A(f"s_cmp_lt_u32 s{sWave}, 10\ns_cbranch_scc1 L_f_not0\ns_waitcnt lgkmcnt(0)")
            ftouch(o["f_t0"], 2, 10)
            A("L_f_not0:")
        A("s_barrier")
        nw0 = 0
        A(f"s_cmp_ge_u32 s{sWave}, 10\ns_cbranch_scc1 L_f_helper")
        A(f"s_mov_b64 exec, s[{sAct}:{sAct+1}]")
        if split: late_loads()
        A(f"s_waitcnt vmcnt({4+nw0})")
        st.mark("dst")
        for i in range(4):
            if o.get("bid") == 2:
                A(f"v_and_b32 v{vBk+i}, 7, v{vDst+i}\nv_bfe_u32 v{t0}, v{vDst+i}, 3, 5\nv_lshlrev_b32 v{t0}, 2, v{t0}\nv_lshl_or_b32 v{vBk+i}, v{vBk+i}, 7, v{t0}")
            else: A(f"v_lshlrev_b32 v{vBk+i}, 2, v{vDst+i}\nv_and_b32 v{vBk+i}, 0x3fc, v{vBk+i}")
            A(f"ds_add_rtn_u32 v{vRk+i}, v{vBk+i}, v{vOne1} offset:{aCNT}")
        A("s_mov_b64 exec, -1")
        A("s_waitcnt lgkmcnt(0)")
        A("s_barrier")
        A(f"ds_read_b128 v[{vCn}:{vCn+3}], v{vL16} offset:{aCNT}")
        A(f"s_waitcnt vmcnt({3+nw0})")
        A.c("key = src<<9 | onehot(j)<<28 | (group*4 + source quarter)<<2 ; record i = c01, c23, key")
        A(f"s_mov_b32 s4, 0x10000000\ns_mov_b32 s5, {-(-(1 << 32) // 3072)}\ns_movk_i32 s7, -3072")
        A(f"s_mov_b32 s19, {-(-(1 << 35) // N)}" if o.get("rot") else f"s_mov_b32 s6, {(1 << 34) // N}")
        def key(i):
            d, s_, k = vDst+i, vSrc+i, vRec+2+4*i
            if o.get("rot"):
                q = [f"v_mul_hi_u32_u24 v{t1}, s19, v{s_}", f"v_lshrrev_b32 v{t3}, 5, v{d}", f"v_sub_u32 v{t1}, v{t1}, v{t3}",
                     f"v_bfe_u32 v{t1}, v{t1}, 1, 2"]
                if o.get("bid"): q = [q[0], f"v_sub_u32 v{t1}, v{t1}, v{d}", q[3]]
            else: q = [f"v_mul_hi_u32_u24 v{t1}, s6, v{s_}"]
            return [f"v_mul_hi_u32_u24 v{t0}, s5, v{d}"] + q + [
                    f"v_mad_i32_i24 v{t2}, v{t0}, s7, v{d}", f"v_lshlrev_b32_e64 v{t0}, v{t0}, s4", f"v_lshrrev_b32 v{t2}, 8, v{t2}",
                    f"v_lshl_or_b32 v{t0}, v{s_}, 9, v{t0}", f"v_lshl_or_b32 v{t1}, v{t2}, 2, v{t1}", f"v_lshl_or_b32 v{k}, v{t1}, 2, v{t0}"]
        for l in key(0) + key(1): A(l)
        A("s_waitcnt lgkmcnt(0)")
        A(f"v_add_u32 v95, v{vCn}, v{vCn+1}\nv_add_u32 v96, v95, v{vCn+2}\nv_add_u32 v97, v96, v{vCn+3}\nv_mov_b32 v98, v97")
        fill = key(2) + key(3)
        for n, s_ in enumerate(scan_steps("v_add_u32", 98)):
            A(fill[2*n]); A(fill[2*n+1]); A(s_)
        A("v_sub_u32 v98, v98, v97")
        A(f"v_add_u32 v99, v98, v{vCn}\nv_add_u32 v100, v98, v95\nv_add_u32 v101, v98, v96")
        A.c("every wave writes the same prefix table and then reads only after its own write")
        A(f"ds_write_b128 v{vL16}, v[98:101] offset:{aPFX}")
        A(f"s_mov_b64 exec, s[{sAct}:{sAct+1}]")
        for i in range(4): A(f"ds_read_b32 v{vBk+i}, v{vBk+i} offset:{aPFX}")
        for l in fill[12:]: A(l)
        A(f"s_movk_i32 s5, {aSTG}\ns_mov_b32 s4, 0xffff0000")
        early = o.get("f_keyfirst", 1)
        if early:
            for i in range(4):
                A(f"s_waitcnt lgkmcnt({3-i+i})")
                A(f"v_add_u32 v{vBk+i}, v{vBk+i}, v{vRk+i}\nv_mad_u32_u24 v{vBk+i}, v{vBk+i}, 12, s5")
                A(f"ds_write_b32 v{vBk+i}, v{vRec+2+4*i} offset:8")
        mW, mR, hA = 106, 122, 138
        def wloads():
            if o.get("diag_now"):
                A(f"v_lshrrev_b32 v144, 3, v{vLane}")
                for q in range(8): A(f"buffer_load_ushort v{mR}, v144, s[{SDBG}:{SDBG+3}], 0 offen")
                return
            A.c("weights: 40 pieces of 8 rows; piece w+12q comes from w_si0 when < 16, else from w_si1")
            srd(A, SD, 58, 59, 128*128); srd(A, SS, 62, 63, 192*128); srd(A, SE, 56, 57, 640)
            A(f"s_cmp_lt_u32 s{sWave}, 4")
            A(f"s_cselect_b32 s{SR}, s58, s62\ns_cselect_b32 s{SR+1}, s59, s63")
            A(f"s_cselect_b32 s{SR+2}, s{SD+2}, s{SS+2}\ns_mov_b32 s{SR+3}, 0x00020000")
            A(f"s_cselect_b32 s19, 0, 16384\ns_sub_u32 s19, 12288, s19")
            A(f"s_lshl_b32 s17, s{sWave}, 10\ns_add_u32 s19, s19, s17")
            A(f"buffer_load_dwordx4 v[{mW}:{mW+3}], v{vL16}, s[{SD}:{SD+3}], s17 offen")
            A(f"buffer_load_dwordx4 v[{mW+4}:{mW+7}], v{vL16}, s[{SR}:{SR+3}], s19 offen")
            A(f"s_add_u32 s19, s17, {24576-16384}")
            A(f"buffer_load_dwordx4 v[{mW+8}:{mW+11}], v{vL16}, s[{SS}:{SS+3}], s19 offen")
            A(f"s_add_u32 s19, s17, {36864-16384}")
            A(f"buffer_load_dwordx4 v[{mW+12}:{mW+15}], v{vL16}, s[{SS}:{SS+3}], s19 offen")
            A(f"v_lshrrev_b32 v144, 3, v{vLane}\nv_lshlrev_b32 v145, 1, v144\ns_lshl_b32 s19, s{sWave}, 4")
            for q in range(4): A(f"buffer_load_ushort v{mR+q}, v145, s[{SE}:{SE+3}], s19 offen offset:{192*q}")
        wearly = o.get("f_wearly", 1)
        if not wearly: A("s_waitcnt vmcnt(0)")
        A("s_mov_b64 exec, -1")
        wloads()
        A(f"s_mov_b64 exec, s[{sAct}:{sAct+1}]")
        A.c("coefficients a, a*Y0, a*Y1, a*Y2 in bf16")
        if wearly: A("s_waitcnt vmcnt(8)")
        def unpack(dst, reg, hi):
            if hi: A(f"v_and_b32 v{dst}, s4, v{reg}")
            else: A(f"v_lshlrev_b32 v{dst}, 16, v{reg}")
        for i in range(4):
            unpack(t0, vEa + i//2, i & 1)
            for j in range(3):
                h = 3*i + j
                unpack(102+j, vRh + h//2, h & 1)
            for j in range(3): A(f"v_mul_f32 v{102+j}, v{t0}, v{102+j}")
            A(f"v_cvt_pk_bf16_f32 v{vRec+4*i}, v{t0}, v102\nv_cvt_pk_bf16_f32 v{vRec+1+4*i}, v103, v104")
            if not early:
                if i == 0: A("s_waitcnt lgkmcnt(0)")
                A(f"v_add_u32 v{vBk+i}, v{vBk+i}, v{vRk+i}\nv_mad_u32_u24 v{vBk+i}, v{vBk+i}, 12, s5")
                A(f"ds_write_b32 v{vBk+i}, v{vRec+2+4*i} offset:8")
            A(f"ds_write2_b32 v{vBk+i}, v{vRec+4*i}, v{vRec+1+4*i} offset0:0 offset1:1")
        A("s_mov_b64 exec, -1")
        A.c("wave 0 prepares start|len<<16 of the 256 buckets, two per lane and store")
        if o.get("f_eo") == 2: A("s_branch L_f_nooff")
        A(f"s_cmp_lg_u32 s{sWave}, 0\ns_cbranch_scc1 L_f_nooff")
        for i in range(4): A(f"v_lshl_or_b32 v{98+i}, v{vCn+i}, 16, v{98+i}")
        tag = o.get("f_tag")
        if tag:
            A(f"v_add_u32 v{t0}, {L_GATE+1024}, v{vL16}\nds_write_b128 v{t0}, v[98:101]")
            A(f"v_lshrrev_b32 v{t0}, 1, v{vL16}\nv_add_u32 v{t0}, {L_GATE+1024}, v{t0}")
            A(f"ds_read_b64 v[152:153], v{t0}\nds_read_b64 v[156:157], v{t0} offset:512")
        else:
            A(f"s_lshl_b32 s4, s{sB}, 10")
            A(f"buffer_store_dwordx4 v[98:101], v{vL16}, s[{SWS}:{SWS+3}], s4 offen sc1")
        A("L_f_nooff:")
        A(f"s_mul_i32 s4, s{sC}, {RSTR}\ns_add_u32 s4, s4, {WS_REC}\ns_add_u32 s5, s4, 10240\ns_add_u32 s6, s4, 20480")
        A(f"s_movk_i32 s17, {RUSE//16 - 1280}\nv_cmp_gt_u32 s[{sAct}:{sAct+1}], s17, v0")
        A("s_setprio 3")
        A("s_waitcnt lgkmcnt(0)")
        A("s_barrier")
        st.mark("sortedA")
        for q in range(3): A(f"ds_read_b128 v[{vRh+4*q}:{vRh+4*q+3}], v{v16} offset:{aSTG + 10240*q}")
        for q in range(3):
            A(f"s_waitcnt lgkmcnt({2-q})")
            if q == 2: A(f"s_mov_b64 exec, s[{sAct}:{sAct+1}]")
            A(f"buffer_store_dwordx4 v[{vRh+4*q}:{vRh+4*q+3}], v{v16}, s[{SWS}:{SWS+3}], s{4+q} offen {o.get('f_sf', 'sc1')}")
        A("s_mov_b64 exec, -1")
        A("s_setprio 0")
        A("s_branch L_f_join")
        A.c("waves 10 and 11 carry no edges: they fetch the launch's mark")
        A("L_f_helper:")
        A("s_waitcnt lgkmcnt(0)")
        A("s_barrier")
        if st.on and "dst" not in st.skip: st.n -= 2; st.names = st.names[:-2]; st.mark("dst")
        elif st.on: st.n -= 1; st.names = st.names[:-1]
        A(f"s_and_b32 s4, s2, 63\ns_lshl_b32 s4, s4, 2\nv_mov_b32 v142, 0\ns_mov_b32 s5, 0x40000")
        A(f"buffer_load_dword v143, v142, s[{SDBG}:{SDBG+3}], s4 offen sc1")
        if o.get("f_eo") == 2: A(f"ds_read_b128 v[{vCn}:{vCn+3}], v{vL16} offset:{aCNT}")
        wloads()
        if o.get("f_eo") == 2:
            A("s_waitcnt lgkmcnt(0)")
            A(f"v_add_u32 v95, v{vCn}, v{vCn+1}\nv_add_u32 v96, v95, v{vCn+2}\nv_add_u32 v97, v96, v{vCn+3}\nv_mov_b32 v98, v97")
            for s_ in scan_steps("v_add_u32", 98): A(s_)
            A("v_sub_u32 v98, v98, v97")
            A(f"v_add_u32 v99, v98, v{vCn}\nv_add_u32 v100, v98, v95\nv_add_u32 v101, v98, v96")
        A("s_waitcnt vmcnt(8)")
        A("L_f_again:")
        A(f"v_readfirstlane_b32 s6, v143")
        A("s_cmp_lg_u32 s6, 0\ns_cbranch_scc1 L_f_got")
        A("s_sub_u32 s5, s5, 1\ns_cbranch_scc1 L_f_got")
        A(f"s_sleep 2\nbuffer_load_dword v143, v142, s[{SDBG}:{SDBG+3}], s4 offen sc1\ns_waitcnt vmcnt(0)\ns_branch L_f_again")
        A("L_f_got:")
        A(f"v_mov_b32 v142, {L_NONCE}\nds_write_b32 v142, v143")
        if o.get("f_eo") == 2:
            A(f"s_cmp_lg_u32 s{sWave}, 11\ns_cbranch_scc1 L_f_hoff")
            A.c("offset words with the launch's mark beside each: 8-byte pairs that are written and read whole")
            A(f"s_waitcnt lgkmcnt(0)")
            for i in range(4): A(f"v_lshl_or_b32 v{98+i}, v{vCn+i}, 16, v{98+i}")
            A(f"v_add_u32 v{t0}, {L_GATE+1024}, v{vL16}\nds_write_b128 v{t0}, v[98:101]")
            A(f"v_lshrrev_b32 v{t0}, 1, v{vL16}\nv_add_u32 v{t0}, {L_GATE+1024}, v{t0}")
            A(f"ds_read_b64 v[152:153], v{t0}\nds_read_b64 v[156:157], v{t0} offset:512")
            A(f"v_mov_b32 v47, v143\nv_mov_b32 v49, v143\nv_mov_b32 v63, v143\nv_mov_b32 v65, v143\ns_lshl_b32 s19, s{sC}, 11")
            A("s_waitcnt lgkmcnt(0)")
            A(f"v_mov_b32 v46, v152\nv_mov_b32 v48, v153\nv_mov_b32 v62, v156\nv_mov_b32 v64, v157")
            A(f"buffer_store_dwordx4 v[46:49], v{vL16}, s[{SWS}:{SWS+3}], s19 offen sc1")
            A(f"buffer_store_dwordx4 v[62:65], v{vL16}, s[{SWS}:{SWS+3}], s19 offen offset:1024 sc1")
            A("L_f_hoff:")
        A("s_waitcnt lgkmcnt(0)")
        A("s_barrier")
        st.mark("sortedA")
        A("s_waitcnt vmcnt(2)" if o.get("f_eo") == 2 else "s_waitcnt vmcnt(0)")
        if o.get("f_eo") == 2: A(f"s_cmp_eq_u32 s{sWave}, 11\ns_cbranch_scc1 L_f_join\ns_waitcnt vmcnt(0)")
        if o.get("f_eo"):
            A("L_f_join:")
            st.mark("stiss")
            sNonce = 35
            A(f"v_mov_b32 v{t0}, {L_NONCE}\nds_read_b32 v{t1}, v{t0}")
            A(f"v_lshlrev_b32 v7, 4, v{vLane}\ns_lshl_b32 s19, s{sC}, 11")
            A("s_waitcnt lgkmcnt(0)")
            A(f"v_readfirstlane_b32 s{sNonce}, v{t1}")
            A.c("offset words with the launch's mark beside each: 8-byte pairs that are written and read whole")
            if o["f_eo"] == 2: A("s_branch L_f_nooff2")
            A(f"s_cmp_lg_u32 s{sWave}, 0\ns_cbranch_scc1 L_f_nooff2")
            A(f"v_mov_b32 v46, v152\nv_mov_b32 v47, v{t1}\nv_mov_b32 v48, v153\nv_mov_b32 v49, v{t1}")
            A(f"v_mov_b32 v62, v156\nv_mov_b32 v63, v{t1}\nv_mov_b32 v64, v157\nv_mov_b32 v65, v{t1}")
            A(f"buffer_store_dwordx4 v[46:49], v7, s[{SWS}:{SWS+3}], s19 offen sc1")
            A(f"buffer_store_dwordx4 v[62:65], v7, s[{SWS}:{SWS+3}], s19 offen offset:1024 sc1")
            A("s_waitcnt vmcnt(5)")
            A("L_f_nooff2:")
            ids2(); rotc(); consts()
            A.c("weights scaled by w_rad, row k as [tile t ^ (k&3)][16 columns 4n+t]")
            A(f"v_and_b32 v{hA}, 7, v{vLane}\nv_lshlrev_b32 v{hA}, 2, v{hA}")
            A(f"v_lshl_add_u32 v{hA}, v144, 7, v{hA}\nv_and_b32 v144, 3, v144\nv_lshl_add_u32 v{hA}, v144, 5, v{hA}")
            A(f"s_lshl_b32 s4, s{sWave}, 10\ns_add_u32 s4, s4, {L_WT}\nv_add_u32 v{hA}, s4, v{hA}")
            for t in range(1, 4): A(f"v_xor_b32 v{hA+t}, {32*t}, v{hA}")
            A("s_mov_b32 s4, 0xffff0000")
            if o["f_eo"] == 2: A("s_waitcnt vmcnt(3)")
            else: A(f"s_cmp_eq_u32 s{sWave}, 0\ns_cbranch_scc1 L_f_wok\ns_waitcnt vmcnt(3)\nL_f_wok:")
            for q in range(4):
                if q == 3: A(f"s_cmp_ge_u32 s{sWave}, 4\ns_cbranch_scc1 L_f_w3")
                A(f"v_lshlrev_b32 v{mR+q}, 16, v{mR+q}")
                for tq in (0, 2):
                    for t in (tq, tq+1):
                        a = 144 + 4*(t & 1)
                        unpack(a, mW + 4*q + t//2, t & 1); unpack(a+1, mW + 4*q + 2 + t//2, t & 1)
                    for a in (144, 148):
                        A(f"v_pk_mul_f32 v[{a}:{a+1}], v[{a}:{a+1}], v[{mR+q & ~1}:{(mR+q & ~1)+1}] op_sel:[0,{q & 1}] op_sel_hi:[1,{q & 1}]")
                    for a in (144, 148): A(f"v_cvt_pk_bf16_f32 v{a+2+tq//2}, v{a}, v{a+1}")
                    for t in (tq, tq+1): A(f"ds_write_b32 v{hA+t}, v{144+4*(t & 1)+2+tq//2} offset:{12288*q}")
            A("L_f_w3:")
            marker_init()
            vA = 100
            A.c("fragment w+12q = (k step (w>>2)+3q, tile w&3): two transposing reads")
            A(f"v_lshrrev_b32 v{t0}, 4, v{vLane}\nv_bfe_u32 v{t2}, v{vLane}, 2, 2\nv_lshl_add_u32 v{vA}, v{t0}, 3, v{t2}\nv_lshlrev_b32 v{vA}, 7, v{vA}")
            A(f"s_and_b32 s4, s{sWave}, 3\nv_xor_b32 v{t2}, s4, v{t2}\nv_lshl_add_u32 v{vA}, v{t2}, 5, v{vA}")
            A(f"v_and_b32 v{t2}, 3, v{vLane}\nv_lshl_add_u32 v{vA}, v{t2}, 3, v{vA}")
            A(f"s_lshr_b32 s4, s{sWave}, 2\ns_lshl_b32 s4, s4, 12\ns_add_u32 s4, s4, {L_WT}\nv_add_u32 v{vA}, s4, v{vA}")
            A(f"s_lshl_b32 s4, s{sWave}, 10\ns_add_u32 s4, s4, {L_W}\nv_add_u32 v{vA+1}, s4, v7")
            A(f"s_lshl_b32 s17, s{sB}, 3\nv_mov_b32 v66, 0\nv_cmp_gt_u32 s[6:7], s{sNseg}, v{vLane}\ns_mov_b32 s5, 0x40000")
            A(f"s_and_b32 s8, s2, {R-1}\ns_lshl_b32 s8, s8, 10\ns_add_u32 s8, s8, {WS_FLAG}")
            A(f"s_lshl_b32 s19, s{sC}, 2\ns_add_u32 s19, s19, {WS_FLAG}\nv_lshlrev_b32 v{t0}, 10, v{vLane}\nv_mov_b32 v{t2}, s{sNonce}")
            round_pre()
            st.mark("wdone")
            A(f"s_waitcnt vmcnt(0) lgkmcnt(0)")
            A("s_barrier")
            st.mark("acked")
            A.c(f"every record store of this workgroup has been acknowledged: raise its flag in all {R} copies")
            A(f"s_cmp_lg_u32 s{sWave}, 0\ns_cbranch_scc1 L_f_noflag")
            if R < 64: A(f"s_mov_b32 exec_lo, {(1 << R) - 1 & 0xffffffff}\ns_mov_b32 exec_hi, 0")
            A(f"buffer_store_dword v{t2}, v{t0}, s[{SWS}:{SWS+3}], s19 offen sc1")
            A("L_f_noflag:")
            tpos = tall = 0
            A.c("read the pairs of this wave's chunks until each carries the mark")
            def poll_load(): A(f"buffer_load_dwordx2 v[66:67], v{vD+2}, s[{SWS}:{SWS+3}], s17 offen sc1")
            A("s_mov_b64 exec, s[6:7]")
            poll_load()
            A("s_mov_b64 exec, -1")
            vW2 = mW
            for q in range(4):
                A(f"ds_read_b64_tr_b16 v[{vW2+4*q}:{vW2+4*q+1}], v{vA} offset:{12288*q}")
                A(f"ds_read_b64_tr_b16 v[{vW2+4*q+2}:{vW2+4*q+3}], v{vA} offset:{12288*q+512}")
            for q in range(4):
                if q == 3: A(f"s_cmp_ge_u32 s{sWave}, 4\ns_cbranch_scc1 L_f_w4")
                A(f"s_waitcnt lgkmcnt({6-2*q})")
                A(f"ds_write_b128 v{vA+1}, v[{vW2+4*q}:{vW2+4*q+3}] offset:{12288*q}")
            A("L_f_w4:")
            if o.get("eo_init", 0) == 0: key_init(); zero_init()
            A("s_mov_b64 exec, s[6:7]")
            A("s_waitcnt vmcnt(0)")
            A("L_f_poll:")
            A(f"v_cmp_ne_u32 vcc, s{sNonce}, v67")
            A("s_and_b64 exec, exec, vcc\ns_cbranch_scc0 L_f_seen")
            A("s_sub_u32 s5, s5, 1\ns_cbranch_scc1 L_f_giveup")
            A(f"s_sleep {o.get('f_sleep', 1)}")
            poll_load()
            A("s_waitcnt vmcnt(0)\ns_branch L_f_poll")
            A("L_f_giveup:\ns_mov_b64 s[6:7], 0")
            A("L_f_seen:")
            A("s_mov_b64 exec, -1")
            A(f"v_mov_b32 v{vOf}, v66")
        else:
            A("L_f_join:")
            ntA = 0
            if o.get("f_tA"): ftouch([o["f_tA"]]); ntA = 1
            st.mark("stiss")
            sNonce = 35
            assert tag
            A(f"v_mov_b32 v{t0}, {L_NONCE}\nds_read_b32 v{t1}, v{t0}")
            ids2(); rotc(); consts()
            A("s_waitcnt lgkmcnt(0)")
            A(f"v_readfirstlane_b32 s{sNonce}, v{t1}")
            def pre_init():
                lds_init()
                A.c("zero block, round word, flags, counters: bytes 0..511")
                A(f"s_mov_b32 exec_hi, 0")
                A(f"ds_write_b128 v7, v[{vz+4}:{vz+7}]")
                A("s_mov_b32 exec_hi, -1")
            if o.get("f_preinit", 1): pre_init()
            A.c("offset words with the launch's mark beside each: 8-byte pairs that are written and read whole")
            A(f"v_mov_b32 v46, v152\nv_mov_b32 v47, s{sNonce}\nv_mov_b32 v48, v153\nv_mov_b32 v49, s{sNonce}")
            A(f"v_mov_b32 v62, v156\nv_mov_b32 v63, s{sNonce}\nv_mov_b32 v64, v157\nv_mov_b32 v65, s{sNonce}")
            A(f"s_lshl_b32 s19, s{sC}, 11\ns_lshl_b32 s17, s{sB}, 3\nv_mov_b32 v66, 0")
            A(f"v_cmp_gt_u32 s[6:7], s{sNseg}, v{vLane}\ns_mov_b32 s5, 0x40000")
            vA = 100
            A.c("fragment w+12q = (k step (w>>2)+3q, tile w&3): two transposing reads")
            A(f"v_lshrrev_b32 v{t0}, 4, v{vLane}\nv_bfe_u32 v{t2}, v{vLane}, 2, 2\nv_lshl_add_u32 v{vA}, v{t0}, 3, v{t2}\nv_lshlrev_b32 v{vA}, 7, v{vA}")
            A(f"s_and_b32 s4, s{sWave}, 3\nv_xor_b32 v{t2}, s4, v{t2}\nv_lshl_add_u32 v{vA}, v{t2}, 5, v{vA}")
            A(f"v_and_b32 v{t2}, 3, v{vLane}\nv_lshl_add_u32 v{vA}, v{t2}, 3, v{vA}")
            A(f"s_lshr_b32 s4, s{sWave}, 2\ns_lshl_b32 s4, s4, 12\ns_add_u32 s4, s4, {L_WT}\nv_add_u32 v{vA}, s4, v{vA}")
            A(f"s_lshl_b32 s4, s{sWave}, 10\ns_add_u32 s4, s4, {L_W}\nv_add_u32 v{vA+1}, s4, v7")
            A.c("weights scaled by w_rad, row k as [tile t ^ (k&3)][16 columns 4n+t]")
            A(f"v_and_b32 v{hA}, 7, v{vLane}\nv_lshlrev_b32 v{hA}, 2, v{hA}")
            A(f"v_lshl_add_u32 v{hA}, v144, 7, v{hA}\nv_and_b32 v144, 3, v144\nv_lshl_add_u32 v{hA}, v144, 5, v{hA}")
            A(f"s_lshl_b32 s4, s{sWave}, 10\ns_add_u32 s4, s4, {L_WT}\nv_add_u32 v{hA}, s4, v{hA}")
            for t in range(1, 4): A(f"v_xor_b32 v{hA+t}, {32*t}, v{hA}")
            A("s_mov_b32 s4, 0xffff0000")
            def wpiece(q):
                A(f"v_lshlrev_b32 v{mR+q}, 16, v{mR+q}")
                for tp in (0, 2):
                    for t in (tp, tp+1):
                        a = 144 + 4*(t & 1)
                        unpack(a, mW + 4*q + t//2, t & 1); unpack(a+1, mW + 4*q + 2 + t//2, t & 1)
                    for a in (144, 148):
                        A(f"v_pk_mul_f32 v[{a}:{a+1}], v[{a}:{a+1}], v[{mR+q & ~1}:{(mR+q & ~1)+1}] op_sel:[0,{q & 1}] op_sel_hi:[1,{q & 1}]")
                    for a in (144, 148): A(f"v_cvt_pk_bf16_f32 v{a+2+tp//2}, v{a}, v{a+1}")
                    for t in (tp, tp+1): A(f"ds_write_b32 v{hA+t}, v{144+4*(t & 1)+2+tp//2} offset:{12288*q}")
            npre = o.get("f_npre", 0)
            if npre: A("s_waitcnt vmcnt(3)")
            for q in range(npre): wpiece(q)
            round_pre()
            if o.get("coop"): coop_pre()
            st.mark("wdone")
            A(f"s_waitcnt vmcnt({ntA})")
            A("s_barrier")
            st.mark("acked")
            A.c("every record store of this workgroup has been acknowledged: publish the offsets")
            A(f"s_cmp_lg_u32 s{sWave}, 0\ns_cbranch_scc1 L_f_noflag")
            A(f"buffer_store_dwordx4 v[46:49], v7, s[{SWS}:{SWS+3}], s19 offen sc1")
            A(f"buffer_store_dwordx4 v[62:65], v7, s[{SWS}:{SWS+3}], s19 offen offset:1024 sc1")
            A("L_f_noflag:")
            if o.get("f_tB"): ftouch([o["f_tB"]])
            tpos = tp[0]
            if not o.get("f_preinit", 1): pre_init()
            for q in range(npre, 4):
                if q == 3: A(f"s_cmp_ge_u32 s{sWave}, 4\ns_cbranch_scc1 L_f_w3")
                wpiece(q)
            A("L_f_w3:")
            def poll_load(): A(f"buffer_load_dwordx2 v[{96 if o.get('f_pp', 0) else 66}:{97 if o.get('f_pp', 0) else 67}], v{vD+2}, s[{SWS}:{SWS+3}], s17 offen sc1")
            A("s_waitcnt lgkmcnt(0)")
            A("s_barrier")
            vW2 = mW
            for q in range(4):
                A(f"ds_read_b64_tr_b16 v[{vW2+4*q}:{vW2+4*q+1}], v{vA} offset:{12288*q}")
                A(f"ds_read_b64_tr_b16 v[{vW2+4*q+2}:{vW2+4*q+3}], v{vA} offset:{12288*q+512}")
            A.c("read the pairs of this wave's chunks until each carries the mark")
            if not o.get("f_late"):
                A("s_mov_b64 exec, s[6:7]")
                poll_load()
                A("s_mov_b64 exec, -1")
            assert not touch0
            tall = tpos
            for q in range(4):
                if q == 3: A(f"s_cmp_ge_u32 s{sWave}, 4\ns_cbranch_scc1 L_f_w4")
                A(f"s_waitcnt lgkmcnt({6-2*q})")
                A(f"ds_write_b128 v{vA+1}, v[{vW2+4*q}:{vW2+4*q+3}] offset:{12288*q}")
            A("L_f_w4:")
            if nacc0: A("s_waitcnt lgkmcnt(0)")
            for i in range(0, nacc0, 2): A(f"v_mov_b64 v[{vC+i}:{vC+i+1}], 0")
            if o.get("f_pp", 0):
                A.c("two reads stay in flight; a lane drops out once its pair carries the mark")
                P = (96, 98)
                def pl(k): A(f"buffer_load_dwordx2 v[{P[k]}:{P[k]+1}], v{vD+2}, s[{SWS}:{SWS+3}], s17 offen sc1")
                A(f"v_mov_b32 v{vOf}, 0")
                A("s_mov_b64 exec, s[6:7]")
                pl(1)
                A("L_f_poll:")
                for k in (0, 1):
                    A("s_waitcnt vmcnt(1)")
                    A(f"v_cmp_eq_u32 vcc, s{sNonce}, v{P[k]+1}")
                    A(f"v_cndmask_b32 v{vOf}, v{vOf}, v{P[k]}, vcc")
                    A("s_andn2_b64 exec, exec, vcc\ns_cbranch_scc0 L_f_seen")
                    if o.get("f_sleep", 1): A(f"s_sleep {o.get('f_sleep', 1)}")
                    pl(k)
                A("s_sub_u32 s5, s5, 1\ns_cbranch_scc0 L_f_poll")
                A("L_f_seen:")
                A("s_mov_b64 exec, -1")
            else:
                A("s_mov_b64 exec, s[6:7]")
                if o.get("f_late"):
                    if o["f_late"] > 1: A(f"s_sleep {o['f_late']-1}")
                    poll_load()
                if o.get("f_prio", 0): A("s_setprio 2")
                A("s_waitcnt vmcnt(0)")
                A("L_f_poll:")
                A(f"v_cmp_ne_u32 vcc, s{sNonce}, v67")
                A("s_and_b64 exec, exec, vcc\ns_cbranch_scc0 L_f_seen")
                A("s_sub_u32 s5, s5, 1\ns_cbranch_scc1 L_f_seen")
                if o.get("f_sleep", 1): A(f"s_sleep {o.get('f_sleep', 1)}")
                poll_load()
                A("s_waitcnt vmcnt(0)\ns_branch L_f_poll")
                A("L_f_seen:")
                A("s_mov_b64 exec, -1")
            st.mark("seen")
            if o.get("coop"):
                A(f"s_cmp_ge_u32 s9, s{sNseg}\ns_cbranch_scc1 L_f_nocoop")
                A("s_mov_b32 exec_hi, 3")
                A(f"buffer_load_dword v{vD+59}, v{vD+58}, s[{SWS}:{SWS+3}], s10 offen {o['coop']}")
                A("s_mov_b32 exec_hi, -1")
                A("L_f_nocoop:")
            if o.get("f_pp", 0): pass
            elif tag: A(f"v_mov_b32 v{vOf}, v66")
            else:
                A(f"buffer_load_dword v{vOf}, v{vD+2}, s[{SWS}:{SWS+3}], s17 offen sc1")
                A("s_waitcnt vmcnt(0)")
    st.mark("off")
    A("L_k2_round:")
    vLen, vInc, vM, vPos = vD+2, vD+3, vD+28, vD+29
    vMk = vD + 30
    vR = vT
    assert vMkA == vMk + 4
    vSave = vD + 36
    A(f"v_lshrrev_b32 v{vInc}, 16, v{vOf}")
    A(f"v_and_b32 v{vM}, 0xffff, v{vOf}")
    A(f"v_mov_b32 v{vLen}, v{vInc}")
    steps = scan_steps("v_add_u32", vInc, upto=32)
    if fused and o.get("rectouch"):
        A.c("start the first and the last line of every segment on their way before the addresses per record are known")
        A(f"v_mad_u32_u24 v{vD+58}, v{vM}, 12, v{vBase}\ns_mov_b32 s19, {WS_REC}")
        A(f"v_mad_u32_u24 v{vD+59}, v{vLen}, 12, v{vD+58}")
        A("s_mov_b64 exec, s[6:7]")
        A(f"buffer_load_dword v{vD+60}, v{vD+58}, s[{SWS}:{SWS+3}], s19 offen sc1")
        if o["rectouch"] > 1:
            A(f"s_sub_u32 s19, s19, 4")
            A(f"buffer_load_dword v{vD+61}, v{vD+59}, s[{SWS}:{SWS+3}], s19 offen sc1")
        A("s_mov_b64 exec, -1")
    A(steps[0])
    A(f"s_mul_i32 s17, s{sRound}, {WIN}")
    A(steps[1])
    A(f"s_movk_i32 s19, 383")
    A(steps[2])
    A(f"v_add_u32 v{vM}, v{vM}, v{vLen}")
    A(steps[3]); A(steps[4])
    A(f"v_sub_u32 v{vM}, v{vM}, v{vInc}")
    A(f"v_readlane_b32 s{sTot}, v{vInc}, 31")
    A(f"v_sub_u32 v{vInc}, v{vInc}, v{vLen}")
    A(f"v_mad_i32_i24 v{vM}, v{vM}, 12, v{vBase}")
    A(f"v_subrev_u32 v{vPos}, s17, v{vInc}")
    A(f"v_med3_i32 v{vPos}, v{vPos}, 0, s19")
    A(f"v_lshl_add_u32 v{vPos}, v{vPos}, 2, s{sMk}")
    if fused and o.get("mkmask", 1):
        A("s_mov_b64 exec, s[6:7]")
        A(f"ds_max_u32 v{vPos}, v{vM}")
        A("s_mov_b64 exec, -1")
    else:
        A(f"s_mov_b32 exec_hi, 0")
        A(f"ds_max_u32 v{vPos}, v{vM}")
        A("s_mov_b32 exec_hi, -1")
    for it in range(NIT): A(f"ds_read_b32 v{vMk+it}, v{vMk+4} offset:{256*it}")
    A(f"v_mov_b32 v{vSave}, v{vOf}\nv_mov_b32 v{vSave+1}, v{vD+1}")
    A(f"s_sub_u32 s{sRem}, s{sTot}, s17\ns_min_i32 s{sRem}, s{sRem}, {WIN}")
    A(f"s_mul_i32 s17, s17, 12\ns_add_u32 s17, s17, {WS_REC}")
    eo = fused and o.get("f_eo")
    def flag_load(): A(f"buffer_load_dword v{vD+59}, v{vD+58}, s[{SWS}:{SWS+3}], s8 offen sc1")
    if eo and o.get("eo_pos", 0) == 0:
        A("s_mov_b64 exec, s[6:7]"); flag_load(); A("s_mov_b64 exec, -1")
    A("s_waitcnt lgkmcnt(1)")
    sc = [scan_steps("v_max_u32", vMk+it) for it in range(NIT)]
    for k in range(6):
        for it in range(NIT-1): A(sc[it][k])
    def recload(it):
        A(f"buffer_load_dwordx3 v[{vR+4*it}:{vR+4*it+2}], v{vMk+it}, s[{SWS}:{SWS+3}], s17 offen offset:{768*it} {hf}")
    for it in range(NIT-1): A(f"v_readlane_b32 s{sCar[it]}, v{vMk+it}, 63")
    A(f"v_add_u32 v{vMk}, v{vMk}, v{vL12}")
    for it in range(1, NIT-1): A(f"s_max_u32 s{sCar[it]}, s{sCar[it]}, s{sCar[it-1]}")
    if eo:
        for it in range(1, NIT-1):
            A(f"v_max_u32 v{vMk+it}, s{sCar[it-1]}, v{vMk+it}")
            A(f"v_add_u32 v{vMk+it}, v{vMk+it}, v{vL12}")
        A.c("the records may be read once the flags of this wave's chunks are up")
        A("s_mov_b64 exec, s[6:7]")
        if o.get("eo_pos", 0) == 1: flag_load()
        A("L_f_poll2:")
        A("s_waitcnt vmcnt(0)")
        A(f"v_cmp_ne_u32 vcc, s35, v{vD+59}")
        A("s_and_b64 exec, exec, vcc\ns_cbranch_scc0 L_f_seen2")
        A("s_sub_u32 s5, s5, 1\ns_cbranch_scc1 L_f_giveup2")
        A(f"s_sleep {o.get('f_sleep', 1)}")
        flag_load()
        A("s_branch L_f_poll2")
        A("L_f_giveup2:\ns_mov_b64 s[6:7], 0")
        A("L_f_seen2:")
        A("s_mov_b64 exec, -1")
        st.mark("seen")
    A.c("the last window is nearly always empty: it goes first, so the counted waits below do not depend on it")
    A(f"s_cmp_le_i32 s{sRem}, {64*(NIT-1)}\ns_cbranch_scc1 L_k2_skip4")
    A("s_waitcnt lgkmcnt(0)")
    for k in range(6): A(sc[NIT-1][k])
    A(f"v_max_u32 v{vMk+NIT-1}, s{sCar[NIT-2]}, v{vMk+NIT-1}")
    A(f"v_add_u32 v{vMk+NIT-1}, v{vMk+NIT-1}, v{vL12}")
    recload(NIT-1)
    A("L_k2_skip4:")
    recload(0)
    for it in range(1, NIT-1):
        if not eo:
            A(f"v_max_u32 v{vMk+it}, s{sCar[it-1]}, v{vMk+it}")
            A(f"v_add_u32 v{vMk+it}, v{vMk+it}, v{vL12}")
        if it == NIT-2 and o.get("mask3"):
            A(f"s_sub_u32 s19, s{sRem}, {64*it}\ns_max_i32 s19, s19, 1\nv_cmp_gt_i32 vcc, s19, v{vLane}\ns_mov_b64 exec, vcc")
        recload(it)
        if it == NIT-2 and o.get("mask3"): A("s_mov_b64 exec, -1")
    if fused and o.get("f_prio", 0): A("s_setprio 0")
    st.mark("recissue")
    for it in range(NIT):
        if it: A(f"s_sub_u32 s19, s{sRem}, {64*it}")
        A(f"v_cmp_gt_i32 s[{sMask+2*it}:{sMask+2*it+1}], s{19 if it else sRem}, v{vLane}")
    A.c("lane constants of the main loop")
    A(f"v_and_b32 v{vOff}, 15, v{vLane}\nv_lshlrev_b32 v{vOff}, 4, v{vOff}")
    A(f"v_and_b32 v{vSh}, 3, v{vLane}\nv_add_u32 v{vSh}, 28, v{vSh}")
    if nacc0 < 64:
        A(f"s_cmp_lg_u32 s{sRound}, 0\ns_cbranch_scc1 L_k2_acc")
        for i in range(nacc0, 64, 2): A(f"v_mov_b64 v[{vC+i}:{vC+i+1}], 0")
        A("L_k2_acc:")
    vBin = vMk
    vRank = vD + 44
    vc, vs, vtq, vx, vm1, vm2 = vD+50, vD+51, vD+52, vD+53, vD+54, vD+55
    vOne = vD + 56
    A(f"v_and_b32 v{vx}, 3, v{vLane}")
    A(f"v_cmp_lt_u32 vcc, 0, v{vx}\nv_lshlrev_b32 v{vPos}, 2, v{vLane}\nv_mov_b32 v{vM}, {L_RND}\nv_cndmask_b32 v{vm1}, 0, -1, vcc")
    A(f"v_cmp_lt_u32 vcc, 1, v{vx}")
    A(f"v_lshrrev_b32 v{vKA}, 4, v{vLane}\nv_lshlrev_b32 v{vKA}, 2, v{vKA}")
    A(f"v_cndmask_b32 v{vm2}, 0, -1, vcc")
    A(f"v_and_b32 v{vK2A}, 12, v{vLane}\nv_lshl_add_u32 v{vK2A}, v{vK2A}, 2, v{vKA}")
    A(f"v_mov_b32 v7, v{vSave}\nv_mov_b32 v0, v{vSave+1}")
    A(f"v_mov_b32 v{vOne}, 4")
    A.c("lanes without a record keep a rank that puts their LDS writes out of range")
    for it in range(NIT): A(f"v_mov_b32 v{vRank+it}, 0x100000" if it == 0 else f"v_mov_b32 v{vRank+it}, v{vRank}")
    tb = o.get("k2_touchb")
    ntb = 0
    nobar = fused and o.get("nobar", 0)
    if not nobar:
        A.c("counters and pad keys of every wave are in place, every record load of the workgroup is under way")
        A("s_waitcnt lgkmcnt(0)")
        A("s_barrier")
    A.c("a wave with more records than one window raises the number of rounds")
    A(f"s_cmp_le_u32 s{sTot}, {WIN}\ns_cbranch_scc1 L_k2_one")
    A(f"v_mov_b32 v{vx}, s{sTot}")
    A("s_mov_b64 exec, 1")
    A(f"ds_max_u32 v{vM}, v{vx}")
    A("s_mov_b64 exec, -1")
    A("L_k2_one:")
    if wpos == 1:
        A(f"v_lshlrev_b32 v{vD+4}, 4, v{vLane}")
        wdma(vD+4); ntb += 4
    def touch_b():
        nonlocal ntb, tpos
        A.c("pull the first rows of x into this XCD's L2 behind the record loads")
        A(f"v_lshlrev_b32 v{vD+5}, 7, v{vLane}")
        A(f"s_lshr_b32 s34, s2, 3\ns_mul_i32 s34, s34, {NW}\ns_add_u32 s34, s34, s{sWave}")
        ntb += touch_x(A, tb, 34, 17, vD+5, vD+6, SX, NW, sRot, tpos)
        tpos += sum(tb[1:]) * 128 * NW * 32
        if o.get("k2_mall") == 2: mall_touch(tpos); ntb += 1
    if tb and not nobar: touch_b()
    late_touch = []
    if tb and nobar:
        n0 = len(A.L); keep = ntb
        touch_b(); ntb = keep
        lines = [l.replace("s17", "s44") for l in A.L[n0:]]; del A.L[n0:]
        k = next(i for i, l in enumerate(lines) if "exec" in l)
        A.L += lines[:k]; late_touch = lines[k:]
    for it in range(NIT):
        if it < NIT-1: A(f"s_waitcnt vmcnt({NIT-2-it+ntb})")
        else: A(f"s_cmp_le_i32 s{sRem}, {64*(NIT-1)}\ns_cbranch_scc1 L_k2_skip4a")
        if it == 0: st.mark("rec0")
        A(f"v_and_b32 v{vBin+it}, 0xfc, v{vR+4*it+2}")
        A(f"s_mov_b64 exec, s[{sMask+2*it}:{sMask+2*it+1}]")
        A(f"ds_add_rtn_u32 v{vRank+it}, v{vBin+it}, v{vOne} offset:{L_CNT}")
        A("s_mov_b64 exec, -1")
    A("L_k2_skip4a:")
    A.L += late_touch
    A("s_waitcnt lgkmcnt(0)")
    A("s_barrier")
    st.mark("ranked")
    A(f"ds_read_b32 v{vc}, v{vPos} offset:{L_CNT}")
    A(f"ds_read_b32 v{vM}, v{vM}")
    if wpos in (3, 4):
        A(f"s_cmp_lg_u32 s{sRound}, 0\ns_cbranch_scc1 L_k2_now")
        A(f"v_lshlrev_b32 v{vD+4}, 4, v{vLane}")
        wdma(vD+4)
        A("L_k2_now:")
    nt = 0
    touch = o.get("k2_touch")
    if touch:
        A.c("pull rows of x into this XCD's L2 while the records are being placed")
        A(f"v_lshlrev_b32 v{vD+5}, 7, v{vLane}")
        A(f"s_lshr_b32 s34, s2, 3\ns_mul_i32 s34, s34, {NW}\ns_add_u32 s34, s34, s{sWave}")
        nt = touch_x(A, touch, 34, 17, vD+5, vD+6, SX, NW, sRot, tpos)
        assert nt <= 1
    if o.get("k2_mall") == 1: mall_touch(tall)
    A(f"s_lshl_b32 s19, s{sGrp}, 2")
    A("s_waitcnt lgkmcnt(1)")
    A(f"v_and_b32_dpp v{vx}, v{vc}, v{vm1} quad_perm:[0,0,1,2] row_mask:0xf bank_mask:0xf")
    A(f"v_add_u32 v{vs}, v{vc}, v{vx}")
    A(f"v_and_b32_dpp v{vx}, v{vs}, v{vm2} quad_perm:[0,0,0,1] row_mask:0xf bank_mask:0xf")
    A(f"v_add_u32 v{vs}, v{vs}, v{vx}")
    A(f"v_mov_b32_dpp v{vtq}, v{vs} quad_perm:[3,3,3,3] row_mask:0xf bank_mask:0xf")
    A(f"v_add_u32 v{vx}, 127, v{vtq}\nv_and_b32 v{vx}, 0xffffff80, v{vx}")
    A(f"v_sub_u32 v{vs}, v{vs}, v{vc}")
    A(f"v_sub_u32 v{vs}, v{vs}, v{vx}")
    sq = scan_steps("v_add_u32", vx, first=4)
    A(f"v_mov_b32 v{vc}, v{vx}")
    A(sq[0])
    A(f"v_readlane_b32 s{sN}, v{vtq}, s19")
    for s_ in sq[1:]: A(s_)
    A(f"v_add_u32 v{vs}, v{vs}, v{vx}")
    A(f"v_sub_u32 v{vc}, v{vx}, v{vc}")
    A(f"s_cmp_le_i32 s{sRem}, {64*(NIT-1)}\ns_cbranch_scc1 L_k2_skip4c")
    A(f"ds_bpermute_b32 v{vBin+NIT-1}, v{vBin+NIT-1}, v{vs}")
    A("L_k2_skip4c:")
    for it in range(NIT-1): A(f"ds_bpermute_b32 v{vBin+it}, v{vBin+it}, v{vs}")
    A(f"v_readlane_b32 s17, v{vc}, s19")
    A(f"s_cmp_lg_u32 s{sRound}, 0\ns_cbranch_scc1 L_k2_havernd")
    A(f"s_waitcnt lgkmcnt({NIT-1})")
    A(f"v_readfirstlane_b32 s{sRnd}, v{vM}")
    A("L_k2_havernd:")
    A.c("LDS addresses of this wave's slots (counts and starts are in units of 4 bytes)")
    A(f"v_add_u32 v{vKA}, s17, v{vKA}")
    A(f"v_add_u32 v{vK2A}, s17, v{vK2A}")
    A(f"s_movk_i32 s19, {L_COEF}")
    A(f"v_lshl_add_u32 v{vCA}, v{vK2A}, 1, s19")
    A(f"s_lshr_b32 s{sN}, s{sN}, 2")
    A(f"s_add_u32 s17, s{sN}, 31\ns_lshr_b32 s17, s17, 5")
    prio = o.get("prio", [3, 2, 1])
    frac = o.get("frac")
    np_ = len(prio) if prio else 0
    for k in range(1, np_):
        t = (sT1, sT2, sT3)[k-1]
        f = int(256 * (frac[k-1] if frac else k / np_) + 0.999)
        A(f"s_mul_i32 s{t}, s17, {f}\ns_add_u32 s{t}, s{t}, 128\ns_lshr_b32 s{t}, s{t}, 8")
    for it in range(NIT):
        p = vBin + it
        if it == NIT-1: A(f"s_cmp_le_i32 s{sRem}, {64*(NIT-1)}\ns_cbranch_scc1 L_k2_skip4b")
        if it < NIT-1: A(f"s_waitcnt lgkmcnt({NIT-2-it + 2*it})")
        A(f"v_add_u32 v{p}, v{p}, v{vRank+it}")
        A(f"ds_write_b32 v{p}, v{vR+4*it+2} offset:{L_KEY}")
        A(f"v_lshlrev_b32 v{vRank+it}, 1, v{p}")
        A(f"ds_write_b64 v{vRank+it}, v[{vR+4*it}:{vR+4*it+1}] offset:{L_COEF}")
    A("L_k2_skip4b:")
    younger = (ntb - 4 if wpos == 1 else 0) + nt + (1 if o.get("k2_mall") == 1 else 0)
    A(f"s_waitcnt vmcnt({younger}) lgkmcnt(0)" if wpos in (1, 3) else "s_waitcnt lgkmcnt(0)")
    A("s_barrier")
    st.mark("sorted")
    def rd_keys():
        for q in range(4):
            A(f"ds_read2_b32 v[{vK+2*q}:{vK+2*q+1}], v{vKA} offset0:{L_KEY//4+8*q} offset1:{L_KEY//4+8*q+4}")
        A(f"ds_read2_b32 v[{vK2}:{vK2+1}], v{vK2A} offset0:{L_KEY//4} offset1:{L_KEY//4+16}")
        A(f"v_add_u32 v{vKA}, 128, v{vKA}\nv_add_u32 v{vK2A}, 128, v{vK2A}")
    def addr():
        for i in range(8): A(f"v_and_or_b32 v{vK+i}, v{vK+i}, s{sRowM}, v{vOff}")
        for u in range(2):
            A(f"v_bfe_i32 v{vK2+u}, v{vK2+u}, v{vSh}, 1")
            A(f"v_and_b32 v{vK2+u}, v{vK2+u}, v{vCA}")
        A(f"v_add_u32 v{vCA}, 256, v{vCA}")
    def rd_coef():
        A(f"ds_read_b64_tr_b16 v[{vAF}:{vAF+1}], v{vK2}")
        A(f"ds_read_b64_tr_b16 v[{vAF+2}:{vAF+3}], v{vK2+1} offset:128")
    gf = o.get("gather_flags", "")
    def load(h, i):
        d = vD + h*32 + i*4
        A(f"buffer_load_dwordx4 v[{d}:{d+3}], v{vK+i}, s[{SX}:{SX+3}], 0 offen offset:{h*256} {gf}")
    def loads(h):
        for i in range(8): load(h, i)
    def loads_part(h, tag, wait):
        for i in range(8):
            if i: A(f"s_cmp_le_i32 s{sRem}, {4*i}\ns_cbranch_scc1 L_{tag}_{i}")
            load(h, i)
        if wait:
            A(f"s_waitcnt vmcnt(8)\ns_branch L_{tag}_done")
            for i in range(1, 8):
                A(f"L_{tag}_{i}:\ns_waitcnt vmcnt({i})")
                if i < 7: A(f"s_branch L_{tag}_done")
            A(f"L_{tag}_done:")
        else:
            for i in range(1, 8): A(f"L_{tag}_{i}:")
    def comp(h, lgkm=False, filler=None, filler0=None):
        if o.get("diag_nocomp"):
            if lgkm: A("s_waitcnt lgkmcnt(0)")
            if filler0: filler0()
            if filler: filler()
            return
        def mf(g):
            t = vT + (g % 4)*4
            c = vC + (h*8 + g)*4
            A(f"v_mfma_f32_16x16x32_bf16 v[{c}:{c+3}], v[{vAF}:{vAF+3}], v[{t}:{t+3}], v[{c}:{c+3}]")
        for g in range(8):
            u, par = g >> 1, g & 1
            t = vT + (g % 4)*4
            for q in range(4):
                a = vD + h*32 + (2*q)*4 + u
                b = vD + h*32 + (2*q+1)*4 + u
                A(f"v_perm_b32 v{t+q}, v{b}, v{a}, s{sP0+par}")
            if lgkm and g == 1: A("s_waitcnt lgkmcnt(0)")
            if g == 7 and filler0: filler0()
            if g: mf(g-1)
        if filler: filler()
        mf(7)
    vH, vSW, vGA, vWB, vO, vFl = vK, vK+1, vK+2, vK+3, vK+4, vK+5
    vY0 = vKA
    sS, sOut = 41, 42
    assert o.get("gshift", 0) % 4 == 0
    def epi_consts():
        g, n = vK+6, vK+7
        A.c("waves 4q..4q+3 share a tile of nodes; once all four have staged their sums, wave 4q+s multiplies component s")
        A(f"s_and_b32 s{sS}, s{sWave}, 3\ns_and_b32 s40, s{sGrp}, 12")
        A(f"v_lshrrev_b32 v{g}, 4, v{vLane}\nv_and_b32 v{n}, 15, v{vLane}")
        A(f"v_bfe_u32 v{vH}, v{vLane}, 3, 1\nv_cvt_f32_u32 v{vH}, v{vH}")
        A.c("staging rows: four for each of groups 0..3, three for the others")
        A(f"s_min_u32 s17, s{sGrp}, 4\ns_mul_i32 s19, s{sGrp}, 3\ns_add_u32 s17, s17, s19")
        A(f"s_mul_i32 s17, s17, {SNODE}\ns_add_u32 s17, s17, {L_STG}\ns_movk_i32 s19, {SNODE}")
        A(f"v_lshl_add_u32 v{vSW}, v{n}, 4, s17")
        A(f"v_mad_u32_u24 v{vSW}, v{g}, s19, v{vSW}")
        A(f"s_min_u32 s17, s40, 4\ns_mul_i32 s46, s40, 3\ns_add_u32 s17, s17, s46")
        A(f"s_mul_i32 s17, s17, {SNODE}\ns_add_u32 s17, s17, {L_STG}")
        A(f"v_lshl_add_u32 v{vGA}, v{g}, 4, s17")
        A(f"v_mad_u32_u24 v{vGA}, v{n}, s19, v{vGA}")
        A(f"s_cmp_eq_u32 s40, 0\ns_cselect_b32 s19, 0, {-SNODE}")
        A(f"v_lshrrev_b32 v{vO}, 2, v{n}\nv_mad_i32_i24 v{vGA}, v{vO}, s19, v{vGA}")
        A.c("block p of component s sits in slot (k, high); one byte per s, in units of 128 bytes")
        ent = {0: [(0,0),(2,0),(3,0),(4,0)], 1: [(2,1),(0,1),(1,0),(1,1)], 2: [(0,0),(5,1),(4,1),(3,1)]}
        A(f"s_lshl_b32 s19, s{sS}, 3")
        for p in range(3):
            c = sum((2*k + h) << (8*i) for i, (k, h) in enumerate(ent[p]))
            A(f"s_lshr_b32 s17, {c:#x}, s19\ns_and_b32 s17, s17, 0xff\ns_lshl_b32 s17, s17, 7")
            A(f"v_add_u32 v{vY0+p}, s17, v{vGA}")
        A(f"s_min_u32 s17, s{sS}, 1\ns_lshl_b32 s17, s17, 14\ns_add_u32 s17, s17, {L_W}")
        A(f"v_lshl_add_u32 v{vWB}, v{vLane}, 4, s17")
        A(f"s_lshl_b32 s17, s40, 10\ns_add_u32 s17, s17, {L_GATE}")
        A(f"v_lshl_add_u32 v{vGA}, v{vLane}, 4, s17")
        A(f"s_lshl_b32 s17, s40, 1\ns_add_u32 s17, s17, {L_FLAG}\nv_mov_b32 v{vFl}, s17")
        A.c("output row = bucket + 256*(first group + g + 12r); rows past the last node fall outside the descriptor")
        A(f"v_lshlrev_b32 v{vO}, 17, v{g}\nv_lshl_add_u32 v{vO}, v{n}, 3, v{vO}")
        A(f"s_lshl_b32 s{sOut}, s40, 17\ns_lshl_b32 s17, s{2 if o.get('bid') == 2 else sB}, 9\ns_add_u32 s{sOut}, s{sOut}, s17")
        A(f"s_lshl_b32 s17, s{sS}, 7\ns_add_u32 s{sOut}, s{sOut}, s17")
        for r in range(1, 4): A(f"s_add_u32 s{sOut+r}, s{sOut}, {r*12 << 17}")
        A(f"s_cmp_lt_u32 s{sGrp}, 4\ns_cselect_b32 s46, -1, 0xffff")
        if wpos == 4: A(f"s_add_u32 s47, s{sRound}, 1\ns_mul_i32 s47, s47, {WIN}")
    if prio: A(f"s_setprio {prio[0]}")
    rd_keys()
    A(f"s_mov_b32 s{sRem}, s{sN}\ns_mov_b32 s{sStep}, 1")
    A(f"s_cmp_ge_u32 s{sN}, 32\ns_cbranch_scc1 L_k2_full")
    A.c("fewer than 32 edges: the row registers that no load fills must not hold NaN patterns")
    A("s_waitcnt vmcnt(0) lgkmcnt(0)")
    for i in range(64): A(f"v_mov_b32 v{vD+i}, 0")
    addr()
    rd_coef()
    A(f"s_cmp_eq_u32 s{sN}, 0\ns_cbranch_scc1 L_k2_last")
    loads_part(0, "p0", False)
    loads_part(1, "p1", False)
    A("s_branch L_k2_last")
    A("L_k2_full:")
    A("s_waitcnt lgkmcnt(0)")
    addr()
    rd_coef()
    loads(0); loads(1)
    rd_keys()
    A(f"s_sub_u32 s{sRem}, s{sRem}, 32")
    A(f"s_cmp_lt_i32 s{sRem}, 32\ns_cbranch_scc1 L_k2_tail")
    A(".p2align 3")
    A("L_k2_loop:")
    if np_ > 1:
        for k in range(1, np_):
            t = (sT1, sT2, sT3)[k-1]
            A(f"s_cmp_lg_u32 s{sStep}, s{t}\ns_cbranch_scc1 L_k2_pr{k}\ns_setprio {prio[k]}\nL_k2_pr{k}:")
        A(f"s_add_u32 s{sStep}, s{sStep}, 1")
    assert wpos != 4
    if o.get("addr_early", 1):
        A("s_waitcnt lgkmcnt(0)")
        addr()
        for h in range(2):
            A("s_waitcnt vmcnt(8)")
            comp(h, False, lambda: load(h, 1), lambda: load(h, 0))
            for i in range(2, 8): load(h, i)
    else:
        A("s_waitcnt vmcnt(8)")
        comp(0, True, addr)
        loads(0)
        A("s_waitcnt vmcnt(8)")
        comp(1, False, lambda: load(1, 0))
        for i in range(1, 8): load(1, i)
    rd_coef()
    rd_keys()
    A(f"s_sub_u32 s{sRem}, s{sRem}, 32")
    A(f"s_cmp_ge_i32 s{sRem}, 32\ns_cbranch_scc1 L_k2_loop")
    A("L_k2_tail:")
    if prio: A(f"s_setprio {prio[-1]}")
    A(f"s_cmp_le_i32 s{sRem}, 0\ns_cbranch_scc1 L_k2_last")
    if o.get("addr_early", 1):
        A("s_waitcnt lgkmcnt(0)")
        addr()
        A("s_waitcnt vmcnt(8)")
        comp(0)
    else:
        A("s_waitcnt vmcnt(8)")
        comp(0, True, addr)
    loads_part(0, "t0", True)
    comp(1)
    loads_part(1, "t1", False)
    rd_coef()
    A("L_k2_last:")
    A("s_waitcnt lgkmcnt(0)")
    epi_consts()
    if o.get("lastsplit", 1):
        A.c("both halves of the last step have the same number of loads: wait for the first half only")
        A(f"s_add_u32 s17, s{sN}, 31\ns_and_b32 s17, s17, 31")
        for i in range(1, 8): A(f"s_cmp_lt_u32 s17, {4*i}\ns_cbranch_scc1 L_lw{i}")
        A("s_waitcnt vmcnt(8)\ns_branch L_lw0")
        for i in range(1, 8):
            A(f"L_lw{i}:\ns_waitcnt vmcnt({i})")
            if i < 7: A("s_branch L_lw0")
        A("L_lw0:")
    else: A("s_waitcnt vmcnt(0)")
    if wpos == 4:
        A.c("this wave's share of the weights has landed; they are read once all twelve waves have said so")
        A(f"v_mov_b32 v{vK+6}, {L_FLAG+32}\nv_mov_b32 v{vK+7}, 1")
        A(f"s_cmp_lg_u32 s{sSaid}, 0\ns_cbranch_scc1 L_k2_said")
        A(f"s_mov_b64 exec, 1\nds_add_u32 v{vK+6}, v{vK+7}\ns_mov_b64 exec, -1\ns_mov_b32 s{sSaid}, 1")
        A("L_k2_said:")
        A(f"ds_read_b32 v{vK+7}, v{vK+6}")
    comp(0)
    if wpos == 4:
        A("L_k2_wait0:")
        A("s_waitcnt lgkmcnt(0)")
        A(f"v_readfirstlane_b32 s17, v{vK+7}")
        A(f"s_cmp_ge_u32 s17, {NW}\ns_cbranch_scc1 L_k2_go0")
        A(f"s_cmp_lt_u32 s47, s{sRnd}\ns_cbranch_scc1 L_k2_go0")
        A(f"s_sleep 1\nds_read_b32 v{vK+7}, v{vK+6}\ns_branch L_k2_wait0")
        A("L_k2_go0:")
    vPk = vT + 4
    wreg = [vD + 4*n for n in range(16)] + [vC + 40 + 4*n for n in range(6)] + [vAF, vT + 12]
    jobs = [(kk, t) for kk in range(6) for t in range(4)]
    def rdw(n):
        A(f"ds_read_b128 v[{wreg[n]}:{wreg[n]+3}], v{vWB} offset:{n*1024}")
    for n in range(8): rdw(n)
    if o.get("lastsplit", 1): A("s_waitcnt vmcnt(0)")
    comp(1)
    eprio = o.get("eprio", 0)
    if prio: A(f"s_setprio {eprio}")
    st.mark("loopend")
    A(f"s_add_u32 s{sRound}, s{sRound}, 1")
    A(f"s_mul_i32 s17, s{sRound}, {WIN}")
    A(f"s_cmp_ge_u32 s17, s{sRnd}\ns_cbranch_scc1 L_k2_epi")
    A.c("rare: a wave found more records than one window holds; sort and gather the next window")
    A("s_waitcnt vmcnt(0) lgkmcnt(0)")
    A("s_barrier")
    A(f"v_mov_b32 v{vOf}, v7\nv_mov_b32 v{vD+1}, v0")
    A(f"s_lshl_b32 s17, s{sWave}, 6\nv_add_u32 v0, s17, v{vLane}")
    A(f"v_lshlrev_b32 v7, 4, v{vLane}")
    lds_init(); round_pre()
    A(f"s_mov_b32 exec_lo, 0xffff\ns_mov_b32 exec_hi, 0")
    A(f"ds_write_b128 v7, v[{vz+4}:{vz+7}] offset:{L_CNT}")
    A("s_mov_b64 exec, -1")
    A("s_waitcnt lgkmcnt(0)")
    A("s_barrier")
    A("s_branch L_k2_round")
    A("L_k2_epi:")
    if o.get("diag_noepi"):
        if st.on: st.mark("issued")
        st.flush(14, sWave, vT, 48)
        A("s_endpgm")
        st.on = False
    U = lambda jj, a: vC + jj*4 + a
    V = lambda jj, a: vC + (8+jj)*4 + a
    ror = "row_ror:8 row_mask:0xf bank_mask:0xf"
    srcs = [lambda jj: U(jj,0), lambda jj: V(jj,0), lambda jj: U(jj,1), lambda jj: U(jj,2), lambda jj: U(jj,3), lambda jj: V(jj,2)]
    npk = [0]
    def pack(k):
        r = vPk + 4*(npk[0] % 2); npk[0] += 1
        for q in range(4): A(f"v_cvt_pk_bf16_f32 v{r+q}, v{srcs[k](2*q)}, v{srcs[k](2*q+1)}")
        A(f"ds_write_b128 v{vSW}, v[{r}:{r+3}] offset:{k*SPITCH}")
    wre = o.get("wre", 1)
    if wre:
        for n in range(8, 16): rdw(n)
    A.c("groups with three nodes own three staging rows: their fourth lane group does not write")
    A("s_mov_b32 exec_hi, s46")
    pack(0); pack(1)
    for jj in range(8):
        t0, t1 = vT + 2*(jj & 1), vT + 1 + 2*(jj & 1)
        A(f"v_add_f32_dpp v{t0}, v{V(jj,2)}, v{V(jj,3)} {ror}")
        A(f"v_sub_f32_dpp v{t1}, v{V(jj,1)}, v{U(jj,2)} {ror}")
        A(f"v_subrev_f32_dpp v{V(jj,2)}, v{V(jj,3)}, v{V(jj,2)} {ror}")
        A(f"v_fma_f32 v{U(jj,1)}, v{t0}, v{vH}, v{U(jj,1)}")
        A(f"v_fma_f32 v{U(jj,3)}, -v{V(jj,1)}, v{vH}, v{U(jj,3)}")
        A(f"v_cndmask_b32 v{U(jj,2)}, v{U(jj,2)}, v{t1}, s[{sH}:{sH+1}]")
    for k in (2, 3, 4, 5): pack(k)
    vS = vC
    vY = vC + 24
    vG = vD
    vF1, vF2 = vT, vT + 1
    A(f"v_mov_b32 v{vF1}, 1")
    A.c("LDS serves a wave's requests in order: the count goes up after the six writes")
    A("s_mov_b64 exec, 1")
    A(f"ds_add_u32 v{vFl}, v{vF1}")
    A("s_mov_b64 exec, -1")
    st.mark("staged")
    if not wre:
        for n in range(8, 24): rdw(n)
    A(f"s_mov_b32 s19, 0xbfb8aa3b\ns_mov_b32 s18, s19")
    A("L_k2_wait1:")
    A(f"ds_read_b32 v{vF2}, v{vFl}")
    for kk in range(6): A(f"ds_read_b128 v[{vS+4*kk}:{vS+4*kk+3}], v{vY0+kk//2} offset:{64*(kk & 1)}")
    A("s_waitcnt lgkmcnt(6)")
    A(f"v_readfirstlane_b32 s17, v{vF2}")
    A("s_cmp_ge_u32 s17, 4\ns_cbranch_scc1 L_k2_go1")
    if o.get("spin_light", 1):
        if o.get("tight", 1):
            A.c("the last four waves have the CU to themselves and ask again at once")
            A(f"s_waitcnt lgkmcnt(0)\ns_cmp_ge_u32 s{sWave}, 8\ns_cbranch_scc1 L_k2_wait1")
        A("L_k2_spin1:")
        A(f"s_sleep 1\nds_read_b32 v{vF2}, v{vFl}\ns_waitcnt lgkmcnt(0)\nv_readfirstlane_b32 s17, v{vF2}")
        A("s_cmp_ge_u32 s17, 4\ns_cbranch_scc0 L_k2_spin1\ns_branch L_k2_wait1")
    else: A("s_waitcnt lgkmcnt(0)\ns_sleep 1\ns_branch L_k2_wait1")
    A("L_k2_go1:")
    if o.get("estamps"): st.mark("go1")
    of = o.get("out_flags", "sc1")
    nfin = [0]
    def finish():
        of2 = o.get("out_flags_early")
        for r in range(4):
            A(f"v_cvt_pk_bf16_f32 v{vD+16+2*r}, v{vY+r}, v{vY+4+r}\nv_cvt_pk_bf16_f32 v{vD+17+2*r}, v{vY+8+r}, v{vY+12+r}")
            if of2 is None: A(f"buffer_store_dwordx2 v[{vD+16+2*r}:{vD+17+2*r}], v{vO}, s[{SOUT}:{SOUT+3}], s{sOut+r} offen {of}")
        if of2 is not None:
            k = nfin[0]; nfin[0] += 1
            A(f"s_cmp_ge_u32 s{sWave}, 8\ns_cbranch_scc1 L_k2_fa{k}")
            for r in range(4): A(f"buffer_store_dwordx2 v[{vD+16+2*r}:{vD+17+2*r}], v{vO}, s[{SOUT}:{SOUT+3}], s{sOut+r} offen {of2}")
            A(f"s_branch L_k2_fb{k}\nL_k2_fa{k}:")
            for r in range(4): A(f"buffer_store_dwordx2 v[{vD+16+2*r}:{vD+17+2*r}], v{vO}, s[{SOUT}:{SOUT+3}], s{sOut+r} offen {of}")
            A(f"L_k2_fb{k}:")
    def mm(kk, t):
        r, acc = wreg[4*kk + t], vY + 4*t
        cin = "0" if kk == 0 else f"v[{acc}:{acc+3}]"
        A(f"v_mfma_f32_16x16x32_bf16 v[{acc}:{acc+3}], v[{vS+4*kk}:{vS+4*kk+3}], v[{r}:{r+3}], {cin}")
    A(f"s_cmp_eq_u32 s{sS}, 0\ns_cbranch_scc1 L_k2_x")
    if wre:
        for n in range(16, 24): rdw(n)
    for kk in range(6):
        A(f"s_waitcnt lgkmcnt({(13-kk if kk < 4 else 4 if kk == 4 else 0) if wre else 5-kk})")
        for t in range(4): mm(kk, t)
    if o.get("estamps"): st.mark("mm")
    A.c("vector outputs: the gates of this node tile")
    A("L_k2_wait2:")
    A(f"ds_read_b32 v{vF2}, v{vFl} offset:4")
    for t in range(4): A(f"ds_read_b128 v[{vG+4*t}:{vG+4*t+3}], v{vGA} offset:{1024*t}")
    A("s_waitcnt lgkmcnt(4)")
    A(f"v_readfirstlane_b32 s17, v{vF2}")
    A("s_cmp_lg_u32 s17, 0\ns_cbranch_scc1 L_k2_go2")
    if o.get("spin_light", 1):
        if o.get("tight", 1): A(f"s_waitcnt lgkmcnt(0)\ns_cmp_ge_u32 s{sWave}, 8\ns_cbranch_scc1 L_k2_wait2")
        A("L_k2_spin2:")
        A(f"s_sleep 1\nds_read_b32 v{vF2}, v{vFl} offset:4\ns_waitcnt lgkmcnt(0)\nv_readfirstlane_b32 s17, v{vF2}")
        A("s_cmp_lg_u32 s17, 0\ns_cbranch_scc0 L_k2_spin2\ns_branch L_k2_wait2")
    else: A("s_waitcnt lgkmcnt(0)\ns_branch L_k2_wait2")
    A("L_k2_go2:")
    if o.get("estamps"): st.mark("go2")
    for t in range(4):
        A(f"s_waitcnt lgkmcnt({3-t})")
        for r in (0, 2): A(f"v_pk_mul_f32 v[{vY+4*t+r}:{vY+4*t+r+1}], v[{vG+4*t+r}:{vG+4*t+r+1}], v[{vY+4*t+r}:{vY+4*t+r+1}]")
    finish()
    A("s_branch L_k2_fin")
    A("L_k2_x:")
    A.c("scalar output and the gates, tile by tile behind the matrix instructions")
    vG = vC + 40
    def sig(t):
        if o.get("pksig", 1):
            g, y = vG + 4*t, vY + 4*t
            return ([f"v_pk_mul_f32 v[{g+r}:{g+r+1}], v[{y+r}:{y+r+1}], s[18:19]" for r in (0, 2)]
                    + [f"v_exp_f32 v{g+r}, v{g+r}" for r in range(4)]
                    + [f"v_pk_add_f32 v[{g+r}:{g+r+1}], v[{g+r}:{g+r+1}], 1.0 op_sel_hi:[1,0]" for r in (0, 2)]
                    + [f"v_rcp_f32 v{g+r}, v{g+r}" for r in range(4)]
                    + ["s_nop 0", f"ds_write_b128 v{vGA}, v[{g}:{g+3}] offset:{1024*t}"])
        return ([f"v_mul_f32 v{vG+4*t+r}, s19, v{vY+4*t+r}" for r in range(4)] + [f"v_exp_f32 v{vG+4*t+r}, v{vG+4*t+r}" for r in range(4)]
                + [f"v_add_f32 v{vG+4*t+r}, 1.0, v{vG+4*t+r}" for r in range(4)] + [f"v_rcp_f32 v{vG+4*t+r}, v{vG+4*t+r}" for r in range(4)]
                + ["s_nop 0", f"ds_write_b128 v{vGA}, v[{vG+4*t}:{vG+4*t+3}] offset:{1024*t}"])
    if o.get("estamps"): st.n -= 2; st.names = st.names[:-2]
    A("s_waitcnt lgkmcnt(0)")
    for kk in range(4): mm(kk, 0)
    for kk in range(4): mm(kk, 1)
    pend = sig(0) + sig(1)
    for t in (2, 3):
        for kk in range(4):
            mm(kk, t)
            if t == 3 or kk >= 2:
                for _ in range(2): A(pend.pop(0))
    if o.get("estamps"): st.mark("mm")
    for l in pend + sig(2) + sig(3): A(l)
    if o.get("estamps"): st.mark("go2")
    A("s_mov_b64 exec, 1")
    A(f"ds_write_b32 v{vFl}, v{vF1} offset:4")
    A("s_mov_b64 exec, -1")
    finish()
    A("L_k2_fin:")
    if st.on:
        st.mark("issued")
        A("s_waitcnt vmcnt(0)")
    st.flush(14, sWave, vT, 48)
    A("L_k2_end:")
    A("s_endpgm")
    return A.finish(o.get("verbose")), L_END, NV, 102 if o.get("stamps") or o.get("diag_jitter") else 80 if fused else 76, st.names

def gen_agg(name, want, encode=None, nws=(10, 12)):
    A = Asm()
    A(f".globl {name}\n.p2align 8\n.type {name},@function\n{name}:")
    A("s_cmp_ge_u32 s2, 1\ns_cbranch_scc1 L_agg_end")
    A("s_load_dwordx4 s[4:7], s[0:1], 80")
    A("v_lshlrev_b32 v1, 2, v0\nv_mov_b32 v2, 0\nds_write_b32 v1, v2")
    A("v_lshlrev_b32 v3, 10, v0")
    A("s_waitcnt lgkmcnt(0)\ns_barrier")
    srd(A, 8, 6, 7, 0x10000000); srd(A, 12, 4, 5, 256)
    for n, (kid, idx, how) in enumerate(want):
        A(f"s_mov_b32 s16, {WS_STAMP + kid*(1 << 20) + 4*idx}")
        for w in range(nws[kid]): A(f"buffer_load_dword v{10+w}, v3, s[8:11], s16 offen offset:{64*w}")
        A("s_waitcnt vmcnt(0)")
        for w in range(nws[kid]):
            if how == "min": A(f"v_not_b32 v{10+w}, v{10+w}")
            A(f"ds_max_u32 v2, v{10+w} offset:{4*n}")
    A("s_waitcnt lgkmcnt(0)\ns_barrier")
    A("ds_read_b32 v4, v1\nds_read_b32 v5, v2\ns_waitcnt lgkmcnt(0)")
    A("v_not_b32 v5, v5")
    mins = sum(1 << n for n, w in enumerate(want) if w[2] == "min")
    A(f"s_mov_b32 s20, {mins}\ns_mov_b32 s21, 0\nv_not_b32 v6, v4\nv_cndmask_b32 v4, v4, v6, s[20:21]")
    A("v_sub_u32 v4, v4, v5")
    if encode is not None:
        A("v_readfirstlane_b32 s23, v0\ns_cmp_lg_u32 s23, 0\ns_cbranch_scc1 L_agg_end")
        A(f"s_nop 1\nv_readlane_b32 s22, v4, {len(want)-1}")
        A(f"s_min_u32 s22, s22, 60000\ns_mul_i32 s22, s22, {encode}")
        A("s_memrealtime s[24:25]\ns_waitcnt lgkmcnt(0)")
        A("L_agg_spin:\ns_memrealtime s[26:27]\ns_waitcnt lgkmcnt(0)\ns_sub_u32 s26, s26, s24\ns_cmp_lt_u32 s26, s22\ns_cbranch_scc1 L_agg_spin")
    A(f"s_mov_b32 exec_lo, {(1 << len(want)) - 1}\ns_mov_b32 exec_hi, 0")
    A("s_cmp_lg_u32 0, 0")
    A("v_cmp_gt_u32 vcc, 16, v0\ns_and_b64 exec, exec, vcc\ns_cbranch_execz L_agg_end")
    A("buffer_store_dword v4, v1, s[12:15], 0 offen")
    A("L_agg_end:\ns_endpgm")
    return A.finish()

HEADER = """; Equivariant tensor-product message passing, N=10000 nodes, E=640000 edges, C=64.
; Launch 1 sorts every chunk of 2500 edges by bucket (dst & 255) into d_ws.
; Kernarg: x 0, rhat 8, e_attr 16, src 24, dst 32, w_rad 40, w_si0 48, w_si1 56, cg_eps 64, out 72, debug 80, ws 88
"""
HEADER_F = """; Equivariant tensor-product message passing, N=10000 nodes, E=640000 edges, C=64.
;  1. every workgroup sorts its chunk of 2500 edges by bucket (dst & 255 = workgroup) and writes the records through to d_ws;
; Kernarg: x 0, rhat 8, e_attr 16, src 24, dst 32, w_rad 40, w_si0 48, w_si1 56, cg_eps 64, out 72, debug 80, ws 88
"""
DEFAULTS = {"out_flags": "nt", "prio": [2, 1], "k2_touch0": None, "k2_touchb": ("l2", 14), "gshift": 4, "frac": [0.35], "rot": 1, "k1_touch": False, "fused": 1, "f_tag": 1, "f_sleep": 2, "f_late": 1, "bid": 2}
def build(o=None):
    o = dict(DEFAULTS, **(o or {}))
    n1, n2 = "tp_sort_kernel", "tp_gather_kernel"
    if o.get("fused"):
        n = "gather_scatter__tensor_product_equiv_equiformer__graph_kernel"
        t2, lds2, v2, s2, names2 = gen_k2(n, o)
        if o.get("agg"):
            want = [(1, names2.index(nm), h) for nm, h in o["agg"]]
            txt = HEADER_F + f"; @launch kernel={n} grid=({NWG},1,1) block=({NW*64},1,1) lds={lds2}\n"
            txt += "; @launch kernel=tp_agg_kernel grid=(1,1,1) block=(256,1,1) lds=1024\n"
            txt += '.amdgcn_target "amdgcn-amd-amdhsa--gfx950"\n.text\n' + t2 + gen_agg("tp_agg_kernel", want, o.get("encode"))
            txt += '.section .rodata,"a"\n' + kd(n, v2, s2) + kd("tp_agg_kernel", 32, 32)
            return txt, None
        txt = HEADER_F + f"; @launch grid=({NWG},1,1) block=({NW*64},1,1) lds={lds2}\n"
        txt += '.amdgcn_target "amdgcn-amd-amdhsa--gfx950"\n.text\n' + t2 + '.section .rodata,"a"\n' + kd(n, v2, s2)
        return txt, [(n, lds2, v2, names2, NW)]
    o["k2name"] = n2
    t1, lds1, v1, s1, names1 = gen_k1(n1, o)
    t2, lds2, v2, s2, names2 = gen_k2(n2, o)
    txt = HEADER
    empty = "; @launch kernel=tp_empty_kernel grid=(1,1,1) block=(64,1,1) lds=0\n"
    txt += empty * o.get("empty_pre", 0)
    txt += f"; @launch kernel={n1} grid=({NWG},1,1) block=(704,1,1) lds={lds1}\n" * o.get("k1_times", 1)
    txt += f"; @launch kernel={n2} grid=({NWG},1,1) block=({NW*64},1,1) lds={lds2}\n" * o.get("k2_times", 1)
    txt += empty * o.get("empty_post", 0)
    if o.get("agg"): txt += "; @launch kernel=tp_agg_kernel grid=(1,1,1) block=(256,1,1) lds=1024\n"
    txt += '.amdgcn_target "amdgcn-amd-amdhsa--gfx950"\n.text\n'
    txt += t1 + t2
    if o.get("agg"):
        nm = [names1, names2]
        want = [(k, nm[k].index(n), h) for k, n, h in o["agg"]]
        txt += gen_agg("tp_agg_kernel", want, o.get("encode"))
    em = o.get("empty_pre") or o.get("empty_post")
    if em: txt += ".globl tp_empty_kernel\n.p2align 8\n.type tp_empty_kernel,@function\ntp_empty_kernel:\n    s_endpgm\n"
    txt += '.section .rodata,"a"\n' + kd(n1, v1, s1) + (".p2align 6\nL_kd2:\n" if o.get("kd_touch") else "") + kd(n2, v2, s2)
    if em: txt += kd("tp_empty_kernel", 8, 16)
    if o.get("agg"): txt += kd("tp_agg_kernel", 32, 32)
    return txt, [(n1, lds1, v1, names1, 11), (n2, lds2, v2, names2, NW)]

if __name__ == "__main__":
    out = sys.argv[1] if len(sys.argv) > 1 else "gather_scatter__tensor_product_equiv_equiformer__graph.s"
    txt, info = build({"verbose": True})
    open(out, "w").write(txt)
    print(info, len(txt))
```

```python
import sys, os, struct, subprocess, ctypes, time
import numpy as np
sys.path.insert(0, "cdna_kernels")
import cdna_launch as cl
from cdna_launch import _hip, hip_check as ck, DeviceBuffer

META = """
.amdgpu_metadata
---
amdhsa.version: [1, 2]
amdhsa.kernels:
%s...
.end_amdgpu_metadata
"""
KM = """  - .name: {name}
    .symbol: {name}.kd
    .kernarg_segment_size: {ka}
    .kernarg_segment_align: 8
    .group_segment_fixed_size: 0
    .private_segment_fixed_size: 0
    .wavefront_size: 64
    .sgpr_count: 102
    .vgpr_count: {vgpr}
    .max_flat_workgroup_size: 1024
    .args:
      - {{.name: kernargs, .size: {ka}, .offset: 0, .value_kind: by_value}}
"""

def assemble(asm, kernels, path, ka=96):
    txt = asm + META % "".join(KM.format(name=n, ka=ka, vgpr=v) for n, v in kernels)
    with open(path + ".s", "w") as f:
        f.write(txt)
    r = subprocess.run(["clang", "-x", "assembler", "-target", "amdgcn-amd-amdhsa",
                        "-mcpu=gfx950", path + ".s", "-o", path + ".co"], capture_output=True, text=True)
    if r.returncode != 0:
        print(r.stderr[:4000]); raise SystemExit(1)
    return path + ".co"

class Module:
    def __init__(self, co):
        self.m = ctypes.c_void_p()
        ck(_hip.hipModuleLoad(ctypes.byref(self.m), co.encode()))
        self.f = {}
    def fn(self, name):
        if name not in self.f:
            f = ctypes.c_void_p()
            ck(_hip.hipModuleGetFunction(ctypes.byref(f), self.m, name.encode()))
            self.f[name] = f
        return self.f[name]
    def launch(self, name, grid, block, ptrs, lds=0, stream=None):
        cl._launch_function(self.fn(name), (grid,1,1), (block,1,1), struct.pack("<%dQ" % len(ptrs), *ptrs), lds, stream)

def sync():
    ck(_hip.hipDeviceSynchronize())

FLUSH_ASM = """
.amdgcn_target "amdgcn-amd-amdhsa--gfx950"
.text
.globl flush_kernel
.p2align 8
.type flush_kernel,@function
flush_kernel:
    s_load_dwordx2 s[4:5], s[0:1], 0
    s_waitcnt lgkmcnt(0)
    s_mov_b32 s8, s4
    s_mov_b32 s9, s5
    s_mov_b32 s10, 0x20000000
    s_mov_b32 s11, 0x00020000
    s_lshl_b32 s3, s2, 16
    v_lshlrev_b32 v1, 4, v0
    v_add_u32 v1, s3, v1
    v_mov_b32 v4, v1
    v_mov_b32 v5, v1
    v_mov_b32 v6, v1
    v_mov_b32 v7, v1
    s_mov_b32 s12, 0
L_fl:
    buffer_store_dwordx4 v[4:7], v1, s[8:11], s12 offen
    s_add_u32 s12, s12, 4096
    s_cmp_lt_u32 s12, 65536
    s_cbranch_scc1 L_fl
    s_endpgm
.section .rodata,"a"
.p2align 6
.amdhsa_kernel flush_kernel
  .amdhsa_next_free_vgpr 16
  .amdhsa_next_free_sgpr 32
  .amdhsa_accum_offset 16
  .amdhsa_group_segment_fixed_size 0
  .amdhsa_kernarg_size 96
  .amdhsa_user_sgpr_count 2
  .amdhsa_user_sgpr_kernarg_segment_ptr 1
  .amdhsa_system_sgpr_workgroup_id_x 1
.end_amdhsa_kernel
"""
RFLUSH_ASM = """
.text
.globl rflush_kernel
.p2align 8
.type rflush_kernel,@function
rflush_kernel:
    s_load_dwordx2 s[4:5], s[0:1], 0
    s_waitcnt lgkmcnt(0)
    s_mov_b32 s8, s4
    s_mov_b32 s9, s5
    s_mov_b32 s10, 0x20000000
    s_mov_b32 s11, 0x00020000
    s_lshl_b32 s3, s2, 16
    v_lshlrev_b32 v1, 4, v0
    v_add_u32 v1, s3, v1
    v_mov_b32 v4, v1
    v_mov_b32 v5, v1
    v_mov_b32 v6, v1
    v_mov_b32 v7, v1
    s_mov_b32 s12, 0
L_rfl:
    buffer_load_dwordx4 v[4:7], v1, s[8:11], s12 offen
    s_add_u32 s12, s12, 4096
    s_cmp_lt_u32 s12, 65536
    s_cbranch_scc1 L_rfl
    s_endpgm
.section .rodata,"a"
.p2align 6
.amdhsa_kernel rflush_kernel
  .amdhsa_next_free_vgpr 16
  .amdhsa_next_free_sgpr 32
  .amdhsa_accum_offset 16
  .amdhsa_group_segment_fixed_size 0
  .amdhsa_kernarg_size 96
  .amdhsa_user_sgpr_count 2
  .amdhsa_user_sgpr_kernarg_segment_ptr 1
  .amdhsa_system_sgpr_workgroup_id_x 1
.end_amdhsa_kernel
"""
BIG_ASM = """
.text
.globl big_kernel
.p2align 8
.type big_kernel,@function
big_kernel:
.rept 40000
    v_add_u32 v1, 0x12345, v1
.endr
    s_endpgm
.section .rodata,"a"
.p2align 6
.amdhsa_kernel big_kernel
  .amdhsa_next_free_vgpr 16
  .amdhsa_next_free_sgpr 32
  .amdhsa_accum_offset 16
  .amdhsa_group_segment_fixed_size 0
  .amdhsa_kernarg_size 96
  .amdhsa_user_sgpr_count 2
  .amdhsa_user_sgpr_kernarg_segment_ptr 1
  .amdhsa_system_sgpr_workgroup_id_x 1
.end_amdhsa_kernel
"""
TLB_ASM = """
.text
.globl tlb_kernel
.p2align 8
.type tlb_kernel,@function
tlb_kernel:
    s_load_dwordx2 s[4:5], s[0:1], 0
    s_lshl_b32 s3, s2, 8
    v_add_u32 v1, s3, v0
    v_mov_b32 v2, 0
    v_mov_b32 v8, v1
    v_mov_b32 v9, 0
    v_lshlrev_b64 v[2:3], 16, v[8:9]
    s_waitcnt lgkmcnt(0)
    v_mov_b32 v5, s5
    v_add_co_u32 v4, vcc, s4, v2
    s_nop 1
    v_addc_co_u32 v5, vcc, v5, v3, vcc
    global_load_dword v6, v[4:5], off
    s_waitcnt vmcnt(0)
    s_endpgm
.section .rodata,"a"
.p2align 6
.amdhsa_kernel tlb_kernel
  .amdhsa_next_free_vgpr 16
  .amdhsa_next_free_sgpr 32
  .amdhsa_accum_offset 16
  .amdhsa_group_segment_fixed_size 0
  .amdhsa_kernarg_size 96
  .amdhsa_user_sgpr_count 2
  .amdhsa_user_sgpr_kernarg_segment_ptr 1
  .amdhsa_system_sgpr_workgroup_id_x 1
.end_amdhsa_kernel
"""
class Flusher:
    def __init__(self, icache=True):
        co = assemble(FLUSH_ASM + RFLUSH_ASM + BIG_ASM + TLB_ASM, [("flush_kernel", 16), ("rflush_kernel", 16), ("big_kernel", 16), ("tlb_kernel", 16)], "flush")
        self.mod = Module(co)
        self.buf = DeviceBuffer(512 << 20)
        self.icache = icache
        self.tlb = 0; self.tlb_after = False; self.big = None; self.mode = "write"
    def __call__(self):
        if self.icache: self.mod.launch("big_kernel", 1024, 256, [0]*12)
        if self.tlb and self.big is None: self.big = DeviceBuffer(32 << 30)
        if self.tlb and not self.tlb_after: self.mod.launch("tlb_kernel", self.tlb * 64, 256, [self.big.ptr] + [0]*11)
        if self.mode == "write": self.mod.launch("flush_kernel", 8192, 256, [self.buf.ptr] + [0]*11)
        elif self.mode == "read":
            ck(_hip.hipMemsetAsync(self.buf.ptr, 1, 512 << 20, None))
            self.mod.launch("rflush_kernel", 8192, 256, [self.buf.ptr] + [0]*11)
            self.mod.launch("rflush_kernel", 8192, 256, [self.buf.ptr] + [0]*11)
        elif self.mode == "memset": ck(_hip.hipMemsetAsync(self.buf.ptr, 1, 512 << 20, None))
        if self.tlb and self.tlb_after: self.mod.launch("tlb_kernel", self.tlb * 64, 256, [self.big.ptr] + [0]*11)

class Events:
    def __init__(self):
        self.a = ctypes.c_void_p(); self.b = ctypes.c_void_p()
        ck(_hip.hipEventCreate(ctypes.byref(self.a))); ck(_hip.hipEventCreate(ctypes.byref(self.b)))
    def start(self): ck(_hip.hipEventRecord(self.a, None))
    def stop(self):
        ck(_hip.hipEventRecord(self.b, None)); ck(_hip.hipEventSynchronize(self.b))
        ms = ctypes.c_float(); ck(_hip.hipEventElapsedTime(ctypes.byref(ms), self.a, self.b))
        return ms.value * 1e3
```

```python
import sys
sys.path.insert(0, "bench"); sys.path.insert(0, "gen")
from common import *
from asmlib import Asm, kd
HEAD = '.amdgcn_target "amdgcn-amd-amdhsa--gfx950"\n.text\n'
def gen(name, nw, steps, mode, compute=True, swap=False, dens=4, noperm=False, nomfma=False, m4=False, agpr=False):
    A = Asm()
    A(f".globl {name}\n.p2align 8\n.type {name},@function\n{name}:")
    A("s_memrealtime s[20:21]")
    A("s_load_dwordx4 s[4:7], s[0:1], 0\ns_load_dwordx4 s[12:15], s[0:1], 16")
    A("v_lshrrev_b32 v1, 6, v0\nv_and_b32 v2, 63, v0\nv_readfirstlane_b32 s3, v1")
    A("s_waitcnt lgkmcnt(0)")
    A("s_mov_b32 s8, s4\ns_mov_b32 s9, s5\ns_mov_b32 s10, 5120000\ns_mov_b32 s11, 0x00020000")
    A("s_mov_b32 s16, s6\ns_mov_b32 s17, s7\ns_mov_b32 s18, 0x1000000\ns_mov_b32 s19, 0x00020000")
    A(f"s_mul_i32 s22, s2, {nw}\ns_add_u32 s22, s22, s3\ns_mul_i32 s22, s22, {steps*128}\ns_mul_i32 s23, s3, {(steps+2)*128}")
    A("v_lshlrev_b32 v3, 2, v2\nv_add_u32 v4, s23, v3")
    nld = (steps*32 + 63)//64
    for i in range(nld): A(f"buffer_load_dword v{10+i}, v3, s[16:19], s22 offen offset:{i*256}")
    A("s_waitcnt vmcnt(0)")
    for i in range(nld): A(f"ds_write_b32 v4, v{10+i} offset:{i*256}")
    A("s_waitcnt lgkmcnt(0)\ns_barrier\ns_memrealtime s[26:27]\ns_memtime s[30:31]")
    K0 = 8; AF = 24; T0 = 28; D0 = 36+8; C0 = 108-4
    C0 = D0 + 64
    A("s_mov_b32 s28, 0xfffffe00\ns_mov_b32 s34, 0x05040100\ns_mov_b32 s35, 0x07060302")
    for i in range(56): A(f"v_accvgpr_write_b32 a{i}, 0" if agpr else f"v_mov_b32 v{C0+i}, 0")
    A("v_mul_u32_u24 v7, 0x1357, v2\nv_and_b32 v7, 0x00ff00ff, v7\nv_or_b32 v7, 0x3c003c00, v7\nv_lshrrev_b32 v9, 2, v2\nv_lshrrev_b32 v10, 4, v2\nv_xor_b32 v9, v9, v10\nv_and_b32 v9, 3, v9\nv_cmp_eq_u32 vcc, 0, v9")
    if dens == 4:
        for i in range(4): A(f"v_cndmask_b32 v{AF+i}, 0, v7, vcc")
    elif dens == 1:
        for i in range(4): A(f"v_mov_b32 v{AF+i}, v7")
    elif dens == 0:
        for i in range(4): A(f"v_mov_b32 v{AF+i}, 0")
    elif dens == 5:
        for i in range(4):
            A(f"v_add_u32 v10, {i}, v9\nv_and_b32 v10, 3, v10\nv_cmp_eq_u32 vcc, 0, v10\nv_and_b32 v11, 0xffff, v7\nv_cndmask_b32 v{AF+i}, 0, v11, vcc")
            A(f"v_cmp_eq_u32 vcc, 2, v10\nv_and_b32 v11, 0xffff0000, v7\nv_cndmask_b32 v{AF+i}, v{AF+i}, v11, vcc")
    if mode == "P":
        A("v_and_b32 v5, 15, v2\nv_lshlrev_b32 v5, 4, v5\nv_lshrrev_b32 v6, 4, v2\nv_lshlrev_b32 v6, 5, v6\nv_add_u32 v6, s23, v6")
        nk = 8
        def loads(h):
            for i in range(8):
                d = D0 + h*32 + i*4
                A(f"buffer_load_dwordx4 v[{d}:{d+3}], v{K0+i}, s[8:11], 0 offen offset:{h*256}")
        def comp(h):
            if not compute: return
            for g in range(8):
                u, par = g >> 1, g & 1
                t = T0 + (g % 4)*4
                if noperm: t = D0 + h*32 + g*4
                else:
                    for q in range(4):
                        A(f"v_perm_b32 v{t+q}, v{D0+h*32+(2*q+1)*4+u}, v{D0+h*32+2*q*4+u}, s{34+par}")
                c = C0 + ((h*8+g) % 14)*4
                if nomfma: continue
                if m4:
                    A(f"v_mfma_f32_4x4x4_16b_bf16 v[{c}:{c+3}], v[{AF}:{AF+1}], v[{t}:{t+1}], v[{c}:{c+3}]")
                    A("s_nop 1")
                    A(f"v_mfma_f32_4x4x4_16b_bf16 v[{c}:{c+3}], v[{AF+2}:{AF+3}], v[{t+2}:{t+3}], v[{c}:{c+3}]")
                    continue
                if agpr:
                    ca = c - C0
                    A(f"v_mfma_f32_16x16x32_bf16 a[{ca}:{ca+3}], v[{AF}:{AF+3}], v[{t}:{t+3}], a[{ca}:{ca+3}]"); continue
                if swap: A(f"v_mfma_f32_16x16x32_bf16 v[{c}:{c+3}], v[{t}:{t+3}], v[{AF}:{AF+3}], v[{c}:{c+3}]")
                else: A(f"v_mfma_f32_16x16x32_bf16 v[{c}:{c+3}], v[{AF}:{AF+3}], v[{t}:{t+3}], v[{c}:{c+3}]")
        W = 8
    elif mode == "d16":
        A("v_and_b32 v5, 15, v2\nv_lshlrev_b32 v5, 2, v5\nv_lshrrev_b32 v6, 4, v2\nv_lshlrev_b32 v6, 5, v6\nv_add_u32 v6, s23, v6")
        nk = 8
        def loads(h):
            for sp in range(4):
                for i in range(4):
                    for s2 in range(2):
                        seg = 2*sp + s2
                        A(f"buffer_load_dword v{D0+h*32+seg*4+i}, v{K0+4*h+i}, s[8:11], 0 offen offset:{seg*64}")
        def comp(h):
            if not compute: return
            for seg in range(8):
                c = C0 + seg*4; t = D0 + h*32 + seg*4
                A(f"v_mfma_f32_16x16x32_bf16 v[{c}:{c+3}], v[{AF}:{AF+3}], v[{t}:{t+3}], v[{c}:{c+3}]")
        W = 32
    elif mode == "d32":
        A("v_and_b32 v5, 31, v2\nv_lshlrev_b32 v5, 2, v5\nv_lshrrev_b32 v6, 5, v2\nv_lshlrev_b32 v6, 6, v6\nv_add_u32 v6, s23, v6")
        nk = 16
        def loads(h):
            for q in range(2):
                for seg in range(4):
                    for i in range(4):
                        A(f"buffer_load_dword v{D0+h*32+q*16+seg*4+i}, v{K0+8*h+4*q+i}, s[8:11], 0 offen offset:{seg*128}")
        def comp(h):
            if not compute: return
            for q in range(2):
                for seg in range(4):
                    c = C0 + (seg % 3)*16; t = D0 + h*32 + q*16 + seg*4
                    A(f"v_mfma_f32_32x32x16_bf16 v[{c}:{c+15}], v[{AF}:{AF+3}], v[{t}:{t+3}], v[{c}:{c+15}]")
        W = 32
    def rdkeys(off, h=None):
        rng = range(nk//4) if h is None else range(h*nk//8, (h+1)*nk//8)
        for q in rng: A(f"ds_read_b128 v[{K0+4*q}:{K0+4*q+3}], v6 offset:{off+16*q}")
    def addr(h=None):
        rng = range(nk) if h is None else range(h*nk//2, (h+1)*nk//2)
        for i in rng: A(f"v_and_or_b32 v{K0+i}, v{K0+i}, s28, v5")
    rdkeys(0); A("s_waitcnt lgkmcnt(0)"); addr(); loads(0); loads(1)
    A(f"s_mov_b32 s29, {steps-1}")
    A(f"L_{name}:")
    A("v_add_u32 v6, 128, v6")
    rdkeys(0)
    A(f"s_waitcnt vmcnt({W})"); comp(0); A("s_waitcnt lgkmcnt(0)"); addr(); loads(0)
    A(f"s_waitcnt vmcnt({W})"); comp(1); loads(1)
    A(f"s_sub_u32 s29, s29, 1\ns_cmp_lg_u32 s29, 0\ns_cbranch_scc1 L_{name}")
    A(f"s_waitcnt vmcnt({W})"); comp(0); A("s_waitcnt vmcnt(0)"); comp(1)
    A("s_nop 15")
    if agpr:
        C0 = 9
        A("v_accvgpr_read_b32 v9, a0")
        for i in range(1, 56): A(f"v_accvgpr_read_b32 v10, a{i}\nv_add_f32 v9, v9, v10")
    else:
        for i in range(1, 56): A(f"v_add_f32 v{C0}, v{C0}, v{C0+i}")
    for i in range(64): A(f"v_xor_b32 v{C0}, v{C0}, v{D0+i}")
    A("s_mov_b32 s8, s12\ns_mov_b32 s9, s13\ns_mov_b32 s10, 0x1000000")
    A(f"s_mul_i32 s22, s2, {nw*256}\nv_lshlrev_b32 v1, 2, v0\nbuffer_store_dword v{C0}, v1, s[8:11], s22 offen")
    A("s_barrier\ns_memrealtime s[24:25]\ns_memtime s[32:33]\ns_waitcnt lgkmcnt(0)\ns_sub_u32 s32, s32, s30")
    A("v_mov_b32 v4, s20\nv_mov_b32 v5, s26\nv_mov_b32 v6, s24\nv_mov_b32 v7, s32")
    A("s_mov_b32 s8, s14\ns_mov_b32 s9, s15\ns_mov_b32 s10, 0x100000\ns_lshl_b32 s22, s2, 4\nv_mov_b32 v1, 0")
    A(f"v_cmp_eq_u32 vcc, 0, v0\ns_and_saveexec_b64 s[36:37], vcc\ns_cbranch_execz L_{name}_end")
    A(f"buffer_store_dwordx4 v[4:7], v1, s[8:11], s22 offen\nL_{name}_end:\ns_endpgm")
    return A.finish() + '.section .rodata,"a"\n' + (kd(name, 168, 64).replace("accum_offset 168", "accum_offset 108") if agpr else kd(name, 168, 64)) + ".text\n"
cfgs = [dict(dens=5), dict(dens=5, agpr=True), dict(dens=5), dict(dens=5, agpr=True)]
nw, steps = 12, 7
asm = HEAD; ks = []
for i, c in enumerate(cfgs):
    asm += gen(f"g{i}", nw, steps, "P", **c); ks.append((f"g{i}", 168))
co = assemble(asm, ks, "gb5")
if not os.path.exists("/dev/kfd"): raise SystemExit(0)
mod = Module(co); fl = Flusher(); fl.mode = "read"
rng = np.random.default_rng(0)
xv = (rng.standard_normal(10240*256).astype(np.float32) * 0.4).view(np.uint32) >> 16
x = DeviceBuffer.from_numpy(xv.astype(np.uint16))
out = DeviceBuffer(1 << 24); st = DeviceBuffer(1 << 20)
for nrows in (4000,):
    nb = 256
    src = rng.integers(0, nrows, size=(nb*nw, steps*32))
    keys = DeviceBuffer.from_numpy((src.astype(np.uint32) << 9).ravel())
    res = [[] for _ in cfgs]
    for rep in range(25):
        for i, c in enumerate(cfgs):
            fl()
            mod.launch(f"g1", nb, nw*64, [x.ptr, keys.ptr, out.ptr, st.ptr] + [0]*8, lds=nw*(steps+2)*128) if False else None
            mod.launch(f"g{i}", nb, nw*64, [x.ptr, keys.ptr, out.ptr, st.ptr] + [0]*8, lds=nw*(steps+2)*128)
            sync()
            s = st.to_numpy(np.uint32, (nb, 4)).astype(np.int64)
            res[i].append((np.median(s[:,2]-s[:,1])*0.01, np.median(s[:,3]), np.median(s[:,3] / ((s[:,2]-s[:,1])*10.0))))
    for i, c in enumerate(cfgs):
        r = np.median(np.array(res[i]), axis=0)
        print(f"rows={nrows} {c}: loop {r[0]:.2f} us  cyc {r[1]:.0f}  clk {r[2]:.3f} GHz  {nw*steps*32*512/r[1]:.1f} B/clk", flush=True)
```

```python
import re

TRANS = ("v_exp_f32", "v_log_f32", "v_rcp_f32", "v_rsq_f32", "v_sqrt_f32", "v_sin_f32", "v_cos_f32", "v_rcp_iflag_f32")

def regs_of(tok):
    tok = tok.strip()
    tok = tok.lstrip("-")
    m = re.fullmatch(r"abs\((.*)\)", tok)
    if m: tok = m.group(1)
    m = re.fullmatch(r"\|(.*)\|", tok)
    if m: tok = m.group(1)
    m = re.fullmatch(r"([vsa])\[(\d+):(\d+)\]", tok)
    if m: return {(m.group(1), i) for i in range(int(m.group(2)), int(m.group(3)) + 1)}
    m = re.fullmatch(r"([vsa])(\d+)", tok)
    if m: return {(m.group(1), int(m.group(2)))}
    if tok in ("vcc", "vcc_lo", "vcc_hi"): return {("vcc", 0)}
    if tok in ("exec", "exec_lo", "exec_hi"): return {("exec", 0)}
    if tok == "m0": return {("m0", 0)}
    return set()

class Ins:
    def __init__(self, text):
        self.text = text
        t = text.split(";")[0].strip()
        self.label = None
        self.op = None
        if t.endswith(":"):
            self.label = t[:-1]; return
        if not t or t.startswith("."):
            return
        parts = t.split(None, 1)
        self.op = op = parts[0]
        rest = parts[1] if len(parts) > 1 else ""
        ops, depth, cur = [], 0, ""
        for ch in rest:
            if ch in "[(": depth += 1
            if ch in "])": depth -= 1
            if ch == "," and depth == 0:
                ops.append(cur.strip()); cur = ""
            else: cur += ch
        if cur.strip(): ops.append(cur.strip())
        mods = ""
        if ops:
            sp = ops[-1].split(None, 1)
            ops[-1] = sp[0]
            if len(sp) > 1: mods = sp[1]
        self.ops, self.mods = ops, mods
        R = [regs_of(o) for o in ops]
        self.dst, self.src = set(), set()
        self.is_valu = op.startswith("v_") and not op.startswith("v_mfma")
        self.is_mfma = op.startswith("v_mfma")
        self.is_vmem = op.startswith(("buffer_", "global_", "flat_"))
        self.is_ds = op.startswith("ds_")
        self.is_salu = op.startswith("s_")
        self.is_dpp = "_dpp" in op or any(k in mods for k in ("row_shr", "row_shl", "row_ror", "quad_perm", "row_bcast", "wave_shr", "row_mirror", "row_half_mirror"))
        self.is_trans = op.replace("_e32", "").replace("_e64", "") in TRANS
        self.branch = None
        self.uncond = False
        if op.startswith("s_cbranch") or op == "s_branch":
            self.branch = ops[0]; self.uncond = op == "s_branch"
        if op == "s_endpgm": self.uncond = True
        self.store_data = set()
        if self.is_mfma:
            self.dst = R[0]; self.A, self.B, self.C = R[1], R[2], R[3]; self.src = R[1] | R[2] | R[3]
        elif self.is_valu:
            self.dst = set(R[0]); srcs = R[1:]
            if op.startswith(("v_add_co", "v_sub_co", "v_addc_co", "v_subb_co", "v_subrev_co")):
                self.dst |= R[1]; srcs = R[2:]
            if op.startswith(("v_fmac", "v_mac", "v_pk_fmac", "v_dot2c")) or self.is_dpp:
                srcs = srcs + [R[0]]
            if op.startswith(("v_permlane32_swap", "v_permlane16_swap", "v_swap")):
                self.dst |= R[1]; srcs = R
            if op.startswith("v_writelane"): srcs = srcs + [R[0]]
            for s in srcs: self.src |= s
        elif self.is_ds:
            if op.startswith(("ds_read", "ds_bpermute", "ds_permute", "ds_swizzle")) or "_rtn" in op:
                self.dst = R[0]
                for s in R[1:]: self.src |= s
            else:
                for s in R: self.src |= s
        elif self.is_vmem:
            if "load" in op and " lds" not in (" " + mods) :
                self.dst = R[0]
                for s in R[1:]: self.src |= s
            elif "atomic" in op and "sc0" in mods:
                self.dst = R[0]
                for s in R: self.src |= s
            else:
                for s in R: self.src |= s
                if "store" in op and ("x3" in op or "x4" in op):
                    self.store_data = R[0] if op.startswith("buffer") else R[1]
        elif self.is_salu:
            if op.startswith(("s_cmp", "s_cbranch", "s_branch", "s_waitcnt", "s_barrier", "s_nop", "s_setprio", "s_sleep", "s_endpgm", "s_bitcmp")):
                for s in R: self.src |= s
            else:
                self.dst = set(R[0])
                for s in R[1:]: self.src |= s
                if "saveexec" in op: self.dst |= {("exec", 0)}; self.src |= {("exec", 0)}
    def states(self):
        if self.op is None: return 0
        if self.op == "s_nop": return int(self.ops[0], 0) + 1
        return 1

def need(p, c):
    n = 0
    pv = {r for r in p.dst if r[0] in "va"} if p.op else set()
    ps = {r for r in p.dst if r[0] in ("s", "vcc")} if p.op else set()
    if p.is_valu:
        if c.is_mfma and pv & c.src: n = max(n, 2)
        if c.is_valu and c.is_dpp and pv & c.src: n = max(n, 2)
        if c.is_valu and c.op.startswith(("v_readlane", "v_readfirstlane")) and pv & c.src: n = max(n, 1)
        if c.is_valu and c.op.startswith("v_permlane") and pv & c.src: n = max(n, 2)
        if ps:
            if c.is_valu and ps & c.src:
                n = max(n, 4 if c.op.startswith(("v_readlane", "v_writelane")) else 2)
            if c.is_vmem and ps & c.src: n = max(n, 5)
            if c.is_salu and ps & c.src: n = max(n, 1)
        if p.is_trans and (c.is_valu or c.is_mfma) and pv & c.src: n = max(n, 1)
        if ("op_sel" in p.mods or "sdwa" in p.op or "dst_sel" in p.mods) and c.is_valu and pv & (c.src | c.dst): n = max(n, 1)
        if ("exec", 0) in p.dst: n = max(n, 5)
    if p.is_mfma:
        passes = 8 if "32x32" in p.op else 4
        big = {4: 8, 8: 12}[passes]; ovl = {4: 6, 8: 10}[passes]; war = {4: 3, 8: 7}[passes]
        if c.is_mfma:
            if p.dst & (c.A | c.B): n = max(n, big)
            if p.dst & c.C and not (p.dst == c.C and p.op == c.op): n = max(n, ovl)
            if p.dst & c.dst and not (p.dst == c.C): n = max(n, ovl)
        elif c.is_valu or c.is_vmem or c.is_ds:
            if p.dst & (c.src | c.dst): n = max(n, big)
            if c.is_valu and p.C & c.dst: n = max(n, war)
    if p.store_data:
        if c.is_valu and p.store_data & c.dst: n = max(n, 2)
        elif c.op and p.store_data & c.dst and not c.is_salu: n = max(n, 1)
    if p.is_salu and ("m0", 0) in p.dst:
        if (c.is_vmem and "lds" in c.mods) or (c.is_ds and "addtid" in c.op) or c.op.startswith("global_load_lds"): n = max(n, 1)
    return n

def fix_hazards(lines, verbose=False):
    inserted = 0
    while True:
        ins = [Ins(l) for l in lines]
        lab = {i.label: k for k, i in enumerate(ins) if i.label}
        preds = [[] for _ in ins]
        for k, i in enumerate(ins):
            if i.op and i.branch in lab: preds[lab[i.branch]].append(k)
            if k + 1 < len(ins) and not (i.op and i.uncond): preds[k + 1].append(k)
        worst = None
        for k, c in enumerate(ins):
            if c.op is None or c.op in ("s_nop",): continue
            short = 0
            stack = [(p, 0) for p in preds[k]]
            seen = {}
            while stack:
                p, d = stack.pop()
                if d >= 12 or seen.get(p, 99) <= d: continue
                seen[p] = d
                pi = ins[p]
                if pi.op:
                    n = need(pi, c)
                    if n > d: short = max(short, n - d)
                nd = d + pi.states()
                for q in preds[p]: stack.append((q, nd))
            if short:
                worst = (k, short); break
        if not worst: return lines, inserted
        k, short = worst
        if verbose: print(f"  hazard: +{short} before: {lines[k].strip()}")
        lines = lines[:k] + [f"    s_nop {short-1}"] + lines[k:]
        inserted += 1

import subprocess, tempfile, os
WIDEN = ("v_mov_b32", "v_add_u32", "v_sub_u32", "v_subrev_u32", "v_and_b32", "v_or_b32", "v_xor_b32", "v_lshlrev_b32", "v_lshrrev_b32",
         "v_mul_f32", "v_add_f32", "v_sub_f32", "v_max_u32", "v_min_u32", "v_mul_u32_u24", "v_mul_hi_u32_u24", "v_exp_f32", "v_rcp_f32",
         "v_cvt_f32_u32", "v_bfrev_b32", "v_mov_b64", "v_cndmask_b32", "v_cmp_lt_u32", "v_cmp_gt_u32", "v_cmp_ne_u32", "v_cmp_eq_u32")
def sizes(lines):
    src = '.amdgcn_target "amdgcn-amd-amdhsa--gfx950"\n.text\n' + "\n".join(lines) + "\n"
    d = tempfile.mkdtemp()
    open(d + "/a.s", "w").write(src)
    r = subprocess.run(["clang", "-x", "assembler", "-target", "amdgcn-amd-amdhsa", "-mcpu=gfx950", "-c", d + "/a.s", "-o", d + "/a.o"], capture_output=True, text=True)
    assert r.returncode == 0, r.stderr[:2000]
    out = subprocess.run(["llvm-objdump", "-d", "--mcpu=gfx950", d + "/a.o"], capture_output=True, text=True).stdout
    sz = [4 * len(l.split("//")[1].split(":", 1)[1].split("<")[0].split()) for l in out.split("\n") if "//" in l]
    return sz

def align_wide(lines, min_run=3):
    lines = list(lines)
    idx = [k for k, l in enumerate(lines) if Ins(l).op]
    sz = sizes(lines)
    assert len(sz) == len(idx), (len(sz), len(idx))
    size = dict(zip(idx, sz))
    out, addr, last4 = [], 0, []
    for n, k in enumerate(range(len(lines))):
        l = lines[k]
        if k not in size:
            if "@align" in l:
                a = int(l.split("@align")[1])
                while addr % a: out.append("    s_nop 0"); addr += 4
                last4 = []
                continue
            out.append(l); continue
        if size[k] == 4:
            last4.append(len(out)); out.append(l); addr += 4; continue
        if addr % 8:
            fixed = False
            for p in reversed(last4):
                i = Ins(out[p])
                if i.op in WIDEN and not i.is_dpp:
                    out[p] = out[p].replace(i.op, i.op + "_e64", 1); addr += 4; fixed = True; break
            if not fixed:
                j = idx.index(k); run = 0
                while j + run < len(idx) and sz[j + run] % 8 == 0: run += 1
                if run >= min_run: out.append("    s_nop 0"); addr += 4
        out.append(l); addr += size[k]
        if addr % 8 == 0: last4 = []
    return out

class Asm:
    def __init__(self):
        self.L = []
    def __call__(self, s):
        for l in s.split("\n"):
            l = l.strip()
            if not l: continue
            if l.endswith(":") or l.startswith("."): self.L.append(l)
            else: self.L.append("    " + l)
    def c(self, s): self.L.append("    ; " + s)
    def finish(self, verbose=False, align=0):
        L, n = fix_hazards(self.L, verbose)
        if align: L = align_wide(L, align)
        return "\n".join(L) + "\n"

def kd(name, vgpr, sgpr):
    acc = (vgpr + 3) // 4 * 4
    return f""".p2align 6
.amdhsa_kernel {name}
  .amdhsa_next_free_vgpr {vgpr}
  .amdhsa_next_free_sgpr {sgpr}
  .amdhsa_accum_offset {acc}
  .amdhsa_group_segment_fixed_size 0
  .amdhsa_kernarg_size 96
  .amdhsa_user_sgpr_count 2
  .amdhsa_user_sgpr_kernarg_segment_ptr 1
  .amdhsa_system_sgpr_workgroup_id_x 1
  .amdhsa_float_denorm_mode_32 3
.end_amdhsa_kernel
"""
```

```python
import sys
sys.path.insert(0, "bench"); sys.path.insert(0, "gen")
from common import *
from asmlib import Asm, kd
HEAD = '.amdgcn_target "amdgcn-amd-amdhsa--gfx950"\n.text\n'
def gen(name, nw, steps, mode, compute=True, swap=False, dens=4, noperm=False, nomfma=False, m4=False):
    A = Asm()
    A(f".globl {name}\n.p2align 8\n.type {name},@function\n{name}:")
    A("s_memrealtime s[20:21]")
    A("s_load_dwordx4 s[4:7], s[0:1], 0\ns_load_dwordx4 s[12:15], s[0:1], 16")
    A("v_lshrrev_b32 v1, 6, v0\nv_and_b32 v2, 63, v0\nv_readfirstlane_b32 s3, v1")
    A("s_waitcnt lgkmcnt(0)")
    A("s_mov_b32 s8, s4\ns_mov_b32 s9, s5\ns_mov_b32 s10, 5120000\ns_mov_b32 s11, 0x00020000")
    A("s_mov_b32 s16, s6\ns_mov_b32 s17, s7\ns_mov_b32 s18, 0x1000000\ns_mov_b32 s19, 0x00020000")
    A(f"s_mul_i32 s22, s2, {nw}\ns_add_u32 s22, s22, s3\ns_mul_i32 s22, s22, {steps*128}\ns_mul_i32 s23, s3, {(steps+2)*128}")
    A("v_lshlrev_b32 v3, 2, v2\nv_add_u32 v4, s23, v3")
    nld = (steps*32 + 63)//64
    for i in range(nld): A(f"buffer_load_dword v{10+i}, v3, s[16:19], s22 offen offset:{i*256}")
    A("s_waitcnt vmcnt(0)")
    for i in range(nld): A(f"ds_write_b32 v4, v{10+i} offset:{i*256}")
    A("s_waitcnt lgkmcnt(0)\ns_barrier\ns_memrealtime s[26:27]\ns_memtime s[30:31]")
    K0 = 8; AF = 24; T0 = 28; D0 = 36+8; C0 = 108-4
    C0 = D0 + 64
    A("s_mov_b32 s28, 0xffffff80\ns_mov_b32 s34, 0x05040100\ns_mov_b32 s35, 0x07060302")
    for i in range(56): A(f"v_mov_b32 v{C0+i}, 0")
    A("v_mul_u32_u24 v7, 0x1357, v2\nv_and_b32 v7, 0x00ff00ff, v7\nv_or_b32 v7, 0x3c003c00, v7\nv_lshrrev_b32 v9, 2, v2\nv_lshrrev_b32 v10, 4, v2\nv_xor_b32 v9, v9, v10\nv_and_b32 v9, 3, v9\nv_cmp_eq_u32 vcc, 0, v9")
    if dens == 4:
        for i in range(4): A(f"v_cndmask_b32 v{AF+i}, 0, v7, vcc")
    elif dens == 1:
        for i in range(4): A(f"v_mov_b32 v{AF+i}, v7")
    elif dens == 0:
        for i in range(4): A(f"v_mov_b32 v{AF+i}, 0")
    elif dens == 5:
        for i in range(4):
            A(f"v_add_u32 v10, {i}, v9\nv_and_b32 v10, 3, v10\nv_cmp_eq_u32 vcc, 0, v10\nv_and_b32 v11, 0xffff, v7\nv_cndmask_b32 v{AF+i}, 0, v11, vcc")
            A(f"v_cmp_eq_u32 vcc, 2, v10\nv_and_b32 v11, 0xffff0000, v7\nv_cndmask_b32 v{AF+i}, v{AF+i}, v11, vcc")
    if mode == "P":
        A("v_and_b32 v5, 15, v2\nv_lshlrev_b32 v5, 4, v5\nv_lshrrev_b32 v6, 4, v2\nv_lshlrev_b32 v6, 5, v6\nv_add_u32 v6, s23, v6")
        nk = 8
        def loads(h):
            for i in range(8):
                d = D0 + h*32 + i*4
                A(f"buffer_load_dwordx4 v[{d}:{d+3}], v{K0+i}, s[8:11], 0 offen offset:{h*256}")
        def comp(h):
            if not compute: return
            for g in range(8):
                u, par = g >> 1, g & 1
                t = T0 + (g % 4)*4
                if noperm: t = D0 + h*32 + g*4
                else:
                    for q in range(4):
                        A(f"v_perm_b32 v{t+q}, v{D0+h*32+(2*q+1)*4+u}, v{D0+h*32+2*q*4+u}, s{34+par}")
                c = C0 + ((h*8+g) % 14)*4
                if nomfma: continue
                if m4:
                    A(f"v_mfma_f32_4x4x4_16b_bf16 v[{c}:{c+3}], v[{AF}:{AF+1}], v[{t}:{t+1}], v[{c}:{c+3}]")
                    A("s_nop 1")
                    A(f"v_mfma_f32_4x4x4_16b_bf16 v[{c}:{c+3}], v[{AF+2}:{AF+3}], v[{t+2}:{t+3}], v[{c}:{c+3}]")
                    continue
                if swap: A(f"v_mfma_f32_16x16x32_bf16 v[{c}:{c+3}], v[{t}:{t+3}], v[{AF}:{AF+3}], v[{c}:{c+3}]")
                else: A(f"v_mfma_f32_16x16x32_bf16 v[{c}:{c+3}], v[{AF}:{AF+3}], v[{t}:{t+3}], v[{c}:{c+3}]")
        W = 8
    elif mode == "c12":
        A("v_and_b32 v5, 15, v2\nv_lshlrev_b32 v5, 2, v5\nv_lshrrev_b32 v6, 4, v2\nv_lshlrev_b32 v6, 5, v6\nv_add_u32 v6, s23, v6")
        A("s_mov_b32 s40, 0x87878787\nv_mov_b32 v7, 0x38383838\ns_mov_b32 s41, 0x05010400\ns_mov_b32 s42, 0x07030602\ns_mov_b32 s43, 0x05010400")
        nk = 8
        def loads(h):
            for i in range(8):
                for d in range(3):
                    A(f"buffer_load_dword v{D0+h*24+i*3+d}, v{K0+i}, s[8:11], 0 offen offset:{h*192+d*64}")
        HB = D0 + 48
        def comp(h):
            if not compute: return
            for i in range(8):
                n = D0 + h*24 + i*3 + 2
                A(f"v_and_or_b32 v{HB+2*i}, v{n}, s40, v7")
                A(f"v_alignbit_b32 v{n}, v{n}, v{n}, 4")
                A(f"v_and_or_b32 v{HB+2*i+1}, v{n}, s40, v7")
            for u in range(2):
                for half in range(2):
                    t0 = T0 + ((u*2+half) % 2)*8
                    for q in range(4):
                        l0, l1 = D0 + h*24 + (2*q)*3 + u, D0 + h*24 + (2*q+1)*3 + u
                        A(f"v_perm_b32 v16, v{l1}, v{l0}, s{41+half}")
                        A(f"v_perm_b32 v17, v{HB+2*(2*q+1)+u}, v{HB+2*(2*q)+u}, s{41+half}")
                        A(f"v_perm_b32 v{t0+q}, v17, v16, s41")
                        A(f"v_perm_b32 v{t0+4+q}, v17, v16, s42")
                    for par in range(2):
                        c = C0 + ((h*8 + u*4 + half*2 + par) % 14)*4
                        A(f"v_mfma_f32_16x16x32_bf16 v[{c}:{c+3}], v[{AF}:{AF+3}], v[{t0+4*par}:{t0+4*par+3}], v[{c}:{c+3}]")
        W = 24
    elif mode == "d16":
        A("v_and_b32 v5, 15, v2\nv_lshlrev_b32 v5, 2, v5\nv_lshrrev_b32 v6, 4, v2\nv_lshlrev_b32 v6, 5, v6\nv_add_u32 v6, s23, v6")
        nk = 8
        def loads(h):
            for sp in range(4):
                for i in range(4):
                    for s2 in range(2):
                        seg = 2*sp + s2
                        A(f"buffer_load_dword v{D0+h*32+seg*4+i}, v{K0+4*h+i}, s[8:11], 0 offen offset:{seg*64}")
        def comp(h):
            if not compute: return
            for seg in range(8):
                c = C0 + seg*4; t = D0 + h*32 + seg*4
                A(f"v_mfma_f32_16x16x32_bf16 v[{c}:{c+3}], v[{AF}:{AF+3}], v[{t}:{t+3}], v[{c}:{c+3}]")
        W = 32
    elif mode == "d32":
        A("v_and_b32 v5, 31, v2\nv_lshlrev_b32 v5, 2, v5\nv_lshrrev_b32 v6, 5, v2\nv_lshlrev_b32 v6, 6, v6\nv_add_u32 v6, s23, v6")
        nk = 16
        def loads(h):
            for q in range(2):
                for seg in range(4):
                    for i in range(4):
                        A(f"buffer_load_dword v{D0+h*32+q*16+seg*4+i}, v{K0+8*h+4*q+i}, s[8:11], 0 offen offset:{seg*128}")
        def comp(h):
            if not compute: return
            for q in range(2):
                for seg in range(4):
                    c = C0 + (seg % 3)*16; t = D0 + h*32 + q*16 + seg*4
                    A(f"v_mfma_f32_32x32x16_bf16 v[{c}:{c+15}], v[{AF}:{AF+3}], v[{t}:{t+3}], v[{c}:{c+15}]")
        W = 32
    def rdkeys(off, h=None):
        rng = range(nk//4) if h is None else range(h*nk//8, (h+1)*nk//8)
        for q in rng: A(f"ds_read_b128 v[{K0+4*q}:{K0+4*q+3}], v6 offset:{off+16*q}")
    def addr(h=None):
        rng = range(nk) if h is None else range(h*nk//2, (h+1)*nk//2)
        for i in rng: A(f"v_and_or_b32 v{K0+i}, v{K0+i}, s28, v5")
    rdkeys(0); A("s_waitcnt lgkmcnt(0)"); addr(); loads(0); loads(1)
    A(f"s_mov_b32 s29, {steps-1}")
    A(f"L_{name}:")
    A("v_add_u32 v6, 128, v6")
    rdkeys(0)
    A(f"s_waitcnt vmcnt({W})"); comp(0); A("s_waitcnt lgkmcnt(0)"); addr(); loads(0)
    A(f"s_waitcnt vmcnt({W})"); comp(1); loads(1)
    A(f"s_sub_u32 s29, s29, 1\ns_cmp_lg_u32 s29, 0\ns_cbranch_scc1 L_{name}")
    A(f"s_waitcnt vmcnt({W})"); comp(0); A("s_waitcnt vmcnt(0)"); comp(1)
    A("s_nop 15")
    for i in range(1, 56): A(f"v_add_f32 v{C0}, v{C0}, v{C0+i}")
    for i in range(64): A(f"v_xor_b32 v{C0}, v{C0}, v{D0+i}")
    A("s_mov_b32 s8, s12\ns_mov_b32 s9, s13\ns_mov_b32 s10, 0x1000000")
    A(f"s_mul_i32 s22, s2, {nw*256}\nv_lshlrev_b32 v1, 2, v0\nbuffer_store_dword v{C0}, v1, s[8:11], s22 offen")
    A("s_barrier\ns_memrealtime s[24:25]\ns_memtime s[32:33]\ns_waitcnt lgkmcnt(0)\ns_sub_u32 s32, s32, s30")
    A("v_mov_b32 v4, s20\nv_mov_b32 v5, s26\nv_mov_b32 v6, s24\nv_mov_b32 v7, s32")
    A("s_mov_b32 s8, s14\ns_mov_b32 s9, s15\ns_mov_b32 s10, 0x100000\ns_lshl_b32 s22, s2, 4\nv_mov_b32 v1, 0")
    A(f"v_cmp_eq_u32 vcc, 0, v0\ns_and_saveexec_b64 s[36:37], vcc\ns_cbranch_execz L_{name}_end")
    A(f"buffer_store_dwordx4 v[4:7], v1, s[8:11], s22 offen\nL_{name}_end:\ns_endpgm")
    return A.finish() + '.section .rodata,"a"\n' + kd(name, 168, 64) + ".text\n"
cfgs = [dict(dens=5), dict(compute=False), dict(dens=5, mode="c12"), dict(compute=False, mode="c12")]
nw, steps = 12, 7
asm = HEAD; ks = []
for i, c in enumerate(cfgs):
    c = dict(c); asm += gen(f"g{i}", nw, steps, c.pop("mode", "P"), **c); ks.append((f"g{i}", 168))
co = assemble(asm, ks, "gb5")
if not os.path.exists("/dev/kfd"): raise SystemExit(0)
mod = Module(co); fl = Flusher(); fl.mode = os.environ.get("FLMODE", "read")
rng = np.random.default_rng(0)
xv = (rng.standard_normal(10240*256).astype(np.float32) * 0.4).view(np.uint32) >> 16
x = DeviceBuffer.from_numpy(xv.astype(np.uint16))
out = DeviceBuffer(1 << 24); st = DeviceBuffer(1 << 20)
for nrows in (4000, 10000):
    nb = 256
    src = rng.integers(0, nrows, size=(nb*nw, steps*32))
    keys = DeviceBuffer.from_numpy((src.astype(np.uint32) << 9).ravel())
    keys12 = DeviceBuffer.from_numpy((src.astype(np.uint32) * 384).ravel())
    res = [[] for _ in cfgs]
    for rep in range(25):
        for i, c in enumerate(cfgs):
            fl()
            mod.launch(f"g1", nb, nw*64, [x.ptr, keys.ptr, out.ptr, st.ptr] + [0]*8, lds=nw*(steps+2)*128) if False else None
            mod.launch(f"g{i}", nb, nw*64, [x.ptr, (keys12 if c.get("mode") else keys).ptr, out.ptr, st.ptr] + [0]*8, lds=nw*(steps+2)*128)
            sync()
            s = st.to_numpy(np.uint32, (nb, 4)).astype(np.int64)
            res[i].append((np.median(s[:,2]-s[:,1])*0.01, np.median(s[:,3]), np.median(s[:,3] / ((s[:,2]-s[:,1])*10.0))))
    for i, c in enumerate(cfgs):
        r = np.median(np.array(res[i]), axis=0)
        print(f"rows={nrows} {c}: loop {r[0]:.2f} us  cyc {r[1]:.0f}  clk {r[2]:.3f} GHz  {nw*steps*32*512/r[1]:.1f} B/clk", flush=True)
```

```python
import sys
sys.path.insert(0, "bench"); sys.path.insert(0, "gen")
from common import *
from asmlib import Asm, kd
HEAD = '.amdgcn_target "amdgcn-amd-amdhsa--gfx950"\n.text\n'
def gen(name, nw, steps, mode, compute=True, swap=False, dens=4, noperm=False, nomfma=False, m4=False):
    A = Asm()
    A(f".globl {name}\n.p2align 8\n.type {name},@function\n{name}:")
    A("s_memrealtime s[20:21]")
    A("s_load_dwordx4 s[4:7], s[0:1], 0\ns_load_dwordx4 s[12:15], s[0:1], 16")
    A("v_lshrrev_b32 v1, 6, v0\nv_and_b32 v2, 63, v0\nv_readfirstlane_b32 s3, v1")
    A("s_waitcnt lgkmcnt(0)")
    A("s_mov_b32 s8, s4\ns_mov_b32 s9, s5\ns_mov_b32 s10, 5120000\ns_mov_b32 s11, 0x00020000")
    A("s_mov_b32 s16, s6\ns_mov_b32 s17, s7\ns_mov_b32 s18, 0x1000000\ns_mov_b32 s19, 0x00020000")
    A(f"s_mul_i32 s22, s2, {nw}\ns_add_u32 s22, s22, s3\ns_mul_i32 s22, s22, {steps*128}\ns_mul_i32 s23, s3, {(steps+2)*128}")
    A("v_lshlrev_b32 v3, 2, v2\nv_add_u32 v4, s23, v3")
    nld = (steps*32 + 63)//64
    for i in range(nld): A(f"buffer_load_dword v{10+i}, v3, s[16:19], s22 offen offset:{i*256}")
    A("s_waitcnt vmcnt(0)")
    for i in range(nld): A(f"ds_write_b32 v4, v{10+i} offset:{i*256}")
    A("s_waitcnt lgkmcnt(0)\ns_barrier\ns_memrealtime s[26:27]\ns_memtime s[30:31]")
    K0 = 8; AF = 24; T0 = 28; D0 = 36+8; C0 = 108-4
    C0 = D0 + 64
    A("s_mov_b32 s28, 0xffffff80\ns_mov_b32 s34, 0x05040100\ns_mov_b32 s35, 0x07060302")
    for i in range(56): A(f"v_mov_b32 v{C0+i}, 0")
    A("v_mul_u32_u24 v7, 0x1357, v2\nv_and_b32 v7, 0x00ff00ff, v7\nv_or_b32 v7, 0x3c003c00, v7\nv_lshrrev_b32 v9, 2, v2\nv_lshrrev_b32 v10, 4, v2\nv_xor_b32 v9, v9, v10\nv_and_b32 v9, 3, v9\nv_cmp_eq_u32 vcc, 0, v9")
    if dens == 4:
        for i in range(4): A(f"v_cndmask_b32 v{AF+i}, 0, v7, vcc")
    elif dens == 1:
        for i in range(4): A(f"v_mov_b32 v{AF+i}, v7")
    elif dens == 0:
        for i in range(4): A(f"v_mov_b32 v{AF+i}, 0")
    elif dens == 5:
        for i in range(4):
            A(f"v_add_u32 v10, {i}, v9\nv_and_b32 v10, 3, v10\nv_cmp_eq_u32 vcc, 0, v10\nv_and_b32 v11, 0xffff, v7\nv_cndmask_b32 v{AF+i}, 0, v11, vcc")
            A(f"v_cmp_eq_u32 vcc, 2, v10\nv_and_b32 v11, 0xffff0000, v7\nv_cndmask_b32 v{AF+i}, v{AF+i}, v11, vcc")
    if mode == "P":
        A("v_and_b32 v5, 15, v2\nv_lshlrev_b32 v5, 4, v5\nv_lshrrev_b32 v6, 4, v2\nv_lshlrev_b32 v6, 5, v6\nv_add_u32 v6, s23, v6")
        nk = 8
        def loads(h):
            for i in range(8):
                d = D0 + h*32 + i*4
                A(f"buffer_load_dwordx4 v[{d}:{d+3}], v{K0+i}, s[8:11], 0 offen offset:{h*256}")
        def comp(h):
            if not compute: return
            for g in range(8):
                u, par = g >> 1, g & 1
                t = T0 + (g % 4)*4
                if noperm: t = D0 + h*32 + g*4
                else:
                    for q in range(4):
                        A(f"v_perm_b32 v{t+q}, v{D0+h*32+(2*q+1)*4+u}, v{D0+h*32+2*q*4+u}, s{34+par}")
                c = C0 + ((h*8+g) % 14)*4
                if nomfma: continue
                if m4:
                    A(f"v_mfma_f32_4x4x4_16b_bf16 v[{c}:{c+3}], v[{AF}:{AF+1}], v[{t}:{t+1}], v[{c}:{c+3}]")
                    A("s_nop 1")
                    A(f"v_mfma_f32_4x4x4_16b_bf16 v[{c}:{c+3}], v[{AF+2}:{AF+3}], v[{t+2}:{t+3}], v[{c}:{c+3}]")
                    continue
                if swap: A(f"v_mfma_f32_16x16x32_bf16 v[{c}:{c+3}], v[{t}:{t+3}], v[{AF}:{AF+3}], v[{c}:{c+3}]")
                else: A(f"v_mfma_f32_16x16x32_bf16 v[{c}:{c+3}], v[{AF}:{AF+3}], v[{t}:{t+3}], v[{c}:{c+3}]")
        W = 8
    elif mode == "c12":
        A("v_and_b32 v5, 15, v2\nv_lshlrev_b32 v5, 2, v5\nv_lshrrev_b32 v6, 4, v2\nv_lshlrev_b32 v6, 5, v6\nv_add_u32 v6, s23, v6")
        A("s_mov_b32 s40, 0x87878787\nv_mov_b32 v7, 0x38383838\ns_mov_b32 s41, 0x05010400\ns_mov_b32 s42, 0x07030602\ns_mov_b32 s43, 0x05010400")
        nk = 8
        def loads(h):
            for i in range(8):
                for d in range(3):
                    A(f"buffer_load_dword v{D0+h*24+i*3+d}, v{K0+i}, s[8:11], 0 offen offset:{h*192+d*64}")
        HB = D0 + 48
        def comp(h):
            if not compute: return
            for i in range(8):
                n = D0 + h*24 + i*3 + 2
                A(f"v_and_or_b32 v{HB+2*i}, v{n}, s40, v7")
                A(f"v_alignbit_b32 v{n}, v{n}, v{n}, 4")
                A(f"v_and_or_b32 v{HB+2*i+1}, v{n}, s40, v7")
            for u in range(2):
                for half in range(2):
                    t0 = T0 + ((u*2+half) % 2)*8
                    for q in range(4):
                        l0, l1 = D0 + h*24 + (2*q)*3 + u, D0 + h*24 + (2*q+1)*3 + u
                        A(f"v_perm_b32 v16, v{l1}, v{l0}, s{41+half}")
                        A(f"v_perm_b32 v17, v{HB+2*(2*q+1)+u}, v{HB+2*(2*q)+u}, s{41+half}")
                        A(f"v_perm_b32 v{t0+q}, v17, v16, s41")
                        A(f"v_perm_b32 v{t0+4+q}, v17, v16, s42")
                    for par in range(2):
                        c = C0 + ((h*8 + u*4 + half*2 + par) % 14)*4
                        A(f"v_mfma_f32_16x16x32_bf16 v[{c}:{c+3}], v[{AF}:{AF+3}], v[{t0+4*par}:{t0+4*par+3}], v[{c}:{c+3}]")
        W = 24
    elif mode == "d16":
        A("v_and_b32 v5, 15, v2\nv_lshlrev_b32 v5, 2, v5\nv_lshrrev_b32 v6, 4, v2\nv_lshlrev_b32 v6, 5, v6\nv_add_u32 v6, s23, v6")
        nk = 8
        def loads(h):
            for sp in range(4):
                for i in range(4):
                    for s2 in range(2):
                        seg = 2*sp + s2
                        A(f"buffer_load_dword v{D0+h*32+seg*4+i}, v{K0+4*h+i}, s[8:11], 0 offen offset:{seg*64}")
        def comp(h):
            if not compute: return
            for seg in range(8):
                c = C0 + seg*4; t = D0 + h*32 + seg*4
                A(f"v_mfma_f32_16x16x32_bf16 v[{c}:{c+3}], v[{AF}:{AF+3}], v[{t}:{t+3}], v[{c}:{c+3}]")
        W = 32
    elif mode == "d32":
        A("v_and_b32 v5, 31, v2\nv_lshlrev_b32 v5, 2, v5\nv_lshrrev_b32 v6, 5, v2\nv_lshlrev_b32 v6, 6, v6\nv_add_u32 v6, s23, v6")
        nk = 16
        def loads(h):
            for q in range(2):
                for seg in range(4):
                    for i in range(4):
                        A(f"buffer_load_dword v{D0+h*32+q*16+seg*4+i}, v{K0+8*h+4*q+i}, s[8:11], 0 offen offset:{seg*128}")
        def comp(h):
            if not compute: return
            for q in range(2):
                for seg in range(4):
                    c = C0 + (seg % 3)*16; t = D0 + h*32 + q*16 + seg*4
                    A(f"v_mfma_f32_32x32x16_bf16 v[{c}:{c+15}], v[{AF}:{AF+3}], v[{t}:{t+3}], v[{c}:{c+15}]")
        W = 32
    def rdkeys(off, h=None):
        rng = range(nk//4) if h is None else range(h*nk//8, (h+1)*nk//8)
        for q in rng: A(f"ds_read_b128 v[{K0+4*q}:{K0+4*q+3}], v6 offset:{off+16*q}")
    def addr(h=None):
        rng = range(nk) if h is None else range(h*nk//2, (h+1)*nk//2)
        for i in rng: A(f"v_and_or_b32 v{K0+i}, v{K0+i}, s28, v5")
    rdkeys(0); A("s_waitcnt lgkmcnt(0)"); addr(); loads(0); loads(1)
    A(f"s_mov_b32 s29, {steps-1}")
    A(f"L_{name}:")
    A("v_add_u32 v6, 128, v6")
    rdkeys(0)
    A(f"s_waitcnt vmcnt({W})"); comp(0); A("s_waitcnt lgkmcnt(0)"); addr(); loads(0)
    A(f"s_waitcnt vmcnt({W})"); comp(1); loads(1)
    A(f"s_sub_u32 s29, s29, 1\ns_cmp_lg_u32 s29, 0\ns_cbranch_scc1 L_{name}")
    A(f"s_waitcnt vmcnt({W})"); comp(0); A("s_waitcnt vmcnt(0)"); comp(1)
    A("s_nop 15")
    for i in range(1, 56): A(f"v_add_f32 v{C0}, v{C0}, v{C0+i}")
    for i in range(64): A(f"v_xor_b32 v{C0}, v{C0}, v{D0+i}")
    A("s_mov_b32 s8, s12\ns_mov_b32 s9, s13\ns_mov_b32 s10, 0x1000000")
    A(f"s_mul_i32 s22, s2, {nw*256}\nv_lshlrev_b32 v1, 2, v0\nbuffer_store_dword v{C0}, v1, s[8:11], s22 offen")
    A("s_barrier\ns_memrealtime s[24:25]\ns_memtime s[32:33]\ns_waitcnt lgkmcnt(0)\ns_sub_u32 s32, s32, s30")
    A("v_mov_b32 v4, s20\nv_mov_b32 v5, s26\nv_mov_b32 v6, s24\nv_mov_b32 v7, s32")
    A("s_mov_b32 s8, s14\ns_mov_b32 s9, s15\ns_mov_b32 s10, 0x100000\ns_lshl_b32 s22, s2, 4\nv_mov_b32 v1, 0")
    A(f"v_cmp_eq_u32 vcc, 0, v0\ns_and_saveexec_b64 s[36:37], vcc\ns_cbranch_execz L_{name}_end")
    A(f"buffer_store_dwordx4 v[4:7], v1, s[8:11], s22 offen\nL_{name}_end:\ns_endpgm")
    return A.finish() + '.section .rodata,"a"\n' + kd(name, 168, 64) + ".text\n"
cfgs = [dict(dens=5), dict(compute=False), dict(dens=5, mode="d16"), dict(compute=False, mode="d16"), dict(dens=5, noperm=True), dict(dens=5)]
nw, steps = 12, 7
asm = HEAD; ks = []
for i, c in enumerate(cfgs):
    c = dict(c); asm += gen(f"g{i}", nw, steps, c.pop("mode", "P"), **c); ks.append((f"g{i}", 168))
co = assemble(asm, ks, "gb5")
if not os.path.exists("/dev/kfd"): raise SystemExit(0)
mod = Module(co); fl = Flusher(); fl.mode = os.environ.get("FLMODE", "read")
rng = np.random.default_rng(0)
xv = (rng.standard_normal(10240*256).astype(np.float32) * 0.4).view(np.uint32) >> 16
x = DeviceBuffer.from_numpy(xv.astype(np.uint16))
out = DeviceBuffer(1 << 24); st = DeviceBuffer(1 << 20)
for nrows in (4000,):
    nb = 256
    src = rng.integers(0, nrows, size=(nb*nw, steps*32))
    keys = DeviceBuffer.from_numpy((src.astype(np.uint32) << 9).ravel())
    keys12 = DeviceBuffer.from_numpy((src.astype(np.uint32) * 384).ravel())
    res = [[] for _ in cfgs]
    for rep in range(25):
        for i, c in enumerate(cfgs):
            fl()
            mod.launch(f"g1", nb, nw*64, [x.ptr, keys.ptr, out.ptr, st.ptr] + [0]*8, lds=nw*(steps+2)*128)
            mod.launch(f"g{i}", nb, nw*64, [x.ptr, keys.ptr, out.ptr, st.ptr] + [0]*8, lds=nw*(steps+2)*128)
            sync()
            s = st.to_numpy(np.uint32, (nb, 4)).astype(np.int64)
            res[i].append((np.median(s[:,2]-s[:,1])*0.01, np.median(s[:,3]), np.median(s[:,3] / ((s[:,2]-s[:,1])*10.0))))
    for i, c in enumerate(cfgs):
        r = np.median(np.array(res[i]), axis=0)
        print(f"rows={nrows} {c}: loop {r[0]:.2f} us  cyc {r[1]:.0f}  clk {r[2]:.3f} GHz  {nw*steps*32*512/r[1]:.1f} B/clk", flush=True)
```
